```python
import torch

def _softmax(x, axis=-1):
    return torch.softmax(x, dim=axis)
def _gelu(x):
    return torch.nn.functional.gelu(x, approximate="tanh")
def _silu(x):
    return torch.nn.functional.silu(x)
def _sigmoid(x):
    return torch.sigmoid(x)
def _layernorm(x, axis=-1, eps=1e-5):
    m = x.mean(dim=axis, keepdim=True)
    v = x.var(dim=axis, keepdim=True, unbiased=False)
    return (x - m) / torch.sqrt(v + eps)
def _scatter_add(tgt, idx, src, axis=0):
    return tgt.clone().index_add_(axis, idx, src)
def _segment_sum(src, seg, n):
    out = torch.zeros((n,) + src.shape[1:], dtype=src.dtype)
    return out.index_add_(0, seg, src)
def _pad(x, pw):
    flat = tuple(v for pair in reversed(pw) for v in pair)
    return torch.nn.functional.pad(x, flat)

kernel_name = 'parallel_sum__mha_block__glu_gated_geglu__prompt'

def setup_inputs():

    _w = (lambda a: (lambda t: t.to(torch.bfloat16) if t.is_floating_point() else t)(torch.as_tensor(a)))
    def _A_setup():
        B, S, D, H = 1, 2048, 448, 16
        return {
            "x": _w((lambda *s: torch.randn(*s, dtype=torch.bfloat16) * 0.05)(B, S, D)),
            "wqkv": _w((lambda *s: torch.randn(*s, dtype=torch.bfloat16) * 0.05)(D, 3 * D)),
            "wo": _w((lambda *s: torch.randn(*s, dtype=torch.bfloat16) * 0.05)(D, D)),
        }
    _A_in = _A_setup()

    def _B_setup():
        B, S, Dm, Df = 1, 2048, 448, 1792
        return {
            "x": _w((lambda *s: torch.randn(*s, dtype=torch.bfloat16) * 0.05)(B, S, Dm)),
            "w_gate": _w((lambda *s: torch.randn(*s, dtype=torch.bfloat16) * 0.4)(Dm, Df) * (Dm ** -0.5)),
            "w_up": _w((lambda *s: torch.randn(*s, dtype=torch.bfloat16) * 0.4)(Dm, Df) * (Dm ** -0.5)),
            "w_down": _w((lambda *s: torch.randn(*s, dtype=torch.bfloat16) * 0.4)(Df, Dm) * (Df ** -0.5)),
        }
    _B_in = _B_setup()

    return {
        "A_x": _A_in["x"],
        "A_wqkv": _A_in["wqkv"],
        "A_wo": _A_in["wo"],
        "B_x": _B_in["x"],
        "B_w_gate": _B_in["w_gate"],
        "B_w_up": _B_in["w_up"],
        "B_w_down": _B_in["w_down"],
    }

def reference(A_x, A_wqkv, A_wo, B_x, B_w_gate, B_w_up, B_w_down):
    def _A_ref(x, wqkv, wo):
        B, S, D = x.shape
        H = 16
        Dh = D // H
        qkv = (lambda x, *d: x.permute(*d))((x @ wqkv).reshape(B, S, 3, H, Dh), 2, 0, 3, 1, 4)
        q, k, v = qkv[0], qkv[1], qkv[2]
        scores = torch.einsum("bhqd,bhkd->bhqk", q, k) * (Dh ** -0.5)
        p = _softmax(scores, axis=-1)
        o = torch.einsum("bhqk,bhkd->bhqd", p, v)
        return (lambda x, *d: x.permute(*d))(o, 0, 2, 1, 3).reshape(B, S, D) @ wo

    def _B_ref(x, w_gate, w_up, w_down):
        g = torch.einsum("bsd,df->bsf", x, w_gate)
        u = torch.einsum("bsd,df->bsf", x, w_up)
        h = _gelu(g) * u
        return torch.einsum("bsf,fd->bsd", h, w_down)

    x = A_x
    xn = _layernorm(x, axis=-1)
    return x + _A_ref(xn, A_wqkv, A_wo) + _B_ref(xn, B_w_gate, B_w_up, B_w_down)
```

```python
import struct

def f2u(x):
    return struct.unpack("<I", struct.pack("<f", x))[0]

def fhex(x):
    return "0x%08x" % f2u(x)

def vr(a, n=1):
    return f"v{a}" if n == 1 else f"v[{a}:{a+n-1}]"

def sr(a, n=1):
    return f"s{a}" if n == 1 else f"s[{a}:{a+n-1}]"

class Asm:
    def __init__(self):
        self.lines = []
        self.uid = 0
    def __call__(self, s):
        for l in s.strip("\n").split("\n"):
            l = l.strip()
            if l:
                self.lines.append(("" if l.endswith(":") else "    ") + l)
    def c(self, s):
        self.lines.append("    ; " + s)
    def label(self, name):
        self.lines.append(name + ":")
    def newlabel(self, p="L"):
        self.uid += 1
        return f"{p}_{self.uid}"
    def text(self):
        return "\n".join(self.lines) + "\n"
    def srd(self, d, base, nbytes):
        self(f"s_mov_b32 s{d}, s{base}")
        self(f"s_and_b32 s{d+1}, s{base+1}, 0xffff")
        self(f"s_mov_b32 s{d+2}, {nbytes}")
        self(f"s_mov_b32 s{d+3}, 0x20000")

def interleave(main, fill, counts=None):
    out = []
    n = len(main)
    if counts is None:
        counts = []
        done = 0
        for i in range(n):
            tgt = (len(fill) * (i + 1) + n - 1) // n
            counts.append(tgt - done)
            done = tgt
    k = 0
    for i in range(n):
        out.append(main[i])
        out.extend(fill[k:k + counts[i]])
        k += counts[i]
    out.extend(fill[k:])
    return out

def kernel_header(name):
    return f""".globl {name}
.p2align 8
.type {name},@function
{name}:
"""

def kernel_desc(name, nvgpr, nsgpr=96, accum=None):
    if accum is None:
        accum = (nvgpr + 3) // 4 * 4
    return f""".p2align 6
.amdhsa_kernel {name}
  .amdhsa_next_free_vgpr {nvgpr}
  .amdhsa_next_free_sgpr {nsgpr}
  .amdhsa_accum_offset {accum}
  .amdhsa_group_segment_fixed_size 0
  .amdhsa_kernarg_size 80
  .amdhsa_user_sgpr_count 2
  .amdhsa_user_sgpr_kernarg_segment_ptr 1
  .amdhsa_system_sgpr_workgroup_id_x 1
.end_amdhsa_kernel
"""
```

```python
from asmlib import *
from consts import *
import math

XROW = 912
RING = 128 * XROW
SLOT = 10240
STATS = RING + 4 * SLOT
LDS_K1 = STATS + 1024

SX, SWQ, SWA, SWS = 16, 20, 24, 28
sW, sRB, sCG, sTT, sCH = 32, 33, 34, 35, 36
sOffA, sOffQ, sRingA, sRingQ, sCnt = 37, 38, 39, 40, 41
sT0, sT1, sT2, sT3 = 42, 43, 44, 45
sMask, sStepA = 46, 47
sTile = 48
vLane, vOffA, vOffQ, vTr0, vTr1, vTrQ, vXa, vNm, vR = 1, 2, 3, 4, 5, 6, 7, 8, 9
vT = 10
vL16 = 32
vSt = 33
WF = 64
XRAW = 104
XC = 112
DT = 120
ACC = 128

def center(a_src, a_dst):
    o = []
    for i in range(4):
        d0, d1 = DT + 2 * i, DT + 2 * i + 1
        o.append(f"v_lshlrev_b32 v{d0}, 16, v{a_src+i}")
        o.append(f"v_and_b32 v{d1}, s{sMask}, v{a_src+i}")
    for i in range(8):
        o.append(f"v_add_f32 v{DT+i}, v{DT+i}, v{vNm}")
    for i in range(4):
        o.append(f"v_cvt_pk_bf16_f32 v{a_dst+i}, v{DT+2*i}, v{DT+2*i+1}")
    return o

def wreads(path, slot, p):
    o = []
    nt = 5 if path == "A" else 4
    for j in range(nt):
        for t in range(2):
            dst = WF + 20 * p + 4 * j + 2 * t
            if j < 4:
                addr = vTr0 if (j & 1) == 0 else vTr1
                off = slot * SLOT + (j >> 1) * 2048 + 512 * t
            else:
                addr = vTrQ
                off = slot * SLOT + 512 * t
            o.append(f"ds_read_b64_tr_b16 v[{dst}:{dst+1}], v{addr} offset:{off}")
    return o

def dma(path, slot):
    o = [f"s_add_u32 m0, s{sRingA}, {slot*SLOT}",
         f"s_nop 0",
         f"buffer_load_dwordx4 v{vOffA}, s[{SWA}:{SWA+3}], s{sOffA} offen lds",
         f"s_add_u32 s{sOffA}, s{sOffA}, s{sStepA}"]
    if path == "A":
        o += [f"s_add_u32 m0, s{sRingQ}, {slot*SLOT}",
              f"s_mov_b64 exec, 0xffff",
              f"buffer_load_dwordx4 v{vOffQ}, s[{SWQ}:{SWQ+3}], s{sOffQ} offen lds",
              f"s_mov_b64 exec, -1",
              f"s_add_u32 s{sOffQ}, s{sOffQ}, {16*2688}"]
    return o

def mfmas(path, p):
    o = []
    nt = 5 if path == "A" else 4
    for j in range(nt):
        w = WF + 20 * p + 4 * j
        x = XC + 4 * p
        acc = ACC + 16 * j
        if path == "A":
            o.append(f"v_mfma_f32_32x32x16_bf16 v[{acc}:{acc+15}], v[{w}:{w+3}], v[{x}:{x+3}], v[{acc}:{acc+15}]")
        else:
            o.append(f"v_mfma_f32_32x32x16_bf16 v[{acc}:{acc+15}], v[{x}:{x+3}], v[{w}:{w+3}], v[{acc}:{acc+15}]")
    return o

def body(a, path, staddr):
    npk = 2 if path == "A" else 1
    a.c(f"---- path {path}: W prologue DMA for k-steps 0..3")
    for s in range(4):
        for l in dma(path, s):
            a(l)
    staddr()
    a.c("zero accumulators while x is in flight")
    for i in range(80 if path == "A" else 64):
        a(f"v_mov_b32 v{ACC+i}, 0")
    a.c("pass 1: row statistics of this wave's 16 rows")
    a(f"v_lshrrev_b32 v{vT}, 2, v{vLane}")
    a(f"s_lshl_b32 s{sT0}, s{sW}, 4")
    a(f"v_add_u32 v{vT}, s{sT0}, v{vT}")
    a(f"v_mul_u32_u24 v{vT+1}, {XROW}, v{vT}")
    a(f"v_and_b32 v{vT+2}, 3, v{vLane}")
    a(f"v_lshl_add_u32 v{vT+1}, v{vT+2}, 4, v{vT+1}")
    a(f"v_lshlrev_b32 v{vT}, 2, v{vT}")
    a(f"v_add_u32 v{vT}, {STATS}, v{vT}")
    a(f"v_mov_b32 v{vT+3}, 0x3f803f80")
    for i in range(4):
        a(f"v_mov_b32 v{vT+4+i}, 0")
    a(f"s_waitcnt vmcnt({4*npk})")
    for i in range(14):
        a(f"ds_read_b128 v[{WF+4*i}:{WF+4*i+3}], v{vT+1} offset:{64*i}")
    for i in range(14):
        if i in (0, 4, 8, 12):
            left = max(0, 14 - (i + 4))
            a(f"s_waitcnt lgkmcnt({left})")
        for k in range(4):
            r = WF + 4 * i + k
            a(f"v_dot2c_f32_bf16 v{vT+4+(k&1)}, v{r}, v{vT+3}")
            a(f"v_dot2c_f32_bf16 v{vT+6+(k&1)}, v{r}, v{r}")
    a("s_nop 2")
    a(f"v_add_f32 v{vT+4}, v{vT+4}, v{vT+5}")
    a(f"v_add_f32 v{vT+6}, v{vT+6}, v{vT+7}")
    a("s_nop 1")
    a(f"v_add_f32_dpp v{vT+4}, v{vT+4}, v{vT+4} quad_perm:[1,0,3,2] row_mask:0xf bank_mask:0xf")
    a(f"v_add_f32_dpp v{vT+6}, v{vT+6}, v{vT+6} quad_perm:[1,0,3,2] row_mask:0xf bank_mask:0xf")
    a("s_nop 1")
    a(f"v_add_f32_dpp v{vT+4}, v{vT+4}, v{vT+4} quad_perm:[2,3,0,1] row_mask:0xf bank_mask:0xf")
    a(f"v_add_f32_dpp v{vT+6}, v{vT+6}, v{vT+6} quad_perm:[2,3,0,1] row_mask:0xf bank_mask:0xf")
    a(f"v_mul_f32 v{vT+4}, {fhex(-1.0/448)}, v{vT+4}")
    a(f"v_mul_f32 v{vT+6}, {fhex(1.0/448)}, v{vT+6}")
    a(f"v_fma_f32 v{vT+6}, -v{vT+4}, v{vT+4}, v{vT+6}")
    a(f"v_max_f32 v{vT+6}, 0, v{vT+6}")
    a(f"v_add_f32 v{vT+6}, {fhex(1e-5)}, v{vT+6}")
    a(f"v_rsq_f32 v{vT+6}, v{vT+6}")
    a(f"ds_write_b32 v{vT}, v{vT+4}")
    a(f"ds_write_b32 v{vT}, v{vT+6} offset:512")
    a(f"s_waitcnt vmcnt({2*npk}) lgkmcnt(0)")
    a("s_barrier")
    a.c("stats of own token, first fragments")
    a(f"v_and_b32 v{vT}, 31, v{vLane}")
    a(f"s_lshl_b32 s{sT0}, s{sTT}, 7")
    a(f"s_add_u32 s{sT0}, s{sT0}, {STATS}")
    a(f"v_lshl_add_u32 v{vT}, v{vT}, 2, s{sT0}")
    a(f"ds_read_b32 v{vNm}, v{vT}")
    a(f"ds_read_b128 v[{XRAW}:{XRAW+3}], v{vXa}")
    a(f"ds_read_b32 v{vR}, v{vT} offset:512")
    a(f"ds_read_b128 v[{XRAW+4}:{XRAW+7}], v{vXa} offset:32")
    for l in wreads(path, 0, 0):
        a(l)
    a("s_waitcnt lgkmcnt(%d)" % (len(wreads(path, 0, 0)) + 2))
    for l in center(XRAW, XC):
        a(l)
    a("s_waitcnt lgkmcnt(0)")
    a(f"s_mov_b32 s{sCnt}, 7")
    lab = f"K1_loop_{path}"
    a.label(lab)
    for q in range(4):
        p = q & 1
        a("s_barrier")
        mm = mfmas(path, p)
        rd = wreads(path, (q + 1) % 4, p ^ 1)
        rd.append(f"ds_read_b128 v[{XRAW+4*p}:{XRAW+4*p+3}], v{vXa} offset:{(q+2)*32}")
        ce = center(XRAW + 4 * (p ^ 1), XC + 4 * (p ^ 1))
        dm = dma(path, q)
        mix = []
        ci = 0
        for r in rd:
            mix.append(r)
            mix.append(ce[ci]); ci += 1
        mix += ce[ci:]
        fill = dm + mix
        if q == 3:
            fill.append(f"v_add_u32 v{vXa}, 128, v{vXa}")
            fill.append(f"s_sub_u32 s{sCnt}, s{sCnt}, 1")
            fill.append(f"s_cmp_lg_u32 s{sCnt}, 0")
        n = len(mm)
        per = (len(fill) + n - 2) // (n - 1)
        counts = [per] * (n - 1) + [0]
        for l in interleave(mm, fill, counts):
            a(l)
        a(f"s_waitcnt vmcnt({2*npk}) lgkmcnt(0)")
    a(f"s_cbranch_scc1 {lab}")
    if path == "A":
        epi_A(a)
    else:
        epi_V(a)

def epi_A(a):
    c0 = -2.0 * math.sqrt(2.0 / math.pi) * math.log2(math.e)
    c1 = c0 * 0.044715
    k0, k1, ir2, sc = vT, vT + 1, vT + 2, vT + 3
    a.c("epilogue A")
    a(f"v_mul_f32 v{ir2}, v{vR}, v{vR}")
    a(f"v_mul_f32 v{k0}, {fhex(c0)}, v{vR}")
    a(f"v_mul_f32 v{k1}, v{ir2}, v{vR}")
    a(f"v_mul_f32 v{k1}, {fhex(c1)}, v{k1}")
    a(f"v_rcp_f32 v{ir2}, v{ir2}")
    a(f"s_cmp_lt_u32 s{sCG}, 7")
    a(f"s_cselect_b32 s{sT0}, {fhex(QSCALE)}, 1.0")
    a(f"v_mul_f32 v{sc}, s{sT0}, v{vR}")
    a(f"s_mul_i32 s{sT1}, s{sTile}, 112")
    a(f"s_lshl_b32 s{sT2}, s{sCG}, 1")
    a(f"s_add_u32 s{sT2}, s{sT2}, s{sCH}")
    a(f"s_lshl_b32 s{sT2}, s{sT2}, 2")
    a(f"s_add_u32 s{sT1}, s{sT1}, s{sT2}")
    a(f"s_lshl_b32 s{sT1}, s{sT1}, 10")
    a(f"s_add_u32 s{sT1}, s{sT1}, {WS_H}")
    a("s_nop 3")
    T = vT + 4
    for p in range(2):
        G = ACC + 16 * p
        U = ACC + 32 + 16 * p
        out = WF + 8 * p
        for i0 in range(0, 16, 4):
            for k in range(4): a(f"v_mul_f32 v{T+k}, v{G+i0+k}, v{G+i0+k}")
            for k in range(4): a(f"v_fma_f32 v{T+k}, v{T+k}, v{k1}, v{k0}")
            for k in range(4): a(f"v_mul_f32 v{T+k}, v{T+k}, v{G+i0+k}")
            for k in range(4): a(f"v_exp_f32 v{T+k}, v{T+k}")
            for k in range(4): a(f"v_mul_f32 v{U+i0+k}, v{U+i0+k}, v{G+i0+k}")
            for k in range(4): a(f"v_fma_f32 v{T+k}, v{T+k}, v{ir2}, v{ir2}")
            for k in range(4): a(f"v_rcp_f32 v{T+k}, v{T+k}")
            a("s_nop 0")
            for k in range(4): a(f"v_mul_f32 v{U+i0+k}, v{U+i0+k}, v{T+k}")
            for k in range(2): a(f"v_cvt_pk_bf16_f32 v{out+i0//2+k}, v{U+i0+2*k}, v{U+i0+2*k+1}")
            if i0 in (4, 12):
                s = i0 // 8
                a(f"buffer_store_dwordx4 v[{out+4*s}:{out+4*s+3}], v{vL16}, s[{SWS}:{SWS+3}], s{sT1} offen offset:{(2*p+s)*1024}")
    a.c("Q/K tile")
    Q = ACC + 64
    out = WF + 16
    for i in range(16):
        a(f"v_mul_f32 v{Q+i}, v{Q+i}, v{sc}")
    for i in range(8):
        a(f"v_cvt_pk_bf16_f32 v{out+i}, v{Q+2*i}, v{Q+2*i+1}")
    for aa in range(4):
        a(f"buffer_store_dwordx2 v[{out+2*aa}:{out+2*aa+1}], v{vSt+aa}, s[{SWS}:{SWS+3}], 0 offen")
    a(f"v_mov_b32 v{out+8}, 0x3f803f80")
    a(f"v_mov_b32 v{out+9}, 0x00003f80")
    a(f"buffer_store_dwordx2 v[{out+8}:{out+9}], v{vSt+4}, s[{SWS}:{SWS+3}], 0 offen")
    a("s_endpgm")

def epi_V(a):
    a.c("epilogue V: r per token in regs")
    RR = WF
    a(f"v_lshrrev_b32 v{vT}, 5, v{vLane}")
    a(f"s_lshl_b32 s{sT0}, s{sTT}, 7")
    a(f"s_add_u32 s{sT0}, s{sT0}, {STATS+512}")
    a(f"v_lshl_add_u32 v{vT}, v{vT}, 4, s{sT0}")
    for aa in range(4):
        a(f"ds_read_b128 v[{RR+4*aa}:{RR+4*aa+3}], v{vT} offset:{32*aa}")
    a("s_nop 7")
    a("s_waitcnt lgkmcnt(0)")
    for j in range(4):
        A = ACC + 16 * j
        out = WF + 16 + 8 * (j & 1)
        for i in range(16):
            a(f"v_mul_f32 v{A+i}, v{A+i}, v{RR+i}")
        for i in range(8):
            a(f"v_cvt_pk_bf16_f32 v{out+i}, v{A+2*i}, v{A+2*i+1}")
        for s in range(2):
            a(f"buffer_store_dwordx4 v[{out+4*s}:{out+4*s+3}], v{vSt+j}, s[{SWS}:{SWS+3}], 0 offen offset:{1024*s}")
    a("s_endpgm")

def gen_k1(name):
    a = Asm()
    a(f"s_cmp_ge_u32 s2, 256")
    a(f"s_cbranch_scc1 K1_exit")
    a("s_load_dwordx4 s[4:7], s[0:1], 0")
    a("s_load_dwordx4 s[8:11], s[0:1], 32")
    a("s_load_dwordx2 s[12:13], s[0:1], 72")
    a(f"v_lshrrev_b32 v{vT}, 6, v0")
    a(f"v_and_b32 v{vLane}, 63, v0")
    a(f"v_readfirstlane_b32 s{sW}, v{vT}")
    a(f"v_lshlrev_b32 v{vL16}, 4, v{vLane}")
    a(f"s_and_b32 s{sT0}, s2, 7")
    a(f"s_lshr_b32 s{sT1}, s2, 3")
    a(f"s_lshr_b32 s{sRB}, s{sT0}, 1")
    a(f"s_lshl_b32 s{sRB}, s{sRB}, 2")
    a(f"s_and_b32 s{sT2}, s{sT1}, 3")
    a(f"s_add_u32 s{sRB}, s{sRB}, s{sT2}")
    a(f"s_and_b32 s{sCG}, s{sT0}, 1")
    a(f"s_lshl_b32 s{sCG}, s{sCG}, 3")
    a(f"s_lshr_b32 s{sT2}, s{sT1}, 2")
    a(f"s_add_u32 s{sCG}, s{sCG}, s{sT2}")
    a(f"s_and_b32 s{sTT}, s{sW}, 3")
    a(f"s_lshr_b32 s{sCH}, s{sW}, 2")
    a(f"s_lshl_b32 s{sTile}, s{sRB}, 2")
    a(f"s_add_u32 s{sTile}, s{sTile}, s{sTT}")
    a(f"s_mov_b32 s{sMask}, 0xffff0000")
    a(f"s_lshl_b32 s{sT0}, s{sRB}, 7")
    a(f"s_lshl_b32 s{sT1}, s{sW}, 4")
    a(f"s_add_u32 s{sT0}, s{sT0}, s{sT1}")
    a(f"s_mul_i32 s{sT0}, s{sT0}, 896")
    a(f"s_mul_i32 s{sT1}, s{sT1}, {XROW}")
    a(f"s_mov_b32 s{sT2}, 16")
    a("s_waitcnt lgkmcnt(0)")
    a.srd(SX, 4, 2048 * 896)
    a("s_mov_b32 exec_hi, 0x00ffffff")
    a.label("K1_xl")
    a(f"s_mov_b32 m0, s{sT1}")
    a(f"s_add_u32 s{sT1}, s{sT1}, {XROW}")
    a(f"buffer_load_dwordx4 v{vL16}, s[{SX}:{SX+3}], s{sT0} offen lds")
    a(f"s_add_u32 s{sT0}, s{sT0}, 896")
    a(f"s_sub_u32 s{sT2}, s{sT2}, 1")
    a(f"s_cmp_lg_u32 s{sT2}, 0")
    a(f"s_cbranch_scc1 K1_xl")
    a("s_mov_b64 exec, -1")
    a.srd(SWQ, 6, 448 * 2688)
    a.c("tr-read addresses")
    i_, t1, t2 = vT, vT + 1, vT + 2
    a(f"v_and_b32 v{i_}, 15, v{vLane}")
    a(f"v_lshrrev_b32 v{t1}, 2, v{i_}")
    a(f"v_lshrrev_b32 v{t2}, 5, v{vLane}")
    a(f"v_lshl_add_u32 v{t1}, v{t2}, 3, v{t1}")
    a(f"v_lshlrev_b32 v{vTr0}, 7, v{t1}")
    a(f"v_bfe_u32 v{t1}, v{vLane}, 4, 1")
    a(f"v_lshl_add_u32 v{vTr0}, v{t1}, 5, v{vTr0}")
    a(f"v_and_b32 v{t1}, 3, v{i_}")
    a(f"v_lshl_add_u32 v{vTr0}, v{t1}, 3, v{vTr0}")
    a(f"v_bfe_u32 v{t1}, v{i_}, 3, 1")
    a(f"v_lshl_add_u32 v{vTr0}, v{t1}, 6, v{vTr0}")
    a(f"s_lshl_b32 s{sT0}, s{sCH}, 6")
    a(f"v_xor_b32 v{vTrQ}, s{sT0}, v{vTr0}")
    a(f"v_add_u32 v{vTrQ}, {RING+8192}, v{vTrQ}")
    a(f"v_xor_b32 v{vTr1}, 64, v{vTr0}")
    a(f"s_lshl_b32 s{sT0}, s{sCH}, 12")
    a(f"s_add_u32 s{sT0}, s{sT0}, {RING}")
    a(f"v_add_u32 v{vTr0}, s{sT0}, v{vTr0}")
    a(f"v_add_u32 v{vTr1}, s{sT0}, v{vTr1}")
    a.c("x fragment address")
    a(f"v_and_b32 v{t1}, 31, v{vLane}")
    a(f"s_lshl_b32 s{sT0}, s{sTT}, 5")
    a(f"v_add_u32 v{t1}, s{sT0}, v{t1}")
    a(f"v_mul_u32_u24 v{vXa}, {XROW}, v{t1}")
    a(f"v_lshl_add_u32 v{vXa}, v{t2}, 4, v{vXa}")
    a.c("dma lane pattern: row=lane>>3, chunk=(lane&7)^(((lane>>4)&1)<<2)")
    a(f"v_bfe_u32 v{t1}, v{vLane}, 4, 1")
    a(f"v_lshlrev_b32 v{t1}, 2, v{t1}")
    a(f"v_and_b32 v{i_}, 7, v{vLane}")
    a(f"v_xor_b32 v{t1}, v{t1}, v{i_}")
    a(f"v_lshlrev_b32 v{t1}, 4, v{t1}")
    a(f"v_lshrrev_b32 v{vT+3}, 3, v{vLane}")
    a(f"s_and_b32 s{sT0}, s{sW}, 1")
    a(f"s_lshl_b32 s{sT0}, s{sT0}, 3")
    a(f"v_add_u32 v{vT+3}, s{sT0}, v{vT+3}")
    a(f"s_lshl_b32 s{sRingA}, s{sW}, 10")
    a(f"s_add_u32 s{sRingA}, s{sRingA}, {RING}")
    a(f"s_cmp_ge_u32 s{sCG}, 14")
    a(f"s_cbranch_scc1 K1_pathV")
    a.c("path A setup")
    a(f"s_bitcmp1_b32 s{sW}, 1")
    a(f"s_cselect_b32 s{SWA}, s10, s8")
    a(f"s_cselect_b32 s{SWA+1}, s11, s9")
    a(f"s_and_b32 s{SWA+1}, s{SWA+1}, 0xffff")
    a(f"s_mov_b32 s{SWA+2}, {448*3584}")
    a(f"s_mov_b32 s{SWA+3}, 0x20000")
    a.srd(SWS, 12, WS_END)
    a(f"s_mov_b32 s{sStepA}, {16*3584}")
    a(f"v_mul_u32_u24 v{vOffA}, 3584, v{vT+3}")
    a(f"v_add_u32 v{vOffA}, v{vOffA}, v{t1}")
    a(f"s_lshl_b32 s{sOffA}, s{sCG}, 1")
    a(f"s_add_u32 s{sOffA}, s{sOffA}, s{sCH}")
    a(f"s_lshl_b32 s{sOffA}, s{sOffA}, 7")
    a(f"v_lshrrev_b32 v{vT+3}, 3, v{vLane}")
    a(f"s_lshl_b32 s{sT0}, s{sW}, 1")
    a(f"v_add_u32 v{vT+3}, s{sT0}, v{vT+3}")
    a(f"v_mul_u32_u24 v{vOffQ}, 2688, v{vT+3}")
    a(f"s_and_b32 s{sT0}, s{sW}, 1")
    a(f"s_lshl_b32 s{sT0}, s{sT0}, 2")
    a(f"v_xor_b32 v{t1}, s{sT0}, v{i_}")
    a(f"v_lshl_add_u32 v{vOffQ}, v{t1}, 4, v{vOffQ}")
    a(f"s_lshl_b32 s{sOffQ}, s{sCG}, 7")
    a(f"s_lshl_b32 s{sRingQ}, s{sW}, 8")
    a(f"s_add_u32 s{sRingQ}, s{sRingQ}, {RING+8192}")
    def stA():
        a.c("Q/K store addresses")
        a(f"s_cmp_lt_u32 s{sCG}, 7")
        a(f"s_cselect_b32 s{sT0}, 0, 7")
        a(f"s_sub_u32 s{sT0}, s{sCG}, s{sT0}")
        a(f"s_lshl_b32 s{sT0}, s{sT0}, 1")
        a(f"s_add_u32 s{sT0}, s{sT0}, s{sCH}")
        a(f"s_cmp_lt_u32 s{sCG}, 7")
        a(f"s_cselect_b32 s{sT1}, 17, 18")
        a(f"s_cselect_b32 s{sT2}, 11, 12")
        a(f"s_cselect_b32 s{sT3}, {WS_Q}, {WS_KV}")
        a(f"s_lshl_b32 s{sT2}, s{sTile}, s{sT2}")
        a(f"s_add_u32 s{sT3}, s{sT3}, s{sT2}")
        a(f"v_and_b32 v{vT+4}, 31, v{vLane}")
        a(f"v_lshlrev_b32 v{vT+4}, 4, v{vT+4}")
        a(f"v_add_u32 v{vT+4}, s{sT3}, v{vT+4}")
        a(f"s_lshl_b32 s{sT2}, s{sT0}, 3")
        a(f"v_add_u32 v{vT+5}, s{sT2}, v{t2}")
        for aa in range(4):
            g4, hd, dq, x = vT + 6, vT + 7, vT + 8, vT + 9
            a(f"v_add_u32 v{g4}, {2*aa}, v{vT+5}")
            a(f"v_mul_u32_u24 v{hd}, 147, v{g4}")
            a(f"v_lshrrev_b32 v{hd}, 10, v{hd}")
            a(f"v_mul_u32_u24 v{dq}, 7, v{hd}")
            a(f"v_sub_u32 v{dq}, v{g4}, v{dq}")
            a(f"v_lshlrev_b32 v{hd}, s{sT1}, v{hd}")
            a(f"v_add_u32 v{vSt+aa}, v{hd}, v{vT+4}")
            a(f"v_lshrrev_b32 v{x}, 2, v{dq}")
            a(f"v_lshl_add_u32 v{vSt+aa}, v{x}, 10, v{vSt+aa}")
            a(f"v_and_b32 v{x}, 1, v{dq}")
            a(f"v_lshl_add_u32 v{vSt+aa}, v{x}, 9, v{vSt+aa}")
            a(f"v_bfe_u32 v{x}, v{dq}, 1, 1")
            a(f"v_lshl_add_u32 v{vSt+aa}, v{x}, 3, v{vSt+aa}")
        a(f"v_mul_u32_u24 v{vT+6}, 14, v{t2}")
        a(f"v_add_u32 v{vT+6}, s{sT0}, v{vT+6}")
        a(f"v_min_u32 v{vT+6}, 15, v{vT+6}")
        a(f"v_lshlrev_b32 v{vT+6}, s{sT1}, v{vT+6}")
        a(f"v_add_u32 v{vSt+4}, v{vT+6}, v{vT+4}")
        a(f"v_add_u32 v{vSt+4}, {1024+512+8}, v{vSt+4}")
    body(a, "A", stA)
    a.label("K1_pathV")
    a.srd(SWA, 6, 448 * 2688)
    a.srd(SWS, 12, WS_KV + (4 << 20))
    a(f"s_mov_b32 s{sStepA}, {16*2688}")
    a(f"v_mul_u32_u24 v{vOffA}, 2688, v{vT+3}")
    a(f"v_add_u32 v{vOffA}, v{vOffA}, v{t1}")
    a(f"s_sub_u32 s{sT0}, s{sCG}, 14")
    a(f"s_lshl_b32 s{sT0}, s{sT0}, 2")
    a(f"s_lshr_b32 s{sT1}, s{sW}, 1")
    a(f"s_add_u32 s{sOffA}, s{sT0}, s{sT1}")
    a(f"s_add_u32 s{sOffA}, s{sOffA}, 14")
    a(f"s_lshl_b32 s{sOffA}, s{sOffA}, 7")
    def stV():
        a(f"s_lshl_b32 s{sT1}, s{sCH}, 1")
        a(f"s_add_u32 s{sT0}, s{sT0}, s{sT1}")
        a(f"s_lshl_b32 s{sT0}, s{sT0}, 6")
        a(f"v_and_b32 v{vT+4}, 31, v{vLane}")
        a(f"v_add_u32 v{vT+4}, s{sT0}, v{vT+4}")
        a(f"s_lshl_b32 s{sT2}, s{sTile}, 12")
        a(f"s_add_u32 s{sT2}, s{sT2}, {WS_KV+2048}")
        a(f"v_lshlrev_b32 v{vT+5}, 9, v{t2}")
        a(f"v_add_u32 v{vT+5}, s{sT2}, v{vT+5}")
        for j in range(4):
            c, hd, d = vT + 6, vT + 7, vT + 8
            a(f"v_add_u32 v{c}, {32*j}, v{vT+4}")
            a(f"v_mul_u32_u24 v{hd}, 2341, v{c}")
            a(f"v_lshrrev_b32 v{hd}, 16, v{hd}")
            a(f"v_mul_u32_u24 v{d}, 28, v{hd}")
            a(f"v_sub_u32 v{d}, v{c}, v{d}")
            a(f"v_lshl_add_u32 v{vSt+j}, v{hd}, 18, v{vT+5}")
            a(f"v_lshl_add_u32 v{vSt+j}, v{d}, 4, v{vSt+j}")
    body(a, "V", stV)
    a.label("K1_exit")
    a("s_endpgm")
    return kernel_header(name) + a.text(), kernel_desc(name, 208, 64), LDS_K1
```

```python
from asmlib import *
from consts import *

NB = 4
SQ, SKV, SKH, SO = 8, 12, 16, 20
sW, sHead, sQB, sOff, sCnt, sT0, sT1, sMask = 24, 25, 26, 27, 28, 29, 30, 31
sVM = 32
sUP = 34
vL16 = 1
vT = 2
QF = 16
KV = 48
SS = KV + 16 * NB
PP = SS + 32
OO = PP + 16
NV = OO + 64
LDS_K2 = 65536

def mf(d, a, b, c):
    cs = "0" if c is None else f"v[{c}:{c+15}]"
    return f"v_mfma_f32_32x32x16_bf16 v[{d}:{d+15}], v[{a}:{a+3}], v[{b}:{b+3}], {cs}"

def kvload(a, kb, srd, soff):
    b = KV + 16 * kb
    a(f"buffer_load_dwordx4 v[{b}:{b+3}], v{vL16}, s[{srd}:{srd+3}], {soff} offen")
    a(f"buffer_load_dwordx4 v[{b+4}:{b+7}], v{vL16}, s[{srd}:{srd+3}], {soff} offen offset:1024")
    a(f"s_mov_b64 exec, s[{sVM}:{sVM+1}]")
    a(f"buffer_load_dwordx4 v[{b+8}:{b+11}], v{vL16}, s[{srd}:{srd+3}], {soff} offen offset:2048")
    a(f"buffer_load_dwordx4 v[{b+12}:{b+15}], v{vL16}, s[{srd}:{srd+3}], {soff} offen offset:3072")
    a(f"s_mov_b64 exec, -1")

def maxtree(a, src, dst, first=True):
    if first:
        a(f"v_max3_f32 v{dst}, v{src}, v{src+1}, v{src+2}")
        for i in range(3, 15, 2):
            a(f"v_max3_f32 v{dst}, v{dst}, v{src+i}, v{src+i+1}")
        a(f"v_max_f32 v{dst}, v{dst}, v{src+15}")
    else:
        for i in range(0, 16, 2):
            a(f"v_max3_f32 v{dst}, v{dst}, v{src+i}, v{src+i+1}")

def setpads(a, ms, qs):
    n = len(ms)
    for m in ms: a(f"v_mov_b32 v{m+4}, v{m}")
    a("s_nop 1")
    for m in ms: a(f"v_permlane32_swap_b32 v{m}, v{m+4}")
    a("s_nop 0")
    for m in ms: a(f"v_max_f32 v{m}, v{m}, v{m+4}")
    a(f"s_mov_b64 exec, s[{sUP}:{sUP+1}]")
    for m, q in zip(ms, qs):
        a(f"v_sub_f32 v{m}, 0, v{m}")
        a(f"v_and_b32 v{m+4}, s{sMask}, v{m}")
        a(f"v_sub_f32 v{m+4}, v{m}, v{m+4}")
        a(f"v_lshrrev_b32 v{m}, 16, v{m}")
        a(f"v_and_b32 v{m+8}, s{sMask}, v{m+4}")
        a(f"v_or_b32 v{q+6}, v{m}, v{m+8}")
        a(f"v_sub_f32 v{m+4}, v{m+4}, v{m+8}")
        a(f"v_lshrrev_b32 v{q+7}, 16, v{m+4}")
    a("s_mov_b64 exec, -1")

def expcvt(S, P, g):
    o = [f"v_exp_f32 v{S+4*g+k}, v{S+4*g+k}" for k in range(4)]
    o += [f"v_cvt_pk_bf16_f32 v{P+2*g+k}, v{S+4*g+2*k}, v{S+4*g+2*k+1}" for k in range(2)]
    return o

def gen_k2(name):
    a = Asm()
    a("s_cmp_ge_u32 s2, 256")
    a("s_cbranch_scc1 K2_exit")
    a("s_load_dwordx2 s[4:5], s[0:1], 72")
    a(f"v_lshrrev_b32 v{vT}, 6, v0")
    a(f"v_and_b32 v{vL16}, 63, v0")
    a(f"v_readfirstlane_b32 s{sW}, v{vT}")
    a(f"v_lshlrev_b32 v{vL16}, 4, v{vL16}")
    a(f"s_and_b32 s{sHead}, s2, 7")
    a(f"s_lshl_b32 s{sHead}, s{sHead}, 1")
    a(f"s_bfe_u32 s{sT0}, s2, 0x10003")
    a(f"s_add_u32 s{sHead}, s{sHead}, s{sT0}")
    a(f"s_lshr_b32 s{sQB}, s2, 4")
    a(f"s_mov_b32 s{sMask}, 0xffff0000")
    a(f"s_mov_b32 s{sVM}, 0x0fffffff")
    a(f"s_mov_b32 s{sVM+1}, 0x0fffffff")
    a(f"s_mov_b32 s{sUP}, 0")
    a(f"s_mov_b32 s{sUP+1}, -1")
    for kb in range(NB):
        for i in range(8):
            a(f"v_mov_b32 v{KV+16*kb+8+i}, 0x3f803f80")
    a(f"s_lshl_b32 s{sT0}, s{sHead}, 17")
    a(f"s_lshl_b32 s{sT1}, s{sQB}, 13")
    a(f"s_add_u32 s{sT0}, s{sT0}, s{sT1}")
    a(f"s_lshl_b32 s{sT1}, s{sHead}, 18")
    a(f"s_add_u32 s{sT1}, s{sT1}, {WS_KV}")
    a("s_waitcnt lgkmcnt(0)")
    a("s_and_b32 s5, s5, 0xffff")
    a(f"s_add_u32 s{SQ}, s4, s{sT0}")
    a(f"s_addc_u32 s{SQ+1}, s5, 0")
    a(f"s_mov_b32 s{SQ+2}, 8192")
    a(f"s_mov_b32 s{SQ+3}, 0x20000")
    a(f"s_add_u32 s{SKH}, s4, s{sT1}")
    a(f"s_addc_u32 s{SKH+1}, s5, 0")
    a(f"s_mov_b32 s{SKH+2}, 262144")
    a(f"s_mov_b32 s{SKH+3}, 0x20000")
    a.c("K tile 0 of the head + Q")
    a(f"buffer_load_dwordx4 v[{PP}:{PP+3}], v{vL16}, s[{SKH}:{SKH+3}], 0 offen")
    a(f"buffer_load_dwordx4 v[{PP+4}:{PP+7}], v{vL16}, s[{SKH}:{SKH+3}], 0 offen offset:1024")
    a(f"s_movk_i32 s{sT0}, 4096")
    for i in range(8):
        so = "0" if i < 4 else f"s{sT0}"
        a(f"buffer_load_dwordx4 v[{QF+4*i}:{QF+4*i+3}], v{vL16}, s[{SQ}:{SQ+3}], {so} offen offset:{(i&3)*1024}")
    a(f"s_lshl_b32 s{sT1}, s{sW}, 16")
    a(f"s_add_u32 s{SKV}, s{SKH}, s{sT1}")
    a(f"s_addc_u32 s{SKV+1}, s{SKH+1}, 0")
    a(f"s_mov_b32 s{SKV+2}, 65536")
    a(f"s_mov_b32 s{SKV+3}, 0x20000")
    a(f"s_mov_b32 s{sOff}, 0")
    for kb in range(NB - 1):
        kvload(a, kb, SKV, f"s{sOff}")
        a(f"s_add_u32 s{sOff}, s{sOff}, 4096")
    a(f"s_add_u32 s{SO}, s4, {WS_O}")
    a(f"s_addc_u32 s{SO+1}, s5, 0")
    a(f"s_mov_b32 s{SO+2}, {2<<20}")
    a(f"s_mov_b32 s{SO+3}, 0x20000")
    a(f"s_waitcnt vmcnt({4*(NB-1)})")
    a(f"s_mov_b64 exec, s[{sUP}:{sUP+1}]")
    for qt in range(4):
        a(f"v_mov_b32 v{QF+8*qt+6}, 0")
        a(f"v_mov_b32 v{QF+8*qt+7}, 0")
    a("s_mov_b64 exec, -1")
    a("s_nop 1")
    for qt in range(4):
        a(mf(OO + 16 * qt, PP, QF + 8 * qt, None))
        a(mf(OO + 16 * qt, PP + 4, QF + 8 * qt + 4, OO + 16 * qt))
    a("s_nop 7")
    for i in range(8):
        a(f"v_mov_b32 v{PP+8+i}, 0")
    for qt in range(4):
        maxtree(a, OO + 16 * qt, vT + qt)
    setpads(a, [vT + qt for qt in range(4)], [QF + 8 * qt for qt in range(4)])
    a(f"s_waitcnt vmcnt({4*(NB-2)})")
    a(mf(SS, KV, QF, None))
    a(mf(SS, KV + 4, QF + 4, SS))
    for i in range(64):
        a(f"v_mov_b32 v{OO+i}, 0")
    a(f"s_mov_b32 s{sCnt}, {16//NB}")
    a.label("K2_loop")
    for kb in range(NB):
        for qt in range(4):
            n = kb * 4 + qt
            cur, nxt = SS + 16 * (n & 1), SS + 16 * ((n + 1) & 1)
            pc, pp = PP + 8 * (n & 1), PP + 8 * ((n + 1) & 1)
            nkb, nqt = (kb, qt + 1) if qt < 3 else ((kb + 1) % NB, 0)
            pkb, pqt = (kb, qt - 1) if qt > 0 else ((kb - 1) % NB, 3)
            if qt == 3:
                a(f"s_waitcnt vmcnt({4*(NB-2)})")
            K = KV + 16 * nkb
            V = KV + 16 * pkb + 8
            O = OO + 16 * pqt
            mm = [mf(nxt, K, QF + 8 * nqt, None), mf(nxt, K + 4, QF + 8 * nqt + 4, nxt),
                  mf(O, V, pp, O), mf(O, V + 4, pp + 4, O)]
            for g in range(4):
                a(mm[g])
                if g == 3 and qt == 0:
                    kvload(a, pkb, SKV, f"s{sOff}")
                    a(f"s_add_u32 s{sOff}, s{sOff}, 4096")
                if g == 3 and n == 4 * NB - 1:
                    a(f"s_sub_u32 s{sCnt}, s{sCnt}, 1")
                    a(f"s_cmp_lg_u32 s{sCnt}, 0")
                for l in expcvt(cur, pc, g):
                    a(l)
    a("s_cbranch_scc1 K2_loop")
    V = KV + 16 * (NB - 1) + 8
    O = OO + 48
    a("s_nop 0")
    a(mf(O, V, PP + 8, O))
    a(mf(O, V + 4, PP + 12, O))
    a.c("combine the four key ranges through LDS")
    a(f"s_lshl_b32 s{sT0}, s{sW}, 14")
    a(f"v_add_u32 v{vT}, s{sT0}, v{vL16}")
    a(f"s_lshl_b32 s{sT0}, s{sW}, 12")
    a(f"v_add_u32 v{vT+1}, s{sT0}, v{vL16}")
    for i in range(12):
        a(f"ds_write_b128 v{vT}, v[{OO+4*i}:{OO+4*i+3}] offset:{1024*i}")
    a("s_nop 1")
    for i in range(12, 16):
        a(f"ds_write_b128 v{vT}, v[{OO+4*i}:{OO+4*i+3}] offset:{1024*i}")
    a(f"s_lshl_b32 s{sT0}, s{sQB}, 2")
    a(f"s_add_u32 s{sT0}, s{sT0}, s{sW}")
    a(f"s_lshl_b32 s{sT0}, s{sT0}, 4")
    a(f"s_add_u32 s{sT0}, s{sT0}, s{sHead}")
    a(f"s_lshl_b32 s{sT0}, s{sT0}, 11")
    a("s_waitcnt lgkmcnt(0)")
    a("s_barrier")
    R = SS
    for w in range(4):
        dst = R if w == 0 else OO + 16 * w
        for aa in range(4):
            a(f"ds_read_b128 v[{dst+4*aa}:{dst+4*aa+3}], v{vT+1} offset:{16384*w+1024*aa}")
        if w == 2:
            a("s_waitcnt lgkmcnt(4)")
            for i in range(16): a(f"v_add_f32 v{R+i}, v{R+i}, v{OO+16+i}")
    a("s_waitcnt lgkmcnt(4)")
    for i in range(16): a(f"v_add_f32 v{R+i}, v{R+i}, v{OO+32+i}")
    a("s_waitcnt lgkmcnt(0)")
    for i in range(16): a(f"v_add_f32 v{R+i}, v{R+i}, v{OO+48+i}")
    a.c("overflow check of the first-tile shift: every value finite and below 2^100, else redo with the true row max")
    a(f"v_add_f32 v{vT+2}, abs(v{R}), abs(v{R+1})")
    for i in range(2, 16):
        a(f"v_add_f32 v{vT+2}, v{vT+2}, abs(v{R+i})")
    a(f"v_cmp_gt_f32 vcc, {fhex(2.0**100)}, v{vT+2}")
    a("s_cmp_eq_u64 vcc, -1")
    a("s_cbranch_scc0 K2_slow")
    a.label("K2_fin")
    a(f"v_mov_b32 v{vT+2}, v{R+12}")
    a(f"v_mov_b32 v{vT+3}, v{R+12}")
    a("s_nop 1")
    a(f"v_permlane32_swap_b32 v{vT+2}, v{vT+3}")
    a("s_nop 0")
    a(f"v_rcp_f32 v{vT+3}, v{vT+3}")
    a(f"s_mov_b64 exec, s[{sUP}:{sUP+1}]")
    for i in range(12, 16): a(f"v_mov_b32 v{R+i}, 0")
    a("s_mov_b64 exec, -1")
    for i in range(16): a(f"v_mul_f32 v{R+i}, v{R+i}, v{vT+3}")
    for i in range(8): a(f"v_cvt_pk_bf16_f32 v{PP+i}, v{R+2*i}, v{R+2*i+1}")
    a(f"buffer_store_dwordx4 v[{PP}:{PP+3}], v{vL16}, s[{SO}:{SO+3}], s{sT0} offen")
    a(f"buffer_store_dwordx4 v[{PP+4}:{PP+7}], v{vL16}, s[{SO}:{SO+3}], s{sT0} offen offset:1024")
    a.label("K2_exit")
    a("s_endpgm")
    a.label("K2_slow")
    S2 = SS + 16
    a(f"s_lshl_b32 s{sT1}, s{sW}, 11")
    a(f"buffer_load_dwordx4 v[{QF}:{QF+3}], v{vL16}, s[{SQ}:{SQ+3}], s{sT1} offen")
    a(f"buffer_load_dwordx4 v[{QF+4}:{QF+7}], v{vL16}, s[{SQ}:{SQ+3}], s{sT1} offen offset:1024")
    a(f"v_mov_b32 v{vT+2}, 0xff800000")
    a(f"s_mov_b32 s{sOff}, 0")
    a("s_waitcnt vmcnt(0)")
    a(f"s_mov_b64 exec, s[{sUP}:{sUP+1}]")
    a(f"v_mov_b32 v{QF+6}, 0")
    a(f"v_mov_b32 v{QF+7}, 0")
    a("s_mov_b64 exec, -1")
    a.label("K2_sl1")
    kvload(a, 0, SKH, f"s{sOff}")
    a(f"s_add_u32 s{sOff}, s{sOff}, 4096")
    a("s_waitcnt vmcnt(0)")
    a(mf(S2, KV, QF, None))
    a(mf(S2, KV + 4, QF + 4, S2))
    a("s_nop 15")
    maxtree(a, S2, vT + 2, first=False)
    a(f"s_cmp_lt_u32 s{sOff}, 262144")
    a("s_cbranch_scc1 K2_sl1")
    setpads(a, [vT + 2], [QF])
    for i in range(16): a(f"v_mov_b32 v{R+i}, 0")
    a(f"s_mov_b32 s{sOff}, 0")
    a.label("K2_sl2")
    kvload(a, 0, SKH, f"s{sOff}")
    a(f"s_add_u32 s{sOff}, s{sOff}, 4096")
    a("s_waitcnt vmcnt(0)")
    a(mf(S2, KV, QF, None))
    a(mf(S2, KV + 4, QF + 4, S2))
    a("s_nop 15")
    for g in range(4):
        for l in expcvt(S2, PP, g): a(l)
    a("s_nop 1")
    a(mf(R, KV + 8, PP, R))
    a(mf(R, KV + 12, PP + 4, R))
    a(f"s_cmp_lt_u32 s{sOff}, 262144")
    a("s_cbranch_scc1 K2_sl2")
    a("s_nop 15")
    a("s_branch K2_fin")
    return kernel_header(name) + a.text(), kernel_desc(name, NV, 48), LDS_K2
```

```python
from asmlib import *
from consts import *

RD = 4
RW = 17408
LDS_K3 = 8 * RW
SWD, SWO, SWS, SX, SOUT = 16, 20, 24, 28, 32
sW, sMT, sNT, sT0, sT1, sT2, sRing, sWoff, sA0, sA1, sMask = 36, 37, 38, 39, 40, 41, 42, 43, 44, 45, 46
sO0, sO1, sWoffO = 47, 48, 49
vLane, vL16, vTr0, vTr1, vXo = 1, 2, 3, 4, 5
vOff = 6
vT = 10
XR = 28
ACT = 32
WF = 96
ACC = 128

def mf(d, a, b, c):
    cs = "0" if c is None else f"v[{c}:{c+15}]"
    return f"v_mfma_f32_32x32x16_bf16 v[{d}:{d+15}], v[{a}:{a+3}], v[{b}:{b+3}], {cs}"

def loads(a, u):
    slot = u % RD
    hpart = u < 7
    srd = SWD if hpart else SWO
    so = sWoff if hpart else sWoffO
    a(f"s_add_u32 m0, s{sRing}, {slot*4096}")
    a0, a1 = (sA0, sA1) if hpart else (sO0, sO1)
    b = ACT + 16 * slot
    a(f"buffer_load_dwordx4 v[{b}:{b+3}], v{vL16}, s[{SWS}:{SWS+3}], s{a0} offen")
    for i in range(4):
        a(f"buffer_load_dwordx4 v{vOff+i}, s[{srd}:{srd+3}], s{so} offen offset:{1024*i} lds")
    a(f"buffer_load_dwordx4 v[{b+4}:{b+7}], v{vL16}, s[{SWS}:{SWS+3}], s{a0} offen offset:1024")
    a(f"buffer_load_dwordx4 v[{b+8}:{b+11}], v{vL16}, s[{SWS}:{SWS+3}], s{a1} offen")
    a(f"buffer_load_dwordx4 v[{b+12}:{b+15}], v{vL16}, s[{SWS}:{SWS+3}], s{a1} offen offset:1024")
    a(f"s_add_u32 s{so}, s{so}, {(32 if hpart else 28)*896}")
    a(f"s_add_u32 s{a0}, s{a0}, 2048")
    a(f"s_add_u32 s{a1}, s{a1}, 2048")

def gen_k3(name):
    a = Asm()
    a("s_cmp_ge_u32 s2, 224")
    a("s_cbranch_scc1 K3_exit")
    a("s_load_dwordx2 s[4:5], s[0:1], 0")
    a("s_load_dwordx2 s[6:7], s[0:1], 16")
    a("s_load_dwordx4 s[8:11], s[0:1], 48")
    a("s_load_dwordx2 s[12:13], s[0:1], 72")
    a(f"v_lshrrev_b32 v{vT}, 6, v0")
    a(f"v_and_b32 v{vLane}, 63, v0")
    a(f"v_readfirstlane_b32 s{sW}, v{vT}")
    a(f"v_lshlrev_b32 v{vL16}, 4, v{vLane}")
    a(f"s_and_b32 s{sMT}, s2, 7")
    a(f"s_lshl_b32 s{sMT}, s{sMT}, 2")
    a(f"s_bfe_u32 s{sT0}, s2, 0x20003")
    a(f"s_add_u32 s{sMT}, s{sMT}, s{sT0}")
    a(f"s_lshr_b32 s{sNT}, s2, 5")
    a(f"s_mov_b32 s{sMask}, 0xffff0000")
    a(f"s_mul_i32 s{sRing}, s{sW}, {RW}")
    t1, t2 = vT, vT + 1
    a(f"v_bfe_u32 v{t1}, v{vLane}, 4, 1")
    a(f"v_lshlrev_b32 v{t1}, 2, v{t1}")
    a(f"v_and_b32 v{t2}, 7, v{vLane}")
    a(f"v_xor_b32 v{t1}, v{t1}, v{t2}")
    a(f"v_lshrrev_b32 v{vT+2}, 3, v{vLane}")
    a(f"v_mul_u32_u24 v{vOff}, 896, v{vT+2}")
    a(f"v_lshl_add_u32 v{vXo}, v{t2}, 4, v{vOff}")
    a(f"v_lshl_add_u32 v{vOff}, v{t1}, 4, v{vOff}")
    for i in range(1, 4):
        a(f"v_add_u32 v{vOff+i}, {i*(7168-1024)}, v{vOff}")
    a(f"s_lshl_b32 s{sT0}, s{sNT}, 7")
    a(f"s_mul_i32 s{sWoff}, s{sW}, {7*32*896}")
    a(f"s_add_u32 s{sWoff}, s{sWoff}, s{sT0}")
    a(f"s_mul_i32 s{sWoffO}, s{sW}, {2*28*896}")
    a(f"s_add_u32 s{sWoffO}, s{sWoffO}, s{sT0}")
    a(f"s_mul_i32 s{sA0}, s{sMT}, {2*112*1024}")
    a(f"s_mul_i32 s{sT1}, s{sW}, {14*1024}")
    a(f"s_add_u32 s{sA0}, s{sA0}, s{sT1}")
    a(f"s_add_u32 s{sA0}, s{sA0}, {WS_H}")
    a(f"s_add_u32 s{sA1}, s{sA0}, {112*1024}")
    a(f"s_lshl_b32 s{sO0}, s{sMT}, 16")
    a(f"s_lshl_b32 s{sT1}, s{sW}, 12")
    a(f"s_add_u32 s{sO0}, s{sO0}, s{sT1}")
    a(f"s_add_u32 s{sO0}, s{sO0}, {WS_O}")
    a(f"s_add_u32 s{sO1}, s{sO0}, {32*1024}")
    a(f"s_lshl_b32 s{sT1}, s{sMT}, 3")
    a(f"s_add_u32 s{sT1}, s{sT1}, s{sW}")
    a(f"s_mul_i32 s{sT1}, s{sT1}, {8*896}")
    a(f"s_add_u32 s{sT2}, s{sT1}, s{sT0}")
    a("s_waitcnt lgkmcnt(0)")
    a.srd(SWD, 8, 1792 * 896)
    a.srd(SWS, 12, WS_END)
    a.srd(SX, 4, 2048 * 896)
    a(f"buffer_load_dwordx4 v[{XR}:{XR+3}], v{vXo}, s[{SX}:{SX+3}], s{sT2} offen")
    for u in range(RD):
        loads(a, u)
    a.srd(SWO, 6, 448 * 896)
    a.srd(SOUT, 10, 2048 * 896)
    a.c("tr-read addresses")
    i_ = vT + 2
    a(f"v_and_b32 v{i_}, 15, v{vLane}")
    a(f"v_lshrrev_b32 v{t1}, 2, v{i_}")
    a(f"v_lshrrev_b32 v{t2}, 5, v{vLane}")
    a(f"v_lshl_add_u32 v{t1}, v{t2}, 2, v{t1}")
    a(f"v_lshlrev_b32 v{vTr0}, 7, v{t1}")
    a(f"v_bfe_u32 v{t1}, v{vLane}, 4, 1")
    a(f"v_lshl_add_u32 v{vTr0}, v{t1}, 5, v{vTr0}")
    a(f"v_and_b32 v{t1}, 3, v{i_}")
    a(f"v_lshl_add_u32 v{vTr0}, v{t1}, 3, v{vTr0}")
    a(f"v_bfe_u32 v{t1}, v{i_}, 3, 1")
    a(f"v_lshl_add_u32 v{vTr0}, v{t1}, 6, v{vTr0}")
    a(f"v_xor_b32 v{vTr1}, 64, v{vTr0}")
    a(f"v_add_u32 v{vTr0}, s{sRing}, v{vTr0}")
    a(f"v_add_u32 v{vTr1}, s{sRing}, v{vTr1}")
    NU = 9
    for u in range(NU):
        slot = u % RD
        left = min(NU - 1, u + RD - 1) - u
        a(f"s_waitcnt vmcnt({8*left})")
        wf = WF + 16 * (u & 1)
        for s in range(2):
            for tau in range(2):
                for t in range(2):
                    d = wf + 8 * s + 4 * tau + 2 * t
                    a(f"ds_read_b64_tr_b16 v[{d}:{d+1}], v{vTr0 if tau == 0 else vTr1} offset:{slot*4096+s*2048+t*1024}")
        for s in range(2):
            a(f"s_waitcnt lgkmcnt({4 if s == 0 else 0})")
            for tau in range(2):
                for tt in range(2):
                    acc = ACC + 16 * (tt * 2 + tau)
                    a(mf(acc, wf + 8 * s + 4 * tau, ACT + 16 * slot + 8 * tt + 4 * s, None if (u == 0 and s == 0) else acc))
        if u + RD < NU:
            loads(a, u + RD)
    a.c("cross-wave reduction")
    a(f"v_add_u32 v{vT}, s{sRing}, v{vL16}")
    a(f"v_and_b32 v{vT+1}, 7, v{vLane}")
    a(f"s_lshr_b32 s{sT0}, s{sW}, 2")
    a(f"s_lshl_b32 s{sT0}, s{sT0}, 3")
    a(f"v_add_u32 v{vT+1}, s{sT0}, v{vT+1}")
    a(f"v_mul_u32_u24 v{vT+1}, 1056, v{vT+1}")
    a(f"v_lshrrev_b32 v{vT+2}, 3, v{vLane}")
    a(f"s_and_b32 s{sT0}, s{sW}, 3")
    a(f"s_lshl_b32 s{sT0}, s{sT0}, 3")
    a(f"v_add_u32 v{vT+2}, s{sT0}, v{vT+2}")
    a(f"v_lshl_add_u32 v{vT+1}, v{vT+2}, 4, v{vT+1}")
    a(f"v_add_u32 v{vT+2}, {3*RW}, v{vT+1}")
    a(f"v_add_u32 v{vT+3}, {6*RW}, v{vT+1}")
    for i in range(16):
        a(f"ds_write_b128 v{vT}, v[{ACC+4*i}:{ACC+4*i+3}] offset:{1056*i}")
    a.c("unpack x")
    R = WF
    for i in range(4):
        a(f"v_lshlrev_b32 v{R+2*i}, 16, v{XR+i}")
        a(f"v_and_b32 v{R+2*i+1}, s{sMask}, v{XR+i}")
    a("s_waitcnt lgkmcnt(0)")
    a("s_barrier")
    for half in range(2):
        for k in range(4):
            src = half * 4 + k
            base = vT + 1 + src // 3
            off = (src % 3) * RW
            d = ACT + 8 * src
            a(f"ds_read_b128 v[{d}:{d+3}], v{base} offset:{off}")
            a(f"ds_read_b128 v[{d+4}:{d+7}], v{base} offset:{off+512}")
        if half == 0:
            a("s_waitcnt lgkmcnt(4)")
            for src in range(2):
                for i in range(8): a(f"v_add_f32 v{R+i}, v{R+i}, v{ACT+8*src+i}")
    for src in range(2, 8):
        a(f"s_waitcnt lgkmcnt({2*(7-src)})")
        for i in range(8): a(f"v_add_f32 v{R+i}, v{R+i}, v{ACT+8*src+i}")
    for i in range(4):
        a(f"v_cvt_pk_bf16_f32 v{XR+i}, v{R+2*i}, v{R+2*i+1}")
    a(f"buffer_store_dwordx4 v[{XR}:{XR+3}], v{vXo}, s[{SOUT}:{SOUT+3}], s{sT2} offen")
    a.label("K3_exit")
    a("s_endpgm")
    return kernel_header(name) + a.text(), kernel_desc(name, 192, 56), LDS_K3
```

```python
import sys
sys.path.insert(0, "gen")
from k1 import gen_k1
from k2 import gen_k2
from k3 import gen_k3

HDR = """; parallel_sum(mha_block, geglu ffn) on gfx950 -- generated by gen/gen.py
"""
def build(path):
    ks = [("k1_kernel", gen_k1, 256, 512), ("k2_kernel", gen_k2, 256, 256), ("k3_kernel", gen_k3, 224, 512)]
    code, desc, launch = "", "", ""
    for name, g, grid, blk in ks:
        c, d, lds = g(name)
        code += c
        desc += d
        launch += f"; @launch kernel={name} grid=({grid},1,1) block=({blk},1,1) lds={lds}\n"
    s = HDR + launch + '.amdgcn_target "amdgcn-amd-amdhsa--gfx950"\n.text\n' + code + '.section .rodata,"a"\n' + desc
    open(path, "w").write(s)
if __name__ == "__main__":
    build(sys.argv[1] if len(sys.argv) > 1 else "parallel_sum__mha_block__glu_gated_geglu__prompt.s")
```

```python
import struct
DIAG = {"on": False}

def f2u(x):
    return struct.unpack("<I", struct.pack("<f", x))[0]

def fhex(x):
    return "0x%08x" % f2u(x)

def vr(a, n=1):
    return f"v{a}" if n == 1 else f"v[{a}:{a+n-1}]"

def sr(a, n=1):
    return f"s{a}" if n == 1 else f"s[{a}:{a+n-1}]"

class Asm:
    def __init__(self):
        self.lines = []
        self.uid = 0
    def __call__(self, s):
        for l in s.strip("\n").split("\n"):
            l = l.strip()
            if l:
                self.lines.append(("" if l.endswith(":") else "    ") + l)
    def c(self, s):
        self.lines.append("    ; " + s)
    def label(self, name):
        self.lines.append(name + ":")
    def newlabel(self, p="L"):
        self.uid += 1
        return f"{p}_{self.uid}"
    def text(self):
        return "\n".join(self.lines) + "\n"
    def stamp(self, idx):
        if not DIAG["on"]:
            return
        self(f"s_memtime s[{64+2*idx}:{65+2*idx}]")
        if idx == 0:
            self("s_memrealtime s[88:89]")
        self("s_waitcnt lgkmcnt(0)")
    def stamp_flush(self, n, kidx, swave, wpw):
        if not DIAG["on"]:
            return
        self("s_memrealtime s[90:91]")
        self("s_load_dwordx2 s[92:93], s[0:1], 72")
        self("s_waitcnt lgkmcnt(0) vmcnt(0)")
        self("s_memtime s[86:87]")
        self(f"s_add_u32 s92, s92, {(128<<20) + kidx*(1<<20)}")
        self("s_addc_u32 s93, s93, 0")
        self("s_and_b32 s93, s93, 0xffff")
        self("s_mov_b32 s94, 0x100000")
        self("s_mov_b32 s95, 0x20000")
        self(f"s_mul_i32 s96, s2, {wpw}")
        self(f"s_add_u32 s96, s96, s{swave}")
        self("s_lshl_b32 s96, s96, 6")
        self("s_mov_b64 exec, 1")
        self("s_waitcnt lgkmcnt(0)")
        self("v_mov_b32 v0, 0")
        for i in list(range(n)) + [11, 12, 13]:
            self(f"v_mov_b32 v1, s{64+2*i}")
            self(f"buffer_store_dword v1, v0, s[92:95], s96 offen offset:{4*i}")
            self("s_nop 1")
    def srd(self, d, base, nbytes):
        self(f"s_mov_b32 s{d}, s{base}")
        self(f"s_and_b32 s{d+1}, s{base+1}, 0xffff")
        self(f"s_mov_b32 s{d+2}, {nbytes}")
        self(f"s_mov_b32 s{d+3}, 0x20000")

def interleave(main, fill, counts=None):
    out = []
    n = len(main)
    if counts is None:
        counts = []
        done = 0
        for i in range(n):
            tgt = (len(fill) * (i + 1) + n - 1) // n
            counts.append(tgt - done)
            done = tgt
    k = 0
    for i in range(n):
        out.append(main[i])
        out.extend(fill[k:k + counts[i]])
        k += counts[i]
    out.extend(fill[k:])
    return out

def kernel_header(name):
    return f""".globl {name}
.p2align 8
.type {name},@function
{name}:
"""

def kernel_desc(name, nvgpr, nsgpr=96, accum=None):
    if DIAG["on"]:
        nsgpr = 100
    if accum is None:
        accum = (nvgpr + 3) // 4 * 4
    return f""".p2align 6
.amdhsa_kernel {name}
  .amdhsa_next_free_vgpr {nvgpr}
  .amdhsa_next_free_sgpr {nsgpr}
  .amdhsa_accum_offset {accum}
  .amdhsa_group_segment_fixed_size 0
  .amdhsa_kernarg_size 80
  .amdhsa_user_sgpr_count 2
  .amdhsa_user_sgpr_kernarg_segment_ptr 1
  .amdhsa_system_sgpr_workgroup_id_x 1
.end_amdhsa_kernel
"""
```

```python
from asmlib import *
from consts import *
import math

XROW = 912
RING = 128 * XROW
SLOT = 10240
STATS = RING + 4 * SLOT
LDS_K1 = STATS + 1024

SX, SWQ, SWA, SWS = 16, 20, 24, 28
sW, sRB, sCG, sTT, sCH = 32, 33, 34, 35, 36
sOffA, sOffQ, sRingA, sRingQ, sCnt = 37, 38, 39, 40, 41
sT0, sT1, sT2, sT3 = 42, 43, 44, 45
sMask, sStepA = 46, 47
sTile = 48
vLane, vOffA, vOffQ, vTr0, vTr1, vTrQ, vXa, vNm, vR = 1, 2, 3, 4, 5, 6, 7, 8, 9
vT = 10
vL16 = 32
vSt = 33
WF = 64
XRAW = 104
XC = 112
DT = 120
ACC = 128

def center(a_src, a_dst):
    o = []
    for i in range(4):
        d0, d1 = DT + 2 * i, DT + 2 * i + 1
        o.append(f"v_lshlrev_b32 v{d0}, 16, v{a_src+i}")
        o.append(f"v_and_b32 v{d1}, s{sMask}, v{a_src+i}")
    for i in range(8):
        o.append(f"v_add_f32 v{DT+i}, v{DT+i}, v{vNm}")
    for i in range(4):
        o.append(f"v_cvt_pk_bf16_f32 v{a_dst+i}, v{DT+2*i}, v{DT+2*i+1}")
    return o

def wreads(path, slot, p):
    o = []
    nt = 5 if path == "A" else 4
    for j in range(nt):
        for t in range(2):
            dst = WF + 20 * p + 4 * j + 2 * t
            if j < 4:
                addr = vTr0 if (j & 1) == 0 else vTr1
                off = slot * SLOT + (j >> 1) * 2048 + 512 * t
            else:
                addr = vTrQ
                off = slot * SLOT + 512 * t
            o.append(f"ds_read_b64_tr_b16 v[{dst}:{dst+1}], v{addr} offset:{off}")
    return o

def dma(path, slot):
    o = [f"s_add_u32 m0, s{sRingA}, {slot*SLOT}",
         f"s_nop 0",
         f"buffer_load_dwordx4 v{vOffA}, s[{SWA}:{SWA+3}], s{sOffA} offen lds",
         f"s_add_u32 s{sOffA}, s{sOffA}, s{sStepA}"]
    if path == "A":
        o += [f"s_add_u32 m0, s{sRingQ}, {slot*SLOT}",
              f"s_mov_b64 exec, 0xffff",
              f"buffer_load_dwordx4 v{vOffQ}, s[{SWQ}:{SWQ+3}], s{sOffQ} offen lds",
              f"s_mov_b64 exec, -1",
              f"s_add_u32 s{sOffQ}, s{sOffQ}, {16*2688}"]
    return o

def mfmas(path, p):
    o = []
    nt = 5 if path == "A" else 4
    for j in range(nt):
        w = WF + 20 * p + 4 * j
        x = XC + 4 * p
        acc = ACC + 16 * j
        if path == "A":
            o.append(f"v_mfma_f32_32x32x16_bf16 v[{acc}:{acc+15}], v[{w}:{w+3}], v[{x}:{x+3}], v[{acc}:{acc+15}]")
        else:
            o.append(f"v_mfma_f32_32x32x16_bf16 v[{acc}:{acc+15}], v[{x}:{x+3}], v[{w}:{w+3}], v[{acc}:{acc+15}]")
    return o

def body(a, path, staddr):
    npk = 2 if path == "A" else 1
    a.c(f"---- path {path}: W prologue DMA for k-steps 0..3")
    for s in range(4):
        for l in dma(path, s):
            a(l)
    staddr()
    a.c("zero accumulators while x is in flight")
    for i in range(80 if path == "A" else 64):
        a(f"v_mov_b32 v{ACC+i}, 0")
    a.c("pass 1: row statistics of this wave's 16 rows")
    a(f"v_lshrrev_b32 v{vT}, 2, v{vLane}")
    a(f"s_lshl_b32 s{sT0}, s{sW}, 4")
    a(f"v_add_u32 v{vT}, s{sT0}, v{vT}")
    a(f"v_mul_u32_u24 v{vT+1}, {XROW}, v{vT}")
    a(f"v_and_b32 v{vT+2}, 3, v{vLane}")
    a(f"v_lshl_add_u32 v{vT+1}, v{vT+2}, 4, v{vT+1}")
    a(f"v_lshlrev_b32 v{vT}, 2, v{vT}")
    a(f"v_add_u32 v{vT}, {STATS}, v{vT}")
    a(f"v_mov_b32 v{vT+3}, 0x3f803f80")
    for i in range(4):
        a(f"v_mov_b32 v{vT+4+i}, 0")
    a.stamp(1)
    a(f"s_waitcnt vmcnt({4*npk})")
    a.stamp(2)
    for i in range(14):
        a(f"ds_read_b128 v[{WF+4*i}:{WF+4*i+3}], v{vT+1} offset:{64*i}")
    for i in range(14):
        if i in (0, 4, 8, 12):
            left = max(0, 14 - (i + 4))
            a(f"s_waitcnt lgkmcnt({left})")
        for k in range(4):
            r = WF + 4 * i + k
            a(f"v_dot2c_f32_bf16 v{vT+4+(k&1)}, v{r}, v{vT+3}")
            a(f"v_dot2c_f32_bf16 v{vT+6+(k&1)}, v{r}, v{r}")
    a("s_nop 2")
    a(f"v_add_f32 v{vT+4}, v{vT+4}, v{vT+5}")
    a(f"v_add_f32 v{vT+6}, v{vT+6}, v{vT+7}")
    a("s_nop 1")
    a(f"v_add_f32_dpp v{vT+4}, v{vT+4}, v{vT+4} quad_perm:[1,0,3,2] row_mask:0xf bank_mask:0xf")
    a(f"v_add_f32_dpp v{vT+6}, v{vT+6}, v{vT+6} quad_perm:[1,0,3,2] row_mask:0xf bank_mask:0xf")
    a("s_nop 1")
    a(f"v_add_f32_dpp v{vT+4}, v{vT+4}, v{vT+4} quad_perm:[2,3,0,1] row_mask:0xf bank_mask:0xf")
    a(f"v_add_f32_dpp v{vT+6}, v{vT+6}, v{vT+6} quad_perm:[2,3,0,1] row_mask:0xf bank_mask:0xf")
    a(f"v_mul_f32 v{vT+4}, {fhex(-1.0/448)}, v{vT+4}")
    a(f"v_mul_f32 v{vT+6}, {fhex(1.0/448)}, v{vT+6}")
    a(f"v_fma_f32 v{vT+6}, -v{vT+4}, v{vT+4}, v{vT+6}")
    a(f"v_max_f32 v{vT+6}, 0, v{vT+6}")
    a(f"v_add_f32 v{vT+6}, {fhex(1e-5)}, v{vT+6}")
    a(f"v_rsq_f32 v{vT+6}, v{vT+6}")
    a(f"ds_write_b32 v{vT}, v{vT+4}")
    a(f"ds_write_b32 v{vT}, v{vT+6} offset:512")
    a(f"s_waitcnt vmcnt({2*npk}) lgkmcnt(0)")
    a.stamp(3)
    a("s_barrier")
    a.stamp(4)
    a.c("stats of own token, first fragments")
    a(f"v_and_b32 v{vT}, 31, v{vLane}")
    a(f"s_lshl_b32 s{sT0}, s{sTT}, 7")
    a(f"s_add_u32 s{sT0}, s{sT0}, {STATS}")
    a(f"v_lshl_add_u32 v{vT}, v{vT}, 2, s{sT0}")
    a(f"ds_read_b32 v{vNm}, v{vT}")
    a(f"ds_read_b128 v[{XRAW}:{XRAW+3}], v{vXa}")
    a(f"ds_read_b32 v{vR}, v{vT} offset:512")
    a(f"ds_read_b128 v[{XRAW+4}:{XRAW+7}], v{vXa} offset:32")
    for l in wreads(path, 0, 0):
        a(l)
    a("s_waitcnt lgkmcnt(%d)" % (len(wreads(path, 0, 0)) + 2))
    for l in center(XRAW, XC):
        a(l)
    a("s_waitcnt lgkmcnt(0)")
    a.stamp(5)
    a(f"s_mov_b32 s{sCnt}, 7")
    lab = f"K1_loop_{path}"
    a.label(lab)
    for q in range(4):
        p = q & 1
        a("s_barrier")
        mm = mfmas(path, p)
        rd = wreads(path, (q + 1) % 4, p ^ 1)
        rd.append(f"ds_read_b128 v[{XRAW+4*p}:{XRAW+4*p+3}], v{vXa} offset:{(q+2)*32}")
        ce = center(XRAW + 4 * (p ^ 1), XC + 4 * (p ^ 1))
        dm = dma(path, q)
        mix = []
        ci = 0
        for r in rd:
            mix.append(r)
            mix.append(ce[ci]); ci += 1
        mix += ce[ci:]
        fill = dm + mix
        if q == 3:
            fill.append(f"v_add_u32 v{vXa}, 128, v{vXa}")
            fill.append(f"s_sub_u32 s{sCnt}, s{sCnt}, 1")
            fill.append(f"s_cmp_lg_u32 s{sCnt}, 0")
        n = len(mm)
        per = (len(fill) + n - 2) // (n - 1)
        counts = [per] * (n - 1) + [0]
        for l in interleave(mm, fill, counts):
            a(l)
        a(f"s_waitcnt vmcnt({2*npk}) lgkmcnt(0)")
    a(f"s_cbranch_scc1 {lab}")
    a.stamp(6)
    if path == "A":
        epi_A(a)
    else:
        epi_V(a)

def epi_A(a):
    c0 = -2.0 * math.sqrt(2.0 / math.pi) * math.log2(math.e)
    c1 = c0 * 0.044715
    k0, k1, ir2, sc = vT, vT + 1, vT + 2, vT + 3
    a.c("epilogue A")
    a(f"v_mul_f32 v{ir2}, v{vR}, v{vR}")
    a(f"v_mul_f32 v{k0}, {fhex(c0)}, v{vR}")
    a(f"v_mul_f32 v{k1}, v{ir2}, v{vR}")
    a(f"v_mul_f32 v{k1}, {fhex(c1)}, v{k1}")
    a(f"v_rcp_f32 v{ir2}, v{ir2}")
    a(f"s_cmp_lt_u32 s{sCG}, 7")
    a(f"s_cselect_b32 s{sT0}, {fhex(QSCALE)}, 1.0")
    a(f"v_mul_f32 v{sc}, s{sT0}, v{vR}")
    a(f"s_mul_i32 s{sT1}, s{sTile}, 112")
    a(f"s_lshl_b32 s{sT2}, s{sCG}, 1")
    a(f"s_add_u32 s{sT2}, s{sT2}, s{sCH}")
    a(f"s_lshl_b32 s{sT2}, s{sT2}, 2")
    a(f"s_add_u32 s{sT1}, s{sT1}, s{sT2}")
    a(f"s_lshl_b32 s{sT1}, s{sT1}, 10")
    a(f"s_add_u32 s{sT1}, s{sT1}, {WS_H}")
    a("s_nop 3")
    T = vT + 4
    for p in range(2):
        G = ACC + 16 * p
        U = ACC + 32 + 16 * p
        out = WF + 8 * p
        for i0 in range(0, 16, 4):
            for k in range(4): a(f"v_mul_f32 v{T+k}, v{G+i0+k}, v{G+i0+k}")
            for k in range(4): a(f"v_fma_f32 v{T+k}, v{T+k}, v{k1}, v{k0}")
            for k in range(4): a(f"v_mul_f32 v{T+k}, v{T+k}, v{G+i0+k}")
            for k in range(4): a(f"v_exp_f32 v{T+k}, v{T+k}")
            for k in range(4): a(f"v_mul_f32 v{U+i0+k}, v{U+i0+k}, v{G+i0+k}")
            for k in range(4): a(f"v_fma_f32 v{T+k}, v{T+k}, v{ir2}, v{ir2}")
            for k in range(4): a(f"v_rcp_f32 v{T+k}, v{T+k}")
            a("s_nop 0")
            for k in range(4): a(f"v_mul_f32 v{U+i0+k}, v{U+i0+k}, v{T+k}")
            for k in range(2): a(f"v_cvt_pk_bf16_f32 v{out+i0//2+k}, v{U+i0+2*k}, v{U+i0+2*k+1}")
            if i0 in (4, 12):
                s = i0 // 8
                a(f"buffer_store_dwordx4 v[{out+4*s}:{out+4*s+3}], v{vL16}, s[{SWS}:{SWS+3}], s{sT1} offen offset:{(2*p+s)*1024}")
    a.c("Q/K tile")
    Q = ACC + 64
    out = WF + 16
    for i in range(16):
        a(f"v_mul_f32 v{Q+i}, v{Q+i}, v{sc}")
    for i in range(8):
        a(f"v_cvt_pk_bf16_f32 v{out+i}, v{Q+2*i}, v{Q+2*i+1}")
    for aa in range(4):
        a(f"buffer_store_dwordx2 v[{out+2*aa}:{out+2*aa+1}], v{vSt+aa}, s[{SWS}:{SWS+3}], 0 offen")
    a(f"v_mov_b32 v{out+8}, 0x3f803f80")
    a(f"v_mov_b32 v{out+9}, 0x00003f80")
    a(f"buffer_store_dwordx2 v[{out+8}:{out+9}], v{vSt+4}, s[{SWS}:{SWS+3}], 0 offen")
    a.stamp(7)
    a.stamp_flush(8, 0, sW, 8)
    a("s_endpgm")

def epi_V(a):
    a.c("epilogue V: r per token in regs")
    RR = WF
    a(f"v_lshrrev_b32 v{vT}, 5, v{vLane}")
    a(f"s_lshl_b32 s{sT0}, s{sTT}, 7")
    a(f"s_add_u32 s{sT0}, s{sT0}, {STATS+512}")
    a(f"v_lshl_add_u32 v{vT}, v{vT}, 4, s{sT0}")
    for aa in range(4):
        a(f"ds_read_b128 v[{RR+4*aa}:{RR+4*aa+3}], v{vT} offset:{32*aa}")
    a("s_nop 7")
    a("s_waitcnt lgkmcnt(0)")
    for j in range(4):
        A = ACC + 16 * j
        out = WF + 16 + 8 * (j & 1)
        for i in range(16):
            a(f"v_mul_f32 v{A+i}, v{A+i}, v{RR+i}")
        for i in range(8):
            a(f"v_cvt_pk_bf16_f32 v{out+i}, v{A+2*i}, v{A+2*i+1}")
        for s in range(2):
            a(f"buffer_store_dwordx4 v[{out+4*s}:{out+4*s+3}], v{vSt+j}, s[{SWS}:{SWS+3}], 0 offen offset:{1024*s}")
    a.stamp(7)
    a.stamp_flush(8, 0, sW, 8)
    a("s_endpgm")

def gen_k1(name):
    a = Asm()
    a(f"s_cmp_ge_u32 s2, 256")
    a(f"s_cbranch_scc1 K1_exit")
    a.stamp(0)
    a("s_load_dwordx4 s[4:7], s[0:1], 0")
    a("s_load_dwordx4 s[8:11], s[0:1], 32")
    a("s_load_dwordx2 s[12:13], s[0:1], 72")
    a(f"v_lshrrev_b32 v{vT}, 6, v0")
    a(f"v_and_b32 v{vLane}, 63, v0")
    a(f"v_readfirstlane_b32 s{sW}, v{vT}")
    a(f"v_lshlrev_b32 v{vL16}, 4, v{vLane}")
    a(f"s_and_b32 s{sT0}, s2, 7")
    a(f"s_lshr_b32 s{sT1}, s2, 3")
    a(f"s_lshr_b32 s{sRB}, s{sT0}, 1")
    a(f"s_lshl_b32 s{sRB}, s{sRB}, 2")
    a(f"s_and_b32 s{sT2}, s{sT1}, 3")
    a(f"s_add_u32 s{sRB}, s{sRB}, s{sT2}")
    a(f"s_and_b32 s{sCG}, s{sT0}, 1")
    a(f"s_lshl_b32 s{sCG}, s{sCG}, 3")
    a(f"s_lshr_b32 s{sT2}, s{sT1}, 2")
    a(f"s_add_u32 s{sCG}, s{sCG}, s{sT2}")
    a(f"s_and_b32 s{sTT}, s{sW}, 3")
    a(f"s_lshr_b32 s{sCH}, s{sW}, 2")
    a(f"s_lshl_b32 s{sTile}, s{sRB}, 2")
    a(f"s_add_u32 s{sTile}, s{sTile}, s{sTT}")
    a(f"s_mov_b32 s{sMask}, 0xffff0000")
    a(f"s_lshl_b32 s{sT0}, s{sRB}, 7")
    a(f"s_lshl_b32 s{sT1}, s{sW}, 4")
    a(f"s_add_u32 s{sT0}, s{sT0}, s{sT1}")
    a(f"s_mul_i32 s{sT0}, s{sT0}, 896")
    a(f"s_mul_i32 s{sT1}, s{sT1}, {XROW}")
    a(f"s_mov_b32 s{sT2}, 16")
    a("s_waitcnt lgkmcnt(0)")
    a.srd(SX, 4, 2048 * 896)
    a("s_mov_b32 exec_hi, 0x00ffffff")
    a.label("K1_xl")
    a(f"s_mov_b32 m0, s{sT1}")
    a(f"s_add_u32 s{sT1}, s{sT1}, {XROW}")
    a(f"buffer_load_dwordx4 v{vL16}, s[{SX}:{SX+3}], s{sT0} offen lds")
    a(f"s_add_u32 s{sT0}, s{sT0}, 896")
    a(f"s_sub_u32 s{sT2}, s{sT2}, 1")
    a(f"s_cmp_lg_u32 s{sT2}, 0")
    a(f"s_cbranch_scc1 K1_xl")
    a("s_mov_b64 exec, -1")
    a.srd(SWQ, 6, 448 * 2688)
    a.c("tr-read addresses")
    i_, t1, t2 = vT, vT + 1, vT + 2
    a(f"v_and_b32 v{i_}, 15, v{vLane}")
    a(f"v_lshrrev_b32 v{t1}, 2, v{i_}")
    a(f"v_lshrrev_b32 v{t2}, 5, v{vLane}")
    a(f"v_lshl_add_u32 v{t1}, v{t2}, 3, v{t1}")
    a(f"v_lshlrev_b32 v{vTr0}, 7, v{t1}")
    a(f"v_bfe_u32 v{t1}, v{vLane}, 4, 1")
    a(f"v_lshl_add_u32 v{vTr0}, v{t1}, 5, v{vTr0}")
    a(f"v_and_b32 v{t1}, 3, v{i_}")
    a(f"v_lshl_add_u32 v{vTr0}, v{t1}, 3, v{vTr0}")
    a(f"v_bfe_u32 v{t1}, v{i_}, 3, 1")
    a(f"v_lshl_add_u32 v{vTr0}, v{t1}, 6, v{vTr0}")
    a(f"s_lshl_b32 s{sT0}, s{sCH}, 6")
    a(f"v_xor_b32 v{vTrQ}, s{sT0}, v{vTr0}")
    a(f"v_add_u32 v{vTrQ}, {RING+8192}, v{vTrQ}")
    a(f"v_xor_b32 v{vTr1}, 64, v{vTr0}")
    a(f"s_lshl_b32 s{sT0}, s{sCH}, 12")
    a(f"s_add_u32 s{sT0}, s{sT0}, {RING}")
    a(f"v_add_u32 v{vTr0}, s{sT0}, v{vTr0}")
    a(f"v_add_u32 v{vTr1}, s{sT0}, v{vTr1}")
    a.c("x fragment address")
    a(f"v_and_b32 v{t1}, 31, v{vLane}")
    a(f"s_lshl_b32 s{sT0}, s{sTT}, 5")
    a(f"v_add_u32 v{t1}, s{sT0}, v{t1}")
    a(f"v_mul_u32_u24 v{vXa}, {XROW}, v{t1}")
    a(f"v_lshl_add_u32 v{vXa}, v{t2}, 4, v{vXa}")
    a.c("dma lane pattern: row=lane>>3, chunk=(lane&7)^(((lane>>4)&1)<<2)")
    a(f"v_bfe_u32 v{t1}, v{vLane}, 4, 1")
    a(f"v_lshlrev_b32 v{t1}, 2, v{t1}")
    a(f"v_and_b32 v{i_}, 7, v{vLane}")
    a(f"v_xor_b32 v{t1}, v{t1}, v{i_}")
    a(f"v_lshlrev_b32 v{t1}, 4, v{t1}")
    a(f"v_lshrrev_b32 v{vT+3}, 3, v{vLane}")
    a(f"s_and_b32 s{sT0}, s{sW}, 1")
    a(f"s_lshl_b32 s{sT0}, s{sT0}, 3")
    a(f"v_add_u32 v{vT+3}, s{sT0}, v{vT+3}")
    a(f"s_lshl_b32 s{sRingA}, s{sW}, 10")
    a(f"s_add_u32 s{sRingA}, s{sRingA}, {RING}")
    a(f"s_cmp_ge_u32 s{sCG}, 14")
    a(f"s_cbranch_scc1 K1_pathV")
    a.c("path A setup")
    a(f"s_bitcmp1_b32 s{sW}, 1")
    a(f"s_cselect_b32 s{SWA}, s10, s8")
    a(f"s_cselect_b32 s{SWA+1}, s11, s9")
    a(f"s_and_b32 s{SWA+1}, s{SWA+1}, 0xffff")
    a(f"s_mov_b32 s{SWA+2}, {448*3584}")
    a(f"s_mov_b32 s{SWA+3}, 0x20000")
    a.srd(SWS, 12, WS_END)
    a(f"s_mov_b32 s{sStepA}, {16*3584}")
    a(f"v_mul_u32_u24 v{vOffA}, 3584, v{vT+3}")
    a(f"v_add_u32 v{vOffA}, v{vOffA}, v{t1}")
    a(f"s_lshl_b32 s{sOffA}, s{sCG}, 1")
    a(f"s_add_u32 s{sOffA}, s{sOffA}, s{sCH}")
    a(f"s_lshl_b32 s{sOffA}, s{sOffA}, 7")
    a(f"v_lshrrev_b32 v{vT+3}, 3, v{vLane}")
    a(f"s_lshl_b32 s{sT0}, s{sW}, 1")
    a(f"v_add_u32 v{vT+3}, s{sT0}, v{vT+3}")
    a(f"v_mul_u32_u24 v{vOffQ}, 2688, v{vT+3}")
    a(f"s_and_b32 s{sT0}, s{sW}, 1")
    a(f"s_lshl_b32 s{sT0}, s{sT0}, 2")
    a(f"v_xor_b32 v{t1}, s{sT0}, v{i_}")
    a(f"v_lshl_add_u32 v{vOffQ}, v{t1}, 4, v{vOffQ}")
    a(f"s_lshl_b32 s{sOffQ}, s{sCG}, 7")
    a(f"s_lshl_b32 s{sRingQ}, s{sW}, 8")
    a(f"s_add_u32 s{sRingQ}, s{sRingQ}, {RING+8192}")
    def stA():
        a.c("Q/K store addresses")
        a(f"s_cmp_lt_u32 s{sCG}, 7")
        a(f"s_cselect_b32 s{sT0}, 0, 7")
        a(f"s_sub_u32 s{sT0}, s{sCG}, s{sT0}")
        a(f"s_lshl_b32 s{sT0}, s{sT0}, 1")
        a(f"s_add_u32 s{sT0}, s{sT0}, s{sCH}")
        a(f"s_cmp_lt_u32 s{sCG}, 7")
        a(f"s_cselect_b32 s{sT1}, 17, 18")
        a(f"s_cselect_b32 s{sT2}, 11, 12")
        a(f"s_cselect_b32 s{sT3}, {WS_Q}, {WS_KV}")
        a(f"s_lshl_b32 s{sT2}, s{sTile}, s{sT2}")
        a(f"s_add_u32 s{sT3}, s{sT3}, s{sT2}")
        a(f"v_and_b32 v{vT+4}, 31, v{vLane}")
        a(f"v_lshlrev_b32 v{vT+4}, 4, v{vT+4}")
        a(f"v_add_u32 v{vT+4}, s{sT3}, v{vT+4}")
        a(f"s_lshl_b32 s{sT2}, s{sT0}, 3")
        a(f"v_add_u32 v{vT+5}, s{sT2}, v{t2}")
        for aa in range(4):
            g4, hd, dq, x = vT + 6, vT + 7, vT + 8, vT + 9
            a(f"v_add_u32 v{g4}, {2*aa}, v{vT+5}")
            a(f"v_mul_u32_u24 v{hd}, 147, v{g4}")
            a(f"v_lshrrev_b32 v{hd}, 10, v{hd}")
            a(f"v_mul_u32_u24 v{dq}, 7, v{hd}")
            a(f"v_sub_u32 v{dq}, v{g4}, v{dq}")
            a(f"v_lshlrev_b32 v{hd}, s{sT1}, v{hd}")
            a(f"v_add_u32 v{vSt+aa}, v{hd}, v{vT+4}")
            a(f"v_lshrrev_b32 v{x}, 2, v{dq}")
            a(f"v_lshl_add_u32 v{vSt+aa}, v{x}, 10, v{vSt+aa}")
            a(f"v_and_b32 v{x}, 1, v{dq}")
            a(f"v_lshl_add_u32 v{vSt+aa}, v{x}, 9, v{vSt+aa}")
            a(f"v_bfe_u32 v{x}, v{dq}, 1, 1")
            a(f"v_lshl_add_u32 v{vSt+aa}, v{x}, 3, v{vSt+aa}")
        a(f"v_mul_u32_u24 v{vT+6}, 14, v{t2}")
        a(f"v_add_u32 v{vT+6}, s{sT0}, v{vT+6}")
        a(f"v_min_u32 v{vT+6}, 15, v{vT+6}")
        a(f"v_lshlrev_b32 v{vT+6}, s{sT1}, v{vT+6}")
        a(f"v_add_u32 v{vSt+4}, v{vT+6}, v{vT+4}")
        a(f"v_add_u32 v{vSt+4}, {1024+512+8}, v{vSt+4}")
    body(a, "A", stA)
    a.label("K1_pathV")
    a.srd(SWA, 6, 448 * 2688)
    a.srd(SWS, 12, WS_KV + (4 << 20))
    a(f"s_mov_b32 s{sStepA}, {16*2688}")
    a(f"v_mul_u32_u24 v{vOffA}, 2688, v{vT+3}")
    a(f"v_add_u32 v{vOffA}, v{vOffA}, v{t1}")
    a(f"s_sub_u32 s{sT0}, s{sCG}, 14")
    a(f"s_lshl_b32 s{sT0}, s{sT0}, 2")
    a(f"s_lshr_b32 s{sT1}, s{sW}, 1")
    a(f"s_add_u32 s{sOffA}, s{sT0}, s{sT1}")
    a(f"s_add_u32 s{sOffA}, s{sOffA}, 14")
    a(f"s_lshl_b32 s{sOffA}, s{sOffA}, 7")
    def stV():
        a(f"s_lshl_b32 s{sT1}, s{sCH}, 1")
        a(f"s_add_u32 s{sT0}, s{sT0}, s{sT1}")
        a(f"s_lshl_b32 s{sT0}, s{sT0}, 6")
        a(f"v_and_b32 v{vT+4}, 31, v{vLane}")
        a(f"v_add_u32 v{vT+4}, s{sT0}, v{vT+4}")
        a(f"s_lshl_b32 s{sT2}, s{sTile}, 12")
        a(f"s_add_u32 s{sT2}, s{sT2}, {WS_KV+2048}")
        a(f"v_lshlrev_b32 v{vT+5}, 9, v{t2}")
        a(f"v_add_u32 v{vT+5}, s{sT2}, v{vT+5}")
        for j in range(4):
            c, hd, d = vT + 6, vT + 7, vT + 8
            a(f"v_add_u32 v{c}, {32*j}, v{vT+4}")
            a(f"v_mul_u32_u24 v{hd}, 2341, v{c}")
            a(f"v_lshrrev_b32 v{hd}, 16, v{hd}")
            a(f"v_mul_u32_u24 v{d}, 28, v{hd}")
            a(f"v_sub_u32 v{d}, v{c}, v{d}")
            a(f"v_lshl_add_u32 v{vSt+j}, v{hd}, 18, v{vT+5}")
            a(f"v_lshl_add_u32 v{vSt+j}, v{d}, 4, v{vSt+j}")
    body(a, "V", stV)
    a.label("K1_exit")
    a("s_endpgm")
    return kernel_header(name) + a.text(), kernel_desc(name, 208, 64), LDS_K1
```

```python
from asmlib import *
from consts import *

NB = 4
SQ, SKV, SKH, SO = 8, 12, 16, 20
sW, sHead, sQB, sOff, sCnt, sT0, sT1, sMask = 24, 25, 26, 27, 28, 29, 30, 31
sVM = 32
sUP = 34
vL16 = 1
vT = 2
QF = 16
KV = 48
SS = KV + 16 * NB
PP = SS + 32
OO = PP + 16
NV = OO + 64
LDS_K2 = 65536

def mf(d, a, b, c):
    cs = "0" if c is None else f"v[{c}:{c+15}]"
    return f"v_mfma_f32_32x32x16_bf16 v[{d}:{d+15}], v[{a}:{a+3}], v[{b}:{b+3}], {cs}"

def kvload(a, kb, srd, soff):
    b = KV + 16 * kb
    a(f"buffer_load_dwordx4 v[{b}:{b+3}], v{vL16}, s[{srd}:{srd+3}], {soff} offen")
    a(f"buffer_load_dwordx4 v[{b+4}:{b+7}], v{vL16}, s[{srd}:{srd+3}], {soff} offen offset:1024")
    a(f"s_mov_b64 exec, s[{sVM}:{sVM+1}]")
    a(f"buffer_load_dwordx4 v[{b+8}:{b+11}], v{vL16}, s[{srd}:{srd+3}], {soff} offen offset:2048")
    a(f"buffer_load_dwordx4 v[{b+12}:{b+15}], v{vL16}, s[{srd}:{srd+3}], {soff} offen offset:3072")
    a(f"s_mov_b64 exec, -1")

def maxtree(a, src, dst, first=True):
    if first:
        a(f"v_max3_f32 v{dst}, v{src}, v{src+1}, v{src+2}")
        for i in range(3, 15, 2):
            a(f"v_max3_f32 v{dst}, v{dst}, v{src+i}, v{src+i+1}")
        a(f"v_max_f32 v{dst}, v{dst}, v{src+15}")
    else:
        for i in range(0, 16, 2):
            a(f"v_max3_f32 v{dst}, v{dst}, v{src+i}, v{src+i+1}")

def setpads(a, ms, qs):
    n = len(ms)
    for m in ms: a(f"v_mov_b32 v{m+4}, v{m}")
    a("s_nop 1")
    for m in ms: a(f"v_permlane32_swap_b32 v{m}, v{m+4}")
    a("s_nop 0")
    for m in ms: a(f"v_max_f32 v{m}, v{m}, v{m+4}")
    a(f"s_mov_b64 exec, s[{sUP}:{sUP+1}]")
    for m, q in zip(ms, qs):
        a(f"v_sub_f32 v{m}, 0, v{m}")
        a(f"v_and_b32 v{m+4}, s{sMask}, v{m}")
        a(f"v_sub_f32 v{m+4}, v{m}, v{m+4}")
        a(f"v_lshrrev_b32 v{m}, 16, v{m}")
        a(f"v_and_b32 v{m+8}, s{sMask}, v{m+4}")
        a(f"v_or_b32 v{q+6}, v{m}, v{m+8}")
        a(f"v_sub_f32 v{m+4}, v{m+4}, v{m+8}")
        a(f"v_lshrrev_b32 v{q+7}, 16, v{m+4}")
    a("s_mov_b64 exec, -1")

def expcvt(S, P, g):
    o = [f"v_exp_f32 v{S+4*g+k}, v{S+4*g+k}" for k in range(4)]
    o += [f"v_cvt_pk_bf16_f32 v{P+2*g+k}, v{S+4*g+2*k}, v{S+4*g+2*k+1}" for k in range(2)]
    return o

def gen_k2(name):
    a = Asm()
    a("s_cmp_ge_u32 s2, 256")
    a("s_cbranch_scc1 K2_exit")
    a.stamp(0)
    a("s_load_dwordx2 s[4:5], s[0:1], 72")
    a(f"v_lshrrev_b32 v{vT}, 6, v0")
    a(f"v_and_b32 v{vL16}, 63, v0")
    a(f"v_readfirstlane_b32 s{sW}, v{vT}")
    a(f"v_lshlrev_b32 v{vL16}, 4, v{vL16}")
    a(f"s_and_b32 s{sHead}, s2, 7")
    a(f"s_lshl_b32 s{sHead}, s{sHead}, 1")
    a(f"s_bfe_u32 s{sT0}, s2, 0x10003")
    a(f"s_add_u32 s{sHead}, s{sHead}, s{sT0}")
    a(f"s_lshr_b32 s{sQB}, s2, 4")
    a(f"s_mov_b32 s{sMask}, 0xffff0000")
    a(f"s_mov_b32 s{sVM}, 0x0fffffff")
    a(f"s_mov_b32 s{sVM+1}, 0x0fffffff")
    a(f"s_mov_b32 s{sUP}, 0")
    a(f"s_mov_b32 s{sUP+1}, -1")
    for kb in range(NB):
        for i in range(8):
            a(f"v_mov_b32 v{KV+16*kb+8+i}, 0x3f803f80")
    a(f"s_lshl_b32 s{sT0}, s{sHead}, 17")
    a(f"s_lshl_b32 s{sT1}, s{sQB}, 13")
    a(f"s_add_u32 s{sT0}, s{sT0}, s{sT1}")
    a(f"s_lshl_b32 s{sT1}, s{sHead}, 18")
    a(f"s_add_u32 s{sT1}, s{sT1}, {WS_KV}")
    a("s_waitcnt lgkmcnt(0)")
    a("s_and_b32 s5, s5, 0xffff")
    a(f"s_add_u32 s{SQ}, s4, s{sT0}")
    a(f"s_addc_u32 s{SQ+1}, s5, 0")
    a(f"s_mov_b32 s{SQ+2}, 8192")
    a(f"s_mov_b32 s{SQ+3}, 0x20000")
    a(f"s_add_u32 s{SKH}, s4, s{sT1}")
    a(f"s_addc_u32 s{SKH+1}, s5, 0")
    a(f"s_mov_b32 s{SKH+2}, 262144")
    a(f"s_mov_b32 s{SKH+3}, 0x20000")
    a.c("K tile 0 of the head + Q")
    a(f"buffer_load_dwordx4 v[{PP}:{PP+3}], v{vL16}, s[{SKH}:{SKH+3}], 0 offen")
    a(f"buffer_load_dwordx4 v[{PP+4}:{PP+7}], v{vL16}, s[{SKH}:{SKH+3}], 0 offen offset:1024")
    a(f"s_movk_i32 s{sT0}, 4096")
    for i in range(8):
        so = "0" if i < 4 else f"s{sT0}"
        a(f"buffer_load_dwordx4 v[{QF+4*i}:{QF+4*i+3}], v{vL16}, s[{SQ}:{SQ+3}], {so} offen offset:{(i&3)*1024}")
    a(f"s_lshl_b32 s{sT1}, s{sW}, 16")
    a(f"s_add_u32 s{SKV}, s{SKH}, s{sT1}")
    a(f"s_addc_u32 s{SKV+1}, s{SKH+1}, 0")
    a(f"s_mov_b32 s{SKV+2}, 65536")
    a(f"s_mov_b32 s{SKV+3}, 0x20000")
    a(f"s_mov_b32 s{sOff}, 0")
    for kb in range(NB - 1):
        kvload(a, kb, SKV, f"s{sOff}")
        a(f"s_add_u32 s{sOff}, s{sOff}, 4096")
    a(f"s_add_u32 s{SO}, s4, {WS_O}")
    a(f"s_addc_u32 s{SO+1}, s5, 0")
    a(f"s_mov_b32 s{SO+2}, {2<<20}")
    a(f"s_mov_b32 s{SO+3}, 0x20000")
    a.stamp(1)
    a(f"s_waitcnt vmcnt({4*(NB-1)})")
    a.stamp(2)
    a(f"s_mov_b64 exec, s[{sUP}:{sUP+1}]")
    for qt in range(4):
        a(f"v_mov_b32 v{QF+8*qt+6}, 0")
        a(f"v_mov_b32 v{QF+8*qt+7}, 0")
    a("s_mov_b64 exec, -1")
    a("s_nop 1")
    for qt in range(4):
        a(mf(OO + 16 * qt, PP, QF + 8 * qt, None))
        a(mf(OO + 16 * qt, PP + 4, QF + 8 * qt + 4, OO + 16 * qt))
    a("s_nop 7")
    for i in range(8):
        a(f"v_mov_b32 v{PP+8+i}, 0")
    for qt in range(4):
        maxtree(a, OO + 16 * qt, vT + qt)
    setpads(a, [vT + qt for qt in range(4)], [QF + 8 * qt for qt in range(4)])
    a(f"s_waitcnt vmcnt({4*(NB-2)})")
    a(mf(SS, KV, QF, None))
    a(mf(SS, KV + 4, QF + 4, SS))
    for i in range(64):
        a(f"v_mov_b32 v{OO+i}, 0")
    a.stamp(3)
    a(f"s_mov_b32 s{sCnt}, {16//NB}")
    a.label("K2_loop")
    for kb in range(NB):
        for qt in range(4):
            n = kb * 4 + qt
            cur, nxt = SS + 16 * (n & 1), SS + 16 * ((n + 1) & 1)
            pc, pp = PP + 8 * (n & 1), PP + 8 * ((n + 1) & 1)
            nkb, nqt = (kb, qt + 1) if qt < 3 else ((kb + 1) % NB, 0)
            pkb, pqt = (kb, qt - 1) if qt > 0 else ((kb - 1) % NB, 3)
            if qt == 3:
                a(f"s_waitcnt vmcnt({4*(NB-2)})")
            K = KV + 16 * nkb
            V = KV + 16 * pkb + 8
            O = OO + 16 * pqt
            mm = [mf(nxt, K, QF + 8 * nqt, None), mf(nxt, K + 4, QF + 8 * nqt + 4, nxt),
                  mf(O, V, pp, O), mf(O, V + 4, pp + 4, O)]
            for g in range(4):
                a(mm[g])
                if g == 3 and qt == 0:
                    kvload(a, pkb, SKV, f"s{sOff}")
                    a(f"s_add_u32 s{sOff}, s{sOff}, 4096")
                if g == 3 and n == 4 * NB - 1:
                    a(f"s_sub_u32 s{sCnt}, s{sCnt}, 1")
                    a(f"s_cmp_lg_u32 s{sCnt}, 0")
                for l in expcvt(cur, pc, g):
                    a(l)
    a("s_cbranch_scc1 K2_loop")
    a.stamp(4)
    V = KV + 16 * (NB - 1) + 8
    O = OO + 48
    a("s_nop 0")
    a(mf(O, V, PP + 8, O))
    a(mf(O, V + 4, PP + 12, O))
    a.c("combine the four key ranges through LDS")
    a(f"s_lshl_b32 s{sT0}, s{sW}, 14")
    a(f"v_add_u32 v{vT}, s{sT0}, v{vL16}")
    a(f"s_lshl_b32 s{sT0}, s{sW}, 12")
    a(f"v_add_u32 v{vT+1}, s{sT0}, v{vL16}")
    for i in range(12):
        a(f"ds_write_b128 v{vT}, v[{OO+4*i}:{OO+4*i+3}] offset:{1024*i}")
    a("s_nop 1")
    for i in range(12, 16):
        a(f"ds_write_b128 v{vT}, v[{OO+4*i}:{OO+4*i+3}] offset:{1024*i}")
    a(f"s_lshl_b32 s{sT0}, s{sQB}, 2")
    a(f"s_add_u32 s{sT0}, s{sT0}, s{sW}")
    a(f"s_lshl_b32 s{sT0}, s{sT0}, 4")
    a(f"s_add_u32 s{sT0}, s{sT0}, s{sHead}")
    a(f"s_lshl_b32 s{sT0}, s{sT0}, 11")
    a("s_waitcnt lgkmcnt(0)")
    a.stamp(5)
    a("s_barrier")
    a.stamp(6)
    R = SS
    for w in range(4):
        dst = R if w == 0 else OO + 16 * w
        for aa in range(4):
            a(f"ds_read_b128 v[{dst+4*aa}:{dst+4*aa+3}], v{vT+1} offset:{16384*w+1024*aa}")
        if w == 2:
            a("s_waitcnt lgkmcnt(4)")
            for i in range(16): a(f"v_add_f32 v{R+i}, v{R+i}, v{OO+16+i}")
    a("s_waitcnt lgkmcnt(4)")
    for i in range(16): a(f"v_add_f32 v{R+i}, v{R+i}, v{OO+32+i}")
    a("s_waitcnt lgkmcnt(0)")
    for i in range(16): a(f"v_add_f32 v{R+i}, v{R+i}, v{OO+48+i}")
    a.c("overflow check of the first-tile shift: every value finite and below 2^100, else redo with the true row max")
    a(f"v_add_f32 v{vT+2}, abs(v{R}), abs(v{R+1})")
    for i in range(2, 16):
        a(f"v_add_f32 v{vT+2}, v{vT+2}, abs(v{R+i})")
    a(f"v_cmp_gt_f32 vcc, {fhex(2.0**100)}, v{vT+2}")
    a("s_cmp_eq_u64 vcc, -1")
    a("s_cbranch_scc0 K2_slow")
    a.label("K2_fin")
    a(f"v_mov_b32 v{vT+2}, v{R+12}")
    a(f"v_mov_b32 v{vT+3}, v{R+12}")
    a("s_nop 1")
    a(f"v_permlane32_swap_b32 v{vT+2}, v{vT+3}")
    a("s_nop 0")
    a(f"v_rcp_f32 v{vT+3}, v{vT+3}")
    a(f"s_mov_b64 exec, s[{sUP}:{sUP+1}]")
    for i in range(12, 16): a(f"v_mov_b32 v{R+i}, 0")
    a("s_mov_b64 exec, -1")
    for i in range(16): a(f"v_mul_f32 v{R+i}, v{R+i}, v{vT+3}")
    for i in range(8): a(f"v_cvt_pk_bf16_f32 v{PP+i}, v{R+2*i}, v{R+2*i+1}")
    a(f"buffer_store_dwordx4 v[{PP}:{PP+3}], v{vL16}, s[{SO}:{SO+3}], s{sT0} offen")
    a(f"buffer_store_dwordx4 v[{PP+4}:{PP+7}], v{vL16}, s[{SO}:{SO+3}], s{sT0} offen offset:1024")
    a.stamp(7)
    a.stamp_flush(8, 1, sW, 4)
    a.label("K2_exit")
    a("s_endpgm")
    a.label("K2_slow")
    S2 = SS + 16
    a(f"s_lshl_b32 s{sT1}, s{sW}, 11")
    a(f"buffer_load_dwordx4 v[{QF}:{QF+3}], v{vL16}, s[{SQ}:{SQ+3}], s{sT1} offen")
    a(f"buffer_load_dwordx4 v[{QF+4}:{QF+7}], v{vL16}, s[{SQ}:{SQ+3}], s{sT1} offen offset:1024")
    a(f"v_mov_b32 v{vT+2}, 0xff800000")
    a(f"s_mov_b32 s{sOff}, 0")
    a("s_waitcnt vmcnt(0)")
    a(f"s_mov_b64 exec, s[{sUP}:{sUP+1}]")
    a(f"v_mov_b32 v{QF+6}, 0")
    a(f"v_mov_b32 v{QF+7}, 0")
    a("s_mov_b64 exec, -1")
    a.label("K2_sl1")
    kvload(a, 0, SKH, f"s{sOff}")
    a(f"s_add_u32 s{sOff}, s{sOff}, 4096")
    a("s_waitcnt vmcnt(0)")
    a(mf(S2, KV, QF, None))
    a(mf(S2, KV + 4, QF + 4, S2))
    a("s_nop 15")
    maxtree(a, S2, vT + 2, first=False)
    a(f"s_cmp_lt_u32 s{sOff}, 262144")
    a("s_cbranch_scc1 K2_sl1")
    setpads(a, [vT + 2], [QF])
    for i in range(16): a(f"v_mov_b32 v{R+i}, 0")
    a(f"s_mov_b32 s{sOff}, 0")
    a.label("K2_sl2")
    kvload(a, 0, SKH, f"s{sOff}")
    a(f"s_add_u32 s{sOff}, s{sOff}, 4096")
    a("s_waitcnt vmcnt(0)")
    a(mf(S2, KV, QF, None))
    a(mf(S2, KV + 4, QF + 4, S2))
    a("s_nop 15")
    for g in range(4):
        for l in expcvt(S2, PP, g): a(l)
    a("s_nop 1")
    a(mf(R, KV + 8, PP, R))
    a(mf(R, KV + 12, PP + 4, R))
    a(f"s_cmp_lt_u32 s{sOff}, 262144")
    a("s_cbranch_scc1 K2_sl2")
    a("s_nop 15")
    a("s_branch K2_fin")
    return kernel_header(name) + a.text(), kernel_desc(name, NV, 48), LDS_K2
```

```python
from asmlib import *
from consts import *

RD = 4
RW = 17408
LDS_K3 = 8 * RW
SWD, SWO, SWS, SX, SOUT = 16, 20, 24, 28, 32
sW, sMT, sNT, sT0, sT1, sT2, sRing, sWoff, sA0, sA1, sMask = 36, 37, 38, 39, 40, 41, 42, 43, 44, 45, 46
sO0, sO1, sWoffO = 47, 48, 49
vLane, vL16, vTr0, vTr1, vXo = 1, 2, 3, 4, 5
vOff = 6
vT = 10
XR = 28
ACT = 32
WF = 96
ACC = 128

def mf(d, a, b, c):
    cs = "0" if c is None else f"v[{c}:{c+15}]"
    return f"v_mfma_f32_32x32x16_bf16 v[{d}:{d+15}], v[{a}:{a+3}], v[{b}:{b+3}], {cs}"

def loads(a, u):
    slot = u % RD
    hpart = u < 7
    srd = SWD if hpart else SWO
    so = sWoff if hpart else sWoffO
    a(f"s_add_u32 m0, s{sRing}, {slot*4096}")
    a0, a1 = (sA0, sA1) if hpart else (sO0, sO1)
    b = ACT + 16 * slot
    a(f"buffer_load_dwordx4 v[{b}:{b+3}], v{vL16}, s[{SWS}:{SWS+3}], s{a0} offen")
    for i in range(4):
        a(f"buffer_load_dwordx4 v{vOff+i}, s[{srd}:{srd+3}], s{so} offen offset:{1024*i} lds")
    a(f"buffer_load_dwordx4 v[{b+4}:{b+7}], v{vL16}, s[{SWS}:{SWS+3}], s{a0} offen offset:1024")
    a(f"buffer_load_dwordx4 v[{b+8}:{b+11}], v{vL16}, s[{SWS}:{SWS+3}], s{a1} offen")
    a(f"buffer_load_dwordx4 v[{b+12}:{b+15}], v{vL16}, s[{SWS}:{SWS+3}], s{a1} offen offset:1024")
    a(f"s_add_u32 s{so}, s{so}, {(32 if hpart else 28)*896}")
    a(f"s_add_u32 s{a0}, s{a0}, 2048")
    a(f"s_add_u32 s{a1}, s{a1}, 2048")

def gen_k3(name):
    a = Asm()
    a("s_cmp_ge_u32 s2, 224")
    a("s_cbranch_scc1 K3_exit")
    a.stamp(0)
    a("s_load_dwordx2 s[4:5], s[0:1], 0")
    a("s_load_dwordx2 s[6:7], s[0:1], 16")
    a("s_load_dwordx4 s[8:11], s[0:1], 48")
    a("s_load_dwordx2 s[12:13], s[0:1], 72")
    a(f"v_lshrrev_b32 v{vT}, 6, v0")
    a(f"v_and_b32 v{vLane}, 63, v0")
    a(f"v_readfirstlane_b32 s{sW}, v{vT}")
    a(f"v_lshlrev_b32 v{vL16}, 4, v{vLane}")
    a(f"s_and_b32 s{sMT}, s2, 7")
    a(f"s_lshl_b32 s{sMT}, s{sMT}, 2")
    a(f"s_bfe_u32 s{sT0}, s2, 0x20003")
    a(f"s_add_u32 s{sMT}, s{sMT}, s{sT0}")
    a(f"s_lshr_b32 s{sNT}, s2, 5")
    a(f"s_mov_b32 s{sMask}, 0xffff0000")
    a(f"s_mul_i32 s{sRing}, s{sW}, {RW}")
    t1, t2 = vT, vT + 1
    a(f"v_bfe_u32 v{t1}, v{vLane}, 4, 1")
    a(f"v_lshlrev_b32 v{t1}, 2, v{t1}")
    a(f"v_and_b32 v{t2}, 7, v{vLane}")
    a(f"v_xor_b32 v{t1}, v{t1}, v{t2}")
    a(f"v_lshrrev_b32 v{vT+2}, 3, v{vLane}")
    a(f"v_mul_u32_u24 v{vOff}, 896, v{vT+2}")
    a(f"v_lshl_add_u32 v{vXo}, v{t2}, 4, v{vOff}")
    a(f"v_lshl_add_u32 v{vOff}, v{t1}, 4, v{vOff}")
    for i in range(1, 4):
        a(f"v_add_u32 v{vOff+i}, {i*(7168-1024)}, v{vOff}")
    a(f"s_lshl_b32 s{sT0}, s{sNT}, 7")
    a(f"s_mul_i32 s{sWoff}, s{sW}, {7*32*896}")
    a(f"s_add_u32 s{sWoff}, s{sWoff}, s{sT0}")
    a(f"s_mul_i32 s{sWoffO}, s{sW}, {2*28*896}")
    a(f"s_add_u32 s{sWoffO}, s{sWoffO}, s{sT0}")
    a(f"s_mul_i32 s{sA0}, s{sMT}, {2*112*1024}")
    a(f"s_mul_i32 s{sT1}, s{sW}, {14*1024}")
    a(f"s_add_u32 s{sA0}, s{sA0}, s{sT1}")
    a(f"s_add_u32 s{sA0}, s{sA0}, {WS_H}")
    a(f"s_add_u32 s{sA1}, s{sA0}, {112*1024}")
    a(f"s_lshl_b32 s{sO0}, s{sMT}, 16")
    a(f"s_lshl_b32 s{sT1}, s{sW}, 12")
    a(f"s_add_u32 s{sO0}, s{sO0}, s{sT1}")
    a(f"s_add_u32 s{sO0}, s{sO0}, {WS_O}")
    a(f"s_add_u32 s{sO1}, s{sO0}, {32*1024}")
    a(f"s_lshl_b32 s{sT1}, s{sMT}, 3")
    a(f"s_add_u32 s{sT1}, s{sT1}, s{sW}")
    a(f"s_mul_i32 s{sT1}, s{sT1}, {8*896}")
    a(f"s_add_u32 s{sT2}, s{sT1}, s{sT0}")
    a("s_waitcnt lgkmcnt(0)")
    a.srd(SWD, 8, 1792 * 896)
    a.srd(SWS, 12, WS_END)
    a.srd(SX, 4, 2048 * 896)
    a(f"buffer_load_dwordx4 v[{XR}:{XR+3}], v{vXo}, s[{SX}:{SX+3}], s{sT2} offen")
    for u in range(RD):
        loads(a, u)
    a.srd(SWO, 6, 448 * 896)
    a.srd(SOUT, 10, 2048 * 896)
    a.c("tr-read addresses")
    i_ = vT + 2
    a(f"v_and_b32 v{i_}, 15, v{vLane}")
    a(f"v_lshrrev_b32 v{t1}, 2, v{i_}")
    a(f"v_lshrrev_b32 v{t2}, 5, v{vLane}")
    a(f"v_lshl_add_u32 v{t1}, v{t2}, 2, v{t1}")
    a(f"v_lshlrev_b32 v{vTr0}, 7, v{t1}")
    a(f"v_bfe_u32 v{t1}, v{vLane}, 4, 1")
    a(f"v_lshl_add_u32 v{vTr0}, v{t1}, 5, v{vTr0}")
    a(f"v_and_b32 v{t1}, 3, v{i_}")
    a(f"v_lshl_add_u32 v{vTr0}, v{t1}, 3, v{vTr0}")
    a(f"v_bfe_u32 v{t1}, v{i_}, 3, 1")
    a(f"v_lshl_add_u32 v{vTr0}, v{t1}, 6, v{vTr0}")
    a(f"v_xor_b32 v{vTr1}, 64, v{vTr0}")
    a(f"v_add_u32 v{vTr0}, s{sRing}, v{vTr0}")
    a(f"v_add_u32 v{vTr1}, s{sRing}, v{vTr1}")
    NU = 9
    for u in range(NU):
        slot = u % RD
        left = min(NU - 1, u + RD - 1) - u
        if u == 0: a.stamp(1)
        a(f"s_waitcnt vmcnt({8*left})")
        if u == 0: a.stamp(2)
        if u == 4: a.stamp(3)
        wf = WF + 16 * (u & 1)
        for s in range(2):
            for tau in range(2):
                for t in range(2):
                    d = wf + 8 * s + 4 * tau + 2 * t
                    a(f"ds_read_b64_tr_b16 v[{d}:{d+1}], v{vTr0 if tau == 0 else vTr1} offset:{slot*4096+s*2048+t*1024}")
        for s in range(2):
            a(f"s_waitcnt lgkmcnt({4 if s == 0 else 0})")
            for tau in range(2):
                for tt in range(2):
                    acc = ACC + 16 * (tt * 2 + tau)
                    a(mf(acc, wf + 8 * s + 4 * tau, ACT + 16 * slot + 8 * tt + 4 * s, None if (u == 0 and s == 0) else acc))
        if u + RD < NU:
            loads(a, u + RD)
    a.stamp(4)
    a.c("cross-wave reduction")
    a(f"v_add_u32 v{vT}, s{sRing}, v{vL16}")
    a(f"v_and_b32 v{vT+1}, 7, v{vLane}")
    a(f"s_lshr_b32 s{sT0}, s{sW}, 2")
    a(f"s_lshl_b32 s{sT0}, s{sT0}, 3")
    a(f"v_add_u32 v{vT+1}, s{sT0}, v{vT+1}")
    a(f"v_mul_u32_u24 v{vT+1}, 1056, v{vT+1}")
    a(f"v_lshrrev_b32 v{vT+2}, 3, v{vLane}")
    a(f"s_and_b32 s{sT0}, s{sW}, 3")
    a(f"s_lshl_b32 s{sT0}, s{sT0}, 3")
    a(f"v_add_u32 v{vT+2}, s{sT0}, v{vT+2}")
    a(f"v_lshl_add_u32 v{vT+1}, v{vT+2}, 4, v{vT+1}")
    a(f"v_add_u32 v{vT+2}, {3*RW}, v{vT+1}")
    a(f"v_add_u32 v{vT+3}, {6*RW}, v{vT+1}")
    for i in range(16):
        a(f"ds_write_b128 v{vT}, v[{ACC+4*i}:{ACC+4*i+3}] offset:{1056*i}")
    a.c("unpack x")
    R = WF
    for i in range(4):
        a(f"v_lshlrev_b32 v{R+2*i}, 16, v{XR+i}")
        a(f"v_and_b32 v{R+2*i+1}, s{sMask}, v{XR+i}")
    a("s_waitcnt lgkmcnt(0)")
    a.stamp(5)
    a("s_barrier")
    a.stamp(6)
    for half in range(2):
        for k in range(4):
            src = half * 4 + k
            base = vT + 1 + src // 3
            off = (src % 3) * RW
            d = ACT + 8 * src
            a(f"ds_read_b128 v[{d}:{d+3}], v{base} offset:{off}")
            a(f"ds_read_b128 v[{d+4}:{d+7}], v{base} offset:{off+512}")
        if half == 0:
            a("s_waitcnt lgkmcnt(4)")
            for src in range(2):
                for i in range(8): a(f"v_add_f32 v{R+i}, v{R+i}, v{ACT+8*src+i}")
    for src in range(2, 8):
        a(f"s_waitcnt lgkmcnt({2*(7-src)})")
        for i in range(8): a(f"v_add_f32 v{R+i}, v{R+i}, v{ACT+8*src+i}")
    for i in range(4):
        a(f"v_cvt_pk_bf16_f32 v{XR+i}, v{R+2*i}, v{R+2*i+1}")
    a(f"buffer_store_dwordx4 v[{XR}:{XR+3}], v{vXo}, s[{SOUT}:{SOUT+3}], s{sT2} offen")
    a.stamp(7)
    a.stamp_flush(8, 2, sW, 8)
    a.label("K3_exit")
    a("s_endpgm")
    return kernel_header(name) + a.text(), kernel_desc(name, 192, 56), LDS_K3
```

```python
import sys
sys.path.insert(0, "gen")
from k1 import gen_k1
from k2 import gen_k2
from k3 import gen_k3

HDR = """; parallel_sum(mha_block, geglu ffn) on gfx950 -- generated by gen/gen.py
"""
def build(path):
    ks = [("k1_kernel", gen_k1, 256, 512), ("k2_kernel", gen_k2, 256, 256), ("k3_kernel", gen_k3, 224, 512)]
    code, desc, launch = "", "", ""
    for name, g, grid, blk in ks:
        c, d, lds = g(name)
        code += c
        desc += d
        launch += f"; @launch kernel={name} grid=({grid},1,1) block=({blk},1,1) lds={lds}\n"
    s = HDR + launch + '.amdgcn_target "amdgcn-amd-amdhsa--gfx950"\n.text\n' + code + '.section .rodata,"a"\n' + desc
    open(path, "w").write(s)
if __name__ == "__main__":
    import asmlib
    if "--diag" in sys.argv:
        asmlib.DIAG["on"] = True
        sys.argv.remove("--diag")
    build(sys.argv[1] if len(sys.argv) > 1 else "parallel_sum__mha_block__glu_gated_geglu__prompt.s")
```

```python
import math
WS_KQ = 0
TS = 4096
HS = 64 * TS
WS_V = 4 << 20
VT = 28672
WS_H = 6 << 20
WS_O = 14 << 20
WS_AX = 16 << 20
WS_AR = WS_AX + 32768
WS_AW = WS_AX + 65536
AW_G = 1344 * 16
AW_U = AW_G + 1792 * 16
WS_FLAG = 17 << 20
WS_END = 18 << 20
QSCALE = (28 ** -0.5) * math.log2(math.e)
```

```python
from asmlib import *
from consts import *
import p1
from p1 import OPT, sW, sRB, sCG, sTT, SWS, SDBG, sMask, vLane, vL16, vH, vZero

RW = 17408
SYNC = p1.LDS_P1
LDS_F = SYNC + 64
FQ, FH, FO = WS_FLAG, WS_FLAG + 8192, WS_FLAG + 10240

SKH, SKV, SVH, SV, SWD = 4, 8, 16, 20, 24
sHead, sQB, sOff, sOffV, sCnt = 36, 37, 38, 39, 41
sT0, sT1, sT2, sT3 = 42, 43, 44, 45
sMT, sNT, sRing = 47, 48, 49
sVM, sUP = 50, 52
sA0, sA1, sWoff = 54, 55, 40
SXO = 60
vT = 4
vZ = 15
vVo = 14
NB = 4
QF = 16
KV = 48
SS = KV + 16 * NB
PP = SS + 32
OO = PP + 16
vTr0, vTr1, vXo = 16, 17, 18
vOff = 20
XRES = 24
ACT = 32
WFG = 64
GACC = 128

def fstamp(a, i):
    if OPT.get("st", "2") == "1" and i < 7:
        return
    a.stamp(i)

def mf(d, a, b, c):
    cs = "0" if c is None else f"v[{c}:{c+15}]"
    return f"v_mfma_f32_32x32x16_bf16 v[{d}:{d+15}], v[{a}:{a+3}], v[{b}:{b+3}], {cs}"

def signal(a, name, cnt_idx, flag_soff_reg, vaddr=None):
    a(f"v_mov_b32 v{vT}, {SYNC + 4*cnt_idx}")
    a(f"v_mov_b32 v{vT+1}, 1")
    a("s_mov_b64 exec, 1")
    a("s_waitcnt vmcnt(0)")
    a(f"ds_add_rtn_u32 v{vT+2}, v{vT}, v{vT+1}")
    a("s_waitcnt lgkmcnt(0)")
    a(f"v_readfirstlane_b32 s{sT0}, v{vT+2}")
    if vaddr is not None: a("s_mov_b64 exec, 0x3ff")
    a(f"s_cmp_lg_u32 s{sT0}, 3")
    a(f"s_cbranch_scc1 {name}_ns")
    a(f"buffer_store_dword v{vT+1}, v{vZ if vaddr is None else vaddr}, s[{SWS}:{SWS+3}], s{flag_soff_reg} offen sc1")
    a.label(f"{name}_ns")
    a("s_mov_b64 exec, -1")

def poll(a, name, soff, nlanes, wide, sleep, rel_idx, poller):
    a(f"s_mov_b32 s{sT1}, 0x8000")
    a(f"v_mov_b32 v{vT+5}, {SYNC + 4*rel_idx}")
    a(f"s_cmp_lg_u32 s{sW}, {poller}")
    a(f"s_cbranch_scc1 {name}_w")
    a(f"s_mov_b64 exec, {hex((1 << nlanes) - 1)}")
    if not wide: a(f"v_lshlrev_b32 v{vT+4}, 2, v{vLane}")
    a.label(f"{name}_l")
    if wide:
        a(f"buffer_load_dwordx4 v[{vT}:{vT+3}], v{vL16}, s[{SWS}:{SWS+3}], {soff} offen sc1")
        a("s_waitcnt vmcnt(0)")
        a(f"v_and_b32 v{vT}, v{vT}, v{vT+1}")
        a(f"v_and_b32 v{vT+2}, v{vT+2}, v{vT+3}")
        a(f"v_and_b32 v{vT}, v{vT}, v{vT+2}")
    else:
        a(f"buffer_load_dword v{vT}, v{vT+4}, s[{SWS}:{SWS+3}], {soff} offen sc1")
        a("s_waitcnt vmcnt(0)")
    a(f"v_cmp_ne_u32 vcc, 1, v{vT}")
    a(f"s_cbranch_vccz {name}_p")
    a(f"s_sub_u32 s{sT1}, s{sT1}, 1")
    a(f"s_cbranch_scc1 {name}_p")
    a(f"s_sleep {sleep}")
    a(f"s_branch {name}_l")
    a.label(f"{name}_p")
    a(f"v_mov_b32 v{vT}, 1")
    a(f"ds_write_b32 v{vT+5}, v{vT}")
    a("s_mov_b64 exec, -1")
    a(f"s_branch {name}_ok")
    a.label(f"{name}_w")
    a(f"s_lshl_b32 s{sT1}, s{sT1}, 4")
    a.label(f"{name}_w2")
    a(f"ds_read_b32 v{vT}, v{vT+5}")
    a("s_waitcnt lgkmcnt(0)")
    a(f"v_readfirstlane_b32 s{sT0}, v{vT}")
    a(f"s_cmp_eq_u32 s{sT0}, 1")
    a(f"s_cbranch_scc1 {name}_ok")
    a(f"s_sub_u32 s{sT1}, s{sT1}, 1")
    a(f"s_cbranch_scc1 {name}_ok")
    a("s_sleep 1")
    a(f"s_branch {name}_w2")
    a.label(f"{name}_ok")

def kvload(a, kb, srd, sv):
    b = KV + 16 * kb
    a(f"buffer_load_dwordx4 v[{b}:{b+3}], v{vL16}, s[{srd}:{srd+3}], s{sOff} offen sc1")
    a(f"buffer_load_dwordx4 v[{b+4}:{b+7}], v{vL16}, s[{srd}:{srd+3}], s{sOff} offen offset:1024 sc1")
    a(f"s_mov_b64 exec, s[{sVM}:{sVM+1}]")
    a(f"buffer_load_dwordx4 v[{b+8}:{b+11}], v{vVo}, s[{sv}:{sv+3}], s{sOffV} offen sc1")
    a(f"s_add_u32 s{sOffV}, s{sOffV}, {VT//2}")
    a(f"buffer_load_dwordx4 v[{b+12}:{b+15}], v{vVo}, s[{sv}:{sv+3}], s{sOffV} offen sc1")
    a(f"s_mov_b64 exec, -1")
    a(f"s_add_u32 s{sOffV}, s{sOffV}, {VT//2}")
    a(f"s_add_u32 s{sOff}, s{sOff}, {TS}")

def maxtree(a, src, dst, first=True):
    if first:
        a(f"v_max3_f32 v{dst}, v{src}, v{src+1}, v{src+2}")
        for i in range(3, 15, 2):
            a(f"v_max3_f32 v{dst}, v{dst}, v{src+i}, v{src+i+1}")
        a(f"v_max_f32 v{dst}, v{dst}, v{src+15}")
    else:
        for i in range(0, 16, 2):
            a(f"v_max3_f32 v{dst}, v{dst}, v{src+i}, v{src+i+1}")

def setpads(a, ms, qs, t):
    n = len(ms)
    for i, m in enumerate(ms): a(f"v_mov_b32 v{t+i}, v{m}")
    a("s_nop 1")
    for i, m in enumerate(ms): a(f"v_permlane32_swap_b32 v{m}, v{t+i}")
    a("s_nop 0")
    for i, m in enumerate(ms): a(f"v_max_f32 v{m}, v{m}, v{t+i}")
    a(f"s_mov_b64 exec, s[{sUP}:{sUP+1}]")
    for i, (m, q) in enumerate(zip(ms, qs)):
        u, w = t + i, t + n + i
        a(f"v_sub_f32 v{m}, 0, v{m}")
        a(f"v_and_b32 v{u}, s{sMask}, v{m}")
        a(f"v_sub_f32 v{u}, v{m}, v{u}")
        a(f"v_lshrrev_b32 v{m}, 16, v{m}")
        a(f"v_and_b32 v{w}, s{sMask}, v{u}")
        a(f"v_or_b32 v{q+6}, v{m}, v{w}")
        a(f"v_sub_f32 v{u}, v{u}, v{w}")
        a(f"v_lshrrev_b32 v{q+7}, 16, v{u}")
    a("s_mov_b64 exec, -1")

def expcvt(S, P, g):
    o = [f"v_exp_f32 v{S+4*g+k}, v{S+4*g+k}" for k in range(4)]
    o += [f"v_cvt_pk_bf16_f32 v{P+2*g+k}, v{S+4*g+2*k}, v{S+4*g+2*k+1}" for k in range(2)]
    return o

def g2_ids(a):
    a(f"s_and_b32 s{sMT}, s2, 7")
    a(f"s_lshl_b32 s{sMT}, s{sMT}, 2")
    a(f"s_bfe_u32 s{sT0}, s2, 0x20003")
    a(f"s_add_u32 s{sMT}, s{sMT}, s{sT0}")
    a(f"s_lshr_b32 s{sNT}, s2, 5")
    a(f"s_mul_i32 s{sRing}, s{sW}, {RW}")

def g2_addr(a):
    t1, t2, i_ = vT, vT + 1, vT + 2
    a(f"v_bfe_u32 v{t1}, v{vLane}, 4, 1")
    a(f"v_lshlrev_b32 v{t1}, 2, v{t1}")
    a(f"v_and_b32 v{t2}, 7, v{vLane}")
    a(f"v_xor_b32 v{t1}, v{t1}, v{t2}")
    a(f"v_lshrrev_b32 v{i_}, 3, v{vLane}")
    a(f"v_mul_u32_u24 v{vOff}, 896, v{i_}")
    a(f"v_lshl_add_u32 v{vXo}, v{t2}, 4, v{vOff}")
    a(f"v_lshl_add_u32 v{vOff}, v{t1}, 4, v{vOff}")
    for i in range(1, 4):
        a(f"v_add_u32 v{vOff+i}, {i*(7168-1024)}, v{vOff}")
    a(f"v_and_b32 v{i_}, 15, v{vLane}")
    a(f"v_lshrrev_b32 v{t1}, 2, v{i_}")
    a(f"v_lshl_add_u32 v{t1}, v{vH}, 2, v{t1}")
    a(f"v_lshlrev_b32 v{vTr0}, 7, v{t1}")
    a(f"v_bfe_u32 v{t1}, v{vLane}, 4, 1")
    a(f"v_lshl_add_u32 v{vTr0}, v{t1}, 5, v{vTr0}")
    a(f"v_and_b32 v{t1}, 3, v{i_}")
    a(f"v_lshl_add_u32 v{vTr0}, v{t1}, 3, v{vTr0}")
    a(f"v_bfe_u32 v{t1}, v{i_}, 3, 1")
    a(f"v_lshl_add_u32 v{vTr0}, v{t1}, 6, v{vTr0}")
    a(f"v_xor_b32 v{vTr1}, 64, v{vTr0}")
    a(f"v_add_u32 v{vTr0}, s{sRing}, v{vTr0}")
    a(f"v_add_u32 v{vTr1}, s{sRing}, v{vTr1}")

def wdma(a, slot, step):
    a(f"s_add_u32 m0, s{sRing}, {slot*4096}")
    a("s_nop 0")
    for i in range(4):
        a(f"buffer_load_dwordx4 v{vOff+i}, s[{SWD}:{SWD+3}], s{sWoff} offen offset:{1024*i} lds")
    a(f"s_add_u32 s{sWoff}, s{sWoff}, {step}")

def actld(a, st):
    b = ACT + 16 * st
    a(f"buffer_load_dwordx4 v[{b}:{b+3}], v{vL16}, s[{SWS}:{SWS+3}], s{sA0} offen sc1")
    a(f"buffer_load_dwordx4 v[{b+4}:{b+7}], v{vL16}, s[{SWS}:{SWS+3}], s{sA0} offen offset:1024 sc1")
    a(f"buffer_load_dwordx4 v[{b+8}:{b+11}], v{vL16}, s[{SWS}:{SWS+3}], s{sA1} offen sc1")
    a(f"buffer_load_dwordx4 v[{b+12}:{b+15}], v{vL16}, s[{SWS}:{SWS+3}], s{sA1} offen offset:1024 sc1")
    a(f"s_add_u32 s{sA0}, s{sA0}, 2048")
    a(f"s_add_u32 s{sA1}, s{sA1}, 2048")

def unit(a, slot, st):
    for s in range(2):
        for tau in range(2):
            for t in range(2):
                d = WFG + 8 * s + 4 * tau + 2 * t
                a(f"ds_read_b64_tr_b16 v[{d}:{d+1}], v{vTr0 if tau == 0 else vTr1} offset:{slot*4096+s*2048+t*1024}")
    for s in range(2):
        a(f"s_waitcnt lgkmcnt({4 if s == 0 else 0})")
        for tau in range(2):
            for tt in range(2):
                acc = GACC + 16 * (tt * 2 + tau)
                a(mf(acc, WFG + 8 * s + 4 * tau, ACT + 16 * st + 8 * tt + 4 * s, acc))

def wo_setup(a):
    a(f"s_load_dwordx2 s[{SWD}:{SWD+1}], s[0:1], 16")
    a(f"s_load_dwordx2 s[{SXO}:{SXO+1}], s[0:1], 0")
    a(f"s_mul_i32 s{sWoff}, s{sW}, {2*28*896}")
    a(f"s_lshl_b32 s{sT0}, s{sNT}, 7")
    a(f"s_add_u32 s{sWoff}, s{sWoff}, s{sT0}")
    a(f"s_lshl_b32 s{sT2}, s{sMT}, 3")
    a(f"s_add_u32 s{sT2}, s{sT2}, s{sW}")
    a(f"s_mul_i32 s{sT2}, s{sT2}, {8*896}")
    a(f"s_add_u32 s{sT2}, s{sT2}, s{sT0}")
    a(f"s_mov_b32 s{SWD+2}, {448*896}")
    a(f"s_mov_b32 s{SWD+3}, 0x20000")
    a(f"s_mov_b32 s{SXO+2}, {2048*896}")
    a(f"s_mov_b32 s{SXO+3}, 0x20000")
    a("s_waitcnt lgkmcnt(0)")
    a(f"s_and_b32 s{SWD+1}, s{SWD+1}, 0xffff")
    a(f"s_and_b32 s{SXO+1}, s{SXO+1}, 0xffff")
    wdma(a, 2, 28 * 896)
    wdma(a, 3, 28 * 896)
    a(f"buffer_load_dwordx4 v[{XRES}:{XRES+3}], v{vXo}, s[{SXO}:{SXO+3}], s{sT2} offen")

def attention(a):
    a.label("F_att")
    fstamp(a, 8)
    a(f"s_and_b32 s{sHead}, s2, 7")
    a(f"s_lshl_b32 s{sHead}, s{sHead}, 1")
    a(f"s_bfe_u32 s{sT0}, s2, 0x10003")
    a(f"s_add_u32 s{sHead}, s{sHead}, s{sT0}")
    a(f"s_lshr_b32 s{sQB}, s2, 4")
    a(f"s_mov_b32 s{sVM}, 0x0fffffff")
    a(f"s_mov_b32 s{sVM+1}, 0x0fffffff")
    a(f"s_mov_b32 s{sUP}, 0")
    a(f"s_mov_b32 s{sUP+1}, -1")
    a(f"v_mov_b32 v{KV+8}, 0x3f803f80")
    a(f"v_mov_b32 v{KV+9}, 0x3f803f80")
    for kb in range(NB):
        for i in range(0, 8, 2):
            if kb or i: a(f"v_mov_b64 v[{KV+16*kb+8+i}:{KV+16*kb+9+i}], v[{KV+8}:{KV+9}]")
    a(f"v_mul_u32_u24 v{vVo}, {VT//4 - 512}, v{vH}")
    a(f"v_add_u32 v{vVo}, v{vVo}, v{vL16}")
    a(f"s_mul_i32 s{sT0}, s{sHead}, 448")
    a(f"v_add_u32 v{vVo}, s{sT0}, v{vVo}")
    a(f"s_lshl_b32 s{sT1}, s{sHead}, 18")
    a(f"s_add_u32 s{SKH}, s{SWS}, s{sT1}")
    a(f"s_addc_u32 s{SKH+1}, s{SWS+1}, 0")
    a(f"s_mov_b32 s{SKH+2}, {HS}")
    a(f"s_mov_b32 s{SKH+3}, 0x20000")
    a(f"s_lshl_b32 s{sT1}, s{sW}, 16")
    a(f"s_add_u32 s{SKV}, s{SKH}, s{sT1}")
    a(f"s_addc_u32 s{SKV+1}, s{SKH+1}, 0")
    a(f"s_mov_b32 s{SKV+2}, {16*TS}")
    a(f"s_mov_b32 s{SKV+3}, 0x20000")
    a(f"s_add_u32 s{SVH}, s{SWS}, {WS_V}")
    a(f"s_addc_u32 s{SVH+1}, s{SWS+1}, 0")
    a(f"s_mov_b32 s{SVH+2}, {64*VT}")
    a(f"s_mov_b32 s{SVH+3}, 0x20000")
    a(f"s_mul_i32 s{sT1}, s{sW}, {16*VT}")
    a(f"s_add_u32 s{SV}, s{SVH}, s{sT1}")
    a(f"s_addc_u32 s{SV+1}, s{SVH+1}, 0")
    a(f"s_mov_b32 s{SV+2}, {16*VT}")
    a(f"s_mov_b32 s{SV+3}, 0x20000")
    a(f"s_mov_b32 s{sOffV}, 0")
    a(f"s_mov_b32 s{sOff}, 0")
    for i in range(0, 8, 2):
        a(f"v_mov_b64 v[{PP+8+i}:{PP+9+i}], 0")
    g2_ids(a)
    a(f"s_lshl_b32 s{sT3}, s{sHead}, 9")
    a(f"s_add_u32 s{sT3}, s{sT3}, {FQ}")
    poll(a, "F_pq", f"s{sT3}", 24, True, int(OPT.get("sq", "8")), 3, 0)
    fstamp(a, 9)
    if OPT.get("prio", "1") == "1": a("s_setprio 1")
    a.c("K tile 0 of the head + Q (local tile j = global (w+j)&3)")
    a(f"buffer_load_dwordx4 v[{PP}:{PP+3}], v{vL16}, s[{SKH}:{SKH+3}], 0 offen sc1")
    a(f"buffer_load_dwordx4 v[{PP+4}:{PP+7}], v{vL16}, s[{SKH}:{SKH+3}], 0 offen offset:1024 sc1")
    a(f"s_lshl_b32 s{sT1}, s{sQB}, 14")
    for j in range(4):
        a(f"s_add_u32 s{sT0}, s{sW}, {j}")
        a(f"s_and_b32 s{sT0}, s{sT0}, 3")
        a(f"s_lshl_b32 s{sT0}, s{sT0}, 12")
        a(f"s_add_u32 s{sT0}, s{sT0}, s{sT1}")
        a(f"buffer_load_dwordx4 v[{QF+8*j}:{QF+8*j+3}], v{vL16}, s[{SKH}:{SKH+3}], s{sT0} offen offset:2048 sc1")
        a(f"buffer_load_dwordx4 v[{QF+8*j+4}:{QF+8*j+7}], v{vL16}, s[{SKH}:{SKH+3}], s{sT0} offen offset:3072 sc1")
    for kb in range(NB - 1):
        kvload(a, kb, SKV, SV)
    a(f"s_waitcnt vmcnt({4*(NB-1)})")
    a(f"s_mov_b64 exec, s[{sUP}:{sUP+1}]")
    for qt in range(4):
        a(f"v_mov_b64 v[{QF+8*qt+6}:{QF+8*qt+7}], 0")
    a("s_mov_b64 exec, -1")
    a("s_nop 1")
    for qt in range(4):
        a(mf(OO + 16 * qt, PP, QF + 8 * qt, None))
        a(mf(OO + 16 * qt, PP + 4, QF + 8 * qt + 4, OO + 16 * qt))
    a("s_nop 7")
    for qt in range(4):
        maxtree(a, OO + 16 * qt, vT + qt)
    a.c("O = 0 (P[1] is zero)")
    for qt in range(4):
        a(mf(OO + 16 * qt, PP + 8, PP + 8, None))
    setpads(a, [vT + qt for qt in range(4)], [QF + 8 * qt for qt in range(4)], SS + 16)
    a(f"s_waitcnt vmcnt({4*(NB-2)})")
    a(mf(SS, KV, QF, None))
    a(mf(SS, KV + 4, QF + 4, SS))
    a(f"s_mov_b32 s{sCnt}, {16//NB}")
    a("s_nop 7")
    a("s_nop 2")
    fstamp(a, 10)
    a.label("F_aloop")
    for kb in range(NB):
        for qt in range(4):
            n = kb * 4 + qt
            cur, nxt = SS + 16 * (n & 1), SS + 16 * ((n + 1) & 1)
            pc, pp = PP + 8 * (n & 1), PP + 8 * ((n + 1) & 1)
            nkb, nqt = (kb, qt + 1) if qt < 3 else ((kb + 1) % NB, 0)
            pkb, pqt = (kb, qt - 1) if qt > 0 else ((kb - 1) % NB, 3)
            if qt == 3:
                a(f"s_waitcnt vmcnt({4*(NB-2)})")
            K = KV + 16 * nkb
            V = KV + 16 * pkb + 8
            O = OO + 16 * pqt
            mm = [mf(nxt, K, QF + 8 * nqt, None), mf(nxt, K + 4, QF + 8 * nqt + 4, nxt),
                  mf(O, V, pp, O), mf(O, V + 4, pp + 4, O)]
            for g in range(4):
                a(mm[g])
                if g == 3 and qt == 0:
                    kvload(a, pkb, SKV, SV)
                if g == 3 and n == 4 * NB - 1:
                    a(f"s_sub_u32 s{sCnt}, s{sCnt}, 1")
                    a(f"s_cmp_lg_u32 s{sCnt}, 0")
                for l in expcvt(cur, pc, g):
                    a(l)
    a("s_cbranch_scc1 F_aloop")
    V = KV + 16 * (NB - 1) + 8
    O = OO + 48
    a("s_nop 0")
    a(mf(O, V, PP + 8, O))
    a(mf(O, V + 4, PP + 12, O))
    fstamp(a, 1)
    a.c("the B waves are done with the phase-1 LDS image")
    a(f"v_mov_b32 v{vT+6}, {SYNC+4}")
    a(f"s_mov_b32 s{sT1}, 0x80000")
    a.label("F_bw1")
    a(f"ds_read_b32 v{vT+6+1}, v{vT+6}")
    a("s_waitcnt lgkmcnt(0)")
    a(f"v_readfirstlane_b32 s{sT0}, v{vT+6+1}")
    a(f"s_sub_u32 s{sT1}, s{sT1}, 1")
    a(f"s_cselect_b32 s{sT0}, 4, s{sT0}")
    a(f"s_cmp_lt_u32 s{sT0}, 4")
    a("s_cbranch_scc1 F_bw1")
    a.c("send local tiles 1..3 to waves (w+j)&3, inbox slot j-1")
    for j in range(1, 4):
        a(f"s_add_u32 s{sT0}, s{sW}, {j}")
        a(f"s_and_b32 s{sT0}, s{sT0}, 3")
        a(f"s_mul_i32 s{sT0}, s{sT0}, {RW}")
        a(f"v_add_u32 v{vT+j}, s{sT0}, v{vL16}")
    for j in range(1, 4):
        for aa in range(4):
            a(f"ds_write_b128 v{vT+j}, v[{OO+16*j+4*aa}:{OO+16*j+4*aa+3}] offset:{4096*(j-1)+1024*aa}")
    a(f"v_add_u32 v{vT}, s{sRing}, v{vL16}")
    a(f"s_lshl_b32 s{sT3}, s{sQB}, 2")
    a(f"s_add_u32 s{sT3}, s{sT3}, s{sW}")
    a(f"s_lshl_b32 s{sT3}, s{sT3}, 4")
    a(f"s_add_u32 s{sT3}, s{sT3}, s{sHead}")
    a(f"s_lshl_b32 s{sT3}, s{sT3}, 11")
    a(f"s_add_u32 s{sT3}, s{sT3}, {WS_O}")
    a("s_waitcnt lgkmcnt(0)")
    a("s_barrier")
    fstamp(a, 2)
    R = OO
    for j in range(1, 4):
        for aa in range(4):
            a(f"ds_read_b128 v[{OO+16*j+4*aa}:{OO+16*j+4*aa+3}], v{vT} offset:{4096*(j-1)+1024*aa}")
    for j in range(1, 4):
        a(f"s_waitcnt lgkmcnt({4*(3-j)})")
        for i in range(16): a(f"v_add_f32 v{R+i}, v{R+i}, v{OO+16*j+i}")
    a.c("overflow check of the first-tile shift: every value finite and below 2^100, else redo with the true row max")
    a(f"v_add_f32 v{vT+2}, abs(v{R}), abs(v{R+1})")
    for i in range(2, 16):
        a(f"v_add_f32 v{vT+2}, v{vT+2}, abs(v{R+i})")
    a(f"v_cmp_gt_f32 vcc, {fhex(2.0**100)}, v{vT+2}")
    a("s_cmp_eq_u64 vcc, -1")
    a("s_cbranch_scc0 F_slow")
    a.label("F_fin")
    a(f"v_mov_b32 v{vT+2}, v{R+12}")
    a(f"v_mov_b32 v{vT+3}, v{R+12}")
    a("s_nop 1")
    a(f"v_permlane32_swap_b32 v{vT+2}, v{vT+3}")
    a("s_nop 0")
    a(f"v_rcp_f32 v{vT+3}, v{vT+3}")
    a(f"s_mov_b64 exec, s[{sUP}:{sUP+1}]")
    a(f"v_mov_b64 v[{R+12}:{R+13}], 0")
    a(f"v_mov_b64 v[{R+14}:{R+15}], 0")
    a("s_mov_b64 exec, -1")
    for i in range(16): a(f"v_mul_f32 v{R+i}, v{R+i}, v{vT+3}")
    for i in range(8): a(f"v_cvt_pk_bf16_f32 v{SS+i}, v{R+2*i}, v{R+2*i+1}")
    a(f"buffer_store_dwordx4 v[{SS}:{SS+3}], v{vL16}, s[{SWS}:{SWS+3}], s{sT3} offen sc1")
    a(f"buffer_store_dwordx4 v[{SS+4}:{SS+7}], v{vL16}, s[{SWS}:{SWS+3}], s{sT3} offen offset:1024 sc1")
    a(f"s_lshl_b32 s{sT3}, s{sQB}, 7")
    a(f"s_lshl_b32 s{sT0}, s{sHead}, 2")
    a(f"s_add_u32 s{sT3}, s{sT3}, s{sT0}")
    a(f"s_add_u32 s{sT3}, s{sT3}, {FO}")
    a.c("work for the tail while the stores fly")
    g2_addr(a)
    a(f"v_mov_b64 v[{WFG}:{WFG+1}], 0")
    a(f"v_mov_b64 v[{WFG+2}:{WFG+3}], 0")
    a("s_nop 1")
    for k in range(4):
        a(mf(GACC + 16 * k, WFG, WFG, None))
    signal(a, "F_so", 2, sT3)
    fstamp(a, 3)
    a(f"s_cmp_ge_u32 s{sNT}, 7")
    a("s_cbranch_scc1 F_end")
    wo_setup(a)
    a("s_branch F_tail")
    a.label("F_slow")
    S2 = SS + 16
    a(f"v_mov_b32 v{vT+2}, 0xff800000")
    a(f"s_mov_b32 s{sOff}, 0")
    a(f"s_mov_b32 s{sOffV}, 0")
    a(f"s_mov_b64 exec, s[{sUP}:{sUP+1}]")
    a(f"v_mov_b64 v[{QF+6}:{QF+7}], 0")
    a("s_mov_b64 exec, -1")
    a.label("F_sl1")
    kvload(a, 0, SKH, SVH)
    a("s_waitcnt vmcnt(0)")
    a(mf(S2, KV, QF, None))
    a(mf(S2, KV + 4, QF + 4, S2))
    a("s_nop 15")
    maxtree(a, S2, vT + 2, first=False)
    a(f"s_cmp_lt_u32 s{sOff}, {HS}")
    a("s_cbranch_scc1 F_sl1")
    setpads(a, [vT + 2], [QF], vT + 4)
    for i in range(0, 16, 2): a(f"v_mov_b64 v[{R+i}:{R+i+1}], 0")
    a(f"s_mov_b32 s{sOff}, 0")
    a(f"s_mov_b32 s{sOffV}, 0")
    a.label("F_sl2")
    kvload(a, 0, SKH, SVH)
    a("s_waitcnt vmcnt(0)")
    a(mf(S2, KV, QF, None))
    a(mf(S2, KV + 4, QF + 4, S2))
    a("s_nop 15")
    for g in range(4):
        for l in expcvt(S2, PP, g): a(l)
    a("s_nop 1")
    a(mf(R, KV + 8, PP, R))
    a(mf(R, KV + 12, PP + 4, R))
    a(f"s_cmp_lt_u32 s{sOff}, {HS}")
    a("s_cbranch_scc1 F_sl2")
    a("s_nop 15")
    a("s_branch F_fin")

def g2h(a):
    a.label("F_g2")
    a("s_setprio 0")
    fstamp(a, 8)
    g2_ids(a)
    a(f"s_cmp_ge_u32 s{sNT}, 7")
    a("s_cbranch_scc1 F_end")
    a(f"s_load_dwordx2 s[{SWD}:{SWD+1}], s[0:1], 48")
    g2_addr(a)
    a(f"v_mov_b64 v[{WFG}:{WFG+1}], 0")
    a(f"v_mov_b64 v[{WFG+2}:{WFG+3}], 0")
    a(f"s_lshl_b32 s{sT0}, s{sNT}, 7")
    a(f"s_mul_i32 s{sWoff}, s{sTT}, {14*32*896}")
    a(f"s_add_u32 s{sWoff}, s{sWoff}, s{sT0}")
    for k in range(4):
        a(mf(GACC + 16 * k, WFG, WFG, None))
    a(f"s_mul_i32 s{sA0}, s{sMT}, {2*112*1024}")
    a(f"s_mul_i32 s{sT1}, s{sTT}, {28*1024}")
    a(f"s_add_u32 s{sA0}, s{sA0}, s{sT1}")
    a(f"s_add_u32 s{sA0}, s{sA0}, {WS_H}")
    a(f"s_add_u32 s{sA1}, s{sA0}, {112*1024}")
    a(f"s_mov_b32 s{SWD+2}, {1792*896}")
    a(f"s_mov_b32 s{SWD+3}, 0x20000")
    a(f"s_lshr_b32 s{sT3}, s{sMT}, 1")
    a(f"s_lshl_b32 s{sT3}, s{sT3}, 7")
    a(f"s_add_u32 s{sT3}, s{sT3}, {FH}")
    a("s_waitcnt lgkmcnt(0)")
    a(f"s_and_b32 s{SWD+1}, s{SWD+1}, 0xffff")
    a(f"v_mov_b32 v{vT+6}, {SYNC+4}")
    a(f"s_mov_b32 s{sT1}, 0x80000")
    a.label("F_bw2")
    a(f"ds_read_b32 v{vT+6+1}, v{vT+6}")
    a("s_waitcnt lgkmcnt(0)")
    a(f"v_readfirstlane_b32 s{sT0}, v{vT+6+1}")
    a(f"s_sub_u32 s{sT1}, s{sT1}, 1")
    a(f"s_cselect_b32 s{sT0}, 4, s{sT0}")
    a(f"s_cmp_lt_u32 s{sT0}, 4")
    a("s_cbranch_scc1 F_bw2")
    wdma(a, 0, 32 * 896)
    wdma(a, 1, 32 * 896)
    poll(a, "F_ph", f"s{sT3}", 14, False, int(OPT.get("sh", "16")), 4, 4)
    a("s_waitcnt vmcnt(0)")
    fstamp(a, 9)
    actld(a, 0)
    actld(a, 1)
    a(f"s_mov_b32 s{sCnt}, 6")
    a("s_waitcnt vmcnt(4)")
    a.label("F_gloop")
    for st in range(2):
        unit(a, st, st)
        actld(a, st)
        wdma(a, st, 32 * 896)
        if st == 1:
            a(f"s_sub_u32 s{sCnt}, s{sCnt}, 1")
            a(f"s_cmp_lg_u32 s{sCnt}, 0")
        a("s_waitcnt vmcnt(8)")
    a("s_cbranch_scc1 F_gloop")
    unit(a, 0, 0)
    wo_setup(a)
    a("s_waitcnt vmcnt(9)")
    unit(a, 1, 1)
    fstamp(a, 10)
    a("s_barrier")

def tail(a):
    a.label("F_tail")
    a(f"s_lshr_b32 s{sT3}, s{sMT}, 1")
    a(f"s_lshl_b32 s{sT3}, s{sT3}, 7")
    a(f"s_add_u32 s{sT3}, s{sT3}, {FO}")
    a(f"s_lshl_b32 s{sA0}, s{sMT}, 16")
    a(f"s_lshl_b32 s{sT1}, s{sW}, 12")
    a(f"s_add_u32 s{sA0}, s{sA0}, s{sT1}")
    a(f"s_add_u32 s{sA0}, s{sA0}, {WS_O}")
    a(f"s_add_u32 s{sA1}, s{sA0}, {32*1024}")
    a(f"s_load_dwordx2 s[{SXO}:{SXO+1}], s[0:1], 56")
    a("s_waitcnt vmcnt(0) lgkmcnt(0)")
    poll(a, "F_po", f"s{sT3}", 16, False, int(OPT.get("so", "4")), 5, 4)
    fstamp(a, 4)
    actld(a, 0)
    actld(a, 1)
    a.c("reduction addresses")
    a(f"v_add_u32 v{vT}, s{sRing}, v{vL16}")
    a(f"v_and_b32 v{vT+1}, 7, v{vLane}")
    a(f"s_lshr_b32 s{sT0}, s{sW}, 2")
    a(f"s_lshl_b32 s{sT0}, s{sT0}, 3")
    a(f"v_add_u32 v{vT+1}, s{sT0}, v{vT+1}")
    a(f"v_mul_u32_u24 v{vT+1}, 1056, v{vT+1}")
    a(f"v_lshrrev_b32 v{vT+2}, 3, v{vLane}")
    a(f"s_lshl_b32 s{sT0}, s{sTT}, 3")
    a(f"v_add_u32 v{vT+2}, s{sT0}, v{vT+2}")
    a(f"v_lshl_add_u32 v{vT+1}, v{vT+2}, 4, v{vT+1}")
    a(f"v_add_u32 v{vT+2}, {3*RW}, v{vT+1}")
    a(f"v_add_u32 v{vT+3}, {6*RW}, v{vT+1}")
    R = 80
    for i in range(4):
        a(f"v_lshlrev_b32 v{R+2*i}, 16, v{XRES+i}")
        a(f"v_and_b32 v{R+2*i+1}, s{sMask}, v{XRES+i}")
    a("s_waitcnt vmcnt(4) lgkmcnt(0)")
    a(f"s_and_b32 s{SXO+1}, s{SXO+1}, 0xffff")
    unit(a, 2, 0)
    a("s_waitcnt vmcnt(0)")
    unit(a, 3, 1)
    fstamp(a, 5)
    a("s_nop 9")
    for i in range(16):
        a(f"ds_write_b128 v{vT}, v[{GACC+4*i}:{GACC+4*i+3}] offset:{1056*i}")
    a("s_waitcnt lgkmcnt(0)")
    a("s_barrier")
    D = GACC
    for half in range(2):
        for k in range(4):
            src = half * 4 + k
            base = vT + 1 + src // 3
            off = (src % 3) * RW
            d = D + 8 * src
            a(f"ds_read_b128 v[{d}:{d+3}], v{base} offset:{off}")
            a(f"ds_read_b128 v[{d+4}:{d+7}], v{base} offset:{off+512}")
        if half == 0:
            a("s_waitcnt lgkmcnt(4)")
            for src in range(2):
                for i in range(8): a(f"v_add_f32 v{R+i}, v{R+i}, v{D+8*src+i}")
    for src in range(2, 8):
        a(f"s_waitcnt lgkmcnt({2*(7-src)})")
        for i in range(8): a(f"v_add_f32 v{R+i}, v{R+i}, v{D+8*src+i}")
    for i in range(4):
        a(f"v_cvt_pk_bf16_f32 v{XRES+i}, v{R+2*i}, v{R+2*i+1}")
    a(f"buffer_store_dwordx4 v[{XRES}:{XRES+3}], v{vXo}, s[{SXO}:{SXO+3}], s{sT2} offen")
    a.label("F_end")
    fstamp(a, 7)
    a.stamp_flush(11, 0, sW, 8)
    a("s_endpgm")

def gen_fused(name):
    a = Asm()
    a("s_cmp_ge_u32 s2, 256")
    a("s_cbranch_scc1 F_exit")
    def endA(a):
        a(f"v_mov_b32 v{vZ}, 0")
        a.c("flag lanes: lane l<10 -> virtual head vh0 + (l>>1), part l&1 (0: holds its first column, 1: its last)")
        vh, col, ad = vT + 4, vT + 5, vT + 6
        a(f"s_mul_i32 s{sT2}, s{sCG}, 96")
        a(f"s_mul_i32 s{sT0}, s{sT2}, 2341")
        a(f"s_lshr_b32 s{sT0}, s{sT0}, 16")
        a(f"v_lshrrev_b32 v{vh}, 1, v{vLane}")
        a(f"v_add_u32 v{vh}, s{sT0}, v{vh}")
        a(f"v_and_b32 v{ad}, 1, v{vLane}")
        a(f"v_mul_u32_u24 v{col}, 27, v{ad}")
        a(f"v_mad_u32_u24 v{col}, v{vh}, 28, v{col}")
        a(f"v_subrev_u32 v{col}, s{sT2}, v{col}")
        a(f"v_cmp_gt_u32 vcc, 96, v{col}")
        a(f"v_lshlrev_b32 v{ad}, 6, v{ad}")
        a(f"v_lshrrev_b32 v{col}, 4, v{vh}")
        a(f"v_lshl_add_u32 v{ad}, v{col}, 7, v{ad}")
        a(f"v_and_b32 v{col}, 15, v{vh}")
        a(f"v_lshl_add_u32 v{ad}, v{col}, 9, v{ad}")
        a(f"v_cndmask_b32 v{ad}, -1, v{ad}, vcc")
        a(f"s_lshl_b32 s{sT3}, s{sRB}, 2")
        a(f"s_add_u32 s{sT3}, s{sT3}, {FQ}")
        a("s_waitcnt vmcnt(6)")
        a("s_barrier")
        signal(a, "F_sq", 0, sT3, ad)
        fstamp(a, 6)
        attention(a)
    def endB(a):
        a(f"v_mov_b32 v{vZ}, 0")
        a(f"s_lshl_b32 s{sT3}, s{sRB}, 7")
        a(f"s_lshl_b32 s{sT0}, s{sCG}, 2")
        a(f"s_add_u32 s{sT3}, s{sT3}, s{sT0}")
        a(f"s_add_u32 s{sT3}, s{sT3}, {FH}")
        signal(a, "F_sh", 1, sT3)
        g2h(a)
        tail(a)
    def endH(a):
        a.c("helper workgroups: wait for all helpers (flags are cleared by then), then take their roles")
        a(f"v_mov_b32 v{vZ}, 0")
        a.c("touch a slice of w_down / wo")
        a("s_load_dwordx2 s[4:5], s[0:1], 16")
        a("s_load_dwordx2 s[6:7], s[0:1], 48")
        a(f"s_lshl_b32 s{sT0}, s2, 3")
        a(f"s_add_u32 s{sT0}, s{sT0}, s{sW}")
        a(f"v_lshlrev_b32 v{vT+1}, 7, v{vLane}")
        a(f"s_mov_b32 s{SWD+2}, {448*896}")
        a("s_waitcnt lgkmcnt(0)")
        a(f"s_cmp_lt_u32 s{sT0}, 196")
        a(f"s_cselect_b32 s{SWD}, s6, s4")
        a(f"s_cselect_b32 s{SWD+1}, s7, s5")
        a(f"s_cselect_b32 s{SWD+2}, {1792*896}, s{SWD+2}")
        a(f"s_cselect_b32 s{sT1}, 0, 196")
        a(f"s_and_b32 s{SWD+1}, s{SWD+1}, 0xffff")
        a(f"s_mov_b32 s{SWD+3}, 0x20000")
        a(f"s_sub_u32 s{sT0}, s{sT0}, s{sT1}")
        a(f"s_lshl_b32 s{sT0}, s{sT0}, 13")
        a(f"buffer_load_dword v{vT+2}, v{vT+1}, s[{SWD}:{SWD+3}], s{sT0} offen")
        a(f"s_mov_b32 s{sT1}, 0x4000")
        a.label("F_hw")
        a("s_sleep 32")
        a(f"buffer_load_dword v{vT}, v{vZ}, s[{SDBG}:{SDBG+3}], 0 offen offset:128 sc1")
        a("s_waitcnt vmcnt(0)")
        a(f"v_readfirstlane_b32 s{sT0}, v{vT}")
        a(f"s_cmp_eq_u32 s{sT0}, 1")
        a("s_cbranch_scc1 F_hw_ok")
        a(f"s_sub_u32 s{sT1}, s{sT1}, 1")
        a("s_cbranch_scc0 F_hw")
        a.label("F_hw_ok")
        a(f"s_cmp_lt_u32 s{sW}, 4")
        a("s_cbranch_scc1 F_att")
        a("s_branch F_g2")
    p1.FUSED = True
    p1.KNAME = name
    p1.gen_p1(a, endA, endB, endH)
    a.label("F_exit")
    a("s_endpgm")
    return kernel_header(name) + a.text(), kernel_desc(name, 256, 64), LDS_F
```

```python
from asmlib import *
from consts import *
import os
OPT = dict(kv.split("=") for kv in os.environ.get("OPT", "").split(",") if kv)

NB = 4
SQ, SKV, SKH, SO, SV, SVH = 8, 12, 16, 20, 36, 40
sOffV = 44
vVo = 15
sW, sHead, sQB, sOff, sCnt, sT0, sT1, sMask = 24, 25, 26, 27, 28, 29, 30, 31
sVM = 32
sUP = 34
vL16 = 1
vT = 2
QF = 16
KV = 48
SS = KV + 16 * NB
PP = SS + 32
OO = PP + 16
NV = OO + 64
LDS_K2 = 65536

def mf(d, a, b, c):
    cs = "0" if c is None else f"v[{c}:{c+15}]"
    return f"v_mfma_f32_32x32x16_bf16 v[{d}:{d+15}], v[{a}:{a+3}], v[{b}:{b+3}], {cs}"

def kvload(a, kb, srd, soff):
    b = KV + 16 * kb
    sv = SV if srd == SKV else SVH
    a(f"buffer_load_dwordx4 v[{b}:{b+3}], v{vL16}, s[{srd}:{srd+3}], {soff} offen")
    a(f"buffer_load_dwordx4 v[{b+4}:{b+7}], v{vL16}, s[{srd}:{srd+3}], {soff} offen offset:1024")
    a(f"s_mov_b64 exec, s[{sVM}:{sVM+1}]")
    a(f"buffer_load_dwordx4 v[{b+8}:{b+11}], v{vVo}, s[{sv}:{sv+3}], s{sOffV} offen")
    a(f"s_add_u32 s{sOffV}, s{sOffV}, {VT//2}")
    a(f"buffer_load_dwordx4 v[{b+12}:{b+15}], v{vVo}, s[{sv}:{sv+3}], s{sOffV} offen")
    a(f"s_mov_b64 exec, -1")
    a(f"s_add_u32 s{sOffV}, s{sOffV}, {VT//2}")

def maxtree(a, src, dst, first=True):
    if first:
        a(f"v_max3_f32 v{dst}, v{src}, v{src+1}, v{src+2}")
        for i in range(3, 15, 2):
            a(f"v_max3_f32 v{dst}, v{dst}, v{src+i}, v{src+i+1}")
        a(f"v_max_f32 v{dst}, v{dst}, v{src+15}")
    else:
        for i in range(0, 16, 2):
            a(f"v_max3_f32 v{dst}, v{dst}, v{src+i}, v{src+i+1}")

def setpads(a, ms, qs):
    n = len(ms)
    for m in ms: a(f"v_mov_b32 v{m+4}, v{m}")
    a("s_nop 1")
    for m in ms: a(f"v_permlane32_swap_b32 v{m}, v{m+4}")
    a("s_nop 0")
    for m in ms: a(f"v_max_f32 v{m}, v{m}, v{m+4}")
    a(f"s_mov_b64 exec, s[{sUP}:{sUP+1}]")
    for m, q in zip(ms, qs):
        a(f"v_sub_f32 v{m}, 0, v{m}")
        a(f"v_and_b32 v{m+4}, s{sMask}, v{m}")
        a(f"v_sub_f32 v{m+4}, v{m}, v{m+4}")
        a(f"v_lshrrev_b32 v{m}, 16, v{m}")
        a(f"v_and_b32 v{m+8}, s{sMask}, v{m+4}")
        a(f"v_or_b32 v{q+6}, v{m}, v{m+8}")
        a(f"v_sub_f32 v{m+4}, v{m+4}, v{m+8}")
        a(f"v_lshrrev_b32 v{q+7}, 16, v{m+4}")
    a("s_mov_b64 exec, -1")

def expcvt(S, P, g):
    o = [f"v_exp_f32 v{S+4*g+k}, v{S+4*g+k}" for k in range(4)]
    o += [f"v_cvt_pk_bf16_f32 v{P+2*g+k}, v{S+4*g+2*k}, v{S+4*g+2*k+1}" for k in range(2)]
    return o

def gen_k2(name):
    a = Asm()
    a("s_cmp_ge_u32 s2, 256")
    a("s_cbranch_scc1 K2_exit")
    a.stamp(0)
    a("s_load_dwordx2 s[4:5], s[0:1], 72")
    a("s_load_dwordx2 s[6:7], s[0:1], 16")
    a("s_load_dwordx2 s[46:47], s[0:1], 48")
    a(f"v_lshrrev_b32 v{vT}, 6, v0")
    a(f"v_and_b32 v{vL16}, 63, v0")
    a(f"v_readfirstlane_b32 s{sW}, v{vT}")
    a(f"v_lshlrev_b32 v{vL16}, 4, v{vL16}")
    a(f"s_and_b32 s{sHead}, s2, 7")
    a(f"s_lshl_b32 s{sHead}, s{sHead}, 1")
    a(f"s_bfe_u32 s{sT0}, s2, 0x10003")
    a(f"s_add_u32 s{sHead}, s{sHead}, s{sT0}")
    a(f"s_lshr_b32 s{sQB}, s2, 4")
    a(f"s_mov_b32 s{sMask}, 0xffff0000")
    a(f"s_mov_b32 s{sVM}, 0x0fffffff")
    a(f"s_mov_b32 s{sVM+1}, 0x0fffffff")
    a(f"s_mov_b32 s{sUP}, 0")
    a(f"s_mov_b32 s{sUP+1}, -1")
    for kb in range(NB):
        for i in range(8):
            a(f"v_mov_b32 v{KV+16*kb+8+i}, 0x3f803f80")
    a(f"s_mul_i32 s{sT1}, s{sHead}, {HS}")
    a(f"s_mul_i32 s{sT0}, s{sQB}, {4*TS}")
    a(f"s_add_u32 s{sT0}, s{sT0}, s{sT1}")
    a(f"s_add_u32 s{sT0}, s{sT0}, 2048")
    a(f"v_lshrrev_b32 v{vVo}, 9, v{vL16}")
    a(f"v_mul_u32_u24 v{vVo}, {VT//4 - 512}, v{vVo}")
    a(f"v_add_u32 v{vVo}, v{vVo}, v{vL16}")
    a(f"s_mul_i32 s{sOffV}, s{sHead}, 448")
    a(f"v_add_u32 v{vVo}, s{sOffV}, v{vVo}")
    a("s_waitcnt lgkmcnt(0)")
    a("s_and_b32 s5, s5, 0xffff")
    a(f"s_add_u32 s{SQ}, s4, s{sT0}")
    a(f"s_addc_u32 s{SQ+1}, s5, 0")
    a(f"s_mov_b32 s{SQ+2}, {3*TS+2048}")
    a(f"s_mov_b32 s{SQ+3}, 0x20000")
    a(f"s_add_u32 s{SKH}, s4, s{sT1}")
    a(f"s_addc_u32 s{SKH+1}, s5, 0")
    a(f"s_mov_b32 s{SKH+2}, {HS}")
    a(f"s_mov_b32 s{SKH+3}, 0x20000")
    a.c("K tile 0 of the head + Q")
    a(f"buffer_load_dwordx4 v[{PP}:{PP+3}], v{vL16}, s[{SKH}:{SKH+3}], 0 offen")
    a(f"buffer_load_dwordx4 v[{PP+4}:{PP+7}], v{vL16}, s[{SKH}:{SKH+3}], 0 offen offset:1024")
    for i in range(8):
        if i % 2 == 0: a(f"s_movk_i32 s{sT0}, {TS*(i//2)}")
        a(f"buffer_load_dwordx4 v[{QF+4*i}:{QF+4*i+3}], v{vL16}, s[{SQ}:{SQ+3}], s{sT0} offen offset:{(i&1)*1024}")
    a(f"s_mul_i32 s{sT1}, s{sW}, {16*TS}")
    a(f"s_add_u32 s{SKV}, s{SKH}, s{sT1}")
    a(f"s_addc_u32 s{SKV+1}, s{SKH+1}, 0")
    a(f"s_mov_b32 s{SKV+2}, {16*TS}")
    a(f"s_mov_b32 s{SKV+3}, 0x20000")
    a(f"s_add_u32 s{SVH}, s4, {WS_V}")
    a(f"s_addc_u32 s{SVH+1}, s5, 0")
    a(f"s_mov_b32 s{SVH+2}, {64*VT}")
    a(f"s_mov_b32 s{SVH+3}, 0x20000")
    a(f"s_mul_i32 s{sT1}, s{sW}, {16*VT}")
    a(f"s_add_u32 s{SV}, s{SVH}, s{sT1}")
    a(f"s_addc_u32 s{SV+1}, s{SVH+1}, 0")
    a(f"s_mov_b32 s{SV+2}, {16*VT}")
    a(f"s_mov_b32 s{SV+3}, 0x20000")
    a(f"s_mov_b32 s{sOffV}, 0")
    a(f"s_mov_b32 s{sOff}, 0")
    for kb in range(NB - 1):
        kvload(a, kb, SKV, f"s{sOff}")
        a(f"s_add_u32 s{sOff}, s{sOff}, {TS}")
    a(f"s_add_u32 s{SO}, s4, {WS_O}")
    a(f"s_addc_u32 s{SO+1}, s5, 0")
    a(f"s_mov_b32 s{SO+2}, {2<<20}")
    a(f"s_mov_b32 s{SO+3}, 0x20000")
    a.stamp(1)
    a(f"s_waitcnt vmcnt({4*(NB-1)})")
    a.stamp(2)
    a(f"s_mov_b64 exec, s[{sUP}:{sUP+1}]")
    for qt in range(4):
        a(f"v_mov_b32 v{QF+8*qt+6}, 0")
        a(f"v_mov_b32 v{QF+8*qt+7}, 0")
    a("s_mov_b64 exec, -1")
    a("s_nop 1")
    for qt in range(4):
        a(mf(OO + 16 * qt, PP, QF + 8 * qt, None))
        a(mf(OO + 16 * qt, PP + 4, QF + 8 * qt + 4, OO + 16 * qt))
    a("s_nop 7")
    for i in range(8):
        a(f"v_mov_b32 v{PP+8+i}, 0")
    for qt in range(4):
        maxtree(a, OO + 16 * qt, vT + qt)
    setpads(a, [vT + qt for qt in range(4)], [QF + 8 * qt for qt in range(4)])
    a(f"s_waitcnt vmcnt({4*(NB-2)})")
    a(mf(SS, KV, QF, None))
    a(mf(SS, KV + 4, QF + 4, SS))
    for i in range(64):
        a(f"v_mov_b32 v{OO+i}, 0")
    a.stamp(3)
    if OPT.get("wp", "1") == "1":
        a.c("touch a slice of w_down / wo")
        a("s_cmp_lt_u32 s2, 196")
        a("s_cselect_b32 s48, s46, s6")
        a("s_cselect_b32 s49, s47, s7")
        a(f"s_mov_b32 s50, {448*896}")
        a(f"s_cselect_b32 s50, {1792*896}, s50")
        a("s_cselect_b32 s52, 0, 196")
        a("s_and_b32 s49, s49, 0xffff")
        a("s_mov_b32 s51, 0x20000")
        a("s_sub_u32 s52, s2, s52")
        a("s_lshl_b32 s52, s52, 13")
        a(f"v_lshlrev_b32 v{vT}, 5, v0")
        a(f"buffer_load_dword v{vT+1}, v{vT}, s[48:51], s52 offen")
    a(f"s_mov_b32 s{sCnt}, {16//NB}")
    a.label("K2_loop")
    for kb in range(NB):
        for qt in range(4):
            n = kb * 4 + qt
            cur, nxt = SS + 16 * (n & 1), SS + 16 * ((n + 1) & 1)
            pc, pp = PP + 8 * (n & 1), PP + 8 * ((n + 1) & 1)
            nkb, nqt = (kb, qt + 1) if qt < 3 else ((kb + 1) % NB, 0)
            pkb, pqt = (kb, qt - 1) if qt > 0 else ((kb - 1) % NB, 3)
            if qt == 3:
                a(f"s_waitcnt vmcnt({4*(NB-2)})")
            K = KV + 16 * nkb
            V = KV + 16 * pkb + 8
            O = OO + 16 * pqt
            mm = [mf(nxt, K, QF + 8 * nqt, None), mf(nxt, K + 4, QF + 8 * nqt + 4, nxt),
                  mf(O, V, pp, O), mf(O, V + 4, pp + 4, O)]
            for g in range(4):
                a(mm[g])
                if g == 3 and qt == 0:
                    kvload(a, pkb, SKV, f"s{sOff}")
                    a(f"s_add_u32 s{sOff}, s{sOff}, {TS}")
                if g == 3 and n == 4 * NB - 1:
                    a(f"s_sub_u32 s{sCnt}, s{sCnt}, 1")
                    a(f"s_cmp_lg_u32 s{sCnt}, 0")
                for l in expcvt(cur, pc, g):
                    a(l)
    a("s_cbranch_scc1 K2_loop")
    a.stamp(4)
    V = KV + 16 * (NB - 1) + 8
    O = OO + 48
    a("s_nop 0")
    a(mf(O, V, PP + 8, O))
    a(mf(O, V + 4, PP + 12, O))
    a.c("combine the four key ranges through LDS")
    a(f"s_lshl_b32 s{sT0}, s{sW}, 14")
    a(f"v_add_u32 v{vT}, s{sT0}, v{vL16}")
    a(f"s_lshl_b32 s{sT0}, s{sW}, 12")
    a(f"v_add_u32 v{vT+1}, s{sT0}, v{vL16}")
    for i in range(12):
        a(f"ds_write_b128 v{vT}, v[{OO+4*i}:{OO+4*i+3}] offset:{1024*i}")
    a("s_nop 1")
    for i in range(12, 16):
        a(f"ds_write_b128 v{vT}, v[{OO+4*i}:{OO+4*i+3}] offset:{1024*i}")
    a(f"s_lshl_b32 s{sT0}, s{sQB}, 2")
    a(f"s_add_u32 s{sT0}, s{sT0}, s{sW}")
    a(f"s_lshl_b32 s{sT0}, s{sT0}, 4")
    a(f"s_add_u32 s{sT0}, s{sT0}, s{sHead}")
    a(f"s_lshl_b32 s{sT0}, s{sT0}, 11")
    a("s_waitcnt lgkmcnt(0)")
    a.stamp(5)
    a("s_barrier")
    a.stamp(6)
    R = SS
    for w in range(4):
        dst = R if w == 0 else OO + 16 * w
        for aa in range(4):
            a(f"ds_read_b128 v[{dst+4*aa}:{dst+4*aa+3}], v{vT+1} offset:{16384*w+1024*aa}")
        if w == 2:
            a("s_waitcnt lgkmcnt(4)")
            for i in range(16): a(f"v_add_f32 v{R+i}, v{R+i}, v{OO+16+i}")
    a("s_waitcnt lgkmcnt(4)")
    for i in range(16): a(f"v_add_f32 v{R+i}, v{R+i}, v{OO+32+i}")
    a("s_waitcnt lgkmcnt(0)")
    for i in range(16): a(f"v_add_f32 v{R+i}, v{R+i}, v{OO+48+i}")
    a.c("overflow check of the first-tile shift: every value finite and below 2^100, else redo with the true row max")
    a(f"v_add_f32 v{vT+2}, abs(v{R}), abs(v{R+1})")
    for i in range(2, 16):
        a(f"v_add_f32 v{vT+2}, v{vT+2}, abs(v{R+i})")
    a(f"v_cmp_gt_f32 vcc, {fhex(2.0**100)}, v{vT+2}")
    a("s_cmp_eq_u64 vcc, -1")
    a("s_cbranch_scc0 K2_slow")
    a.label("K2_fin")
    a(f"v_mov_b32 v{vT+2}, v{R+12}")
    a(f"v_mov_b32 v{vT+3}, v{R+12}")
    a("s_nop 1")
    a(f"v_permlane32_swap_b32 v{vT+2}, v{vT+3}")
    a("s_nop 0")
    a(f"v_rcp_f32 v{vT+3}, v{vT+3}")
    a(f"s_mov_b64 exec, s[{sUP}:{sUP+1}]")
    for i in range(12, 16): a(f"v_mov_b32 v{R+i}, 0")
    a("s_mov_b64 exec, -1")
    for i in range(16): a(f"v_mul_f32 v{R+i}, v{R+i}, v{vT+3}")
    for i in range(8): a(f"v_cvt_pk_bf16_f32 v{PP+i}, v{R+2*i}, v{R+2*i+1}")
    a(f"buffer_store_dwordx4 v[{PP}:{PP+3}], v{vL16}, s[{SO}:{SO+3}], s{sT0} offen")
    a(f"buffer_store_dwordx4 v[{PP+4}:{PP+7}], v{vL16}, s[{SO}:{SO+3}], s{sT0} offen offset:1024")
    a.stamp(7)
    a.stamp_flush(8, 1, sW, 4)
    a.label("K2_exit")
    a("s_endpgm")
    a.label("K2_slow")
    S2 = SS + 16
    a(f"s_mul_i32 s{sT1}, s{sW}, {TS}")
    a(f"buffer_load_dwordx4 v[{QF}:{QF+3}], v{vL16}, s[{SQ}:{SQ+3}], s{sT1} offen")
    a(f"buffer_load_dwordx4 v[{QF+4}:{QF+7}], v{vL16}, s[{SQ}:{SQ+3}], s{sT1} offen offset:1024")
    a(f"v_mov_b32 v{vT+2}, 0xff800000")
    a(f"s_mov_b32 s{sOff}, 0")
    a(f"s_mov_b32 s{sOffV}, 0")
    a("s_waitcnt vmcnt(0)")
    a(f"s_mov_b64 exec, s[{sUP}:{sUP+1}]")
    a(f"v_mov_b32 v{QF+6}, 0")
    a(f"v_mov_b32 v{QF+7}, 0")
    a("s_mov_b64 exec, -1")
    a.label("K2_sl1")
    kvload(a, 0, SKH, f"s{sOff}")
    a(f"s_add_u32 s{sOff}, s{sOff}, {TS}")
    a("s_waitcnt vmcnt(0)")
    a(mf(S2, KV, QF, None))
    a(mf(S2, KV + 4, QF + 4, S2))
    a("s_nop 15")
    maxtree(a, S2, vT + 2, first=False)
    a(f"s_cmp_lt_u32 s{sOff}, {HS}")
    a("s_cbranch_scc1 K2_sl1")
    setpads(a, [vT + 2], [QF])
    for i in range(16): a(f"v_mov_b32 v{R+i}, 0")
    a(f"s_mov_b32 s{sOff}, 0")
    a(f"s_mov_b32 s{sOffV}, 0")
    a.label("K2_sl2")
    kvload(a, 0, SKH, f"s{sOff}")
    a(f"s_add_u32 s{sOff}, s{sOff}, {TS}")
    a("s_waitcnt vmcnt(0)")
    a(mf(S2, KV, QF, None))
    a(mf(S2, KV + 4, QF + 4, S2))
    a("s_nop 15")
    for g in range(4):
        for l in expcvt(S2, PP, g): a(l)
    a("s_nop 1")
    a(mf(R, KV + 8, PP, R))
    a(mf(R, KV + 12, PP + 4, R))
    a(f"s_cmp_lt_u32 s{sOff}, {HS}")
    a("s_cbranch_scc1 K2_sl2")
    a("s_nop 15")
    a("s_branch K2_fin")
    return kernel_header(name) + a.text(), kernel_desc(name, NV, 56), LDS_K2
```

```python
from asmlib import *
from consts import *
import math, os
OPT = dict(kv.split("=") for kv in os.environ.get("OPT", "").split(",") if kv)

XR = 0
FR = 98304
QR = 131072
LDS_P1 = QR + 4 * 6144
SC1 = " sc1"
FUSED = False
KNAME = "k1_kernel"

SX, SWQ, SWA, SWS, SDBG = 16, 20, 24, 28, 56
sW, sRB, sCG, sTT = 32, 33, 34, 35
sOffX, sOffA, sOffQ, sRingA, sRingQ, sCnt = 36, 37, 38, 39, 40, 41
sT0, sT1, sT2, sT3 = 42, 43, 44, 45
sMask, sDelta = 46, 47
sTile, sRingX = 48, 49
sE48 = 50
sColA, sColQ, sRowX, sDq = 52, 53, 54, 55
vLane, vL16, vH, vR, vR2, vFlag = 1, 2, 3, 4, 5, 6
vTr0, vTr1 = 7, 8
vOffA, vOffA2, vOffQ = 9, 10, 11
vT = 12
vSt = 28
vOffQ2 = 40
vXk = 48
vOffX = 52
vZero = 54
WF = 64
XB = 96
XC = 112
RR = 192
ACC = 128

def pstamp(a, i):
    if FUSED and OPT.get("st", "2") == "2" and i != 0:
        return
    a.stamp(i)

def mf(d, a, b):
    return f"v_mfma_f32_32x32x16_bf16 v[{d}:{d+15}], v[{a}:{a+3}], v[{b}:{b+3}], v[{d}:{d+15}]"

def wreadsA(slot, p):
    return [f"ds_read_b64_tr_b16 v[{WF+24*p+12*k+4*j+2*t}:{WF+24*p+12*k+4*j+2*t+1}], v{vTr0} offset:{slot*6144 + 3072*k + 64*j + 768*t}"
            for k in range(2) for j in range(3) for t in range(2)]

def wreadsB(slot, p):
    return [f"ds_read_b64_tr_b16 v[{WF+16*p+4*j+2*t}:{WF+16*p+4*j+2*t+1}], v{vTr0 if (j&1)==0 else vTr1} offset:{slot*8192 + (j>>1)*2048 + 512*t}"
            for j in range(4) for t in range(2)]

def dmaF(slot):
    g1 = [f"s_add_u32 m0, s{sRingA}, {slot*8192}",
          f"s_nop 0",
          f"buffer_load_dwordx4 v{vOffA}, s[{SWA}:{SWA+3}], s{sOffA} offen lds"]
    g2 = [f"buffer_load_dwordx4 v{vOffA2}, s[{SWA}:{SWA+3}], s{sOffA} offen offset:1024 lds",
          f"s_add_u32 s{sOffA}, s{sOffA}, {16*3584}"]
    return g1, g2

def dmaQ(slot):
    g1 = [f"s_add_u32 m0, s{sRingQ}, {slot*6144}",
          f"s_mov_b64 exec, s[{sE48}:{sE48+1}]",
          f"buffer_load_dwordx4 v{vOffQ}, s[{SWQ}:{SWQ+3}], s{sOffQ} offen lds",
          f"s_mov_b64 exec, -1"]
    g2 = [f"s_mov_b64 exec, s[{sE48}:{sE48+1}]",
          f"buffer_load_dwordx4 v{vOffQ2}, s[{SWQ}:{SWQ+3}], s{sOffQ} offen offset:768 lds",
          f"s_mov_b64 exec, -1",
          f"s_add_u32 s{sOffQ}, s{sOffQ}, {32*2688}"]
    return g1, g2

sSM, sSG = 60, 62
sTab = 14

def dmaX(q):
    x1 = [f"s_mov_b32 m0, s{sRingX}",
          f"s_add_u32 s{sRingX}, s{sRingX}, s{sSM+q}",
          f"buffer_load_dwordx4 v{vOffX}, s[{SX}:{SX+3}], s{sOffX} offen lds"]
    x2 = [f"buffer_load_dwordx4 v{vOffX+1}, s[{SX}:{SX+3}], s{sOffX} offen offset:1024 lds",
          f"s_add_u32 s{sOffX}, s{sOffX}, s{sSG+q}"]
    return x1, x2

def mmA(typ, p):
    out = []
    for k in range(2):
        for j in range(3):
            w, x = WF + 24 * p + 12 * k + 4 * j, XC + 8 * p + 4 * k
            out.append(mf(ACC + 16 * j, w, x) if typ[j] == "Q" else mf(ACC + 16 * j, x, w))
    return out

def mmB(p):
    return [mf(ACC + 64 * th + 16 * j, WF + 16 * p + 4 * j, XB + 8 * p + 4 * th) for j in range(4) for th in range(2)]

AXA = 188
AWA = 176
AXB = 28
AWB = 112

def call(a, cnt, lab, target):
    a(f"s_cmp_lg_u32 s{sCnt}, {cnt}")
    a(f"s_cbranch_scc1 {lab}")
    a(f"s_getpc_b64 s[{sT2}:{sT3}]")
    a(f"s_branch {target}")
    a.label(lab)

def ret(a):
    a(f"s_add_u32 s{sT2}, s{sT2}, 4")
    a(f"s_addc_u32 s{sT3}, s{sT3}, 0")
    a(f"s_setpc_b64 s[{sT2}:{sT3}]")

def loopA(a, typ):
    lab = f"P1_loopA_{typ}"
    a.label(lab)
    for q in range(2):
        p = q
        a("s_barrier")
        mm = mmA(typ, p)
        if q == 0:
            a(f"s_cmp_gt_u32 s{sCnt}, 4")
            a(f"s_cbranch_scc1 {lab}_n0")
            a(f"s_getpc_b64 s[{sT2}:{sT3}]")
            a(f"s_branch P1_side")
            a.label(f"{lab}_n0")
        if q == 1: call(a, 1, f"{lab}_n1", "P1_auxA")
        if q == 0:
            tail = [f"s_cmp_eq_u32 s{sCnt}, 2", f"s_cselect_b32 s{sT1}, {(-5*16384) & 0xffffffff}, s{sRowX}",
                    f"v_add_u32 v{vXk}, s{sT1}, v{vXk}", f"v_add_u32 v{vXk+1}, s{sT1}, v{vXk+1}",
                    f"v_add_u32 v{vXk+2}, s{sT1}, v{vXk+2}", f"v_add_u32 v{vXk+3}, s{sT1}, v{vXk+3}",
                    f"v_add_u32 v{vTr0}, s{sDq}, v{vTr0}"]
        else:
            tail = [f"s_add_u32 s{sRingA}, s{sRingA}, s{sDelta}", f"s_add_u32 s{sRingQ}, s{sRingQ}, s{sDq}",
                    f"s_sub_u32 s{sDelta}, 0, s{sDelta}", f"s_sub_u32 s{sDq}, 0, s{sDq}",
                    f"s_sub_u32 s{sCnt}, s{sCnt}, 1", f"s_cmp_lg_u32 s{sCnt}, 0"]
        ks0 = 2 if q == 0 else 0
        rx = [f"ds_read_b128 v[{XC+8*(p^1)+4*k}:{XC+8*(p^1)+4*k+3}], v{vXk+ks0+k}" for k in range(2)]
        wr_ = wreadsA(1 - q, p ^ 1)
        rd = [rx[0]] + wr_[:6] + [rx[1]] + wr_[6:]
        f1, f2 = dmaF(q)
        q1, q2 = dmaQ(q)
        x1, x2 = dmaX(q)
        seq = f1 + rd[:3] + [mm[0]] + f2 + rd[3:6] + [mm[1]] + q1 + rd[6:9] + [mm[2]] + q2 + rd[9:12] + [mm[3]] + x1 + rd[12:] + [mm[4]] + x2 + tail + [mm[5]]
        for l in seq: a(l)
        a("s_waitcnt vmcnt(12) lgkmcnt(0)")
    a(f"s_cbranch_scc1 {lab}")
    a("s_barrier")
    a("s_waitcnt vmcnt(6)")
    for j in range(3):
        w, x = AWA + 4 * j, AXA
        a(mf(ACC + 16 * j, w, x) if typ[j] == "Q" else mf(ACC + 16 * j, x, w))

def pair_dma(a, base, ks):
    a(f"s_add_u32 s{sRingX}, s{sColQ}, {base}")
    a(f"s_add_u32 s{sOffX}, s{sColA}, {ks*16*3584}")
    for q in range(2):
        for g in dmaX(q):
            for l in g: a(l)

BTAB = [6, 7, 6, 7, 6, 7, 6, 7, 6, 1, 2, 3, 8, 7, 7]
NBAR = int(OPT.get("nbar", "19"))

def loopB(a):
    lab = "P1_loopB"
    a.label(lab)
    for q in range(2):
        p = q
        a(f"s_bitcmp0_b32 s{sDq}, {q}")
        a(f"s_cbranch_scc1 {lab}_b{q}")
        a("s_barrier")
        a.label(f"{lab}_b{q}")
        mm = mmB(p)
        if q == 0:
            tail = [f"s_bitcmp1_b32 s{sCnt}, 0", f"s_cselect_b32 s{sT1}, 16384, 0",
                    f"s_cmp_eq_u32 s{sCnt}, 3", f"s_cselect_b32 s{sT1}, {(-5*16384) & 0xffffffff}, s{sT1}",
                    f"v_xor_b32 v{vXk}, 64, v{vXk}", f"v_add_u32 v{vXk}, s{sT1}, v{vXk}", f"v_xor_b32 v{vXk+1}, 32, v{vXk}",
                    f"s_lshr_b64 s[{sTab}:{sTab+1}], s[{sTab}:{sTab+1}], 4", f"s_and_b32 s{sT1}, s{sTab}, 15", f"s_lshl_b32 s{sT1}, s{sT1}, 14",
                    f"v_add_u32 v{vTr0}, s{sT1}, v{vOffA}", f"v_add_u32 v{vTr1}, s{sT1}, v{vOffA2}"]
        else:
            tail = [f"s_lshr_b32 s{sDq}, s{sDq}, 2", f"s_sub_u32 s{sCnt}, s{sCnt}, 1", f"s_cmp_lg_u32 s{sCnt}, 0"]
        xa = vXk + 1 if q == 0 else vXk
        rx = [f"ds_read_b128 v[{XB+8*(p^1)+4*th}:{XB+8*(p^1)+4*th+3}], v{xa} offset:{4096*th}" for th in range(2)]
        wr_ = wreadsB(1 - q, p ^ 1)
        rd = [rx[0]] + wr_[:2] + [rx[1]] + wr_[2:]
        nr = [2, 2, 2, 2, 2, 0, 0]
        for g in range(8):
            a(mm[g])
            if g == 0 and q == 1:
                a(f"s_cmp_gt_u32 s{sCnt}, 3")
                a(f"s_cbranch_scc1 {lab}_n1")
                a(f"s_getpc_b64 s[{sT2}:{sT3}]")
                a(f"s_branch P1_sideB")
                a.label(f"{lab}_n1")
            if g < 7:
                for l in rd[:nr[g]]: a(l)
                rd = rd[nr[g]:]
            if g == 5:
                for l in tail[:len(tail)//2]: a(l)
            if g == 6:
                for l in tail[len(tail)//2:]: a(l)
        assert not rd
        a("s_waitcnt lgkmcnt(0)")
    a(f"s_cbranch_scc1 {lab}")
    a("s_waitcnt vmcnt(0)")
    for j in range(4):
        for th in range(2):
            a(mf(ACC + 64 * th + 16 * j, AWB + 4 * j, AXB + 4 * th))

def waitgo(a, name, off):
    a(f"s_mov_b32 s{sT1}, 0x4000")
    a.label(f"{name}_l")
    a(f"v_readfirstlane_b32 s{sT0}, v{vFlag}")
    a(f"s_cmp_eq_u32 s{sT0}, 1")
    a(f"s_cbranch_scc1 {name}_ok")
    a(f"s_sub_u32 s{sT1}, s{sT1}, 1")
    a(f"s_cbranch_scc1 {name}_ok")
    a(f"buffer_load_dword v{vFlag}, v{vZero}, s[{SDBG}:{SDBG+3}], 0 offen offset:{off} sc1")
    a("s_sleep 4")
    a("s_waitcnt vmcnt(0)")
    a(f"s_branch {name}_l")
    a.label(f"{name}_ok")

def aux_blocks(a):
    a.c("A side jobs at the top of bodies 3..6 (cnt 4..1)")
    a.label("P1_side")
    a(f"s_cmp_lg_u32 s{sCnt}, 4")
    a("s_cbranch_scc1 P1_s3")
    a(f"s_lshl_b32 s{sRingX}, s{sTT}, 12")
    ret(a)
    a.label("P1_s3")
    a(f"s_cmp_lg_u32 s{sCnt}, 3")
    a("s_cbranch_scc1 P1_s2")
    a.c("the x stream now carries gate/up rows: k-steps 18,19 -> x slot 1")
    a(f"s_mov_b64 s[{SX}:{SX+1}], s[{SWA}:{SWA+1}]")
    a(f"s_mov_b32 s{SX+2}, s{SWA+2}")
    a(f"v_mov_b32 v{vOffX}, v{vOffA}")
    a(f"v_mov_b32 v{vOffX+1}, v{vOffA2}")
    a(f"s_mov_b32 s{sSM}, 8192")
    a(f"s_mov_b32 s{sSM+1}, 8192")
    a(f"s_mov_b32 s{sSG}, {16*3584}")
    a(f"s_mov_b32 s{sSG+1}, {16*3584}")
    a(f"s_add_u32 s{sRingX}, s{sColQ}, 16384")
    a(f"s_add_u32 s{sOffX}, s{sColA}, {18*16*3584}")
    ret(a)
    a.label("P1_s2")
    a(f"s_cmp_lg_u32 s{sCnt}, 2")
    a("s_cbranch_scc1 P1_s1")
    a(f"s_mov_b32 s{sRingX}, 0x30000")
    a(f"s_mov_b32 s{sOffX}, 0x40000000")
    a(f"s_mov_b32 s{sRingQ}, 0x34000")
    a(f"s_cmp_lg_u32 s{sW}, 0")
    a("s_cbranch_scc1 P1_s2r")
    a(f"buffer_load_dword v{vFlag}, v{vZero}, s[{SDBG}:{SDBG+3}], 0 offen offset:128 sc1")
    a.label("P1_s2r")
    ret(a)
    a.label("P1_s1")
    a(f"s_add_u32 s{sRingX}, s{sColQ}, 32768")
    a(f"s_add_u32 s{sOffX}, s{sColA}, {20*16*3584}")
    a(f"s_cmp_lg_u32 s{sW}, 0")
    a("s_cbranch_scc1 P1_g1_ok")
    waitgo(a, "P1_g1", 128)
    ret(a)
    a.c("B side jobs (cnt 3..1): sample / wait for the second helper flag, load the operands")
    a.label("P1_sideB")
    a(f"s_cmp_lg_u32 s{sCnt}, 3")
    a("s_cbranch_scc1 P1_sb2")
    a(f"buffer_load_dword v{vFlag}, v{vZero}, s[{SDBG}:{SDBG+3}], 0 offen offset:192 sc1")
    ret(a)
    a.label("P1_sb2")
    a(f"s_cmp_lg_u32 s{sCnt}, 2")
    a("s_cbranch_scc1 P1_sbr")
    a("s_waitcnt vmcnt(0)")
    waitgo(a, "P1_g2", 192)
    a("s_branch P1_auxB")
    a.label("P1_sbr")
    ret(a)
    a.label("P1_auxA")
    a(f"v_and_b32 v{vT}, 0x1f0, v{vL16}")
    a(f"v_lshl_add_u32 v{vT+1}, v{vH}, 30, v{vT}")
    a(f"s_lshl_b32 s{sT0}, s{sTile}, 9")
    a(f"s_add_u32 s{sT0}, s{sT0}, {WS_AX}")
    a(f"buffer_load_dwordx4 v[{AXA}:{AXA+3}], v{vT+1}, s[{SWS}:{SWS+3}], s{sT0} offen sc1")
    a(f"s_mul_i32 s{sT0}, s{sCG}, {96*16}")
    a(f"s_add_u32 s{sT0}, s{sT0}, {WS_AW}")
    for j in range(3):
        a(f"buffer_load_dwordx4 v[{AWA+4*j}:{AWA+4*j+3}], v{vT}, s[{SWS}:{SWS+3}], s{sT0} offen offset:{512*j} sc1")
    a(f"s_lshl_b32 s{sT0}, s{sTile}, 7")
    a(f"s_add_u32 s{sT0}, s{sT0}, {WS_AR}")
    a(f"v_lshrrev_b32 v{vT+2}, 2, v{vT}")
    a(f"v_lshlrev_b32 v{vT+3}, 4, v{vH}")
    a(f"buffer_load_dword v{vR}, v{vT+2}, s[{SWS}:{SWS+3}], s{sT0} offen sc1")
    for aa in range(4):
        a(f"buffer_load_dwordx4 v[{RR+4*aa}:{RR+4*aa+3}], v{vT+3}, s[{SWS}:{SWS+3}], s{sT0} offen offset:{32*aa} sc1")
    ret(a)
    a.label("P1_auxB")
    a(f"v_and_b32 v{vT}, 0x1f0, v{vL16}")
    a(f"v_lshl_add_u32 v{vT+1}, v{vH}, 30, v{vT}")
    a(f"s_and_b32 s{sT1}, s{sTT}, 1")
    a(f"s_lshl_b32 s{sT1}, s{sT1}, 1")
    a(f"s_lshl_b32 s{sT0}, s{sRB}, 2")
    a(f"s_add_u32 s{sT1}, s{sT1}, s{sT0}")
    a(f"s_lshl_b32 s{sT0}, s{sT1}, 9")
    a(f"s_add_u32 s{sT0}, s{sT0}, {WS_AX}")
    for th in range(2):
        a(f"buffer_load_dwordx4 v[{AXB+4*th}:{AXB+4*th+3}], v{vT+1}, s[{SWS}:{SWS+3}], s{sT0} offen offset:{512*th} sc1")
    a(f"s_lshl_b32 s{sT0}, s{sT1}, 7")
    a(f"s_add_u32 s{sT0}, s{sT0}, {WS_AR}")
    a(f"v_lshrrev_b32 v{vT+2}, 2, v{vT}")
    a(f"buffer_load_dword v{vR}, v{vT+2}, s[{SWS}:{SWS+3}], s{sT0} offen sc1")
    a(f"buffer_load_dword v{vR2}, v{vT+2}, s[{SWS}:{SWS+3}], s{sT0} offen offset:128 sc1")
    a(f"s_lshl_b32 s{sT0}, s{sCG}, 1")
    a(f"s_lshr_b32 s{sT1}, s{sTT}, 1")
    a(f"s_add_u32 s{sT0}, s{sT0}, s{sT1}")
    a(f"s_lshl_b32 s{sT0}, s{sT0}, 10")
    a(f"s_add_u32 s{sT0}, s{sT0}, {WS_AW+AW_G}")
    a(f"s_add_u32 s{sT1}, s{sT0}, {AW_U-AW_G}")
    for j in range(4):
        a(f"buffer_load_dwordx4 v[{AWB+4*j}:{AWB+4*j+3}], v{vT}, s[{SWS}:{SWS+3}], s{sT0 if j < 2 else sT1} offen offset:{512*(j&1)} sc1")
    ret(a)

def epi_B(a):
    c0 = -2.0 * math.sqrt(2.0 / math.pi) * math.log2(math.e)
    c1 = c0 * 0.044715
    a.c("epilogue B: gelu(g)*u")
    if OPT.get("gp", "2") != "0": a(f"s_setprio {OPT.get('gp', '2')}")
    a(f"s_and_b32 s{sT1}, s{sTT}, 1")
    a(f"s_lshl_b32 s{sT1}, s{sT1}, 1")
    a(f"s_lshl_b32 s{sT2}, s{sRB}, 2")
    a(f"s_add_u32 s{sT1}, s{sT1}, s{sT2}")
    a(f"s_mul_i32 s{sT1}, s{sT1}, 112")
    a(f"s_lshl_b32 s{sT2}, s{sCG}, 3")
    a(f"s_add_u32 s{sT1}, s{sT1}, s{sT2}")
    a(f"s_lshr_b32 s{sT2}, s{sTT}, 1")
    a(f"s_lshl_b32 s{sT2}, s{sT2}, 2")
    a(f"s_add_u32 s{sT1}, s{sT1}, s{sT2}")
    a(f"s_lshl_b32 s{sT1}, s{sT1}, 10")
    a(f"s_add_u32 s{sT1}, s{sT1}, {WS_H}")
    a(f"s_add_u32 s{sT2}, s{sT1}, {112*1024}")
    for th in range(2):
        k0, k1, ir2 = vT + 3 * th, vT + 3 * th + 1, vT + 3 * th + 2
        r = vR if th == 0 else vR2
        a(f"v_mul_f32 v{ir2}, v{r}, v{r}")
        a(f"v_mul_f32 v{k0}, {fhex(c0)}, v{r}")
        a(f"v_mul_f32 v{k1}, v{ir2}, v{r}")
        a(f"v_mul_f32 v{k1}, {fhex(c1)}, v{k1}")
        a(f"v_rcp_f32 v{ir2}, v{ir2}")
    T = vT + 8
    for th in range(2):
        k0, k1, ir2 = vT + 3 * th, vT + 3 * th + 1, vT + 3 * th + 2
        for p in range(2):
            G = ACC + 64 * th + 16 * p
            U = G + 32
            out = WF + 8 * (2 * th + p)
            for i0 in range(0, 16, 4):
                for k in range(4): a(f"v_mul_f32 v{T+k}, v{G+i0+k}, v{G+i0+k}")
                for k in range(4): a(f"v_fma_f32 v{T+k}, v{T+k}, v{k1}, v{k0}")
                for k in range(4): a(f"v_mul_f32 v{T+k}, v{T+k}, v{G+i0+k}")
                for k in range(4): a(f"v_exp_f32 v{T+k}, v{T+k}")
                for k in range(4): a(f"v_mul_f32 v{U+i0+k}, v{U+i0+k}, v{G+i0+k}")
                for k in range(4): a(f"v_fma_f32 v{T+k}, v{T+k}, v{ir2}, v{ir2}")
                for k in range(4): a(f"v_rcp_f32 v{T+k}, v{T+k}")
                a("s_nop 0")
                for k in range(4): a(f"v_mul_f32 v{U+i0+k}, v{U+i0+k}, v{T+k}")
                for k in range(2): a(f"v_cvt_pk_bf16_f32 v{out+i0//2+k}, v{U+i0+2*k}, v{U+i0+2*k+1}")
                if i0 in (4, 12):
                    s = i0 // 8
                    so = sT1 if th == 0 else sT2
                    a(f"buffer_store_dwordx4 v[{out+4*s}:{out+4*s+3}], v{vL16}, s[{SWS}:{SWS+3}], s{so} offen offset:{(2*p+s)*1024}{STF()}")

def STF():
    return SC1 if OPT.get("sc1", "1") == "1" else ""

def epi_A(a):
    a.c("epilogue A")
    pair_dma(a, QR, 24)
    a(f"s_mul_i32 s{sT0}, s{sCG}, 3")
    for j in range(3):
        a(f"s_cmp_lt_u32 s{sT0}, {14-j}")
        a(f"s_cselect_b32 s{sT1}, {fhex(QSCALE)}, 1.0")
        a(f"v_mul_f32 v{vT+8+j}, s{sT1}, v{vR}")
    P0, P1 = vT + 4, vT + 5
    a(f"v_mov_b32 v{P0}, 0x3f803f80")
    a(f"v_mov_b32 v{P1}, 0x00003f80")
    a(f"s_mul_i32 s{sT2}, s{sTile}, {VT}")
    a(f"s_lshl_b32 s{sT3}, s{sT0}, 9")
    a(f"s_add_u32 s{sT2}, s{sT2}, s{sT3}")
    a(f"s_add_u32 s{sT2}, s{sT2}, {WS_V - 28*512}")
    a(f"s_add_u32 s{sT3}, s{sT2}, {VT//2}")
    for j in range(3):
        A = ACC + 16 * j
        out = WF + 12 * j
        if j == 0:
            a("s_waitcnt vmcnt(4)")
            a("s_barrier")
            pair_dma(a, 3 * 16384, 22)
            pair_dma(a, FR + 16384, 26)
        a(f"s_cmp_ge_u32 s{sT0}, {28-j}")
        a(f"s_cbranch_scc1 P1_eV{j}")
        for i in range(16):
            a(f"v_mul_f32 v{A+i}, v{A+i}, v{vT+8+j}")
        for i in range(8):
            a(f"v_cvt_pk_bf16_f32 v{out+6*(i>>2)+(i&3)}, v{A+2*i}, v{A+2*i+1}")
        for pp in range(2):
            a(f"v_mov_b32 v{out+6*pp+4}, v{P0}")
            a(f"v_mov_b32 v{out+6*pp+5}, v{P1}")
            a(f"v_cmp_gt_i32 s[{sE48+2*pp}:{sE48+2*pp+1}], 0, v{vSt+6+2*j+pp}")
        for pp in range(2):
            o = out + 6 * pp
            a(f"v_permlane32_swap_b32 v{o}, v{o+2}")
            a(f"v_permlane32_swap_b32 v{o+1}, v{o+3}")
        for pp in range(2):
            o = out + 6 * pp
            a(f"buffer_store_dwordx4 v[{o+2}:{o+5}], v{vSt+6+2*j+pp}, s[{SWS}:{SWS+3}], 0 offen{STF()}")
        a("s_nop 0")
        for pp in range(2):
            o = out + 6 * pp
            a(f"v_cndmask_b32 v{o+2}, v{P0}, v{o+2}, s[{sE48+2*pp}:{sE48+2*pp+1}]")
            a(f"v_cndmask_b32 v{o+3}, v{P1}, v{o+3}, s[{sE48+2*pp}:{sE48+2*pp+1}]")
        for pp in range(2):
            o = out + 6 * pp
            a(f"buffer_store_dwordx4 v[{o}:{o+3}], v{vSt+2*j+pp}, s[{SWS}:{SWS+3}], 0 offen{STF()}")
        a(f"s_branch P1_eN{j}")
        a.label(f"P1_eV{j}")
        for i in range(16):
            a(f"v_mul_f32 v{A+i}, v{A+i}, v{RR+i}")
        for i in range(8):
            a(f"v_cvt_pk_bf16_f32 v{out+i}, v{A+2*i}, v{A+2*i+1}")
        for s in range(2):
            a(f"buffer_store_dwordx4 v[{out+4*s}:{out+4*s+3}], v{vT+12}, s[{SWS}:{SWS+3}], s{sT2+s} offen offset:{512*j}{STF()}")
        a.label(f"P1_eN{j}")

def split3(a, src, t, o1, o2, o3):
    a(f"v_and_b32 v{o1}, s{sMask}, v{src}")
    a(f"v_sub_f32 v{t}, v{src}, v{o1}")
    a(f"v_and_b32 v{o2}, s{sMask}, v{t}")
    a(f"v_sub_f32 v{t}, v{t}, v{o2}")
    a(f"v_and_b32 v{o3}, s{sMask}, v{t}")

def helper(a):
    sHid, sU, sPass = sCnt, sRingA, sRingQ
    a.label("P1_help")
    a(f"s_lshl_b32 s{sHid}, s{sRB}, 1")
    a(f"s_add_u32 s{sHid}, s{sHid}, s{sCG}")
    a(f"s_sub_u32 s{sHid}, s{sHid}, 14")
    XD = 64
    WD = 128
    a(f"v_mul_u32_u24 v{vT+1}, 896, v{vT+4}")
    a(f"v_lshl_add_u32 v{vT+3}, v{vT+5}, 4, v{vT+1}")
    a(f"s_lshl_b32 s{sTile}, s{sHid}, 3")
    a(f"s_add_u32 s{sTile}, s{sTile}, s{sW}")
    a(f"s_mul_i32 s{sRowX}, s{sTile}, {8*896}")
    for i in range(7):
        a(f"buffer_load_dwordx4 v[{XD+4*i}:{XD+4*i+3}], v{vT+3}, s[{SX}:{SX+3}], s{sRowX} offen offset:{128*i}")
    a.c("unit loads: wave -> 56 rows, lane -> (row lane>>3, chunk lane&7)")
    a(f"s_mov_b32 s{SWA+3}, 0x20000")
    def uload(u):
        a(f"s_add_u32 s{sU}, s{sHid}, {32*u}")
        if u == 0:
            a(f"s_cmp_lt_u32 s{sU}, 21")
            a(f"s_cselect_b32 s{SWA}, s6, s8")
            a(f"s_cselect_b32 s{SWA+1}, s7, s9")
            a(f"s_cselect_b32 s{sT0}, 0, 21")
            a(f"s_movk_i32 s{sT1}, 3584")
            a(f"s_cselect_b32 s{sT1}, 2688, s{sT1}")
        elif u == 1:
            a(f"s_cmp_lt_u32 s{sU}, 49")
            a(f"s_cselect_b32 s{SWA}, s8, s10")
            a(f"s_cselect_b32 s{SWA+1}, s9, s11")
            a(f"s_cselect_b32 s{sT0}, 21, 49")
            a(f"s_movk_i32 s{sT1}, 3584")
        else:
            a(f"s_mov_b64 s[{SWA}:{SWA+1}], s[10:11]")
            a(f"s_movk_i32 s{sT0}, 49")
        a(f"s_and_b32 s{SWA+1}, s{SWA+1}, 0xffff")
        if u < 2:
            a(f"s_mul_i32 s{SWA+2}, s{sT1}, 448")
            a(f"v_mul_u32_u24 v51, s{sT1}, v{vT+4}")
            a(f"v_lshl_add_u32 v51, v{vT+5}, 4, v51")
            a(f"s_mul_i32 s{sT3}, s{sW}, 56")
            a(f"s_mul_i32 s{sT3}, s{sT3}, s{sT1}")
            a(f"s_lshl_b32 s{sT2}, s{sT1}, 3")
        else:
            a(f"s_cmp_lt_u32 s{sU}, 77")
            a(f"s_cselect_b32 s{SWA+2}, s{SWA+2}, 0")
        a(f"s_sub_u32 s{sT0}, s{sU}, s{sT0}")
        a(f"s_lshl_b32 s{sT0}, s{sT0}, 7")
        a(f"s_add_u32 s{sOffA}, s{sT3}, s{sT0}")
        for i in range(7):
            r = WD + 28 * u + 4 * i
            a(f"buffer_load_dwordx4 v[{r}:{r+3}], v51, s[{SWA}:{SWA+3}], s{sOffA} offen")
            if i < 6: a(f"s_add_u32 s{sOffA}, s{sOffA}, s{sT2}")
    uload(0)
    a.c("clear this launch's flags: 384 bytes per helper; mark phase 1 of the B waves as done")
    a(f"s_mul_i32 s{sT0}, s{sHid}, 384")
    a(f"s_add_u32 s{sT0}, s{sT0}, {WS_FLAG}")
    a(f"v_lshlrev_b32 v{vT+7}, 4, v0")
    a(f"v_cmp_gt_u32 vcc, 24, v0")
    a(f"v_mov_b32 v{vT+2}, 0x3f803f80")
    a(f"v_mov_b32 v43, 1.0")
    a(f"v_cndmask_b32 v{vT+7}, -1, v{vT+7}, vcc")
    a(f"buffer_store_dwordx4 v[{vT+8}:{vT+11}], v{vT+7}, s[{SWS}:{SWS+3}], s{sT0} offen sc1")
    pstamp(a, 1)
    a.c("statistics (two pass)")
    S0, S1, ONE0, ONE1, D0, D1 = 40, 41, 42, 43, 44, 45
    a(f"v_mov_b64 v[{S0}:{S1}], 0")
    a(f"v_mov_b32 v{ONE0}, 0x00003f80")
    a("s_waitcnt vmcnt(8)")
    for i in range(28):
        a(f"v_dot2c_f32_bf16 v{S0+(i&1)}, v{XD+i}, v{vT+2}")
    def red8(r):
        a("s_nop 2")
        a(f"v_add_f32 v{r}, v{S0}, v{S1}")
        a("s_nop 1")
        a(f"v_add_f32_dpp v{r}, v{r}, v{r} quad_perm:[1,0,3,2] row_mask:0xf bank_mask:0xf")
        a("s_nop 1")
        a(f"v_add_f32_dpp v{r}, v{r}, v{r} quad_perm:[2,3,0,1] row_mask:0xf bank_mask:0xf")
        a("s_nop 1")
        a(f"v_add_f32_dpp v{r}, v{r}, v{r} row_half_mirror row_mask:0xf bank_mask:0xf")
    NM = 46
    red8(NM)
    a(f"v_mul_f32 v{NM}, {fhex(-1.0/448)}, v{NM}")
    a(f"v_mov_b64 v[{S0}:{S1}], 0")
    DD = 96
    for i0 in range(0, 28, 4):
        for k in range(4):
            a(f"v_dot2_f32_bf16 v{DD+2*k}, v{XD+i0+k}, v{ONE0}, v{NM}")
            a(f"v_dot2_f32_bf16 v{DD+2*k+1}, v{XD+i0+k}, v{ONE1}, v{NM}")
        a("s_nop 1")
        for k in range(8):
            a(f"v_fmac_f32 v{S0+(k&1)}, v{DD+k}, v{DD+k}")
    RS = 47
    red8(RS)
    a(f"v_mov_b32 v{D0}, {fhex(1e-5)}")
    a(f"v_fmac_f32 v{D0}, {fhex(1.0/448)}, v{RS}")
    a(f"v_rsq_f32 v{RS}, v{D0}")
    m1, m2, m3, O = 48, 49, 50, 56
    split3(a, NM, D0, m1, m2, m3)
    a(f"v_lshrrev_b32 v{D0}, 16, v{m1}")
    a(f"v_lshrrev_b32 v{D1}, 16, v{m2}")
    a(f"v_or_b32 v{O}, v{D0}, v{m1}")
    a(f"v_or_b32 v{O+1}, v{D1}, v{m1}")
    a(f"v_or_b32 v{O+2}, v{D1}, v{m3}")
    a(f"v_or_b32 v{O+3}, v{D1}, v{m3}")
    a(f"v_lshlrev_b32 v{D0}, 4, v{vT+4}")
    a(f"v_lshlrev_b32 v{D1}, 2, v{vT+4}")
    a(f"s_lshl_b32 s{sRowX}, s{sTile}, 7")
    a(f"s_add_u32 s{sRowX}, s{sRowX}, {WS_AX}")
    a(f"s_lshl_b32 s{sColQ}, s{sTile}, 5")
    a(f"s_add_u32 s{sColQ}, s{sColQ}, {WS_AR}")
    a("s_mov_b32 exec_lo, 0x01010101")
    a("s_mov_b32 exec_hi, 0x01010101")
    a(f"buffer_store_dwordx4 v[{O}:{O+3}], v{D0}, s[{SWS}:{SWS+3}], s{sRowX} offen sc1")
    a(f"buffer_store_dword v{RS}, v{D1}, s[{SWS}:{SWS+3}], s{sColQ} offen sc1")
    a("s_mov_b64 exec, -1")
    pstamp(a, 2)
    a.c("column sums: per wave partials [unit][wave*8 + row lane][64] in LDS (row pitch 272B)")
    C = 64
    a(f"s_mul_i32 s{sT0}, s{sW}, {8*272}")
    a(f"v_mul_u32_u24 v{vT+6}, 272, v{vT+4}")
    a(f"v_lshl_add_u32 v{vT+6}, v{vT+5}, 5, v{vT+6}")
    a(f"v_add_u32 v{vT+6}, s{sT0}, v{vT+6}")
    a(f"v_lshl_add_u32 v{vT+7}, v{vLane}, 2, s{sT0}")
    def usum(u, wait):
        for k in range(0, 8, 2): a(f"v_mov_b64 v[{C+k}:{C+k+1}], 0")
        a(f"s_waitcnt vmcnt({wait})")
        for i in range(7):
            for k in range(4):
                a(f"v_dot2c_f32_bf16 v{C+2*k}, v{WD+28*u+4*i+k}, v{ONE0}")
                a(f"v_dot2c_f32_bf16 v{C+2*k+1}, v{WD+28*u+4*i+k}, v{ONE1}")
        a("s_nop 2")
        a(f"ds_write_b128 v{vT+6}, v[{C}:{C+3}]")
        a(f"ds_write_b128 v{vT+6}, v[{C+4}:{C+7}] offset:16")
        a("s_waitcnt lgkmcnt(0)")
        for k in range(4):
            a(f"ds_read2_b32 v[{C+8+2*k}:{C+9+2*k}], v{vT+7} offset0:{136*(k&1)} offset1:{136*(k&1)+68}" if k < 2 else
              f"ds_read2_b32 v[{C+8+2*k}:{C+9+2*k}], v{vT+1} offset0:{136*(k&1)} offset1:{136*(k&1)+68}")
        a("s_waitcnt lgkmcnt(0)")
        for k in range(4): a(f"v_add_f32 v{C+8+k}, v{C+8+k}, v{C+12+k}")
        a(f"v_add_f32 v{C+8}, v{C+8}, v{C+10}")
        a(f"v_add_f32 v{C+9}, v{C+9}, v{C+11}")
        a(f"v_add_f32 v{C+8}, v{C+8}, v{C+9}")
        a(f"ds_write_b32 v{vT+3}, v{C+8} offset:{32768 + 2048*u}")
    a(f"v_add_u32 v{vT+1}, {4*272}, v{vT+7}")
    a(f"v_lshlrev_b32 v{vT+3}, 2, v0")
    def final(name, nw, ubase, cnt_off, go_off):
        a("s_waitcnt lgkmcnt(0)")
        a("s_barrier")
        a(f"s_cmp_ge_u32 s{sW}, {nw}")
        a(f"s_cbranch_scc1 {name}_s")
        a(f"s_lshl_b32 s{sT0}, s{sW}, 11")
        a(f"v_lshl_add_u32 v{D1}, v{vLane}, 2, s{sT0}")
        for k in range(4):
            a(f"ds_read2st64_b32 v[{C+8+2*k}:{C+9+2*k}], v{D1} offset0:{128+8*ubase+2*k} offset1:{128+8*ubase+2*k+1}")
        a(f"s_add_u32 s{sT0}, s{sW}, {ubase}")
        a(f"s_lshl_b32 s{sT0}, s{sT0}, 5")
        a(f"s_add_u32 s{sT0}, s{sT0}, s{sHid}")
        a(f"s_cmp_lt_u32 s{sT0}, 77")
        a(f"s_cselect_b32 s{sT1}, {WS_AW}, -1")
        a(f"s_cselect_b32 s{sT0}, s{sT0}, 0")
        a(f"s_lshl_b32 s{sT0}, s{sT0}, 10")
        a(f"s_add_u32 s{sT0}, s{sT0}, s{sT1}")
        a("s_waitcnt lgkmcnt(0)")
        for k in range(4): a(f"v_add_f32 v{C+8+k}, v{C+8+k}, v{C+12+k}")
        a(f"v_add_f32 v{C+8}, v{C+8}, v{C+10}")
        a(f"v_add_f32 v{C+9}, v{C+9}, v{C+11}")
        a(f"v_add_f32 v{C+8}, v{C+8}, v{C+9}")
        split3(a, C + 8, D0, 84, 85, 86)
        for k in range(3):
            a(f"v_lshrrev_b32 v{87+k}, 16, v{84+k}")
        a(f"v_or_b32 v92, v87, v85")
        a(f"v_or_b32 v93, v87, v86")
        a(f"v_or_b32 v94, v88, v84")
        a(f"v_or_b32 v95, v89, v85")
        a(f"buffer_store_dwordx4 v[92:95], v{vL16}, s[{SWS}:{SWS+3}], s{sT0} offen sc1")
        a.label(f"{name}_s")
    def sig(name, cnt_off, go_off):
        a("s_barrier")
        a(f"s_cmp_lg_u32 s{sW}, 7")
        a(f"s_cbranch_scc1 {name}_e")
        a(f"v_mov_b32 v{D0}, 1")
        a("s_mov_b64 exec, 1")
        a(f"buffer_atomic_add v{D0}, v{vZero}, s[{SDBG}:{SDBG+3}], 0 offen offset:{cnt_off} sc0 sc1")
        a("s_waitcnt vmcnt(0)")
        a(f"v_readfirstlane_b32 s{sT0}, v{D0}")
        a(f"v_mov_b32 v{D0}, 1")
        a(f"s_cmp_lg_u32 s{sT0}, 31")
        a(f"s_cbranch_scc1 {name}_n")
        a(f"buffer_store_dword v{D0}, v{vZero}, s[{SDBG}:{SDBG+3}], 0 offen offset:{go_off} sc1")
        a.label(f"{name}_n")
        a("s_mov_b64 exec, -1")
        a.label(f"{name}_e")
    usum(0, 3)
    pstamp(a, 3)
    final("P1_h1", 1, 0, 0, 128)
    a("s_waitcnt vmcnt(0)")
    pstamp(a, 4)
    sig("P1_h1", 0, 128)
    pstamp(a, 5)
    uload(1)
    uload(2)
    usum(1, 7)
    usum(2, 0)
    final("P1_h2", 2, 1, 64, 192)
    a("s_waitcnt vmcnt(0)")
    sig("P1_h2", 64, 192)
    a(f"v_mov_b32 v{D0}, {LDS_P1+4}")
    a(f"v_mov_b32 v{D1}, 4")
    a(f"ds_write_b32 v{D0}, v{D1}")
    pstamp(a, 6)

def gen_p1(a, endA, endB, endH):
    pstamp(a, 0)
    a("s_load_dwordx4 s[4:7], s[0:1], 0")
    a("s_load_dwordx4 s[8:11], s[0:1], 32")
    a("s_load_dwordx4 s[12:15], s[0:1], 64")
    a(f"v_lshrrev_b32 v{vT}, 6, v0")
    a(f"v_and_b32 v{vLane}, 63, v0")
    a(f"v_readfirstlane_b32 s{sW}, v{vT}")
    a(f"v_lshlrev_b32 v{vL16}, 4, v{vLane}")
    a(f"v_lshrrev_b32 v{vH}, 5, v{vLane}")
    a(f"v_mov_b32 v{vZero}, 0")
    a(f"v_mov_b32 v{vFlag}, 0")
    if OPT.get("cp", "1") == "1":
        a.c("pull the code of all phases into L2: wave w touches 8KB")
        a(f"s_getpc_b64 s[{SWQ}:{SWQ+1}]")
        a(f"s_and_b32 s{SWQ}, s{SWQ}, 0xffffff00")
        a(f"s_and_b32 s{SWQ+1}, s{SWQ+1}, 0xffff")
        a(f"s_mov_b32 s{SWQ+2}, CODE_END - {KNAME}")
        a(f"s_mov_b32 s{SWQ+3}, 0x20000")
        a(f"v_lshlrev_b32 v{vT+1}, 7, v0")
        a(f"v_subrev_u32 v{vT+1}, {5*8192}, v{vT+1}")
        a(f"buffer_load_dword v55, v{vT+1}, s[{SWQ}:{SWQ+3}], 0 offen")
    a(f"s_and_b32 s{sT0}, s2, 7")
    a(f"s_lshr_b32 s{sT1}, s2, 3")
    a(f"s_add_u32 s{sT1}, s{sT1}, 28")
    a(f"s_and_b32 s{sT1}, s{sT1}, 31")
    a(f"s_lshr_b32 s{sRB}, s{sT0}, 1")
    a(f"s_lshl_b32 s{sRB}, s{sRB}, 2")
    a(f"s_and_b32 s{sT2}, s{sT1}, 3")
    a(f"s_add_u32 s{sRB}, s{sRB}, s{sT2}")
    a(f"s_and_b32 s{sCG}, s{sT0}, 1")
    a(f"s_lshr_b32 s{sT2}, s{sT1}, 2")
    a(f"s_lshl_b32 s{sT2}, s{sT2}, 1")
    a(f"s_add_u32 s{sCG}, s{sCG}, s{sT2}")
    a(f"s_and_b32 s{sTT}, s{sW}, 3")
    a(f"s_lshl_b32 s{sTile}, s{sRB}, 2")
    a(f"s_add_u32 s{sTile}, s{sTile}, s{sTT}")
    a(f"s_mov_b32 s{sMask}, 0xffff0000")
    a(f"s_mov_b32 s{sCnt}, 7")
    a.c("x dma pattern")
    t1, i_ = vT + 1, vT
    a(f"v_lshrrev_b32 v{vT+4}, 3, v{vLane}")
    a(f"v_mul_u32_u24 v{vOffX}, 896, v{vT+4}")
    a(f"v_lshrrev_b32 v{t1}, 4, v{vLane}")
    a(f"v_and_b32 v{vT+5}, 7, v{vLane}")
    a(f"v_xor_b32 v{t1}, v{t1}, v{vT+5}")
    a(f"v_lshl_add_u32 v{vOffX}, v{t1}, 4, v{vOffX}")
    a(f"v_xor_b32 v{vOffX+1}, 64, v{vOffX}")
    a(f"v_add_u32 v{vOffX+1}, {7168-1024}, v{vOffX+1}")
    a(f"s_movk_i32 s{sSM}, 2048")
    a(f"s_movk_i32 s{sSM+1}, 14336")
    a(f"s_movk_i32 s{sSG}, 14336")
    a(f"s_movk_i32 s{sSG+1}, {128-14336}")
    a(f"s_mul_i32 s{sRowX}, s{sTile}, {32*896}")
    a(f"s_mov_b32 s{sOffX}, s{sRowX}")
    a(f"s_lshl_b32 s{sRingX}, s{sTT}, 12")
    a("s_waitcnt lgkmcnt(0)")
    a.srd(SX, 4, 2048 * 896)
    a.srd(SDBG, 12, 256)
    a.srd(SWS, 14, WS_END)
    a("s_mov_b32 s12, s14")
    if FUSED:
        a(f"v_mov_b32 v{vT+6}, {LDS_P1}")
        a(f"v_mov_b64 v[{vT+8}:{vT+9}], 0")
        a(f"v_mov_b64 v[{vT+10}:{vT+11}], 0")
        a(f"ds_write_b128 v{vT+6}, v[{vT+8}:{vT+11}]")
        a(f"ds_write_b128 v{vT+6}, v[{vT+8}:{vT+11}] offset:16")
    a(f"s_cmp_ge_u32 s{sCG}, 14")
    a("s_cbranch_scc1 P1_help")
    a(f"s_cmp_ge_u32 s{sW}, 4")
    a("s_cbranch_scc1 P1_B")
    a.srd(SWQ, 6, 448 * 2688)
    ffn_setup(a)
    a(f"v_mul_u32_u24 v{t1}, 43, v{vLane}")
    a(f"v_lshrrev_b32 v{t1}, 9, v{t1}")
    a(f"v_mul_u32_u24 v{vOffQ}, {2688-192}, v{t1}")
    a(f"v_add_u32 v{vOffQ}, v{vOffQ}, v{vL16}")
    a(f"v_add_u32 v{vOffQ2}, {4*2688-768}, v{vOffQ}")
    a(f"s_mul_i32 s{sOffQ}, s{sCG}, 192")
    a(f"s_mul_i32 s{sT0}, s{sW}, {8*2688}")
    a(f"s_add_u32 s{sOffQ}, s{sOffQ}, s{sT0}")
    a(f"s_mul_i32 s{sRingQ}, s{sW}, 1536")
    a(f"s_add_u32 s{sRingQ}, s{sRingQ}, {QR}")
    a(f"s_mov_b32 s{sE48}, -1")
    a(f"s_mov_b32 s{sE48+1}, 0xffff")
    a(f"s_mov_b32 s{sColA}, s{sOffA}")
    a(f"s_lshl_b32 s{sColQ}, s{sTT}, 11")
    a(f"s_add_u32 s{sOffX}, s{sOffX}, 256")
    a(f"s_add_u32 s{sRingX}, s{sRingX}, 32768")
    for sl in range(4):
        for g in dmaQ(sl) + dmaF(sl):
            for l in g: a(l)
        if sl >= 2:
            for g in dmaX(sl - 2):
                for l in g: a(l)
    a(f"s_mov_b32 s{sRowX}, 16384")
    a(f"s_mov_b32 s{sDq}, {2*6144}")
    pstamp(a, 1)
    common_addr(a, "A")
    a(f"v_mul_u32_u24 v{vTr0}, 192, v{vT+2}")
    a(f"v_add_u32 v{vTr0}, v{vTr0}, v{vT+3}")
    a(f"v_add_u32 v{vTr0}, {QR}, v{vTr0}")
    for j in range(3):
        a(f"v_mfma_f32_32x32x16_bf16 v[{ACC+16*j}:{ACC+16*j+15}], v[{vT+8}:{vT+11}], v[{vT+8}:{vT+11}], 0")
    a(f"s_lshl_b32 s{sT3}, s{sTile}, 12")
    a.c("Q/K store address table: lane l -> 8-column chunk 12*cg + l")
    g8, m, e, x, tab, tab2 = vT + 4, vT + 5, vT + 6, vT + 7, vT + 8, vT + 9
    a(f"s_mul_i32 s{sT0}, s{sCG}, 12")
    a(f"v_add_u32 v{g8}, s{sT0}, v{vLane}")
    a(f"v_mul_u32_u24 v{m}, 9363, v{g8}")
    a(f"v_lshrrev_b32 v{m}, 16, v{m}")
    a(f"v_mul_u32_u24 v{e}, 7, v{m}")
    a(f"v_sub_u32 v{e}, v{g8}, v{e}")
    a(f"v_and_b32 v{x}, 7, v{m}")
    a(f"v_lshl_add_u32 v{tab}, v{x}, 19, s{sT3}")
    a(f"v_bfe_u32 v{x}, v{m}, 3, 1")
    a(f"v_xor_b32 v{x}, 1, v{x}")
    a(f"v_lshl_add_u32 v{tab}, v{x}, 11, v{tab}")
    a(f"v_add_u32 v{tab2}, {HS + 3*512}, v{tab}")
    a(f"v_lshrrev_b32 v{x}, 2, v{e}")
    a(f"v_lshl_add_u32 v{tab}, v{x}, 18, v{tab}")
    a(f"v_and_b32 v{x}, 3, v{e}")
    a(f"v_lshl_add_u32 v{tab}, v{x}, 9, v{tab}")
    a(f"v_cmp_eq_u32 vcc, 3, v{e}")
    a(f"v_lshlrev_b32 v{x}, 2, v{vH}")
    a(f"v_bfrev_b32 v{m}, 1")
    a(f"v_cndmask_b32 v{tab2}, v{m}, v{tab2}, vcc")
    for k in range(6):
        a(f"ds_bpermute_b32 v{vSt+k}, v{x}, v{tab} offset:{8*k}")
        a(f"ds_bpermute_b32 v{vSt+6+k}, v{x}, v{tab2} offset:{8*k}")
    a(f"v_and_b32 v{x}, 0x1f0, v{vL16}")
    a(f"v_mul_u32_u24 v{vT+12}, {VT//4}, v{vH}")
    a(f"v_add_u32 v{vT+12}, v{vT+12}, v{x}")
    a("s_waitcnt lgkmcnt(0)")
    for k in range(12):
        a(f"v_add_u32 v{vSt+k}, v{vSt+k}, v{x}")
    pstamp(a, 2)
    a("s_waitcnt vmcnt(16)")
    pstamp(a, 3)
    a("s_barrier")
    pstamp(a, 4)
    a(f"ds_read_b128 v[{XC}:{XC+3}], v{vXk}")
    a(f"ds_read_b128 v[{XC+4}:{XC+7}], v{vXk+1}")
    for l in wreadsA(0, 0): a(l)
    a("s_waitcnt vmcnt(12) lgkmcnt(0)")
    pstamp(a, 5)
    a(f"s_cmp_gt_u32 s{sCG}, 9")
    a("s_cbranch_scc1 P1_loopA_VVV")
    a(f"s_cmp_eq_u32 s{sCG}, 9")
    a("s_cbranch_scc1 P1_loopA_QVV")
    loopA(a, "QQQ")
    a("s_branch P1_Aepi")
    loopA(a, "QVV")
    a("s_branch P1_Aepi")
    loopA(a, "VVV")
    a.label("P1_Aepi")
    pstamp(a, 6)
    epi_A(a)
    endA(a)
    aux_blocks(a)
    a.label("P1_B")
    for c in range(2):
        for q in range(2):
            for g in dmaX(q):
                for l in g: a(l)
    if OPT.get("pf", "1") == "1":
        a.c("touch one slice of x / wqkv / w_gate / w_up so that the whole chip asks memory for them at once")
        a(f"s_cmp_lt_u32 s{sTT}, 2")
        a(f"s_cselect_b32 s{SWA}, s4, s8")
        a(f"s_cselect_b32 s{SWA+1}, s5, s9")
        a(f"s_cselect_b32 s{sT0}, s6, s10")
        a(f"s_cselect_b32 s{sT1}, s7, s11")
        a(f"s_mov_b32 s{SWA+2}, {448*3584}")
        a(f"s_cselect_b32 s{sT2}, {448*2688}, s{SWA+2}")
        a(f"s_cselect_b32 s{SWA+2}, {2048*896}, s{SWA+2}")
        a(f"s_bitcmp1_b32 s{sTT}, 0")
        a(f"s_cselect_b32 s{SWA}, s{sT0}, s{SWA}")
        a(f"s_cselect_b32 s{SWA+1}, s{sT1}, s{SWA+1}")
        a(f"s_cselect_b32 s{SWA+2}, s{sT2}, s{SWA+2}")
        a(f"s_and_b32 s{SWA+1}, s{SWA+1}, 0xffff")
        a(f"s_mov_b32 s{SWA+3}, 0x20000")
        a(f"s_sub_u32 s{sT0}, s2, 32")
        a(f"s_lshl_b32 s{sT0}, s{sT0}, 13")
        a(f"v_lshlrev_b32 v{vT+6}, 7, v{vLane}")
        a(f"buffer_load_dword v55, v{vT+6}, s[{SWA}:{SWA+3}], s{sT0} offen")
    tab = sum(v << (4 * i) for i, v in enumerate(BTAB))
    a(f"s_mov_b32 s{sTab}, {tab & 0xffffffff}")
    a(f"s_mov_b32 s{sTab+1}, {tab >> 32}")
    a(f"s_mov_b32 s{sDq}, {((1 << 16) - 1) | (1 << NBAR)}")
    a(f"s_mov_b32 s{sCnt}, 14")
    pstamp(a, 1)
    common_addr(a, "B")
    a(f"v_lshlrev_b32 v{vTr0}, 7, v{vT+2}")
    a(f"v_add_u32 v{vTr0}, v{vTr0}, v{vT+3}")
    a(f"v_bfe_u32 v{t1}, v{i_}, 3, 1")
    a(f"v_lshl_add_u32 v{vTr0}, v{t1}, 6, v{vTr0}")
    a(f"v_xor_b32 v{vTr1}, 64, v{vTr0}")
    a(f"s_lshr_b32 s{sT0}, s{sTT}, 1")
    a(f"s_lshl_b32 s{sT0}, s{sT0}, 12")
    a(f"v_add_u32 v{vOffA}, s{sT0}, v{vTr0}")
    a(f"v_add_u32 v{vOffA2}, s{sT0}, v{vTr1}")
    a(f"v_add_u32 v{vTr0}, {FR}, v{vOffA}")
    a(f"v_add_u32 v{vTr1}, {FR}, v{vOffA2}")
    for j in range(8):
        a(f"v_mfma_f32_32x32x16_bf16 v[{ACC+16*j}:{ACC+16*j+15}], v[{vT+8}:{vT+11}], v[{vT+8}:{vT+11}], 0")
    pstamp(a, 2)
    a("s_waitcnt vmcnt(%d)" % (5 if OPT.get("pf", "1") == "1" else 4))
    pstamp(a, 3)
    a("s_barrier")
    pstamp(a, 4)
    a(f"ds_read_b128 v[{XB}:{XB+3}], v{vXk}")
    a(f"ds_read_b128 v[{XB+4}:{XB+7}], v{vXk} offset:4096")
    for l in wreadsB(0, 0): a(l)
    a("s_waitcnt vmcnt(%d) lgkmcnt(0)" % (1 if OPT.get("pf", "1") == "1" else 0))
    pstamp(a, 5)
    loopB(a)
    pstamp(a, 6)
    epi_B(a)
    endB(a)
    helper(a)
    endH(a)

def ffn_setup(a):
    t1 = vT + 1
    a.c("gate/up dma setup: wave tt loads block tt (G0,U0,G1,U1)")
    a(f"s_bitcmp1_b32 s{sW}, 0")
    a(f"s_cselect_b32 s{SWA}, s10, s8")
    a(f"s_cselect_b32 s{SWA+1}, s11, s9")
    a(f"s_and_b32 s{SWA+1}, s{SWA+1}, 0xffff")
    a(f"s_mov_b32 s{SWA+2}, {448*3584}")
    a(f"s_mov_b32 s{SWA+3}, 0x20000")
    a(f"v_bfe_u32 v{t1}, v{vLane}, 4, 1")
    a(f"v_lshlrev_b32 v{t1}, 2, v{t1}")
    a(f"v_xor_b32 v{t1}, v{t1}, v{vT+5}")
    a(f"v_mul_u32_u24 v{vOffA}, 3584, v{vT+4}")
    a(f"v_lshl_add_u32 v{vOffA}, v{t1}, 4, v{vOffA}")
    a(f"v_add_u32 v{vOffA2}, {8*3584-1024}, v{vOffA}")
    a(f"s_lshl_b32 s{sOffA}, s{sCG}, 1")
    a(f"s_lshr_b32 s{sT0}, s{sTT}, 1")
    a(f"s_add_u32 s{sOffA}, s{sOffA}, s{sT0}")
    a(f"s_lshl_b32 s{sOffA}, s{sOffA}, 7")
    a(f"s_lshl_b32 s{sRingA}, s{sTT}, 11")
    a(f"s_add_u32 s{sRingA}, s{sRingA}, {FR}")

def common_addr(a, role):
    t1, i_ = vT + 1, vT
    a.c("x fragment addresses")
    a(f"v_and_b32 v{t1}, 31, v{vLane}")
    a(f"v_bfe_u32 v{vT+2}, v{vLane}, 1, 3")
    a(f"v_xor_b32 v{vT+2}, v{vT+2}, v{vH}")
    a(f"v_lshlrev_b32 v{vT+2}, 4, v{vT+2}")
    a(f"v_lshl_add_u32 v{vXk}, v{t1}, 7, v{vT+2}")
    if role == "A":
        a(f"s_lshl_b32 s{sT0}, s{sTT}, 12")
    else:
        a(f"s_and_b32 s{sT0}, s{sTT}, 1")
        a(f"s_lshl_b32 s{sT0}, s{sT0}, 13")
    a(f"v_add_u32 v{vXk}, s{sT0}, v{vXk}")
    for k in range(1, 4):
        a(f"v_xor_b32 v{vXk+k}, {32*k}, v{vXk}")
    a(f"v_and_b32 v{i_}, 15, v{vLane}")
    a(f"v_lshrrev_b32 v{t1}, 2, v{i_}")
    a(f"v_lshl_add_u32 v{vT+2}, v{vH}, 3, v{t1}")
    a(f"v_bfe_u32 v{t1}, v{vLane}, 4, 1")
    a(f"v_lshlrev_b32 v{vT+3}, 5, v{t1}")
    a(f"v_and_b32 v{t1}, 3, v{i_}")
    a(f"v_lshl_add_u32 v{vT+3}, v{t1}, 3, v{vT+3}")
    a(f"s_mov_b32 s{sDelta}, {2*8192}")

def gen_k1(name):
    a = Asm()
    a(f"s_cmp_ge_u32 s2, 256")
    a(f"s_cbranch_scc1 K1_exit")
    def end(a):
        pstamp(a, 7)
        a.stamp_flush(8, 0, sW, 8)
        a("s_endpgm")
    def endH(a):
        pstamp(a, 8)
        a.stamp_flush(9, 0, sW, 8)
        a("s_endpgm")
    gen_p1(a, end, end, endH)
    a.label("K1_exit")
    a("s_endpgm")
    return kernel_header(name) + a.text(), kernel_desc(name, 256, 64), LDS_P1
```

```python
import sys
sys.path.insert(0, "gen")
from p1 import gen_k1
from k2 import gen_k2
from k3 import gen_k3

HDR = """; parallel_sum(mha_block, geglu ffn) on gfx950 -- generated by gen/gen.py
"""
def build(path):
    import os
    if os.environ.get("MODE", "fused") == "fused":
        from fused import gen_fused
        name = "parallel_sum__mha_block__glu_gated_geglu__prompt_kernel"
        c, d, lds = gen_fused(name)
        s = HDR + f"; @launch grid=(256,1,1) block=(512,1,1) lds={lds}\n" + '.amdgcn_target "amdgcn-amd-amdhsa--gfx950"\n.text\n' + c + 'CODE_END:\n.section .rodata,"a"\n' + d
        open(path, "w").write(s)
        return
    ks = [("k1_kernel", gen_k1, 256, 512), ("k2_kernel", gen_k2, 256, 256), ("k3_kernel", gen_k3, 224, 512)]
    code, desc, launch = "", "", ""
    for name, g, grid, blk in ks:
        c, d, lds = g(name)
        code += c
        desc += d
        launch += f"; @launch kernel={name} grid=({grid},1,1) block=({blk},1,1) lds={lds}\n"
    s = HDR + launch + '.amdgcn_target "amdgcn-amd-amdhsa--gfx950"\n.text\n' + code + 'CODE_END:\n.section .rodata,"a"\n' + desc
    open(path, "w").write(s)
if __name__ == "__main__":
    import asmlib
    if "--diag" in sys.argv:
        asmlib.DIAG["on"] = True
        sys.argv.remove("--diag")
    build(sys.argv[1] if len(sys.argv) > 1 else "parallel_sum__mha_block__glu_gated_geglu__prompt.s")
```

```python
import struct
DIAG = {"on": False}

def f2u(x):
    return struct.unpack("<I", struct.pack("<f", x))[0]

def fhex(x):
    return "0x%08x" % f2u(x)

def vr(a, n=1):
    return f"v{a}" if n == 1 else f"v[{a}:{a+n-1}]"

def sr(a, n=1):
    return f"s{a}" if n == 1 else f"s[{a}:{a+n-1}]"

class Asm:
    def __init__(self):
        self.lines = []
        self.uid = 0
    def __call__(self, s):
        for l in s.strip("\n").split("\n"):
            l = l.strip()
            if l:
                self.lines.append(("" if l.endswith(":") else "    ") + l)
    def c(self, s):
        self.lines.append("    ; " + s)
    def label(self, name):
        self.lines.append(name + ":")
    def newlabel(self, p="L"):
        self.uid += 1
        return f"{p}_{self.uid}"
    def text(self):
        return "\n".join(self.lines) + "\n"
    def stamp(self, idx):
        if not DIAG["on"]:
            return
        import os
        self(f"{'s_memrealtime' if os.environ.get('RT') else 's_memtime'} s[{64+2*idx}:{65+2*idx}]")
        if idx == 0:
            self("s_memrealtime s[88:89]")
        self("s_waitcnt lgkmcnt(0)")
    def stamp_flush(self, n, kidx, swave, wpw):
        if not DIAG["on"]:
            return
        self("s_memrealtime s[90:91]")
        self("s_load_dwordx2 s[92:93], s[0:1], 72")
        self("s_waitcnt lgkmcnt(0) vmcnt(0)")
        import os
        self(f"{'s_memrealtime' if os.environ.get('RT') else 's_memtime'} s[86:87]")
        self(f"s_add_u32 s92, s92, {(128<<20) + kidx*(1<<20)}")
        self("s_addc_u32 s93, s93, 0")
        self("s_and_b32 s93, s93, 0xffff")
        self("s_mov_b32 s94, 0x100000")
        self("s_mov_b32 s95, 0x20000")
        self(f"s_mul_i32 s96, s2, {wpw}")
        self(f"s_add_u32 s96, s96, s{swave}")
        self("s_lshl_b32 s96, s96, 6")
        self("s_mov_b64 exec, 1")
        self("s_waitcnt lgkmcnt(0)")
        self("v_mov_b32 v0, 0")
        for i in list(range(n)) + [11, 12, 13]:
            self(f"v_mov_b32 v1, s{64+2*i}")
            self(f"buffer_store_dword v1, v0, s[92:95], s96 offen offset:{4*i}")
            self("s_nop 1")
    def srd(self, d, base, nbytes):
        self(f"s_mov_b32 s{d}, s{base}")
        self(f"s_and_b32 s{d+1}, s{base+1}, 0xffff")
        self(f"s_mov_b32 s{d+2}, {nbytes}")
        self(f"s_mov_b32 s{d+3}, 0x20000")

def interleave(main, fill, counts=None):
    out = []
    n = len(main)
    if counts is None:
        counts = []
        done = 0
        for i in range(n):
            tgt = (len(fill) * (i + 1) + n - 1) // n
            counts.append(tgt - done)
            done = tgt
    k = 0
    for i in range(n):
        out.append(main[i])
        out.extend(fill[k:k + counts[i]])
        k += counts[i]
    out.extend(fill[k:])
    return out

def kernel_header(name):
    return f""".globl {name}
.p2align 8
.type {name},@function
{name}:
"""

def kernel_desc(name, nvgpr, nsgpr=96, accum=None):
    if DIAG["on"]:
        nsgpr = 100
    if accum is None:
        accum = (nvgpr + 3) // 4 * 4
    return f""".p2align 6
.amdhsa_kernel {name}
  .amdhsa_next_free_vgpr {nvgpr}
  .amdhsa_next_free_sgpr {nsgpr}
  .amdhsa_accum_offset {accum}
  .amdhsa_group_segment_fixed_size 0
  .amdhsa_kernarg_size 80
  .amdhsa_user_sgpr_count 2
  .amdhsa_user_sgpr_kernarg_segment_ptr 1
  .amdhsa_system_sgpr_workgroup_id_x 1
.end_amdhsa_kernel
"""
```

```python
from asmlib import *
from consts import *
import p1
from p1 import OPT, sW, sRB, sCG, sTT, SWS, SDBG, sMask, vLane, vL16, vH, vZero

INB = 12288
WOB = 49152
XCH = 114688
SYNC = p1.LDS_P1
LDS_F = SYNC + 64
FQ, FH, FO = WS_FLAG, WS_FLAG + 8192, WS_FLAG + 10240

SKH, SKV, SVH, SV, SWD = 4, 8, 16, 20, 24
sHead, sQB, sOff, sOffV, sCnt = 36, 37, 38, 39, 41
sT0, sT1, sT2, sT3 = 42, 43, 44, 45
sMT, sNT, sRing = 47, 48, 49
sVM, sUP = 50, 52
sA0, sA1, sWoff, sStep, sKQ = 54, 55, 40, 14, 15
SXO = 60
vT = 4
vZ = 15
vVo = 14
NB = 4
QF = 16
KV = 48
SS = KV + 16 * NB
PP = SS + 32
OO = PP + 16
vTr0, vTr1 = 16, 17
vOff = 20
XRES = 24
vXo = 28
ACT = 32
WFG = 96
GACC = 128
TW = 192

def fstamp(a, i):
    if OPT.get("st", "2") in ("1", "3") and i < 7:
        return
    a.stamp(i)

def xstamp(a, i):
    if OPT.get("st", "2") == "3":
        a.stamp(i)

def mf(d, a, b, c):
    cs = "0" if c is None else f"v[{c}:{c+15}]"
    return f"v_mfma_f32_32x32x16_bf16 v[{d}:{d+15}], v[{a}:{a+3}], v[{b}:{b+3}], {cs}"

def signal(a, name, cnt_idx, flag_soff_reg, vaddr=None):
    a(f"v_mov_b32 v{vT}, {SYNC + 4*cnt_idx}")
    a(f"v_mov_b32 v{vT+1}, 1")
    a("s_mov_b64 exec, 1")
    a("s_waitcnt vmcnt(0)")
    a(f"ds_add_rtn_u32 v{vT+2}, v{vT}, v{vT+1}")
    a("s_waitcnt lgkmcnt(0)")
    a(f"v_readfirstlane_b32 s{sT0}, v{vT+2}")
    if vaddr is not None: a("s_mov_b64 exec, 0x3ff")
    a(f"s_cmp_lg_u32 s{sT0}, 3")
    a(f"s_cbranch_scc1 {name}_ns")
    a(f"buffer_store_dword v{vT+1}, v{vZ if vaddr is None else vaddr}, s[{SWS}:{SWS+3}], s{flag_soff_reg} offen sc1")
    a.label(f"{name}_ns")
    a("s_mov_b64 exec, -1")

def poll(a, name, soff, nlanes, wide, sleep, rel_idx, poller):
    a(f"s_mov_b32 s{sT1}, 0x8000")
    a(f"v_mov_b32 v{vT+5}, {SYNC + 4*rel_idx}")
    a(f"s_cmp_lg_u32 s{sW}, {poller}")
    a(f"s_cbranch_scc1 {name}_w")
    a(f"s_mov_b64 exec, {hex((1 << nlanes) - 1)}")
    if not wide: a(f"v_lshlrev_b32 v{vT+4}, 2, v{vLane}")
    a.label(f"{name}_l")
    if wide:
        a(f"buffer_load_dwordx4 v[{vT}:{vT+3}], v{vL16}, s[{SWS}:{SWS+3}], {soff} offen sc1")
        a("s_waitcnt vmcnt(0)")
        a(f"v_and_b32 v{vT}, v{vT}, v{vT+1}")
        a(f"v_and_b32 v{vT+2}, v{vT+2}, v{vT+3}")
        a(f"v_and_b32 v{vT}, v{vT}, v{vT+2}")
    else:
        a(f"buffer_load_dword v{vT}, v{vT+4}, s[{SWS}:{SWS+3}], {soff} offen sc1")
        a("s_waitcnt vmcnt(0)")
    a(f"v_cmp_ne_u32 vcc, 1, v{vT}")
    a(f"s_cbranch_vccz {name}_p")
    a(f"s_sub_u32 s{sT1}, s{sT1}, 1")
    a(f"s_cbranch_scc1 {name}_p")
    a(f"s_sleep {sleep}")
    a(f"s_branch {name}_l")
    a.label(f"{name}_p")
    a(f"v_mov_b32 v{vT}, 1")
    a(f"ds_write_b32 v{vT+5}, v{vT}")
    a("s_mov_b64 exec, -1")
    a(f"s_branch {name}_ok")
    a.label(f"{name}_w")
    a(f"s_lshl_b32 s{sT1}, s{sT1}, 4")
    a.label(f"{name}_w2")
    a(f"ds_read_b32 v{vT}, v{vT+5}")
    a("s_waitcnt lgkmcnt(0)")
    a(f"v_readfirstlane_b32 s{sT0}, v{vT}")
    a(f"s_cmp_eq_u32 s{sT0}, 1")
    a(f"s_cbranch_scc1 {name}_ok")
    a(f"s_sub_u32 s{sT1}, s{sT1}, 1")
    a(f"s_cbranch_scc1 {name}_ok")
    a("s_sleep 1")
    a(f"s_branch {name}_w2")
    a.label(f"{name}_ok")

def kvload(a, kb, srd, sv):
    b = KV + 16 * kb
    a(f"buffer_load_dwordx4 v[{b}:{b+3}], v{vL16}, s[{srd}:{srd+3}], s{sOff} offen sc1")
    a(f"buffer_load_dwordx4 v[{b+4}:{b+7}], v{vL16}, s[{srd}:{srd+3}], s{sOff} offen offset:1024 sc1")
    a(f"s_mov_b64 exec, s[{sVM}:{sVM+1}]")
    a(f"buffer_load_dwordx4 v[{b+8}:{b+11}], v{vVo}, s[{sv}:{sv+3}], s{sOffV} offen sc1")
    a(f"s_add_u32 s{sOffV}, s{sOffV}, {VT//2}")
    a(f"buffer_load_dwordx4 v[{b+12}:{b+15}], v{vVo}, s[{sv}:{sv+3}], s{sOffV} offen sc1")
    a(f"s_mov_b64 exec, -1")
    a(f"s_add_u32 s{sOffV}, s{sOffV}, {VT//2}")
    a(f"s_add_u32 s{sOff}, s{sOff}, {TS}")

def maxtree(a, src, dst, first=True):
    if first:
        a(f"v_max3_f32 v{dst}, v{src}, v{src+1}, v{src+2}")
        for i in range(3, 15, 2):
            a(f"v_max3_f32 v{dst}, v{dst}, v{src+i}, v{src+i+1}")
        a(f"v_max_f32 v{dst}, v{dst}, v{src+15}")
    else:
        for i in range(0, 16, 2):
            a(f"v_max3_f32 v{dst}, v{dst}, v{src+i}, v{src+i+1}")

def setpads(a, ms, qs, t):
    n = len(ms)
    for i, m in enumerate(ms): a(f"v_mov_b32 v{t+i}, v{m}")
    a("s_nop 1")
    for i, m in enumerate(ms): a(f"v_permlane32_swap_b32 v{m}, v{t+i}")
    a("s_nop 0")
    for i, m in enumerate(ms): a(f"v_max_f32 v{m}, v{m}, v{t+i}")
    a(f"s_mov_b64 exec, s[{sUP}:{sUP+1}]")
    for i, (m, q) in enumerate(zip(ms, qs)):
        u, w = t + i, t + n + i
        a(f"v_sub_f32 v{m}, 0, v{m}")
        a(f"v_and_b32 v{u}, s{sMask}, v{m}")
        a(f"v_sub_f32 v{u}, v{m}, v{u}")
        a(f"v_lshrrev_b32 v{m}, 16, v{m}")
        a(f"v_and_b32 v{w}, s{sMask}, v{u}")
        a(f"v_or_b32 v{q+6}, v{m}, v{w}")
        a(f"v_sub_f32 v{u}, v{u}, v{w}")
        a(f"v_lshrrev_b32 v{q+7}, 16, v{u}")
    a("s_mov_b64 exec, -1")

def expcvt(S, P, g):
    o = [f"v_exp_f32 v{S+4*g+k}, v{S+4*g+k}" for k in range(4)]
    o += [f"v_cvt_pk_bf16_f32 v{P+2*g+k}, v{S+4*g+2*k}, v{S+4*g+2*k+1}" for k in range(2)]
    return o

def ldswait(a, name, idx, n):
    a(f"v_mov_b32 v{vT+6}, {SYNC+4*idx}")
    a(f"s_mov_b32 s{sT1}, 0x80000")
    a.label(name)
    a(f"ds_read_b32 v{vT+7}, v{vT+6}")
    a("s_waitcnt lgkmcnt(0)")
    a(f"v_readfirstlane_b32 s{sT0}, v{vT+7}")
    a(f"s_sub_u32 s{sT1}, s{sT1}, 1")
    a(f"s_cselect_b32 s{sT0}, {n}, s{sT0}")
    a(f"s_cmp_lt_u32 s{sT0}, {n}")
    a(f"s_cbranch_scc1 {name}")

def ldsadd(a, idx):
    a(f"v_mov_b32 v{vT+6}, {SYNC+4*idx}")
    a(f"v_mov_b32 v{vT+7}, 1")
    a("s_mov_b64 exec, 1")
    a(f"ds_add_u32 v{vT+6}, v{vT+7}")
    a("s_mov_b64 exec, -1")

def g2_ids(a):
    a(f"s_and_b32 s{sMT}, s2, 7")
    a(f"s_lshl_b32 s{sMT}, s{sMT}, 2")
    a(f"s_bfe_u32 s{sT0}, s2, 0x20003")
    a(f"s_add_u32 s{sMT}, s{sMT}, s{sT0}")
    a(f"s_lshr_b32 s{sNT}, s2, 5")
    a(f"s_lshr_b32 s{sKQ}, s{sW}, 1")

def g2_tr(a):
    t1, i_ = vT, vT + 2
    a(f"v_and_b32 v{i_}, 15, v{vLane}")
    a(f"v_lshrrev_b32 v{t1}, 2, v{i_}")
    a(f"v_lshl_add_u32 v{t1}, v{vH}, 2, v{t1}")
    a(f"v_lshlrev_b32 v{vTr0}, 7, v{t1}")
    a(f"v_bfe_u32 v{t1}, v{vLane}, 4, 1")
    a(f"v_lshl_add_u32 v{vTr0}, v{t1}, 5, v{vTr0}")
    a(f"v_and_b32 v{t1}, 3, v{i_}")
    a(f"v_lshl_add_u32 v{vTr0}, v{t1}, 3, v{vTr0}")
    a(f"v_bfe_u32 v{t1}, v{i_}, 3, 1")
    a(f"v_lshl_add_u32 v{vTr0}, v{t1}, 6, v{vTr0}")
    a(f"s_lshl_b32 s{sT0}, s{sKQ}, 5")
    a(f"v_xor_b32 v{vTr0}, s{sT0}, v{vTr0}")
    a(f"v_xor_b32 v{vTr1}, 64, v{vTr0}")

def wdma(a, slot):
    a(f"s_add_u32 m0, s{sRing}, {slot*4096}")
    a("s_nop 0")
    for i in range(4):
        a(f"buffer_load_dwordx4 v{vOff+i}, s[{SWD}:{SWD+3}], s{sWoff} offen offset:{1024*i} lds")
    a(f"s_add_u32 s{sWoff}, s{sWoff}, s{sStep}")

def actld(a, st):
    b = ACT + 16 * st
    a(f"buffer_load_dwordx4 v[{b}:{b+3}], v{vL16}, s[{SWS}:{SWS+3}], s{sA0} offen sc1")
    a(f"buffer_load_dwordx4 v[{b+4}:{b+7}], v{vL16}, s[{SWS}:{SWS+3}], s{sA0} offen offset:1024 sc1")
    a(f"buffer_load_dwordx4 v[{b+8}:{b+11}], v{vL16}, s[{SWS}:{SWS+3}], s{sA1} offen sc1")
    a(f"buffer_load_dwordx4 v[{b+12}:{b+15}], v{vL16}, s[{SWS}:{SWS+3}], s{sA1} offen offset:1024 sc1")
    a(f"s_add_u32 s{sA0}, s{sA0}, 2048")
    a(f"s_add_u32 s{sA1}, s{sA1}, 2048")

def unit(a, slot):
    for s in range(2):
        for tau in range(2):
            for t in range(2):
                d = WFG + 8 * s + 4 * tau + 2 * t
                a(f"ds_read_b64_tr_b16 v[{d}:{d+1}], v{vTr0+2 if tau == 0 else vTr1+2} offset:{slot*4096+s*2048+t*1024}")
    for s in range(2):
        a(f"s_waitcnt lgkmcnt({4 if s == 0 else 0})")
        for tau in range(2):
            for tt in range(2):
                acc = GACC + 16 * (tt * 2 + tau)
                a(mf(acc, WFG + 8 * s + 4 * tau, ACT + 16 * slot + 8 * tt + 4 * s, acc))

def attention(a):
    a.label("F_att")
    fstamp(a, 8)
    a(f"s_and_b32 s{sHead}, s2, 7")
    a(f"s_lshl_b32 s{sHead}, s{sHead}, 1")
    a(f"s_bfe_u32 s{sT0}, s2, 0x10003")
    a(f"s_add_u32 s{sHead}, s{sHead}, s{sT0}")
    a(f"s_lshr_b32 s{sQB}, s2, 4")
    a(f"s_mov_b32 s{sVM}, 0x0fffffff")
    a(f"s_mov_b32 s{sVM+1}, 0x0fffffff")
    a(f"s_mov_b32 s{sUP}, 0")
    a(f"s_mov_b32 s{sUP+1}, -1")
    a(f"v_mov_b32 v{KV+8}, 0x3f803f80")
    a(f"v_mov_b32 v{KV+9}, 0x3f803f80")
    for kb in range(NB):
        for i in range(0, 8, 2):
            if kb or i: a(f"v_mov_b64 v[{KV+16*kb+8+i}:{KV+16*kb+9+i}], v[{KV+8}:{KV+9}]")
    a(f"v_mul_u32_u24 v{vVo}, {VT//4 - 512}, v{vH}")
    a(f"v_add_u32 v{vVo}, v{vVo}, v{vL16}")
    a(f"s_mul_i32 s{sT0}, s{sHead}, 448")
    a(f"v_add_u32 v{vVo}, s{sT0}, v{vVo}")
    a(f"s_lshl_b32 s{sT1}, s{sHead}, 18")
    a(f"s_add_u32 s{SKH}, s{SWS}, s{sT1}")
    a(f"s_addc_u32 s{SKH+1}, s{SWS+1}, 0")
    a(f"s_mov_b32 s{SKH+2}, {HS}")
    a(f"s_mov_b32 s{SKH+3}, 0x20000")
    a(f"s_lshl_b32 s{sT1}, s{sW}, 16")
    a(f"s_add_u32 s{SKV}, s{SKH}, s{sT1}")
    a(f"s_addc_u32 s{SKV+1}, s{SKH+1}, 0")
    a(f"s_mov_b32 s{SKV+2}, {16*TS}")
    a(f"s_mov_b32 s{SKV+3}, 0x20000")
    a(f"s_add_u32 s{SVH}, s{SWS}, {WS_V}")
    a(f"s_addc_u32 s{SVH+1}, s{SWS+1}, 0")
    a(f"s_mov_b32 s{SVH+2}, {64*VT}")
    a(f"s_mov_b32 s{SVH+3}, 0x20000")
    a(f"s_mul_i32 s{sT1}, s{sW}, {16*VT}")
    a(f"s_add_u32 s{SV}, s{SVH}, s{sT1}")
    a(f"s_addc_u32 s{SV+1}, s{SVH+1}, 0")
    a(f"s_mov_b32 s{SV+2}, {16*VT}")
    a(f"s_mov_b32 s{SV+3}, 0x20000")
    a(f"s_mov_b32 s{sOffV}, 0")
    a(f"s_mov_b32 s{sOff}, 0")
    for i in range(0, 8, 2):
        a(f"v_mov_b64 v[{PP+8+i}:{PP+9+i}], 0")
    g2_ids(a)
    a(f"s_lshl_b32 s{sT3}, s{sHead}, 9")
    a(f"s_add_u32 s{sT3}, s{sT3}, {FQ}")
    poll(a, "F_pq", f"s{sT3}", 24, True, int(OPT.get("sq", "3")), 3, 0)
    fstamp(a, 9)
    a(f"s_setprio {OPT.get('pp', '3')}")
    a.c("K tile 0 of the head + Q (local tile j = global (w+j)&3)")
    a(f"buffer_load_dwordx4 v[{PP}:{PP+3}], v{vL16}, s[{SKH}:{SKH+3}], 0 offen sc1")
    a(f"buffer_load_dwordx4 v[{PP+4}:{PP+7}], v{vL16}, s[{SKH}:{SKH+3}], 0 offen offset:1024 sc1")
    a(f"s_lshl_b32 s{sT1}, s{sQB}, 14")
    for j in range(4):
        a(f"s_add_u32 s{sT0}, s{sW}, {j}")
        a(f"s_and_b32 s{sT0}, s{sT0}, 3")
        a(f"s_lshl_b32 s{sT0}, s{sT0}, 12")
        a(f"s_add_u32 s{sT0}, s{sT0}, s{sT1}")
        a(f"buffer_load_dwordx4 v[{QF+8*j}:{QF+8*j+3}], v{vL16}, s[{SKH}:{SKH+3}], s{sT0} offen offset:2048 sc1")
        a(f"buffer_load_dwordx4 v[{QF+8*j+4}:{QF+8*j+7}], v{vL16}, s[{SKH}:{SKH+3}], s{sT0} offen offset:3072 sc1")
    for kb in range(NB - 1):
        kvload(a, kb, SKV, SV)
    a(f"s_waitcnt vmcnt({4*(NB-1)})")
    a(f"s_mov_b64 exec, s[{sUP}:{sUP+1}]")
    for qt in range(4):
        a(f"v_mov_b64 v[{QF+8*qt+6}:{QF+8*qt+7}], 0")
    a("s_mov_b64 exec, -1")
    a("s_nop 1")
    for qt in range(4):
        a(mf(OO + 16 * qt, PP, QF + 8 * qt, None))
        a(mf(OO + 16 * qt, PP + 4, QF + 8 * qt + 4, OO + 16 * qt))
    a("s_nop 7")
    for qt in range(4):
        maxtree(a, OO + 16 * qt, vT + qt)
    a.c("O = 0 (P[1] is zero)")
    for qt in range(4):
        a(mf(OO + 16 * qt, PP + 8, PP + 8, None))
    setpads(a, [vT + qt for qt in range(4)], [QF + 8 * qt for qt in range(4)], SS + 16)
    a(f"s_waitcnt vmcnt({4*(NB-2)})")
    a(mf(SS, KV, QF, None))
    a(mf(SS, KV + 4, QF + 4, SS))
    a(f"s_mov_b32 s{sCnt}, {16//NB}")
    a("s_nop 7")
    a("s_nop 2")
    a(f"s_setprio {OPT.get('prio', '1')}")
    fstamp(a, 10)
    a.label("F_aloop")
    for kb in range(NB):
        for qt in range(4):
            n = kb * 4 + qt
            cur, nxt = SS + 16 * (n & 1), SS + 16 * ((n + 1) & 1)
            pc, pp = PP + 8 * (n & 1), PP + 8 * ((n + 1) & 1)
            nkb, nqt = (kb, qt + 1) if qt < 3 else ((kb + 1) % NB, 0)
            pkb, pqt = (kb, qt - 1) if qt > 0 else ((kb - 1) % NB, 3)
            if qt == 3:
                a(f"s_waitcnt vmcnt({4*(NB-2)})")
            K = KV + 16 * nkb
            V = KV + 16 * pkb + 8
            O = OO + 16 * pqt
            mm = [mf(nxt, K, QF + 8 * nqt, None), mf(nxt, K + 4, QF + 8 * nqt + 4, nxt),
                  mf(O, V, pp, O), mf(O, V + 4, pp + 4, O)]
            for g in range(4):
                a(mm[g])
                if g == 3 and qt == 0:
                    kvload(a, pkb, SKV, SV)
                if g == 3 and n == 4 * NB - 1:
                    a(f"s_sub_u32 s{sCnt}, s{sCnt}, 1")
                    a(f"s_cmp_lg_u32 s{sCnt}, 0")
                for l in expcvt(cur, pc, g):
                    a(l)
    a("s_cbranch_scc1 F_aloop")
    V = KV + 16 * (NB - 1) + 8
    O = OO + 48
    a("s_nop 0")
    a(mf(O, V, PP + 8, O))
    a(mf(O, V + 4, PP + 12, O))
    fstamp(a, 1)
    a.c("the B waves are done with the phase-1 LDS image")
    ldswait(a, "F_bw1", 1, 4)
    a.c("send local tiles 1..3 to waves (w+j)&3, inbox slot j-1")
    for j in range(1, 4):
        a(f"s_add_u32 s{sT0}, s{sW}, {j}")
        a(f"s_and_b32 s{sT0}, s{sT0}, 3")
        a(f"s_mul_i32 s{sT0}, s{sT0}, {INB}")
        a(f"v_add_u32 v{vT+j}, s{sT0}, v{vL16}")
    for j in range(1, 4):
        for aa in range(4):
            a(f"ds_write_b128 v{vT+j}, v[{OO+16*j+4*aa}:{OO+16*j+4*aa+3}] offset:{4096*(j-1)+1024*aa}")
    ldsadd(a, 6)
    a(f"s_mul_i32 s{sT0}, s{sW}, {INB}")
    a(f"v_add_u32 v{vT}, s{sT0}, v{vL16}")
    a(f"s_lshl_b32 s{sT3}, s{sQB}, 2")
    a(f"s_add_u32 s{sT3}, s{sT3}, s{sW}")
    a(f"s_lshl_b32 s{sT3}, s{sT3}, 4")
    a(f"s_add_u32 s{sT3}, s{sT3}, s{sHead}")
    a(f"s_lshl_b32 s{sT3}, s{sT3}, 11")
    a(f"s_add_u32 s{sT3}, s{sT3}, {WS_O}")
    ldswait(a, "F_iw", 6, 4)
    fstamp(a, 2)
    R = OO
    for j in range(1, 4):
        for aa in range(4):
            a(f"ds_read_b128 v[{OO+16*j+4*aa}:{OO+16*j+4*aa+3}], v{vT} offset:{4096*(j-1)+1024*aa}")
    for j in range(1, 4):
        a(f"s_waitcnt lgkmcnt({4*(3-j)})")
        for i in range(16): a(f"v_add_f32 v{R+i}, v{R+i}, v{OO+16*j+i}")
    a.c("overflow check of the first-tile shift: every value finite and below 2^100, else redo with the true row max")
    a(f"v_add_f32 v{vT+2}, abs(v{R}), abs(v{R+1})")
    for i in range(2, 16):
        a(f"v_add_f32 v{vT+2}, v{vT+2}, abs(v{R+i})")
    a(f"v_cmp_gt_f32 vcc, {fhex(2.0**100)}, v{vT+2}")
    a("s_cmp_eq_u64 vcc, -1")
    a("s_cbranch_scc0 F_slow")
    a.label("F_fin")
    a(f"v_mov_b32 v{vT+2}, v{R+12}")
    a(f"v_mov_b32 v{vT+3}, v{R+12}")
    a("s_nop 1")
    a(f"v_permlane32_swap_b32 v{vT+2}, v{vT+3}")
    a("s_nop 0")
    a(f"v_rcp_f32 v{vT+3}, v{vT+3}")
    a(f"s_mov_b64 exec, s[{sUP}:{sUP+1}]")
    a(f"v_mov_b64 v[{R+12}:{R+13}], 0")
    a(f"v_mov_b64 v[{R+14}:{R+15}], 0")
    a("s_mov_b64 exec, -1")
    for i in range(16): a(f"v_mul_f32 v{R+i}, v{R+i}, v{vT+3}")
    for i in range(8): a(f"v_cvt_pk_bf16_f32 v{SS+i}, v{R+2*i}, v{R+2*i+1}")
    a(f"buffer_store_dwordx4 v[{SS}:{SS+3}], v{vL16}, s[{SWS}:{SWS+3}], s{sT3} offen sc1")
    a(f"buffer_store_dwordx4 v[{SS+4}:{SS+7}], v{vL16}, s[{SWS}:{SWS+3}], s{sT3} offen offset:1024 sc1")
    a(f"s_lshl_b32 s{sT3}, s{sQB}, 7")
    a(f"s_lshl_b32 s{sT0}, s{sHead}, 2")
    a(f"s_add_u32 s{sT3}, s{sT3}, s{sT0}")
    a(f"s_add_u32 s{sT3}, s{sT3}, {FO}")
    a.c("work for the tail while the stores fly")
    g2_tr(a)
    a(f"v_mov_b64 v[{WFG}:{WFG+1}], 0")
    a(f"v_mov_b64 v[{WFG+2}:{WFG+3}], 0")
    a("s_nop 1")
    for k in range(2):
        a(mf(GACC + 16 * k, WFG, WFG, None))
    signal(a, "F_so", 2, sT3)
    fstamp(a, 3)
    a(f"s_cmp_ge_u32 s{sNT}, 7")
    a("s_cbranch_scc1 F_end")
    a("s_branch F_tail")
    a.label("F_slow")
    S2 = SS + 16
    a(f"v_mov_b32 v{vT+2}, 0xff800000")
    a(f"s_mov_b32 s{sOff}, 0")
    a(f"s_mov_b32 s{sOffV}, 0")
    a(f"s_mov_b64 exec, s[{sUP}:{sUP+1}]")
    a(f"v_mov_b64 v[{QF+6}:{QF+7}], 0")
    a("s_mov_b64 exec, -1")
    a.label("F_sl1")
    kvload(a, 0, SKH, SVH)
    a("s_waitcnt vmcnt(0)")
    a(mf(S2, KV, QF, None))
    a(mf(S2, KV + 4, QF + 4, S2))
    a("s_nop 15")
    maxtree(a, S2, vT + 2, first=False)
    a(f"s_cmp_lt_u32 s{sOff}, {HS}")
    a("s_cbranch_scc1 F_sl1")
    setpads(a, [vT + 2], [QF], vT + 4)
    for i in range(0, 16, 2): a(f"v_mov_b64 v[{R+i}:{R+i+1}], 0")
    a(f"s_mov_b32 s{sOff}, 0")
    a(f"s_mov_b32 s{sOffV}, 0")
    a.label("F_sl2")
    kvload(a, 0, SKH, SVH)
    a("s_waitcnt vmcnt(0)")
    a(mf(S2, KV, QF, None))
    a(mf(S2, KV + 4, QF + 4, S2))
    a("s_nop 15")
    for g in range(4):
        for l in expcvt(S2, PP, g): a(l)
    a("s_nop 1")
    a(mf(R, KV + 8, PP, R))
    a(mf(R, KV + 12, PP + 4, R))
    a(f"s_cmp_lt_u32 s{sOff}, {HS}")
    a("s_cbranch_scc1 F_sl2")
    a("s_nop 15")
    a("s_branch F_fin")

def g2h(a):
    a.label("F_g2")
    a("s_setprio 0")
    fstamp(a, 8)
    g2_ids(a)
    a(f"s_cmp_ge_u32 s{sNT}, 7")
    a("s_cbranch_scc1 F_end")
    a(f"s_load_dwordx2 s[{SWD}:{SWD+1}], s[0:1], 48")
    a(f"s_load_dwordx2 s[{SXO}:{SXO+1}], s[0:1], 16")
    a(f"s_lshl_b32 s{sRing}, s{sTT}, 14")
    a(f"s_add_u32 s{sRing}, s{sRing}, {WOB}")
    g2_tr(a)
    a(f"v_add_u32 v{vTr0+2}, s{sRing}, v{vTr0}")
    a(f"v_add_u32 v{vTr1+2}, s{sRing}, v{vTr1}")
    t1, t2, i_ = vT, vT + 1, vT + 2
    a(f"v_bfe_u32 v{t1}, v{vLane}, 4, 1")
    a(f"v_lshlrev_b32 v{t1}, 2, v{t1}")
    a(f"v_and_b32 v{t2}, 7, v{vLane}")
    a(f"v_xor_b32 v{t1}, v{t1}, v{t2}")
    a(f"v_lshrrev_b32 v{i_}, 3, v{vLane}")
    a(f"v_mul_u32_u24 v{vOff}, 896, v{i_}")
    a(f"v_lshl_add_u32 v{vOff}, v{t1}, 4, v{vOff}")
    for i in range(1, 4):
        a(f"v_add_u32 v{vOff+i}, {i*(7168-1024)}, v{vOff}")
    a(f"v_mov_b64 v[{WFG}:{WFG+1}], 0")
    a(f"v_mov_b64 v[{WFG+2}:{WFG+3}], 0")
    a(f"s_lshl_b32 s{sT2}, s{sNT}, 7")
    a(f"s_mul_i32 s{sWoff}, s{sTT}, {14*32*896}")
    a(f"s_add_u32 s{sWoff}, s{sWoff}, s{sT2}")
    for k in range(4):
        a(mf(GACC + 16 * k, WFG, WFG, None))
    a.c("local token tile 0 = tile w&1")
    a(f"s_mul_i32 s{sA0}, s{sMT}, {2*112*1024}")
    a(f"s_mul_i32 s{sT1}, s{sTT}, {28*1024}")
    a(f"s_add_u32 s{sA0}, s{sA0}, s{sT1}")
    a(f"s_add_u32 s{sA0}, s{sA0}, {WS_H}")
    a(f"s_add_u32 s{sT1}, s{sA0}, {112*1024}")
    a(f"s_bitcmp1_b32 s{sW}, 0")
    a(f"s_cselect_b32 s{sA1}, s{sA0}, s{sT1}")
    a(f"s_cselect_b32 s{sA0}, s{sT1}, s{sA0}")
    a(f"s_mov_b32 s{SWD+2}, {1792*896}")
    a(f"s_mov_b32 s{SWD+3}, 0x20000")
    a(f"s_movk_i32 s{sStep}, {32*896}")
    a(f"s_lshr_b32 s{sT3}, s{sMT}, 1")
    a(f"s_lshl_b32 s{sT3}, s{sT3}, 7")
    a(f"s_add_u32 s{sT3}, s{sT3}, {FH}")
    ldswait(a, "F_bw2", 1, 4)
    a(f"s_and_b32 s{SWD+1}, s{SWD+1}, 0xffff")
    for u in range(4): wdma(a, (u + 2) % 4)
    poll(a, "F_ph", f"s{sT3}", 14, False, int(OPT.get("sh", "4")), 4, 4)
    fstamp(a, 9)
    for u in range(4): actld(a, (u + 2) % 4)
    a(f"s_mov_b32 s{sCnt}, 4")
    a("s_waitcnt vmcnt(4)")
    a("s_branch F_gmid")
    a.label("F_gloop")
    a(f"s_cmp_lg_u32 s{sCnt}, 1")
    a("s_cbranch_scc1 F_gl2")
    a.c("last round: the weight stream continues with wo (heads 4tt..4tt+3), no more activations")
    a(f"s_mov_b32 s{SWD}, s{SXO}")
    a(f"s_and_b32 s{SWD+1}, s{SXO+1}, 0xffff")
    a(f"s_mov_b32 s{SWD+2}, {448*896}")
    a(f"s_movk_i32 s{sStep}, {28*896}")
    a(f"s_mul_i32 s{sWoff}, s{sTT}, {4*28*896}")
    a(f"s_add_u32 s{sWoff}, s{sWoff}, s{sT2}")
    a(f"s_mov_b32 s{sA0}, 0x40000000")
    a(f"s_mov_b32 s{sA1}, 0x40000000")
    a.label("F_gl2")
    for st in range(4):
        if st == 2: a.label("F_gmid")
        a("s_waitcnt vmcnt(24)")
        unit(a, st)
        actld(a, st)
        wdma(a, st)
    a(f"s_sub_u32 s{sCnt}, s{sCnt}, 1")
    a(f"s_cmp_lg_u32 s{sCnt}, 0")
    a("s_cbranch_scc1 F_gloop")
    fstamp(a, 10)
    a.c("pair exchange: the other token tile goes to wave w^1")
    a(f"s_xor_b32 s{sT0}, s{sTT}, 1")
    a(f"s_lshl_b32 s{sT0}, s{sT0}, 13")
    a(f"s_add_u32 s{sT0}, s{sT0}, {XCH}")
    a(f"v_add_u32 v{vT}, s{sT0}, v{vL16}")
    a(f"v_xor_b32 v{vT+1}, 0x2000, v{vT}")
    for i in range(8):
        a(f"ds_write_b128 v{vT}, v[{GACC+32+4*i}:{GACC+32+4*i+3}] offset:{1024*i}")
    ldsadd(a, 7)
    ldswait(a, "F_xw", 7, 4)
    for i in range(8):
        a(f"ds_read_b128 v[{GACC+32+4*i}:{GACC+32+4*i+3}], v{vT+1} offset:{1024*i}")
    a("s_waitcnt vmcnt(0) lgkmcnt(0)")
    ldsadd(a, 8)
    for i in range(32):
        a(f"v_add_f32 v{GACC+i}, v{GACC+i}, v{GACC+32+i}")

def tail(a):
    a.label("F_tail")
    a(f"s_load_dwordx2 s[{SXO}:{SXO+1}], s[0:1], 0")
    a(f"s_load_dwordx2 s[{SWD}:{SWD+1}], s[0:1], 56")
    a(f"s_lshr_b32 s{sT3}, s{sMT}, 1")
    a(f"s_lshl_b32 s{sT3}, s{sT3}, 7")
    a(f"s_add_u32 s{sT3}, s{sT3}, {FO}")
    a.c("token tile 2mt + (w&1); heads 4kq..4kq+3")
    a(f"s_and_b32 s{sT2}, s{sW}, 1")
    a(f"s_lshl_b32 s{sT0}, s{sMT}, 1")
    a(f"s_add_u32 s{sT2}, s{sT2}, s{sT0}")
    a(f"s_lshl_b32 s{sA0}, s{sT2}, 15")
    a(f"s_lshl_b32 s{sT0}, s{sKQ}, 13")
    a(f"s_add_u32 s{sA0}, s{sA0}, s{sT0}")
    a(f"s_add_u32 s{sA0}, s{sA0}, {WS_O}")
    a(f"s_add_u32 s{sA1}, s{sA0}, 4096")
    a(f"s_mul_i32 s{sT2}, s{sT2}, {32*896}")
    a(f"s_lshl_b32 s{sT0}, s{sNT}, 7")
    a(f"s_add_u32 s{sT2}, s{sT2}, s{sT0}")
    a(f"s_lshl_b32 s{sT0}, s{sKQ}, 5")
    a(f"s_add_u32 s{sT2}, s{sT2}, s{sT0}")
    a(f"v_and_b32 v{vXo}, 31, v{vLane}")
    a(f"v_mul_u32_u24 v{vXo}, 896, v{vXo}")
    a(f"v_lshl_add_u32 v{vXo+1}, v{vH}, 3, v{vXo}")
    a(f"v_lshl_add_u32 v{vXo}, v{vH}, 4, v{vXo}")
    a(f"s_lshl_b32 s{sT0}, s{sKQ}, 14")
    a(f"s_add_u32 s{sT0}, s{sT0}, {WOB}")
    a(f"v_add_u32 v{vTr0}, s{sT0}, v{vTr0}")
    a(f"v_add_u32 v{vTr1}, s{sT0}, v{vTr1}")
    a(f"s_mov_b32 s{SXO+2}, {2048*896}")
    a(f"s_mov_b32 s{SXO+3}, 0x20000")
    a(f"s_mov_b32 s{SWD+2}, {2048*896}")
    a(f"s_mov_b32 s{SWD+3}, 0x20000")
    ldswait(a, "F_ww", 8, 4)
    a(f"s_and_b32 s{SXO+1}, s{SXO+1}, 0xffff")
    a(f"s_and_b32 s{SWD+1}, s{SWD+1}, 0xffff")
    a(f"buffer_load_dwordx2 v[{XRES}:{XRES+1}], v{vXo+1}, s[{SXO}:{SXO+3}], s{sT2} offen")
    a(f"buffer_load_dwordx2 v[{XRES+2}:{XRES+3}], v{vXo+1}, s[{SXO}:{SXO+3}], s{sT2} offen offset:16")
    for hd in range(4):
        for s_ in range(2):
            for tau in range(2):
                for t in range(2):
                    d = TW + 16 * hd + 8 * s_ + 4 * tau + 2 * t
                    a(f"ds_read_b64_tr_b16 v[{d}:{d+1}], v{vTr0 if tau == 0 else vTr1} offset:{hd*4096+s_*2048+t*1024}")
    a.c("final inbox addresses: local quarter i -> wave w ^ (2i), slot i-1")
    for i in range(1, 4):
        a(f"s_xor_b32 s{sT0}, s{sW}, {2*i}")
        a(f"s_mul_i32 s{sT0}, s{sT0}, 6144")
        a(f"v_add_u32 v{vOff+i}, s{sT0}, v{vL16}")
    a(f"s_mul_i32 s{sT0}, s{sW}, 6144")
    a(f"v_add_u32 v{vOff}, s{sT0}, v{vL16}")
    ldswait(a, "F_ow", 2, 4)
    poll(a, "F_po", f"s{sT3}", 16, False, int(OPT.get("so", "2")), 5, 4)
    fstamp(a, 4)
    for k in range(8):
        a(f"buffer_load_dwordx4 v[{ACT+4*k}:{ACT+4*k+3}], v{vL16}, s[{SWS}:{SWS+3}], s{sA0 if k < 4 else sA1} offen offset:{1024*(k&3)} sc1")
    R = 64
    a("s_waitcnt vmcnt(8)")
    for i in range(4):
        a(f"v_lshlrev_b32 v{R+2*i}, 16, v{XRES+i}")
        a(f"v_and_b32 v{R+2*i+1}, s{sMask}, v{XRES+i}")
    for k in range(8):
        a(f"s_waitcnt vmcnt({7-k})")
        for tau in range(2):
            acc = GACC + 16 * tau
            a(mf(acc, TW + 8 * k + 4 * tau, ACT + 4 * k, acc))
    fstamp(a, 5)
    a("s_nop 10")
    for i in range(1, 4):
        for c in range(2):
            r = GACC + 8 * i + 4 * c
            a(f"ds_write_b128 v{vOff+i}, v[{r}:{r+3}] offset:{2048*(i-1)+1024*c}")
    for i in range(8): a(f"v_add_f32 v{R+i}, v{R+i}, v{GACC+i}")
    a("s_waitcnt lgkmcnt(0)")
    a("s_barrier")
    D = GACC + 32
    for k in range(6):
        a(f"ds_read_b128 v[{D+4*k}:{D+4*k+3}], v{vOff} offset:{1024*k}")
    for i in range(3):
        a(f"s_waitcnt lgkmcnt({4-2*i})")
        for k in range(8): a(f"v_add_f32 v{R+k}, v{R+k}, v{D+8*i+k}")
    for i in range(4):
        a(f"v_cvt_pk_bf16_f32 v{XRES+i}, v{R+2*i}, v{R+2*i+1}")
    a("s_nop 1")
    a(f"v_permlane32_swap_b32 v{XRES}, v{XRES+2}")
    a(f"v_permlane32_swap_b32 v{XRES+1}, v{XRES+3}")
    a(f"buffer_store_dwordx4 v[{XRES}:{XRES+3}], v{vXo}, s[{SWD}:{SWD+3}], s{sT2} offen")
    a.label("F_end")
    fstamp(a, 7)
    a.stamp_flush(11, 0, sW, 8)
    a("s_endpgm")

def gen_fused(name):
    a = Asm()
    a("s_cmp_ge_u32 s2, 256")
    a("s_cbranch_scc1 F_exit")
    def endA(a):
        a(f"v_mov_b32 v{vZ}, 0")
        a.c("flag lanes: lane l<10 -> virtual head vh0 + (l>>1), part l&1 (0: holds its first column, 1: its last)")
        vh, col, ad = vT + 4, vT + 5, vT + 6
        a(f"s_mul_i32 s{sT2}, s{sCG}, 96")
        a(f"s_mul_i32 s{sT0}, s{sT2}, 2341")
        a(f"s_lshr_b32 s{sT0}, s{sT0}, 16")
        a(f"v_lshrrev_b32 v{vh}, 1, v{vLane}")
        a(f"v_add_u32 v{vh}, s{sT0}, v{vh}")
        a(f"v_and_b32 v{ad}, 1, v{vLane}")
        a(f"v_mul_u32_u24 v{col}, 27, v{ad}")
        a(f"v_mad_u32_u24 v{col}, v{vh}, 28, v{col}")
        a(f"v_subrev_u32 v{col}, s{sT2}, v{col}")
        a(f"v_cmp_gt_u32 vcc, 96, v{col}")
        a(f"v_lshlrev_b32 v{ad}, 6, v{ad}")
        a(f"v_lshrrev_b32 v{col}, 4, v{vh}")
        a(f"v_lshl_add_u32 v{ad}, v{col}, 7, v{ad}")
        a(f"v_and_b32 v{col}, 15, v{vh}")
        a(f"v_lshl_add_u32 v{ad}, v{col}, 9, v{ad}")
        a(f"v_cndmask_b32 v{ad}, -1, v{ad}, vcc")
        a(f"s_lshl_b32 s{sT3}, s{sRB}, 2")
        a(f"s_add_u32 s{sT3}, s{sT3}, {FQ}")
        xstamp(a, 3)
        a("s_waitcnt vmcnt(12)")
        a(f"s_cmp_lt_u32 s{sCG}, 9")
        a("s_cbranch_scc1 F_bf")
        a("s_waitcnt vmcnt(6)")
        a.label("F_bf")
        xstamp(a, 4)
        a("s_barrier")
        xstamp(a, 5)
        signal(a, "F_sq", 0, sT3, ad)
        fstamp(a, 6)
        attention(a)
    def endB(a):
        xstamp(a, 3)
        a(f"v_mov_b32 v{vZ}, 0")
        a(f"s_lshl_b32 s{sT3}, s{sRB}, 7")
        a(f"s_lshl_b32 s{sT0}, s{sCG}, 2")
        a(f"s_add_u32 s{sT3}, s{sT3}, s{sT0}")
        a(f"s_add_u32 s{sT3}, s{sT3}, {FH}")
        signal(a, "F_sh", 1, sT3)
        g2h(a)
        tail(a)
    def endH(a):
        a.c("helper workgroups: wait for all helpers (flags are cleared by then), then take their roles")
        a(f"v_mov_b32 v{vZ}, 0")
        a.c("touch a slice of w_down / wo")
        a("s_load_dwordx2 s[4:5], s[0:1], 16")
        a("s_load_dwordx2 s[6:7], s[0:1], 48")
        a(f"s_lshl_b32 s{sT0}, s2, 3")
        a(f"s_add_u32 s{sT0}, s{sT0}, s{sW}")
        a(f"v_lshlrev_b32 v{vT+1}, 7, v{vLane}")
        a(f"s_mov_b32 s{SWD+2}, {448*896}")
        a("s_waitcnt lgkmcnt(0)")
        a(f"s_cmp_lt_u32 s{sT0}, 196")
        a(f"s_cselect_b32 s{SWD}, s6, s4")
        a(f"s_cselect_b32 s{SWD+1}, s7, s5")
        a(f"s_cselect_b32 s{SWD+2}, {1792*896}, s{SWD+2}")
        a(f"s_cselect_b32 s{sT1}, 0, 196")
        a(f"s_and_b32 s{SWD+1}, s{SWD+1}, 0xffff")
        a(f"s_mov_b32 s{SWD+3}, 0x20000")
        a(f"s_sub_u32 s{sT0}, s{sT0}, s{sT1}")
        a(f"s_lshl_b32 s{sT0}, s{sT0}, 13")
        a(f"buffer_load_dword v{vT+2}, v{vT+1}, s[{SWD}:{SWD+3}], s{sT0} offen")
        a(f"s_mov_b32 s{sT1}, 0x4000")
        a(f"s_cmp_lg_u32 s{sW}, 0")
        a("s_cbranch_scc1 F_hw_ok")
        a.label("F_hw")
        a("s_sleep 32")
        a(f"buffer_load_dword v{vT}, v{vZ}, s[{SDBG}:{SDBG+3}], 0 offen offset:128 sc1")
        a("s_waitcnt vmcnt(0)")
        a(f"v_readfirstlane_b32 s{sT0}, v{vT}")
        a(f"s_cmp_eq_u32 s{sT0}, 1")
        a("s_cbranch_scc1 F_hw_ok")
        a(f"s_sub_u32 s{sT1}, s{sT1}, 1")
        a("s_cbranch_scc0 F_hw")
        a.label("F_hw_ok")
        a("s_barrier")
        a(f"s_cmp_lt_u32 s{sW}, 4")
        a("s_cbranch_scc1 F_att")
        a("s_branch F_g2")
    p1.FUSED = True
    p1.KNAME = name
    p1.gen_p1(a, endA, endB, endH)
    a.label("F_exit")
    a("s_endpgm")
    return kernel_header(name) + a.text(), kernel_desc(name, 256, 64), LDS_F
```

```python
from asmlib import *
from consts import *
import math, os
OPT = dict(kv.split("=") for kv in os.environ.get("OPT", "").split(",") if kv)

XR = 0
FR = 98304
QR = 131072
LDS_P1 = QR + 4 * 6144
SC1 = " sc1"
FUSED = False
KNAME = "k1_kernel"

SX, SWQ, SWA, SWS, SDBG = 16, 20, 24, 28, 56
sW, sRB, sCG, sTT = 32, 33, 34, 35
sOffX, sOffA, sOffQ, sRingA, sRingQ, sCnt = 36, 37, 38, 39, 40, 41
sT0, sT1, sT2, sT3 = 42, 43, 44, 45
sMask, sDelta = 46, 47
sTile, sRingX = 48, 49
sE48 = 50
sColA, sColQ, sRowX, sDq = 52, 53, 54, 55
vLane, vL16, vH, vR, vR2, vFlag = 1, 2, 3, 4, 5, 62
vTr0, vTr1 = 7, 8
vOffA, vOffA2, vOffQ = 9, 10, 11
vT = 12
vSt = 28
vOffQ2 = 40
vXk = 48
vOffX = 52
vZero = 54
WF = 64
XB = 96
XC = 112
RR = 192
ACC = 128

def pstamp(a, i):
    if FUSED and OPT.get("st", "2") == "2" and i != 0:
        return
    if OPT.get("st", "2") == "3" and i not in (0, 6):
        return
    a.stamp(i)

def mf(d, a, b):
    return f"v_mfma_f32_32x32x16_bf16 v[{d}:{d+15}], v[{a}:{a+3}], v[{b}:{b+3}], v[{d}:{d+15}]"

def wreadsA(slot, p):
    return [f"ds_read_b64_tr_b16 v[{WF+24*p+12*k+4*j+2*t}:{WF+24*p+12*k+4*j+2*t+1}], v{vTr0} offset:{slot*6144 + 3072*k + 64*j + 768*t}"
            for k in range(2) for j in range(3) for t in range(2)]

def wreadsB(slot, p):
    return [f"ds_read_b64_tr_b16 v[{WF+16*p+4*j+2*t}:{WF+16*p+4*j+2*t+1}], v{vTr0 if (j&1)==0 else vTr1} offset:{slot*8192 + (j>>1)*2048 + 512*t}"
            for j in range(4) for t in range(2)]

def dmaF(slot):
    g1 = [f"s_add_u32 m0, s{sRingA}, {slot*8192}",
          f"s_nop 0",
          f"buffer_load_dwordx4 v{vOffA}, s[{SWA}:{SWA+3}], s{sOffA} offen lds"]
    g2 = [f"buffer_load_dwordx4 v{vOffA2}, s[{SWA}:{SWA+3}], s{sOffA} offen offset:1024 lds",
          f"s_add_u32 s{sOffA}, s{sOffA}, {16*3584}"]
    return g1, g2

def dmaQ(slot):
    g1 = [f"s_add_u32 m0, s{sRingQ}, {slot*6144}",
          f"s_mov_b64 exec, s[{sE48}:{sE48+1}]",
          f"buffer_load_dwordx4 v{vOffQ}, s[{SWQ}:{SWQ+3}], s{sOffQ} offen lds",
          f"s_mov_b64 exec, -1"]
    g2 = [f"s_mov_b64 exec, s[{sE48}:{sE48+1}]",
          f"buffer_load_dwordx4 v{vOffQ2}, s[{SWQ}:{SWQ+3}], s{sOffQ} offen offset:768 lds",
          f"s_mov_b64 exec, -1",
          f"s_add_u32 s{sOffQ}, s{sOffQ}, {32*2688}"]
    return g1, g2

sSM, sSG = 60, 62
sTab = 14

def dmaX(q):
    x1 = [f"s_mov_b32 m0, s{sRingX}",
          f"s_add_u32 s{sRingX}, s{sRingX}, s{sSM+q}",
          f"buffer_load_dwordx4 v{vOffX}, s[{SX}:{SX+3}], s{sOffX} offen lds"]
    x2 = [f"buffer_load_dwordx4 v{vOffX+1}, s[{SX}:{SX+3}], s{sOffX} offen offset:1024 lds",
          f"s_add_u32 s{sOffX}, s{sOffX}, s{sSG+q}"]
    return x1, x2

def mmA(typ, p):
    out = []
    for k in range(2):
        for j in range(3):
            w, x = WF + 24 * p + 12 * k + 4 * j, XC + 8 * p + 4 * k
            out.append(mf(ACC + 16 * j, w, x) if typ[j] == "Q" else mf(ACC + 16 * j, x, w))
    return out

def mmB(p):
    return [mf(ACC + 64 * th + 16 * j, WF + 16 * p + 4 * j, XB + 8 * p + 4 * th) for j in range(4) for th in range(2)]

AXA = 188
AWA = 176
AXB = 28
AWB = 112

def call(a, cnt, lab, target):
    a(f"s_cmp_lg_u32 s{sCnt}, {cnt}")
    a(f"s_cbranch_scc1 {lab}")
    a(f"s_getpc_b64 s[{sT2}:{sT3}]")
    a(f"s_branch {target}")
    a.label(lab)

def ret(a):
    a(f"s_add_u32 s{sT2}, s{sT2}, 4")
    a(f"s_addc_u32 s{sT3}, s{sT3}, 0")
    a(f"s_setpc_b64 s[{sT2}:{sT3}]")

def loopA(a, typ):
    lab = f"P1_loopA_{typ}"
    a.label(lab)
    for q in range(2):
        p = q
        a("s_waitcnt vmcnt(12) lgkmcnt(0)")
        a("s_barrier")
        mm = mmA(typ, p)
        if q == 0:
            a(f"s_cmp_gt_u32 s{sCnt}, 4")
            a(f"s_cbranch_scc1 {lab}_n0")
            a(f"s_getpc_b64 s[{sT2}:{sT3}]")
            a(f"s_branch P1_side")
            a.label(f"{lab}_n0")
        if q == 1: call(a, 1, f"{lab}_n1", "P1_auxA")
        if q == 0:
            tail = [f"s_cmp_eq_u32 s{sCnt}, 2", f"s_cselect_b32 s{sT1}, {(-5*16384) & 0xffffffff}, s{sRowX}",
                    f"v_add_u32 v{vXk}, s{sT1}, v{vXk}", f"v_add_u32 v{vXk+1}, s{sT1}, v{vXk+1}",
                    f"v_add_u32 v{vXk+2}, s{sT1}, v{vXk+2}", f"v_add_u32 v{vXk+3}, s{sT1}, v{vXk+3}",
                    f"v_add_u32 v{vTr0}, s{sDq}, v{vTr0}"]
        else:
            tail = [f"s_add_u32 s{sRingA}, s{sRingA}, s{sDelta}", f"s_add_u32 s{sRingQ}, s{sRingQ}, s{sDq}",
                    f"s_sub_u32 s{sDelta}, 0, s{sDelta}", f"s_sub_u32 s{sDq}, 0, s{sDq}",
                    f"s_sub_u32 s{sCnt}, s{sCnt}, 1", f"s_cmp_lg_u32 s{sCnt}, 0"]
        ks0 = 2 if q == 0 else 0
        rx = [f"ds_read_b128 v[{XC+8*(p^1)+4*k}:{XC+8*(p^1)+4*k+3}], v{vXk+ks0+k}" for k in range(2)]
        wr_ = wreadsA(1 - q, p ^ 1)
        rd = [rx[0]] + wr_[:6] + [rx[1]] + wr_[6:]
        f1, f2 = dmaF(q)
        q1, q2 = dmaQ(q)
        x1, x2 = dmaX(q)
        seq = f1 + rd[:3] + [mm[0]] + f2 + rd[3:6] + [mm[1]] + q1 + rd[6:9] + [mm[2]] + q2 + rd[9:12] + [mm[3]] + x1 + rd[12:] + [mm[4]] + x2 + tail + [mm[5]]
        for l in seq: a(l)
    a(f"s_cbranch_scc1 {lab}")
    a("s_waitcnt vmcnt(21) lgkmcnt(0)")
    a("s_barrier")
    pair_dma(a, QR, 24)
    a("s_waitcnt vmcnt(10)")
    for j in range(3):
        w, x = AWA + 4 * j, AXA
        a(mf(ACC + 16 * j, w, x) if typ[j] == "Q" else mf(ACC + 16 * j, x, w))

def pair_dma(a, base, ks):
    a(f"s_add_u32 s{sRingX}, s{sColQ}, {base}")
    a(f"s_add_u32 s{sOffX}, s{sColA}, {ks*16*3584}")
    for q in range(2):
        for g in dmaX(q):
            for l in g: a(l)

BTAB = [6, 7, 6, 7, 6, 7, 6, 7, 6, 1, 2, 3, 8, 7, 7]
NBAR = int(OPT.get("nbar", "19"))

def loopB(a):
    lab = "P1_loopB"
    a.label(lab)
    for q in range(2):
        p = q
        a(f"s_bitcmp0_b32 s{sDq}, {q}")
        a(f"s_cbranch_scc1 {lab}_b{q}")
        a("s_barrier")
        a.label(f"{lab}_b{q}")
        mm = mmB(p)
        if q == 0:
            tail = [f"s_bitcmp1_b32 s{sCnt}, 0", f"s_cselect_b32 s{sT1}, 16384, 0",
                    f"s_cmp_eq_u32 s{sCnt}, 3", f"s_cselect_b32 s{sT1}, {(-5*16384) & 0xffffffff}, s{sT1}",
                    f"v_xor_b32 v{vXk}, 64, v{vXk}", f"v_add_u32 v{vXk}, s{sT1}, v{vXk}", f"v_xor_b32 v{vXk+1}, 32, v{vXk}",
                    f"s_lshr_b64 s[{sTab}:{sTab+1}], s[{sTab}:{sTab+1}], 4", f"s_and_b32 s{sT1}, s{sTab}, 15", f"s_lshl_b32 s{sT1}, s{sT1}, 14",
                    f"v_add_u32 v{vTr0}, s{sT1}, v{vOffA}", f"v_add_u32 v{vTr1}, s{sT1}, v{vOffA2}"]
        else:
            tail = [f"s_lshr_b32 s{sDq}, s{sDq}, 2", f"s_sub_u32 s{sCnt}, s{sCnt}, 1", f"s_cmp_lg_u32 s{sCnt}, 0"]
        xa = vXk + 1 if q == 0 else vXk
        rx = [f"ds_read_b128 v[{XB+8*(p^1)+4*th}:{XB+8*(p^1)+4*th+3}], v{xa} offset:{4096*th}" for th in range(2)]
        wr_ = wreadsB(1 - q, p ^ 1)
        rd = [rx[0]] + wr_[:2] + [rx[1]] + wr_[2:]
        nr = [2, 2, 2, 2, 2, 0, 0]
        for g in range(8):
            a(mm[g])
            if g == 0 and q == 1:
                call(a, int(OPT.get("sb", "8")), f"{lab}_n1", "P1_auxB")
            if g < 7:
                for l in rd[:nr[g]]: a(l)
                rd = rd[nr[g]:]
            if g == 5:
                for l in tail[:len(tail)//2]: a(l)
            if g == 6:
                for l in tail[len(tail)//2:]: a(l)
        assert not rd
        a("s_waitcnt lgkmcnt(0)")
    a(f"s_cbranch_scc1 {lab}")
    if OPT.get("st") == "3": a.stamp(2)
    a.c("column-sum words still all-ones were not written yet: load again")
    a(f"s_mov_b32 s{sDq}, 0x2000")
    a.label("P1_bchk")
    a("s_waitcnt vmcnt(0)")
    a(f"v_max3_u32 v{vT+4}, v{AWB}, v{AWB+1}, v{AWB+2}")
    for i in range(3, 15, 2):
        a(f"v_max3_u32 v{vT+4}, v{vT+4}, v{AWB+i}, v{AWB+i+1}")
    a(f"v_max_u32 v{vT+4}, v{vT+4}, v{AWB+15}")
    a(f"v_cmp_eq_u32 vcc, -1, v{vT+4}")
    a("s_cbranch_vccz P1_bok")
    a(f"s_sub_u32 s{sDq}, s{sDq}, 1")
    a("s_cbranch_scc1 P1_bok")
    a("s_sleep 8")
    a(f"s_getpc_b64 s[{sT2}:{sT3}]")
    a("s_branch P1_auxB")
    a("s_branch P1_bchk")
    a.label("P1_bok")
    for j in range(4):
        for th in range(2):
            a(mf(ACC + 64 * th + 16 * j, AWB + 4 * j, AXB + 4 * th))

def waitgo(a, name, which, sleep):
    a(f"s_mov_b32 s{sT1}, 0x4000")
    a.label(f"{name}_l")
    a(f"v_readfirstlane_b32 s{sT0}, v{vFlag+which}")
    a(f"s_cmp_eq_u32 s{sT0}, 1")
    a(f"s_cbranch_scc1 {name}_ok")
    a(f"s_sub_u32 s{sT1}, s{sT1}, 1")
    a(f"s_cbranch_scc1 {name}_ok")
    a(f"buffer_load_dwordx2 v[{vFlag}:{vFlag+1}], v{vZero}, s[{SDBG}:{SDBG+3}], 0 offen offset:128 sc1")
    a(f"s_sleep {sleep}")
    a("s_waitcnt vmcnt(0)")
    a(f"s_branch {name}_l")
    a.label(f"{name}_ok")

def aux_blocks(a):
    a.c("A side jobs at the top of bodies 3..6 (cnt 4..1)")
    a.label("P1_side")
    a(f"s_cmp_lg_u32 s{sCnt}, 4")
    a("s_cbranch_scc1 P1_s3")
    a(f"s_lshl_b32 s{sRingX}, s{sTT}, 12")
    ret(a)
    a.label("P1_s3")
    a(f"s_cmp_lg_u32 s{sCnt}, 3")
    a("s_cbranch_scc1 P1_s2")
    a.c("the x stream now carries gate/up rows: k-steps 18,19 -> x slot 1")
    a(f"s_mov_b64 s[{SX}:{SX+1}], s[{SWA}:{SWA+1}]")
    a(f"s_mov_b32 s{SX+2}, s{SWA+2}")
    a(f"v_mov_b32 v{vOffX}, v{vOffA}")
    a(f"v_mov_b32 v{vOffX+1}, v{vOffA2}")
    a(f"s_mov_b32 s{sSM}, 8192")
    a(f"s_mov_b32 s{sSM+1}, 8192")
    a(f"s_mov_b32 s{sSG}, {16*3584}")
    a(f"s_mov_b32 s{sSG+1}, {16*3584}")
    a(f"s_add_u32 s{sRingX}, s{sColQ}, 16384")
    a(f"s_add_u32 s{sOffX}, s{sColA}, {18*16*3584}")
    ret(a)
    a.label("P1_s2")
    a(f"s_cmp_lg_u32 s{sCnt}, 2")
    a("s_cbranch_scc1 P1_s1")
    a(f"s_mov_b32 s{sRingX}, 0x30000")
    a(f"s_mov_b32 s{sOffX}, 0x40000000")
    a(f"s_mov_b32 s{sRingQ}, 0x34000")
    a(f"s_cmp_lg_u32 s{sW}, 0")
    a("s_cbranch_scc1 P1_s2r")
    a(f"buffer_load_dwordx2 v[{vFlag}:{vFlag+1}], v{vZero}, s[{SDBG}:{SDBG+3}], 0 offen offset:128 sc1")
    a.label("P1_s2r")
    ret(a)
    a.label("P1_s1")
    a(f"s_add_u32 s{sRingX}, s{sColQ}, 32768")
    a(f"s_add_u32 s{sOffX}, s{sColA}, {20*16*3584}")
    a(f"s_cmp_lg_u32 s{sW}, 0")
    a("s_cbranch_scc1 P1_s1r")
    waitgo(a, "P1_g1", 0, 8)
    a.label("P1_s1r")
    ret(a)
    a.label("P1_auxA")
    a(f"v_and_b32 v{vT}, 0x1f0, v{vL16}")
    a(f"v_lshl_add_u32 v{vT+1}, v{vH}, 30, v{vT}")
    a(f"s_lshl_b32 s{sT0}, s{sTile}, 9")
    a(f"s_add_u32 s{sT0}, s{sT0}, {WS_AX}")
    a(f"buffer_load_dwordx4 v[{AXA}:{AXA+3}], v{vT+1}, s[{SWS}:{SWS+3}], s{sT0} offen sc1")
    a(f"s_mul_i32 s{sT0}, s{sCG}, {96*16}")
    a(f"s_add_u32 s{sT0}, s{sT0}, {WS_AW}")
    for j in range(3):
        a(f"buffer_load_dwordx4 v[{AWA+4*j}:{AWA+4*j+3}], v{vT}, s[{SWS}:{SWS+3}], s{sT0} offen offset:{512*j} sc1")
    a(f"s_lshl_b32 s{sT0}, s{sTile}, 7")
    a(f"s_add_u32 s{sT0}, s{sT0}, {WS_AR}")
    a(f"v_lshrrev_b32 v{vT+2}, 2, v{vT}")
    a(f"v_lshlrev_b32 v{vT+3}, 4, v{vH}")
    a(f"buffer_load_dword v{vR}, v{vT+2}, s[{SWS}:{SWS+3}], s{sT0} offen sc1")
    for aa in range(4):
        a(f"buffer_load_dwordx4 v[{RR+4*aa}:{RR+4*aa+3}], v{vT+3}, s[{SWS}:{SWS+3}], s{sT0} offen offset:{32*aa} sc1")
    ret(a)
    a.label("P1_auxB")
    if OPT.get("st") == "3": a("s_memtime s[66:67]")
    a(f"v_and_b32 v{vT}, 0x1f0, v{vL16}")
    a(f"v_lshl_add_u32 v{vT+1}, v{vH}, 30, v{vT}")
    a(f"s_and_b32 s{sT1}, s{sTT}, 1")
    a(f"s_lshl_b32 s{sT1}, s{sT1}, 1")
    a(f"s_lshl_b32 s{sT0}, s{sRB}, 2")
    a(f"s_add_u32 s{sT1}, s{sT1}, s{sT0}")
    a(f"s_lshl_b32 s{sT0}, s{sT1}, 9")
    a(f"s_add_u32 s{sT0}, s{sT0}, {WS_AX}")
    for th in range(2):
        a(f"buffer_load_dwordx4 v[{AXB+4*th}:{AXB+4*th+3}], v{vT+1}, s[{SWS}:{SWS+3}], s{sT0} offen offset:{512*th} sc1")
    a(f"s_lshl_b32 s{sT0}, s{sT1}, 7")
    a(f"s_add_u32 s{sT0}, s{sT0}, {WS_AR}")
    a(f"v_lshrrev_b32 v{vT+2}, 2, v{vT}")
    a(f"buffer_load_dword v{vR}, v{vT+2}, s[{SWS}:{SWS+3}], s{sT0} offen sc1")
    a(f"buffer_load_dword v{vR2}, v{vT+2}, s[{SWS}:{SWS+3}], s{sT0} offen offset:128 sc1")
    a(f"s_lshl_b32 s{sT0}, s{sCG}, 1")
    a(f"s_lshr_b32 s{sT1}, s{sTT}, 1")
    a(f"s_add_u32 s{sT0}, s{sT0}, s{sT1}")
    a(f"s_lshl_b32 s{sT0}, s{sT0}, 10")
    a(f"s_add_u32 s{sT0}, s{sT0}, {WS_AW+AW_G}")
    a(f"s_add_u32 s{sT1}, s{sT0}, {AW_U-AW_G}")
    for j in range(4):
        a(f"buffer_load_dwordx4 v[{AWB+4*j}:{AWB+4*j+3}], v{vT}, s[{SWS}:{SWS+3}], s{sT0 if j < 2 else sT1} offen offset:{512*(j&1)} sc1")
    ret(a)

def epi_B(a):
    c0 = -2.0 * math.sqrt(2.0 / math.pi) * math.log2(math.e)
    c1 = c0 * 0.044715
    a.c("epilogue B: gelu(g)*u")
    if OPT.get("gp", "2") != "0": a(f"s_setprio {OPT.get('gp', '2')}")
    a(f"s_and_b32 s{sT1}, s{sTT}, 1")
    a(f"s_lshl_b32 s{sT1}, s{sT1}, 1")
    a(f"s_lshl_b32 s{sT2}, s{sRB}, 2")
    a(f"s_add_u32 s{sT1}, s{sT1}, s{sT2}")
    a(f"s_mul_i32 s{sT1}, s{sT1}, 112")
    a(f"s_lshl_b32 s{sT2}, s{sCG}, 3")
    a(f"s_add_u32 s{sT1}, s{sT1}, s{sT2}")
    a(f"s_lshr_b32 s{sT2}, s{sTT}, 1")
    a(f"s_lshl_b32 s{sT2}, s{sT2}, 2")
    a(f"s_add_u32 s{sT1}, s{sT1}, s{sT2}")
    a(f"s_lshl_b32 s{sT1}, s{sT1}, 10")
    a(f"s_add_u32 s{sT1}, s{sT1}, {WS_H}")
    a(f"s_add_u32 s{sT2}, s{sT1}, {112*1024}")
    KC = 28
    for th in range(2):
        k0, k1, ir2 = KC + 6 * th, KC + 6 * th + 2, KC + 6 * th + 4
        r = vR if th == 0 else vR2
        a(f"v_mul_f32 v{ir2}, v{r}, v{r}")
        a(f"v_mul_f32 v{k0}, {fhex(c0)}, v{r}")
        a(f"v_mul_f32 v{k1}, v{ir2}, v{r}")
        a(f"v_mul_f32 v{k1}, {fhex(c1)}, v{k1}")
        a(f"v_rcp_f32 v{ir2}, v{ir2}")
        a(f"v_mov_b32 v{k0+1}, v{k0}")
        a(f"v_mov_b32 v{k1+1}, v{k1}")
        a(f"v_mov_b32 v{ir2+1}, v{ir2}")
    T = vT
    pr = lambda r: f"v[{r}:{r+1}]"
    for th in range(2):
        k0, k1, ir2 = KC + 6 * th, KC + 6 * th + 2, KC + 6 * th + 4
        for p in range(2):
            G = ACC + 64 * th + 16 * p
            U = G + 32
            out = WF + 8 * (2 * th + p)
            for i0 in range(0, 16, 8):
                for k in range(0, 8, 2): a(f"v_pk_mul_f32 {pr(T+k)}, {pr(G+i0+k)}, {pr(G+i0+k)}")
                for k in range(0, 8, 2): a(f"v_pk_fma_f32 {pr(T+k)}, {pr(T+k)}, {pr(k1)}, {pr(k0)}")
                for k in range(0, 8, 2): a(f"v_pk_mul_f32 {pr(T+k)}, {pr(T+k)}, {pr(G+i0+k)}")
                for k in range(8): a(f"v_exp_f32 v{T+k}, v{T+k}")
                for k in range(0, 8, 2): a(f"v_pk_mul_f32 {pr(U+i0+k)}, {pr(U+i0+k)}, {pr(G+i0+k)}")
                for k in range(0, 8, 2): a(f"v_pk_fma_f32 {pr(T+k)}, {pr(T+k)}, {pr(ir2)}, {pr(ir2)}")
                for k in range(8): a(f"v_rcp_f32 v{T+k}, v{T+k}")
                a("s_nop 0")
                for k in range(0, 8, 2): a(f"v_pk_mul_f32 {pr(U+i0+k)}, {pr(U+i0+k)}, {pr(T+k)}")
                for k in range(4): a(f"v_cvt_pk_bf16_f32 v{out+i0//2+k}, v{U+i0+2*k}, v{U+i0+2*k+1}")
                s = i0 // 8
                so = sT1 if th == 0 else sT2
                a(f"buffer_store_dwordx4 v[{out+4*s}:{out+4*s+3}], v{vL16}, s[{SWS}:{SWS+3}], s{so} offen offset:{(2*p+s)*1024}{STF()}")

def STF():
    return SC1 if OPT.get("sc1", "1") == "1" else ""

def epi_A(a):
    a.c("epilogue A")
    a(f"s_mul_i32 s{sT0}, s{sCG}, 3")
    for j in range(3):
        a(f"s_cmp_lt_u32 s{sT0}, {14-j}")
        a(f"s_cselect_b32 s{sT1}, {fhex(QSCALE)}, 1.0")
        a(f"v_mul_f32 v{vT+6+2*j}, s{sT1}, v{vR}")
        a(f"v_mul_f32 v{vT+7+2*j}, s{sT1}, v{vR}")
    P0, P1 = vT + 4, vT + 5
    a(f"v_mov_b32 v{P0}, 0x3f803f80")
    a(f"v_mov_b32 v{P1}, 0x00003f80")
    a(f"s_mul_i32 s{sT2}, s{sTile}, {VT}")
    a(f"s_lshl_b32 s{sT3}, s{sT0}, 9")
    a(f"s_add_u32 s{sT2}, s{sT2}, s{sT3}")
    a(f"s_add_u32 s{sT2}, s{sT2}, {WS_V - 28*512}")
    a(f"s_add_u32 s{sT3}, s{sT2}, {VT//2}")
    for j in range(3):
        A = ACC + 16 * j
        out = WF + 12 * j
        a(f"s_cmp_ge_u32 s{sT0}, {28-j}")
        a(f"s_cbranch_scc1 P1_eV{j}")
        for i in range(0, 16, 2):
            a(f"v_pk_mul_f32 v[{A+i}:{A+i+1}], v[{A+i}:{A+i+1}], v[{vT+6+2*j}:{vT+7+2*j}]")
        for i in range(8):
            a(f"v_cvt_pk_bf16_f32 v{out+6*(i>>2)+(i&3)}, v{A+2*i}, v{A+2*i+1}")
        for pp in range(2):
            a(f"v_mov_b64 v[{out+6*pp+4}:{out+6*pp+5}], v[{P0}:{P1}]")
            a(f"v_cmp_gt_i32 s[{4+2*pp}:{5+2*pp}], 0, v{vSt+6+2*j+pp}")
        for pp in range(2):
            o = out + 6 * pp
            a(f"v_permlane32_swap_b32 v{o}, v{o+2}")
            a(f"v_permlane32_swap_b32 v{o+1}, v{o+3}")
        if j == 0: bar15(a)
        for pp in range(2):
            o = out + 6 * pp
            a(f"buffer_store_dwordx4 v[{o+2}:{o+5}], v{vSt+6+2*j+pp}, s[{SWS}:{SWS+3}], 0 offen{STF()}")
        a("s_nop 0")
        for pp in range(2):
            o = out + 6 * pp
            a(f"v_cndmask_b32 v{o+2}, v{P0}, v{o+2}, s[{4+2*pp}:{5+2*pp}]")
            a(f"v_cndmask_b32 v{o+3}, v{P1}, v{o+3}, s[{4+2*pp}:{5+2*pp}]")
        for pp in range(2):
            o = out + 6 * pp
            a(f"buffer_store_dwordx4 v[{o}:{o+3}], v{vSt+2*j+pp}, s[{SWS}:{SWS+3}], 0 offen{STF()}")
        a(f"s_branch P1_eN{j}")
        a.label(f"P1_eV{j}")
        for i in range(0, 16, 2):
            a(f"v_pk_mul_f32 v[{A+i}:{A+i+1}], v[{A+i}:{A+i+1}], v[{RR+i}:{RR+i+1}]")
        for i in range(8):
            a(f"v_cvt_pk_bf16_f32 v{out+i}, v{A+2*i}, v{A+2*i+1}")
        if j == 0: bar15(a)
        for s in range(2):
            a(f"buffer_store_dwordx4 v[{out+4*s}:{out+4*s+3}], v{vT+12}, s[{SWS}:{SWS+3}], s{sT2+s} offen offset:{512*j}{STF()}")
        a.label(f"P1_eN{j}")

def bar15(a):
    a("s_waitcnt vmcnt(4)")
    if OPT.get("st") == "3": a.stamp(1)
    a("s_barrier")
    pair_dma(a, 3 * 16384, 22)
    pair_dma(a, FR + 16384, 26)
    if OPT.get("st") == "3": a.stamp(2)

def split3(a, src, t, o1, o2, o3):
    a(f"v_and_b32 v{o1}, s{sMask}, v{src}")
    a(f"v_sub_f32 v{t}, v{src}, v{o1}")
    a(f"v_and_b32 v{o2}, s{sMask}, v{t}")
    a(f"v_sub_f32 v{t}, v{t}, v{o2}")
    a(f"v_and_b32 v{o3}, s{sMask}, v{t}")

def helper(a):
    sHid, sU, sPass = sCnt, sRingA, sRingQ
    a.label("P1_help")
    a(f"s_lshl_b32 s{sHid}, s{sRB}, 1")
    a(f"s_add_u32 s{sHid}, s{sHid}, s{sCG}")
    a(f"s_sub_u32 s{sHid}, s{sHid}, 14")
    XD = 64
    WD = 128
    a(f"v_mul_u32_u24 v{vT+1}, 896, v{vT+4}")
    a(f"v_lshl_add_u32 v{vT+3}, v{vT+5}, 4, v{vT+1}")
    a(f"s_lshl_b32 s{sTile}, s{sHid}, 3")
    a(f"s_add_u32 s{sTile}, s{sTile}, s{sW}")
    a(f"s_mul_i32 s{sRowX}, s{sTile}, {8*896}")
    for i in range(7):
        a(f"buffer_load_dwordx4 v[{XD+4*i}:{XD+4*i+3}], v{vT+3}, s[{SX}:{SX+3}], s{sRowX} offen offset:{128*i}")
    a.c("unit loads: wave -> 56 rows, lane -> (row lane>>3, chunk lane&7)")
    a(f"s_mov_b32 s{SWA+3}, 0x20000")
    def uload(u):
        a(f"s_add_u32 s{sU}, s{sHid}, {32*u}")
        if u == 0:
            a(f"s_cmp_lt_u32 s{sU}, 21")
            a(f"s_cselect_b32 s{SWA}, s6, s8")
            a(f"s_cselect_b32 s{SWA+1}, s7, s9")
            a(f"s_cselect_b32 s{sT0}, 0, 21")
            a(f"s_movk_i32 s{sT1}, 3584")
            a(f"s_cselect_b32 s{sT1}, 2688, s{sT1}")
        elif u == 1:
            a(f"s_cmp_lt_u32 s{sU}, 49")
            a(f"s_cselect_b32 s{SWA}, s8, s10")
            a(f"s_cselect_b32 s{SWA+1}, s9, s11")
            a(f"s_cselect_b32 s{sT0}, 21, 49")
            a(f"s_movk_i32 s{sT1}, 3584")
        else:
            a(f"s_mov_b64 s[{SWA}:{SWA+1}], s[10:11]")
            a(f"s_movk_i32 s{sT0}, 49")
        a(f"s_and_b32 s{SWA+1}, s{SWA+1}, 0xffff")
        if u < 2:
            a(f"s_mul_i32 s{SWA+2}, s{sT1}, 448")
            a(f"v_mul_u32_u24 v51, s{sT1}, v{vT+4}")
            a(f"v_lshl_add_u32 v51, v{vT+5}, 4, v51")
            if u == 0:
                a(f"s_mul_i32 s{sT3}, s{sW}, 56")
            else:
                a(f"s_sub_u32 s{sT3}, s{sW}, 1")
                a(f"s_lshl_b32 s{sT3}, s{sT3}, 6")
            a(f"s_mul_i32 s{sT3}, s{sT3}, s{sT1}")
            a(f"s_lshl_b32 s{sT2}, s{sT1}, 3")
        else:
            a(f"s_cmp_lt_u32 s{sU}, 77")
            a(f"s_cselect_b32 s{SWA+2}, s{SWA+2}, 0")
        a(f"s_sub_u32 s{sT0}, s{sU}, s{sT0}")
        a(f"s_lshl_b32 s{sT0}, s{sT0}, 7")
        a(f"s_add_u32 s{sOffA}, s{sT3}, s{sT0}")
        n = 7 if u == 0 else 8
        for i in range(n):
            r = WD + 32 * u + 4 * i
            a(f"buffer_load_dwordx4 v[{r}:{r+3}], v51, s[{SWA}:{SWA+3}], s{sOffA} offen")
            if i < n - 1: a(f"s_add_u32 s{sOffA}, s{sOffA}, s{sT2}")
    uload(0)
    a.c("clear this launch's flags: 384 bytes per helper; mark phase 1 of the B waves as done")
    a(f"s_mul_i32 s{sT0}, s{sHid}, 384")
    a(f"s_add_u32 s{sT0}, s{sT0}, {WS_FLAG}")
    a(f"v_lshlrev_b32 v{vT+7}, 4, v0")
    a(f"v_cmp_gt_u32 vcc, 24, v0")
    a(f"v_mov_b32 v{vT+2}, 0x3f803f80")
    a(f"v_mov_b32 v43, 1.0")
    a(f"v_cndmask_b32 v{vT+7}, -1, v{vT+7}, vcc")
    a(f"buffer_store_dwordx4 v[{vT+8}:{vT+11}], v{vT+7}, s[{SWS}:{SWS+3}], s{sT0} offen sc1")
    a.c("wave w < 3 marks the column-sum block of unit hid + 32w as not written")
    a(f"s_lshl_b32 s{sT0}, s{sW}, 5")
    a(f"s_add_u32 s{sT0}, s{sT0}, s{sHid}")
    a(f"s_cmp_lt_u32 s{sT0}, 77")
    a(f"s_cselect_b32 s{sT1}, {WS_AW}, -1")
    a(f"s_cselect_b32 s{sT0}, s{sT0}, 0")
    a(f"s_lshl_b32 s{sT0}, s{sT0}, 10")
    a(f"s_add_u32 s{sOffQ}, s{sT0}, s{sT1}")
    a(f"v_mov_b64 v[92:93], -1")
    a(f"v_mov_b64 v[94:95], -1")
    a(f"buffer_store_dwordx4 v[92:95], v{vL16}, s[{SWS}:{SWS+3}], s{sOffQ} offen sc1")
    pstamp(a, 1)
    a.c("statistics (two pass)")
    S0, S1, ONE0, ONE1, D0, D1 = 40, 41, 42, 43, 44, 45
    a(f"v_mov_b64 v[{S0}:{S1}], 0")
    a(f"v_mov_b32 v{ONE0}, 0x00003f80")
    a("s_waitcnt vmcnt(9)")
    for i in range(28):
        a(f"v_dot2c_f32_bf16 v{S0+(i&1)}, v{XD+i}, v{vT+2}")
    def red8(r):
        a("s_nop 2")
        a(f"v_add_f32 v{r}, v{S0}, v{S1}")
        a("s_nop 1")
        a(f"v_add_f32_dpp v{r}, v{r}, v{r} quad_perm:[1,0,3,2] row_mask:0xf bank_mask:0xf")
        a("s_nop 1")
        a(f"v_add_f32_dpp v{r}, v{r}, v{r} quad_perm:[2,3,0,1] row_mask:0xf bank_mask:0xf")
        a("s_nop 1")
        a(f"v_add_f32_dpp v{r}, v{r}, v{r} row_half_mirror row_mask:0xf bank_mask:0xf")
    NM = 46
    red8(NM)
    a(f"v_mul_f32 v{NM}, {fhex(-1.0/448)}, v{NM}")
    a(f"v_mov_b64 v[{S0}:{S1}], 0")
    DD = 96
    for i0 in range(0, 28, 4):
        for k in range(4):
            a(f"v_dot2_f32_bf16 v{DD+2*k}, v{XD+i0+k}, v{ONE0}, v{NM}")
            a(f"v_dot2_f32_bf16 v{DD+2*k+1}, v{XD+i0+k}, v{ONE1}, v{NM}")
        a("s_nop 1")
        for k in range(8):
            a(f"v_fmac_f32 v{S0+(k&1)}, v{DD+k}, v{DD+k}")
    RS = 47
    red8(RS)
    a(f"v_mov_b32 v{D0}, {fhex(1e-5)}")
    a(f"v_fmac_f32 v{D0}, {fhex(1.0/448)}, v{RS}")
    a(f"v_rsq_f32 v{RS}, v{D0}")
    m1, m2, m3, O = 48, 49, 50, 56
    split3(a, NM, D0, m1, m2, m3)
    a(f"v_lshrrev_b32 v{D0}, 16, v{m1}")
    a(f"v_lshrrev_b32 v{D1}, 16, v{m2}")
    a(f"v_or_b32 v{O}, v{D0}, v{m1}")
    a(f"v_or_b32 v{O+1}, v{D1}, v{m1}")
    a(f"v_or_b32 v{O+2}, v{D1}, v{m3}")
    a(f"v_or_b32 v{O+3}, v{D1}, v{m3}")
    a(f"v_lshlrev_b32 v{D0}, 4, v{vT+4}")
    a(f"v_lshlrev_b32 v{D1}, 2, v{vT+4}")
    a(f"s_lshl_b32 s{sRowX}, s{sTile}, 7")
    a(f"s_add_u32 s{sRowX}, s{sRowX}, {WS_AX}")
    a(f"s_lshl_b32 s{sColQ}, s{sTile}, 5")
    a(f"s_add_u32 s{sColQ}, s{sColQ}, {WS_AR}")
    a("s_mov_b32 exec_lo, 0x01010101")
    a("s_mov_b32 exec_hi, 0x01010101")
    a(f"buffer_store_dwordx4 v[{O}:{O+3}], v{D0}, s[{SWS}:{SWS+3}], s{sRowX} offen sc1")
    a(f"buffer_store_dword v{RS}, v{D1}, s[{SWS}:{SWS+3}], s{sColQ} offen sc1")
    a("s_mov_b64 exec, -1")
    pstamp(a, 2)
    a.c("column sums: per wave partials [unit][wave*8 + row lane][64] in LDS (row pitch 272B)")
    C = 64
    a(f"s_mul_i32 s{sT0}, s{sW}, {8*272}")
    a(f"v_mul_u32_u24 v{vT+6}, 272, v{vT+4}")
    a(f"v_lshl_add_u32 v{vT+6}, v{vT+5}, 5, v{vT+6}")
    a(f"v_add_u32 v{vT+6}, s{sT0}, v{vT+6}")
    a(f"v_lshl_add_u32 v{vT+7}, v{vLane}, 2, s{sT0}")
    def usum(u, wait):
        for k in range(0, 8, 2): a(f"v_mov_b64 v[{C+k}:{C+k+1}], 0")
        a(f"s_waitcnt vmcnt({wait})")
        for i in range(7 if u == 0 else 8):
            for k in range(4):
                a(f"v_dot2c_f32_bf16 v{C+2*k}, v{WD+32*u+4*i+k}, v{ONE0}")
                a(f"v_dot2c_f32_bf16 v{C+2*k+1}, v{WD+32*u+4*i+k}, v{ONE1}")
        a("s_nop 2")
        a(f"ds_write_b128 v{vT+6}, v[{C}:{C+3}]")
        a(f"ds_write_b128 v{vT+6}, v[{C+4}:{C+7}] offset:16")
        a("s_waitcnt lgkmcnt(0)")
        for k in range(4):
            a(f"ds_read2_b32 v[{C+8+2*k}:{C+9+2*k}], v{vT+7} offset0:{136*(k&1)} offset1:{136*(k&1)+68}" if k < 2 else
              f"ds_read2_b32 v[{C+8+2*k}:{C+9+2*k}], v{vT+1} offset0:{136*(k&1)} offset1:{136*(k&1)+68}")
        a("s_waitcnt lgkmcnt(0)")
        for k in range(4): a(f"v_add_f32 v{C+8+k}, v{C+8+k}, v{C+12+k}")
        a(f"v_add_f32 v{C+8}, v{C+8}, v{C+10}")
        a(f"v_add_f32 v{C+9}, v{C+9}, v{C+11}")
        a(f"v_add_f32 v{C+8}, v{C+8}, v{C+9}")
        a(f"ds_write_b32 v{vT+3}, v{C+8} offset:{32768 + 2048*u}")
    a(f"v_add_u32 v{vT+1}, {4*272}, v{vT+7}")
    a(f"v_lshlrev_b32 v{vT+3}, 2, v0")
    def final(name, lo, hi, ubase):
        a("s_waitcnt lgkmcnt(0)")
        a("s_barrier")
        a(f"s_sub_u32 s{sT0}, s{sW}, {lo}")
        a(f"s_cmp_ge_u32 s{sT0}, {hi-lo}")
        a(f"s_cbranch_scc1 {name}_s")
        a(f"s_lshl_b32 s{sT0}, s{sW}, 11")
        a(f"v_lshl_add_u32 v{D1}, v{vLane}, 2, s{sT0}")
        for k in range(4):
            a(f"ds_read2st64_b32 v[{C+8+2*k}:{C+9+2*k}], v{D1} offset0:{128+8*ubase+2*k} offset1:{128+8*ubase+2*k+1}")
        a("s_waitcnt lgkmcnt(0)")
        for k in range(4): a(f"v_add_f32 v{C+8+k}, v{C+8+k}, v{C+12+k}")
        a(f"v_add_f32 v{C+8}, v{C+8}, v{C+10}")
        a(f"v_add_f32 v{C+9}, v{C+9}, v{C+11}")
        a(f"v_add_f32 v{C+8}, v{C+8}, v{C+9}")
        split3(a, C + 8, D0, 84, 85, 86)
        for k in range(3):
            a(f"v_lshrrev_b32 v{87+k}, 16, v{84+k}")
        a(f"v_or_b32 v92, v87, v85")
        a(f"v_or_b32 v93, v87, v86")
        a(f"v_or_b32 v94, v88, v84")
        a(f"v_or_b32 v95, v89, v85")
        a(f"buffer_store_dwordx4 v[92:95], v{vL16}, s[{SWS}:{SWS+3}], s{sOffQ} offen sc1")
        a.label(f"{name}_s")
    def sig(name, cnt_off, go_off, bar=True):
        if bar:
            a("s_barrier")
            a(f"s_cmp_lg_u32 s{sW}, 7")
            a(f"s_cbranch_scc1 {name}_e")
        a(f"v_mov_b32 v{D0}, 1")
        a("s_mov_b64 exec, 1")
        a(f"buffer_atomic_add v{D0}, v{vZero}, s[{SDBG}:{SDBG+3}], 0 offen offset:{cnt_off} sc0 sc1")
        a("s_waitcnt vmcnt(0)")
        a(f"v_readfirstlane_b32 s{sT0}, v{D0}")
        a(f"v_mov_b32 v{D0}, 1")
        a(f"s_cmp_lg_u32 s{sT0}, 31")
        a(f"s_cbranch_scc1 {name}_n")
        a(f"buffer_store_dword v{D0}, v{vZero}, s[{SDBG}:{SDBG+3}], 0 offen offset:{go_off} sc1")
        a.label(f"{name}_n")
        a("s_mov_b64 exec, -1")
        a.label(f"{name}_e")
    a("s_waitcnt vmcnt(2)")
    a(f"s_cmp_eq_u32 s{sW}, 0")
    a("s_cbranch_scc1 P1_hnl")
    uload(1)
    uload(2)
    a.label("P1_hnl")
    usum(0, 63)
    pstamp(a, 3)
    a("s_waitcnt vmcnt(16)")
    final("P1_h1", 0, 1, 0)
    a(f"s_cmp_lg_u32 s{sW}, 0")
    a("s_cbranch_scc1 P1_h1x")
    a(f"ds_write_b32 v{vT+3}, v{vZero} offset:{32768 + 2048}")
    a(f"ds_write_b32 v{vT+3}, v{vZero} offset:{32768 + 4096}")
    a("s_waitcnt vmcnt(0)")
    sig("P1_h1", 0, 128, False)
    a("s_branch P1_h1y")
    a.label("P1_h1x")
    pstamp(a, 5)
    usum(1, 8)
    usum(2, 0)
    a.label("P1_h1y")
    pstamp(a, 4)
    final("P1_h2", 1, 3, 0)
    a(f"v_mov_b32 v{D0}, {LDS_P1+4}")
    a(f"v_mov_b32 v{D1}, 4")
    a(f"ds_write_b32 v{D0}, v{D1}")
    pstamp(a, 6)

def gen_p1(a, endA, endB, endH):
    pstamp(a, 0)
    a("s_load_dwordx4 s[4:7], s[0:1], 0")
    a("s_load_dwordx4 s[8:11], s[0:1], 32")
    a("s_load_dwordx4 s[12:15], s[0:1], 64")
    a(f"v_lshrrev_b32 v{vT}, 6, v0")
    a(f"v_and_b32 v{vLane}, 63, v0")
    a(f"v_readfirstlane_b32 s{sW}, v{vT}")
    a(f"v_lshlrev_b32 v{vL16}, 4, v{vLane}")
    a(f"v_lshrrev_b32 v{vH}, 5, v{vLane}")
    a(f"v_mov_b32 v{vZero}, 0")
    a(f"v_mov_b64 v[{vFlag}:{vFlag+1}], 0")
    if OPT.get("cp", "1") == "1":
        a.c("pull the code of all phases into L2: wave w touches 8KB")
        a(f"s_getpc_b64 s[{SWQ}:{SWQ+1}]")
        a(f"s_and_b32 s{SWQ}, s{SWQ}, 0xffffff00")
        a(f"s_and_b32 s{SWQ+1}, s{SWQ+1}, 0xffff")
        a(f"s_mov_b32 s{SWQ+2}, CODE_END - {KNAME}")
        a(f"s_mov_b32 s{SWQ+3}, 0x20000")
        a(f"v_lshlrev_b32 v{vT+1}, 7, v0")
        a(f"v_subrev_u32 v{vT+1}, {5*8192}, v{vT+1}")
        a(f"buffer_load_dword v55, v{vT+1}, s[{SWQ}:{SWQ+3}], 0 offen")
    a(f"s_and_b32 s{sT0}, s2, 7")
    a(f"s_lshr_b32 s{sT1}, s2, 3")
    a(f"s_add_u32 s{sT1}, s{sT1}, 28")
    a(f"s_and_b32 s{sT1}, s{sT1}, 31")
    a(f"s_lshr_b32 s{sRB}, s{sT0}, 1")
    a(f"s_lshl_b32 s{sRB}, s{sRB}, 2")
    a(f"s_and_b32 s{sT2}, s{sT1}, 3")
    a(f"s_add_u32 s{sRB}, s{sRB}, s{sT2}")
    a(f"s_and_b32 s{sCG}, s{sT0}, 1")
    a(f"s_lshr_b32 s{sT2}, s{sT1}, 2")
    a(f"s_lshl_b32 s{sT2}, s{sT2}, 1")
    a(f"s_add_u32 s{sCG}, s{sCG}, s{sT2}")
    a(f"s_and_b32 s{sTT}, s{sW}, 3")
    a(f"s_lshl_b32 s{sTile}, s{sRB}, 2")
    a(f"s_add_u32 s{sTile}, s{sTile}, s{sTT}")
    a(f"s_mov_b32 s{sMask}, 0xffff0000")
    a(f"s_mov_b32 s{sCnt}, 7")
    a.c("x dma pattern")
    t1, i_ = vT + 1, vT
    a(f"v_lshrrev_b32 v{vT+4}, 3, v{vLane}")
    a(f"v_mul_u32_u24 v{vOffX}, 896, v{vT+4}")
    a(f"v_lshrrev_b32 v{t1}, 4, v{vLane}")
    a(f"v_and_b32 v{vT+5}, 7, v{vLane}")
    a(f"v_xor_b32 v{t1}, v{t1}, v{vT+5}")
    a(f"v_lshl_add_u32 v{vOffX}, v{t1}, 4, v{vOffX}")
    a(f"v_xor_b32 v{vOffX+1}, 64, v{vOffX}")
    a(f"v_add_u32 v{vOffX+1}, {7168-1024}, v{vOffX+1}")
    a(f"s_movk_i32 s{sSM}, 2048")
    a(f"s_movk_i32 s{sSM+1}, 14336")
    a(f"s_movk_i32 s{sSG}, 14336")
    a(f"s_movk_i32 s{sSG+1}, {128-14336}")
    a(f"s_mul_i32 s{sRowX}, s{sTile}, {32*896}")
    a(f"s_mov_b32 s{sOffX}, s{sRowX}")
    a(f"s_lshl_b32 s{sRingX}, s{sTT}, 12")
    a("s_waitcnt lgkmcnt(0)")
    a.srd(SX, 4, 2048 * 896)
    a.srd(SDBG, 12, 256)
    a.srd(SWS, 14, WS_END)
    a("s_mov_b32 s12, s14")
    if FUSED:
        a(f"v_mov_b32 v{vT+6}, {LDS_P1}")
        a(f"v_mov_b64 v[{vT+8}:{vT+9}], 0")
        a(f"v_mov_b64 v[{vT+10}:{vT+11}], 0")
        a(f"ds_write_b128 v{vT+6}, v[{vT+8}:{vT+11}]")
        a(f"ds_write_b128 v{vT+6}, v[{vT+8}:{vT+11}] offset:16")
        a(f"ds_write_b128 v{vT+6}, v[{vT+8}:{vT+11}] offset:32")
    a(f"s_cmp_ge_u32 s{sCG}, 14")
    a("s_cbranch_scc1 P1_help")
    a(f"s_cmp_ge_u32 s{sW}, 4")
    a("s_cbranch_scc1 P1_B")
    a.srd(SWQ, 6, 448 * 2688)
    ffn_setup(a)
    a(f"v_mul_u32_u24 v{t1}, 43, v{vLane}")
    a(f"v_lshrrev_b32 v{t1}, 9, v{t1}")
    a(f"v_mul_u32_u24 v{vOffQ}, {2688-192}, v{t1}")
    a(f"v_add_u32 v{vOffQ}, v{vOffQ}, v{vL16}")
    a(f"v_add_u32 v{vOffQ2}, {4*2688-768}, v{vOffQ}")
    a(f"s_mul_i32 s{sOffQ}, s{sCG}, 192")
    a(f"s_mul_i32 s{sT0}, s{sW}, {8*2688}")
    a(f"s_add_u32 s{sOffQ}, s{sOffQ}, s{sT0}")
    a(f"s_mul_i32 s{sRingQ}, s{sW}, 1536")
    a(f"s_add_u32 s{sRingQ}, s{sRingQ}, {QR}")
    a(f"s_mov_b32 s{sE48}, -1")
    a(f"s_mov_b32 s{sE48+1}, 0xffff")
    a(f"s_mov_b32 s{sColA}, s{sOffA}")
    a(f"s_lshl_b32 s{sColQ}, s{sTT}, 11")
    a(f"s_add_u32 s{sOffX}, s{sOffX}, 256")
    a(f"s_add_u32 s{sRingX}, s{sRingX}, 32768")
    for sl in range(4):
        for g in dmaQ(sl) + dmaF(sl):
            for l in g: a(l)
        if sl >= 2:
            for g in dmaX(sl - 2):
                for l in g: a(l)
    a(f"s_mov_b32 s{sRowX}, 16384")
    a(f"s_mov_b32 s{sDq}, {2*6144}")
    pstamp(a, 1)
    common_addr(a, "A")
    a(f"v_mul_u32_u24 v{vTr0}, 192, v{vT+2}")
    a(f"v_add_u32 v{vTr0}, v{vTr0}, v{vT+3}")
    a(f"v_add_u32 v{vTr0}, {QR}, v{vTr0}")
    for j in range(3):
        a(f"v_mfma_f32_32x32x16_bf16 v[{ACC+16*j}:{ACC+16*j+15}], v[{vT+8}:{vT+11}], v[{vT+8}:{vT+11}], 0")
    a(f"s_lshl_b32 s{sT3}, s{sTile}, 12")
    a.c("Q/K store address table: lane l -> 8-column chunk 12*cg + l")
    g8, m, e, x, tab, tab2 = vT + 4, vT + 5, vT + 6, vT + 7, vT + 8, vT + 9
    a(f"s_mul_i32 s{sT0}, s{sCG}, 12")
    a(f"v_add_u32 v{g8}, s{sT0}, v{vLane}")
    a(f"v_mul_u32_u24 v{m}, 9363, v{g8}")
    a(f"v_lshrrev_b32 v{m}, 16, v{m}")
    a(f"v_mul_u32_u24 v{e}, 7, v{m}")
    a(f"v_sub_u32 v{e}, v{g8}, v{e}")
    a(f"v_and_b32 v{x}, 7, v{m}")
    a(f"v_lshl_add_u32 v{tab}, v{x}, 19, s{sT3}")
    a(f"v_bfe_u32 v{x}, v{m}, 3, 1")
    a(f"v_xor_b32 v{x}, 1, v{x}")
    a(f"v_lshl_add_u32 v{tab}, v{x}, 11, v{tab}")
    a(f"v_add_u32 v{tab2}, {HS + 3*512}, v{tab}")
    a(f"v_lshrrev_b32 v{x}, 2, v{e}")
    a(f"v_lshl_add_u32 v{tab}, v{x}, 18, v{tab}")
    a(f"v_and_b32 v{x}, 3, v{e}")
    a(f"v_lshl_add_u32 v{tab}, v{x}, 9, v{tab}")
    a(f"v_cmp_eq_u32 vcc, 3, v{e}")
    a(f"v_lshlrev_b32 v{x}, 2, v{vH}")
    a(f"v_bfrev_b32 v{m}, 1")
    a(f"v_cndmask_b32 v{tab2}, v{m}, v{tab2}, vcc")
    for k in range(6):
        a(f"ds_bpermute_b32 v{vSt+k}, v{x}, v{tab} offset:{8*k}")
        a(f"ds_bpermute_b32 v{vSt+6+k}, v{x}, v{tab2} offset:{8*k}")
    a(f"v_and_b32 v{x}, 0x1f0, v{vL16}")
    a(f"v_mul_u32_u24 v{vT+12}, {VT//4}, v{vH}")
    a(f"v_add_u32 v{vT+12}, v{vT+12}, v{x}")
    a("s_waitcnt lgkmcnt(0)")
    for k in range(12):
        a(f"v_add_u32 v{vSt+k}, v{vSt+k}, v{x}")
    pstamp(a, 2)
    a("s_waitcnt vmcnt(16)")
    pstamp(a, 3)
    a("s_barrier")
    pstamp(a, 4)
    a(f"ds_read_b128 v[{XC}:{XC+3}], v{vXk}")
    a(f"ds_read_b128 v[{XC+4}:{XC+7}], v{vXk+1}")
    for l in wreadsA(0, 0): a(l)
    a("s_waitcnt vmcnt(12) lgkmcnt(0)")
    pstamp(a, 5)
    a(f"s_cmp_gt_u32 s{sCG}, 9")
    a("s_cbranch_scc1 P1_loopA_VVV")
    a(f"s_cmp_eq_u32 s{sCG}, 9")
    a("s_cbranch_scc1 P1_loopA_QVV")
    loopA(a, "QQQ")
    a("s_branch P1_Aepi")
    loopA(a, "QVV")
    a("s_branch P1_Aepi")
    loopA(a, "VVV")
    a.label("P1_Aepi")
    pstamp(a, 6)
    epi_A(a)
    endA(a)
    aux_blocks(a)
    a.label("P1_B")
    for c in range(2):
        for q in range(2):
            for g in dmaX(q):
                for l in g: a(l)
    if OPT.get("pf", "1") == "1":
        a.c("touch one slice of x / wqkv / w_gate / w_up so that the whole chip asks memory for them at once")
        a(f"s_cmp_lt_u32 s{sTT}, 2")
        a(f"s_cselect_b32 s{SWA}, s4, s8")
        a(f"s_cselect_b32 s{SWA+1}, s5, s9")
        a(f"s_cselect_b32 s{sT0}, s6, s10")
        a(f"s_cselect_b32 s{sT1}, s7, s11")
        a(f"s_mov_b32 s{SWA+2}, {448*3584}")
        a(f"s_cselect_b32 s{sT2}, {448*2688}, s{SWA+2}")
        a(f"s_cselect_b32 s{SWA+2}, {2048*896}, s{SWA+2}")
        a(f"s_bitcmp1_b32 s{sTT}, 0")
        a(f"s_cselect_b32 s{SWA}, s{sT0}, s{SWA}")
        a(f"s_cselect_b32 s{SWA+1}, s{sT1}, s{SWA+1}")
        a(f"s_cselect_b32 s{SWA+2}, s{sT2}, s{SWA+2}")
        a(f"s_and_b32 s{SWA+1}, s{SWA+1}, 0xffff")
        a(f"s_mov_b32 s{SWA+3}, 0x20000")
        a(f"s_sub_u32 s{sT0}, s2, 32")
        a(f"s_lshl_b32 s{sT0}, s{sT0}, 13")
        a(f"v_lshlrev_b32 v{vT+6}, 7, v{vLane}")
        a(f"buffer_load_dword v55, v{vT+6}, s[{SWA}:{SWA+3}], s{sT0} offen")
    tab = sum(v << (4 * i) for i, v in enumerate(BTAB))
    a(f"s_mov_b32 s{sTab}, {tab & 0xffffffff}")
    a(f"s_mov_b32 s{sTab+1}, {tab >> 32}")
    a(f"s_mov_b32 s{sDq}, {((1 << 16) - 1) | (1 << NBAR)}")
    a(f"s_mov_b32 s{sCnt}, 14")
    pstamp(a, 1)
    common_addr(a, "B")
    a(f"v_lshlrev_b32 v{vTr0}, 7, v{vT+2}")
    a(f"v_add_u32 v{vTr0}, v{vTr0}, v{vT+3}")
    a(f"v_bfe_u32 v{t1}, v{i_}, 3, 1")
    a(f"v_lshl_add_u32 v{vTr0}, v{t1}, 6, v{vTr0}")
    a(f"v_xor_b32 v{vTr1}, 64, v{vTr0}")
    a(f"s_lshr_b32 s{sT0}, s{sTT}, 1")
    a(f"s_lshl_b32 s{sT0}, s{sT0}, 12")
    a(f"v_add_u32 v{vOffA}, s{sT0}, v{vTr0}")
    a(f"v_add_u32 v{vOffA2}, s{sT0}, v{vTr1}")
    a(f"v_add_u32 v{vTr0}, {FR}, v{vOffA}")
    a(f"v_add_u32 v{vTr1}, {FR}, v{vOffA2}")
    for j in range(8):
        a(f"v_mfma_f32_32x32x16_bf16 v[{ACC+16*j}:{ACC+16*j+15}], v[{vT+8}:{vT+11}], v[{vT+8}:{vT+11}], 0")
    pstamp(a, 2)
    a("s_waitcnt vmcnt(%d)" % (5 if OPT.get("pf", "1") == "1" else 4))
    pstamp(a, 3)
    a("s_barrier")
    pstamp(a, 4)
    a(f"ds_read_b128 v[{XB}:{XB+3}], v{vXk}")
    a(f"ds_read_b128 v[{XB+4}:{XB+7}], v{vXk} offset:4096")
    for l in wreadsB(0, 0): a(l)
    a("s_waitcnt vmcnt(%d) lgkmcnt(0)" % (1 if OPT.get("pf", "1") == "1" else 0))
    pstamp(a, 5)
    loopB(a)
    pstamp(a, 6)
    epi_B(a)
    endB(a)
    helper(a)
    endH(a)

def ffn_setup(a):
    t1 = vT + 1
    a.c("gate/up dma setup: wave tt loads block tt (G0,U0,G1,U1)")
    a(f"s_bitcmp1_b32 s{sW}, 0")
    a(f"s_cselect_b32 s{SWA}, s10, s8")
    a(f"s_cselect_b32 s{SWA+1}, s11, s9")
    a(f"s_and_b32 s{SWA+1}, s{SWA+1}, 0xffff")
    a(f"s_mov_b32 s{SWA+2}, {448*3584}")
    a(f"s_mov_b32 s{SWA+3}, 0x20000")
    a(f"v_bfe_u32 v{t1}, v{vLane}, 4, 1")
    a(f"v_lshlrev_b32 v{t1}, 2, v{t1}")
    a(f"v_xor_b32 v{t1}, v{t1}, v{vT+5}")
    a(f"v_mul_u32_u24 v{vOffA}, 3584, v{vT+4}")
    a(f"v_lshl_add_u32 v{vOffA}, v{t1}, 4, v{vOffA}")
    a(f"v_add_u32 v{vOffA2}, {8*3584-1024}, v{vOffA}")
    a(f"s_lshl_b32 s{sOffA}, s{sCG}, 1")
    a(f"s_lshr_b32 s{sT0}, s{sTT}, 1")
    a(f"s_add_u32 s{sOffA}, s{sOffA}, s{sT0}")
    a(f"s_lshl_b32 s{sOffA}, s{sOffA}, 7")
    a(f"s_lshl_b32 s{sRingA}, s{sTT}, 11")
    a(f"s_add_u32 s{sRingA}, s{sRingA}, {FR}")

def common_addr(a, role):
    t1, i_ = vT + 1, vT
    a.c("x fragment addresses")
    a(f"v_and_b32 v{t1}, 31, v{vLane}")
    a(f"v_bfe_u32 v{vT+2}, v{vLane}, 1, 3")
    a(f"v_xor_b32 v{vT+2}, v{vT+2}, v{vH}")
    a(f"v_lshlrev_b32 v{vT+2}, 4, v{vT+2}")
    a(f"v_lshl_add_u32 v{vXk}, v{t1}, 7, v{vT+2}")
    if role == "A":
        a(f"s_lshl_b32 s{sT0}, s{sTT}, 12")
    else:
        a(f"s_and_b32 s{sT0}, s{sTT}, 1")
        a(f"s_lshl_b32 s{sT0}, s{sT0}, 13")
    a(f"v_add_u32 v{vXk}, s{sT0}, v{vXk}")
    for k in range(1, 4):
        a(f"v_xor_b32 v{vXk+k}, {32*k}, v{vXk}")
    a(f"v_and_b32 v{i_}, 15, v{vLane}")
    a(f"v_lshrrev_b32 v{t1}, 2, v{i_}")
    a(f"v_lshl_add_u32 v{vT+2}, v{vH}, 3, v{t1}")
    a(f"v_bfe_u32 v{t1}, v{vLane}, 4, 1")
    a(f"v_lshlrev_b32 v{vT+3}, 5, v{t1}")
    a(f"v_and_b32 v{t1}, 3, v{i_}")
    a(f"v_lshl_add_u32 v{vT+3}, v{t1}, 3, v{vT+3}")
    a(f"s_mov_b32 s{sDelta}, {2*8192}")

def gen_k1(name):
    a = Asm()
    a(f"s_cmp_ge_u32 s2, 256")
    a(f"s_cbranch_scc1 K1_exit")
    def end(a):
        pstamp(a, 7)
        a.stamp_flush(8, 0, sW, 8)
        a("s_endpgm")
    def endH(a):
        pstamp(a, 8)
        a.stamp_flush(9, 0, sW, 8)
        a("s_endpgm")
    gen_p1(a, end, end, endH)
    a.label("K1_exit")
    a("s_endpgm")
    return kernel_header(name) + a.text(), kernel_desc(name, 256, 64), LDS_P1
```

```python
import struct
DIAG = {"on": False}

def f2u(x):
    return struct.unpack("<I", struct.pack("<f", x))[0]

def fhex(x):
    return "0x%08x" % f2u(x)

def vr(a, n=1):
    return f"v{a}" if n == 1 else f"v[{a}:{a+n-1}]"

def sr(a, n=1):
    return f"s{a}" if n == 1 else f"s[{a}:{a+n-1}]"

class Asm:
    def __init__(self):
        self.lines = []
        self.uid = 0
    def __call__(self, s):
        for l in s.strip("\n").split("\n"):
            l = l.strip()
            if l:
                self.lines.append(("" if l.endswith(":") else "    ") + l)
    def c(self, s):
        self.lines.append("    ; " + s)
    def label(self, name):
        self.lines.append(name + ":")
    def newlabel(self, p="L"):
        self.uid += 1
        return f"{p}_{self.uid}"
    def text(self):
        return "\n".join(self.lines) + "\n"
    def stamp(self, idx):
        if not DIAG["on"]:
            return
        import os
        self(f"{'s_memrealtime' if os.environ.get('RT') else 's_memtime'} s[{64+2*idx}:{65+2*idx}]")
        if idx == 0:
            self("s_memrealtime s[88:89]")
        self("s_waitcnt lgkmcnt(0)")
    def stamp_flush(self, n, kidx, swave, wpw):
        if not DIAG["on"]:
            return
        import os
        if os.environ.get("DBGOUT"):
            self("s_memrealtime s[90:91]")
            self("s_load_dwordx2 s[92:93], s[0:1], 64")
            self("s_waitcnt lgkmcnt(0) vmcnt(0)")
            self("s_cmp_lg_u32 s2, 100")
            self("s_cbranch_scc1 DBG_skip")
            self(f"s_cmp_lg_u32 s{swave}, {os.environ['DBGOUT']}")
            self("s_cbranch_scc1 DBG_skip")
            self("s_and_b32 s93, s93, 0xffff")
            self("s_mov_b32 s94, 256")
            self("s_mov_b32 s95, 0x20000")
            self("s_mov_b64 exec, 1")
            self("v_mov_b32 v0, 0")
            for i in range(1, n):
                self(f"s_sub_u32 s96, s{64+2*i}, s64")
                self(f"v_mov_b32 v1, s96")
                self(f"buffer_store_dword v1, v0, s[92:95], 0 offen offset:{4*i}")
                self("s_nop 1")
            self("s_sub_u32 s96, s90, s88")
            self(f"v_mov_b32 v1, s96")
            self(f"buffer_store_dword v1, v0, s[92:95], 0 offen offset:60")
            self.label("DBG_skip")
            return
        self("s_memrealtime s[90:91]")
        self("s_load_dwordx2 s[92:93], s[0:1], 72")
        self("s_waitcnt lgkmcnt(0) vmcnt(0)")
        import os
        self(f"{'s_memrealtime' if os.environ.get('RT') else 's_memtime'} s[86:87]")
        self(f"s_add_u32 s92, s92, {(128<<20) + kidx*(1<<20)}")
        self("s_addc_u32 s93, s93, 0")
        self("s_and_b32 s93, s93, 0xffff")
        self("s_mov_b32 s94, 0x100000")
        self("s_mov_b32 s95, 0x20000")
        self(f"s_mul_i32 s96, s2, {wpw}")
        self(f"s_add_u32 s96, s96, s{swave}")
        self("s_lshl_b32 s96, s96, 6")
        self("s_mov_b64 exec, 1")
        self("s_waitcnt lgkmcnt(0)")
        self("v_mov_b32 v0, 0")
        for i in list(range(n)) + [11, 12, 13]:
            self(f"v_mov_b32 v1, s{64+2*i}")
            self(f"buffer_store_dword v1, v0, s[92:95], s96 offen offset:{4*i}")
            self("s_nop 1")
    def srd(self, d, base, nbytes):
        self(f"s_mov_b32 s{d}, s{base}")
        self(f"s_and_b32 s{d+1}, s{base+1}, 0xffff")
        self(f"s_mov_b32 s{d+2}, {nbytes}")
        self(f"s_mov_b32 s{d+3}, 0x20000")

def interleave(main, fill, counts=None):
    out = []
    n = len(main)
    if counts is None:
        counts = []
        done = 0
        for i in range(n):
            tgt = (len(fill) * (i + 1) + n - 1) // n
            counts.append(tgt - done)
            done = tgt
    k = 0
    for i in range(n):
        out.append(main[i])
        out.extend(fill[k:k + counts[i]])
        k += counts[i]
    out.extend(fill[k:])
    return out

def kernel_header(name):
    return f""".globl {name}
.p2align 8
.type {name},@function
{name}:
"""

def kernel_desc(name, nvgpr, nsgpr=96, accum=None):
    if DIAG["on"]:
        nsgpr = 100
    if accum is None:
        accum = (nvgpr + 3) // 4 * 4
    return f""".p2align 6
.amdhsa_kernel {name}
  .amdhsa_next_free_vgpr {nvgpr}
  .amdhsa_next_free_sgpr {nsgpr}
  .amdhsa_accum_offset {accum}
  .amdhsa_group_segment_fixed_size 0
  .amdhsa_kernarg_size 80
  .amdhsa_user_sgpr_count 2
  .amdhsa_user_sgpr_kernarg_segment_ptr 1
  .amdhsa_system_sgpr_workgroup_id_x 1
.end_amdhsa_kernel
"""
```

```python
from asmlib import *
from consts import *
import p1
from p1 import OPT, sW, sRB, sCG, sTT, SWS, SDBG, sMask, vLane, vL16, vH, vZero

INB = 12288
WOB = 49152
XCH = 114688
SYNC = p1.LDS_P1
LDS_F = SYNC + 64
FQ, FH, FO = WS_FLAG, WS_FLAG + 8192, WS_FLAG + 10240

SKH, SKV, SVH, SV, SWD = 4, 8, 16, 20, 24
sHead, sQB, sOff, sOffV, sCnt = 36, 37, 38, 39, 41
sT0, sT1, sT2, sT3 = 42, 43, 44, 45
sMT, sNT, sRing = 47, 48, 49
sVM, sUP = 50, 52
sA0, sA1, sWoff, sStep, sKQ = 54, 55, 40, 14, 15
SXO = 60
vT = 4
vZ = 15
vVo = 14
NB = 4
QF = 16
KV = 48
SS = KV + 16 * NB
PP = SS + 32
OO = PP + 16
vTr0, vTr1 = 16, 17
vOff = 20
XRES = 24
vXo = 28
ACT = 32
WFG = 96
GACC = 128
TW = 192

def fstamp(a, i):
    if OPT.get("st", "2") in ("1", "3") and i < 7:
        return
    a.stamp(i)

def xstamp(a, i):
    if OPT.get("st", "2") == "3":
        a.stamp(i)

def mf(d, a, b, c):
    cs = "0" if c is None else f"v[{c}:{c+15}]"
    return f"v_mfma_f32_32x32x16_bf16 v[{d}:{d+15}], v[{a}:{a+3}], v[{b}:{b+3}], {cs}"

def signal(a, name, cnt_idx, flag_soff_reg, vaddr=None):
    a(f"v_mov_b32 v{vT}, {SYNC + 4*cnt_idx}")
    a(f"v_mov_b32 v{vT+1}, 1")
    a("s_mov_b64 exec, 1")
    a("s_waitcnt vmcnt(0)")
    a(f"ds_add_rtn_u32 v{vT+2}, v{vT}, v{vT+1}")
    a("s_waitcnt lgkmcnt(0)")
    a(f"v_readfirstlane_b32 s{sT0}, v{vT+2}")
    if vaddr is not None: a("s_mov_b64 exec, 0x3ff")
    a(f"s_cmp_lg_u32 s{sT0}, 3")
    a(f"s_cbranch_scc1 {name}_ns")
    a(f"buffer_store_dword v{vT+1}, v{vZ if vaddr is None else vaddr}, s[{SWS}:{SWS+3}], s{flag_soff_reg} offen sc1")
    a.label(f"{name}_ns")
    a("s_mov_b64 exec, -1")

def poll(a, name, soff, nlanes, wide, sleep, rel_idx, poller):
    a(f"s_mov_b32 s{sT1}, 0x8000")
    a(f"v_mov_b32 v{vT+5}, {SYNC + 4*rel_idx}")
    a(f"s_cmp_lg_u32 s{sW}, {poller}")
    a(f"s_cbranch_scc1 {name}_w")
    a(f"s_mov_b64 exec, {hex((1 << nlanes) - 1)}")
    if not wide: a(f"v_lshlrev_b32 v{vT+4}, 2, v{vLane}")
    a.label(f"{name}_l")
    if wide:
        a(f"buffer_load_dwordx4 v[{vT}:{vT+3}], v{vL16}, s[{SWS}:{SWS+3}], {soff} offen sc1")
        a("s_waitcnt vmcnt(0)")
        a(f"v_and_b32 v{vT}, v{vT}, v{vT+1}")
        a(f"v_and_b32 v{vT+2}, v{vT+2}, v{vT+3}")
        a(f"v_and_b32 v{vT}, v{vT}, v{vT+2}")
    else:
        a(f"buffer_load_dword v{vT}, v{vT+4}, s[{SWS}:{SWS+3}], {soff} offen sc1")
        a("s_waitcnt vmcnt(0)")
    a(f"v_cmp_ne_u32 vcc, 1, v{vT}")
    a(f"s_cbranch_vccz {name}_p")
    a(f"s_sub_u32 s{sT1}, s{sT1}, 1")
    a(f"s_cbranch_scc1 {name}_p")
    a(f"s_sleep {sleep}")
    a(f"s_branch {name}_l")
    a.label(f"{name}_p")
    a(f"v_mov_b32 v{vT}, 1")
    a(f"ds_write_b32 v{vT+5}, v{vT}")
    a("s_mov_b64 exec, -1")
    a(f"s_branch {name}_ok")
    a.label(f"{name}_w")
    a(f"s_lshl_b32 s{sT1}, s{sT1}, 4")
    a.label(f"{name}_w2")
    a(f"ds_read_b32 v{vT}, v{vT+5}")
    a("s_waitcnt lgkmcnt(0)")
    a(f"v_readfirstlane_b32 s{sT0}, v{vT}")
    a(f"s_cmp_eq_u32 s{sT0}, 1")
    a(f"s_cbranch_scc1 {name}_ok")
    a(f"s_sub_u32 s{sT1}, s{sT1}, 1")
    a(f"s_cbranch_scc1 {name}_ok")
    a("s_sleep 1")
    a(f"s_branch {name}_w2")
    a.label(f"{name}_ok")

def kvload(a, kb, srd, sv):
    b = KV + 16 * kb
    a(f"buffer_load_dwordx4 v[{b}:{b+3}], v{vL16}, s[{srd}:{srd+3}], s{sOff} offen sc1")
    a(f"buffer_load_dwordx4 v[{b+4}:{b+7}], v{vL16}, s[{srd}:{srd+3}], s{sOff} offen offset:1024 sc1")
    a(f"s_mov_b64 exec, s[{sVM}:{sVM+1}]")
    a(f"buffer_load_dwordx4 v[{b+8}:{b+11}], v{vVo}, s[{sv}:{sv+3}], s{sOffV} offen sc1")
    a(f"s_add_u32 s{sOffV}, s{sOffV}, {VT//2}")
    a(f"buffer_load_dwordx4 v[{b+12}:{b+15}], v{vVo}, s[{sv}:{sv+3}], s{sOffV} offen sc1")
    a(f"s_mov_b64 exec, -1")
    a(f"s_add_u32 s{sOffV}, s{sOffV}, {VT//2}")
    a(f"s_add_u32 s{sOff}, s{sOff}, {TS}")

def maxtree(a, src, dst, first=True):
    if first:
        a(f"v_max3_f32 v{dst}, v{src}, v{src+1}, v{src+2}")
        for i in range(3, 15, 2):
            a(f"v_max3_f32 v{dst}, v{dst}, v{src+i}, v{src+i+1}")
        a(f"v_max_f32 v{dst}, v{dst}, v{src+15}")
    else:
        for i in range(0, 16, 2):
            a(f"v_max3_f32 v{dst}, v{dst}, v{src+i}, v{src+i+1}")

def setpads(a, ms, qs, t):
    n = len(ms)
    for i, m in enumerate(ms): a(f"v_mov_b32 v{t+i}, v{m}")
    a("s_nop 1")
    for i, m in enumerate(ms): a(f"v_permlane32_swap_b32 v{m}, v{t+i}")
    a("s_nop 0")
    for i, m in enumerate(ms): a(f"v_max_f32 v{m}, v{m}, v{t+i}")
    a(f"s_mov_b64 exec, s[{sUP}:{sUP+1}]")
    for i, (m, q) in enumerate(zip(ms, qs)):
        u, w = t + i, t + n + i
        a(f"v_sub_f32 v{m}, 0, v{m}")
        a(f"v_and_b32 v{u}, s{sMask}, v{m}")
        a(f"v_sub_f32 v{u}, v{m}, v{u}")
        a(f"v_lshrrev_b32 v{m}, 16, v{m}")
        a(f"v_and_b32 v{w}, s{sMask}, v{u}")
        a(f"v_or_b32 v{q+6}, v{m}, v{w}")
        a(f"v_sub_f32 v{u}, v{u}, v{w}")
        a(f"v_lshrrev_b32 v{q+7}, 16, v{u}")
    a("s_mov_b64 exec, -1")

def expcvt(S, P, g):
    o = [f"v_exp_f32 v{S+4*g+k}, v{S+4*g+k}" for k in range(4)]
    o += [f"v_cvt_pk_bf16_f32 v{P+2*g+k}, v{S+4*g+2*k}, v{S+4*g+2*k+1}" for k in range(2)]
    return o

def ldswait(a, name, idx, n):
    a(f"v_mov_b32 v{vT+6}, {SYNC+4*idx}")
    a(f"s_mov_b32 s{sT1}, 0x80000")
    a.label(name)
    a(f"ds_read_b32 v{vT+7}, v{vT+6}")
    a("s_waitcnt lgkmcnt(0)")
    a(f"v_readfirstlane_b32 s{sT0}, v{vT+7}")
    a(f"s_sub_u32 s{sT1}, s{sT1}, 1")
    a(f"s_cselect_b32 s{sT0}, {n}, s{sT0}")
    a(f"s_cmp_lt_u32 s{sT0}, {n}")
    a(f"s_cbranch_scc1 {name}")

def ldsadd(a, idx):
    a(f"v_mov_b32 v{vT+6}, {SYNC+4*idx}")
    a(f"v_mov_b32 v{vT+7}, 1")
    a("s_mov_b64 exec, 1")
    a(f"ds_add_u32 v{vT+6}, v{vT+7}")
    a("s_mov_b64 exec, -1")

def g2_ids(a):
    a(f"s_and_b32 s{sMT}, s2, 7")
    a(f"s_lshl_b32 s{sMT}, s{sMT}, 2")
    a(f"s_bfe_u32 s{sT0}, s2, 0x20003")
    a(f"s_add_u32 s{sMT}, s{sMT}, s{sT0}")
    a(f"s_lshr_b32 s{sNT}, s2, 5")
    a(f"s_lshr_b32 s{sKQ}, s{sW}, 1")

def g2_tr(a):
    t1, i_ = vT, vT + 2
    a(f"v_and_b32 v{i_}, 15, v{vLane}")
    a(f"v_lshrrev_b32 v{t1}, 2, v{i_}")
    a(f"v_lshl_add_u32 v{t1}, v{vH}, 2, v{t1}")
    a(f"v_lshlrev_b32 v{vTr0}, 7, v{t1}")
    a(f"v_bfe_u32 v{t1}, v{vLane}, 4, 1")
    a(f"v_lshl_add_u32 v{vTr0}, v{t1}, 5, v{vTr0}")
    a(f"v_and_b32 v{t1}, 3, v{i_}")
    a(f"v_lshl_add_u32 v{vTr0}, v{t1}, 3, v{vTr0}")
    a(f"v_bfe_u32 v{t1}, v{i_}, 3, 1")
    a(f"v_lshl_add_u32 v{vTr0}, v{t1}, 6, v{vTr0}")
    a(f"s_lshl_b32 s{sT0}, s{sKQ}, 5")
    a(f"v_xor_b32 v{vTr0}, s{sT0}, v{vTr0}")
    a(f"v_xor_b32 v{vTr1}, 64, v{vTr0}")

def wdma(a, slot):
    a(f"s_add_u32 m0, s{sRing}, {slot*4096}")
    a("s_nop 0")
    for i in range(4):
        a(f"buffer_load_dwordx4 v{vOff+i}, s[{SWD}:{SWD+3}], s{sWoff} offen offset:{1024*i} lds")
    a(f"s_add_u32 s{sWoff}, s{sWoff}, s{sStep}")

def actld(a, st):
    b = ACT + 16 * st
    a(f"buffer_load_dwordx4 v[{b}:{b+3}], v{vL16}, s[{SWS}:{SWS+3}], s{sA0} offen sc1")
    a(f"buffer_load_dwordx4 v[{b+4}:{b+7}], v{vL16}, s[{SWS}:{SWS+3}], s{sA0} offen offset:1024 sc1")
    a(f"buffer_load_dwordx4 v[{b+8}:{b+11}], v{vL16}, s[{SWS}:{SWS+3}], s{sA1} offen sc1")
    a(f"buffer_load_dwordx4 v[{b+12}:{b+15}], v{vL16}, s[{SWS}:{SWS+3}], s{sA1} offen offset:1024 sc1")
    a(f"s_add_u32 s{sA0}, s{sA0}, 2048")
    a(f"s_add_u32 s{sA1}, s{sA1}, 2048")

def unit(a, slot):
    for s in range(2):
        for tau in range(2):
            for t in range(2):
                d = WFG + 8 * s + 4 * tau + 2 * t
                a(f"ds_read_b64_tr_b16 v[{d}:{d+1}], v{vTr0+2 if tau == 0 else vTr1+2} offset:{slot*4096+s*2048+t*1024}")
    for s in range(2):
        a(f"s_waitcnt lgkmcnt({4 if s == 0 else 0})")
        for tau in range(2):
            for tt in range(2):
                acc = GACC + 16 * (tt * 2 + tau)
                a(mf(acc, WFG + 8 * s + 4 * tau, ACT + 16 * slot + 8 * tt + 4 * s, acc))

def attention(a):
    a.label("F_att")
    fstamp(a, 8)
    a(f"s_and_b32 s{sHead}, s2, 7")
    a(f"s_lshl_b32 s{sHead}, s{sHead}, 1")
    a(f"s_bfe_u32 s{sT0}, s2, 0x10003")
    a(f"s_add_u32 s{sHead}, s{sHead}, s{sT0}")
    a(f"s_lshr_b32 s{sQB}, s2, 4")
    a(f"s_mov_b32 s{sVM}, 0x0fffffff")
    a(f"s_mov_b32 s{sVM+1}, 0x0fffffff")
    a(f"s_mov_b32 s{sUP}, 0")
    a(f"s_mov_b32 s{sUP+1}, -1")
    a(f"v_mov_b32 v{KV+8}, 0x3f803f80")
    a(f"v_mov_b32 v{KV+9}, 0x3f803f80")
    for kb in range(NB):
        for i in range(0, 8, 2):
            if kb or i: a(f"v_mov_b64 v[{KV+16*kb+8+i}:{KV+16*kb+9+i}], v[{KV+8}:{KV+9}]")
    a(f"v_mul_u32_u24 v{vVo}, {VT//4 - 512}, v{vH}")
    a(f"v_add_u32 v{vVo}, v{vVo}, v{vL16}")
    a(f"s_mul_i32 s{sT0}, s{sHead}, 448")
    a(f"v_add_u32 v{vVo}, s{sT0}, v{vVo}")
    a(f"s_lshl_b32 s{sT1}, s{sHead}, 18")
    a(f"s_add_u32 s{SKH}, s{SWS}, s{sT1}")
    a(f"s_addc_u32 s{SKH+1}, s{SWS+1}, 0")
    a(f"s_mov_b32 s{SKH+2}, {HS}")
    a(f"s_mov_b32 s{SKH+3}, 0x20000")
    a(f"s_lshl_b32 s{sT1}, s{sW}, 16")
    a(f"s_add_u32 s{SKV}, s{SKH}, s{sT1}")
    a(f"s_addc_u32 s{SKV+1}, s{SKH+1}, 0")
    a(f"s_mov_b32 s{SKV+2}, {16*TS}")
    a(f"s_mov_b32 s{SKV+3}, 0x20000")
    a(f"s_add_u32 s{SVH}, s{SWS}, {WS_V}")
    a(f"s_addc_u32 s{SVH+1}, s{SWS+1}, 0")
    a(f"s_mov_b32 s{SVH+2}, {64*VT}")
    a(f"s_mov_b32 s{SVH+3}, 0x20000")
    a(f"s_mul_i32 s{sT1}, s{sW}, {16*VT}")
    a(f"s_add_u32 s{SV}, s{SVH}, s{sT1}")
    a(f"s_addc_u32 s{SV+1}, s{SVH+1}, 0")
    a(f"s_mov_b32 s{SV+2}, {16*VT}")
    a(f"s_mov_b32 s{SV+3}, 0x20000")
    a(f"s_mov_b32 s{sOffV}, 0")
    a(f"s_mov_b32 s{sOff}, 0")
    for i in range(0, 8, 2):
        a(f"v_mov_b64 v[{PP+8+i}:{PP+9+i}], 0")
    g2_ids(a)
    a(f"s_lshl_b32 s{sT3}, s{sHead}, 9")
    a(f"s_add_u32 s{sT3}, s{sT3}, {FQ}")
    poll(a, "F_pq", f"s{sT3}", 24, True, int(OPT.get("sq", "3")), 3, 0)
    fstamp(a, 9)
    a(f"s_setprio {OPT.get('pp', '3')}")
    a.c("K tile 0 of the head + Q (local tile j = global (w+j)&3)")
    a(f"buffer_load_dwordx4 v[{PP}:{PP+3}], v{vL16}, s[{SKH}:{SKH+3}], 0 offen sc1")
    a(f"buffer_load_dwordx4 v[{PP+4}:{PP+7}], v{vL16}, s[{SKH}:{SKH+3}], 0 offen offset:1024 sc1")
    a(f"s_lshl_b32 s{sT1}, s{sQB}, 14")
    for j in range(4):
        a(f"s_add_u32 s{sT0}, s{sW}, {j}")
        a(f"s_and_b32 s{sT0}, s{sT0}, 3")
        a(f"s_lshl_b32 s{sT0}, s{sT0}, 12")
        a(f"s_add_u32 s{sT0}, s{sT0}, s{sT1}")
        a(f"buffer_load_dwordx4 v[{QF+8*j}:{QF+8*j+3}], v{vL16}, s[{SKH}:{SKH+3}], s{sT0} offen offset:2048 sc1")
        a(f"buffer_load_dwordx4 v[{QF+8*j+4}:{QF+8*j+7}], v{vL16}, s[{SKH}:{SKH+3}], s{sT0} offen offset:3072 sc1")
    for kb in range(NB - 1):
        kvload(a, kb, SKV, SV)
    a(f"s_waitcnt vmcnt({4*(NB-1)})")
    a(f"s_mov_b64 exec, s[{sUP}:{sUP+1}]")
    for qt in range(4):
        a(f"v_mov_b64 v[{QF+8*qt+6}:{QF+8*qt+7}], 0")
    a("s_mov_b64 exec, -1")
    a("s_nop 1")
    for qt in range(4):
        a(mf(OO + 16 * qt, PP, QF + 8 * qt, None))
        a(mf(OO + 16 * qt, PP + 4, QF + 8 * qt + 4, OO + 16 * qt))
    a("s_nop 7")
    for qt in range(4):
        maxtree(a, OO + 16 * qt, vT + qt)
    a.c("O = 0 (P[1] is zero)")
    for qt in range(4):
        a(mf(OO + 16 * qt, PP + 8, PP + 8, None))
    setpads(a, [vT + qt for qt in range(4)], [QF + 8 * qt for qt in range(4)], SS + 16)
    a(f"s_waitcnt vmcnt({4*(NB-2)})")
    a(mf(SS, KV, QF, None))
    a(mf(SS, KV + 4, QF + 4, SS))
    a(f"s_mov_b32 s{sCnt}, {16//NB}")
    a("s_nop 7")
    a("s_nop 2")
    a(f"s_setprio {OPT.get('prio', '1')}")
    fstamp(a, 10)
    a.label("F_aloop")
    for kb in range(NB):
        for qt in range(4):
            n = kb * 4 + qt
            cur, nxt = SS + 16 * (n & 1), SS + 16 * ((n + 1) & 1)
            pc, pp = PP + 8 * (n & 1), PP + 8 * ((n + 1) & 1)
            nkb, nqt = (kb, qt + 1) if qt < 3 else ((kb + 1) % NB, 0)
            pkb, pqt = (kb, qt - 1) if qt > 0 else ((kb - 1) % NB, 3)
            if qt == 3:
                a(f"s_waitcnt vmcnt({4*(NB-2)})")
            K = KV + 16 * nkb
            V = KV + 16 * pkb + 8
            O = OO + 16 * pqt
            mm = [mf(nxt, K, QF + 8 * nqt, None), mf(nxt, K + 4, QF + 8 * nqt + 4, nxt),
                  mf(O, V, pp, O), mf(O, V + 4, pp + 4, O)]
            for g in range(4):
                a(mm[g])
                if g == 3 and qt == 0:
                    kvload(a, pkb, SKV, SV)
                if g == 3 and n == 4 * NB - 1:
                    a(f"s_sub_u32 s{sCnt}, s{sCnt}, 1")
                    a(f"s_cmp_lg_u32 s{sCnt}, 0")
                for l in expcvt(cur, pc, g):
                    a(l)
    a("s_cbranch_scc1 F_aloop")
    V = KV + 16 * (NB - 1) + 8
    O = OO + 48
    a("s_nop 0")
    a(mf(O, V, PP + 8, O))
    a(mf(O, V + 4, PP + 12, O))
    fstamp(a, 1)
    a.c("the B waves are done with the phase-1 LDS image")
    ldswait(a, "F_bw1", 1, 4)
    a.c("send local tiles 1..3 to waves (w+j)&3, inbox slot j-1")
    for j in range(1, 4):
        a(f"s_add_u32 s{sT0}, s{sW}, {j}")
        a(f"s_and_b32 s{sT0}, s{sT0}, 3")
        a(f"s_mul_i32 s{sT0}, s{sT0}, {INB}")
        a(f"v_add_u32 v{vT+j}, s{sT0}, v{vL16}")
    for j in range(1, 4):
        for aa in range(4):
            a(f"ds_write_b128 v{vT+j}, v[{OO+16*j+4*aa}:{OO+16*j+4*aa+3}] offset:{4096*(j-1)+1024*aa}")
    ldsadd(a, 6)
    a(f"s_mul_i32 s{sT0}, s{sW}, {INB}")
    a(f"v_add_u32 v{vT}, s{sT0}, v{vL16}")
    a(f"s_lshl_b32 s{sT3}, s{sQB}, 2")
    a(f"s_add_u32 s{sT3}, s{sT3}, s{sW}")
    a(f"s_lshl_b32 s{sT3}, s{sT3}, 4")
    a(f"s_add_u32 s{sT3}, s{sT3}, s{sHead}")
    a(f"s_lshl_b32 s{sT3}, s{sT3}, 11")
    a(f"s_add_u32 s{sT3}, s{sT3}, {WS_O}")
    ldswait(a, "F_iw", 6, 4)
    fstamp(a, 2)
    R = OO
    for j in range(1, 4):
        for aa in range(4):
            a(f"ds_read_b128 v[{OO+16*j+4*aa}:{OO+16*j+4*aa+3}], v{vT} offset:{4096*(j-1)+1024*aa}")
    for j in range(1, 4):
        a(f"s_waitcnt lgkmcnt({4*(3-j)})")
        for i in range(16): a(f"v_add_f32 v{R+i}, v{R+i}, v{OO+16*j+i}")
    a.c("overflow check of the first-tile shift: every value finite and below 2^100, else redo with the true row max")
    a(f"v_add_f32 v{vT+2}, abs(v{R}), abs(v{R+1})")
    for i in range(2, 16):
        a(f"v_add_f32 v{vT+2}, v{vT+2}, abs(v{R+i})")
    a(f"v_cmp_gt_f32 vcc, {fhex(2.0**100)}, v{vT+2}")
    a("s_cmp_eq_u64 vcc, -1")
    a("s_cbranch_scc0 F_slow")
    a.label("F_fin")
    a(f"v_mov_b32 v{vT+2}, v{R+12}")
    a(f"v_mov_b32 v{vT+3}, v{R+12}")
    a("s_nop 1")
    a(f"v_permlane32_swap_b32 v{vT+2}, v{vT+3}")
    a("s_nop 0")
    a(f"v_rcp_f32 v{vT+3}, v{vT+3}")
    a(f"s_mov_b64 exec, s[{sUP}:{sUP+1}]")
    a(f"v_mov_b64 v[{R+12}:{R+13}], 0")
    a(f"v_mov_b64 v[{R+14}:{R+15}], 0")
    a("s_mov_b64 exec, -1")
    for i in range(16): a(f"v_mul_f32 v{R+i}, v{R+i}, v{vT+3}")
    for i in range(8): a(f"v_cvt_pk_bf16_f32 v{SS+i}, v{R+2*i}, v{R+2*i+1}")
    a(f"buffer_store_dwordx4 v[{SS}:{SS+3}], v{vL16}, s[{SWS}:{SWS+3}], s{sT3} offen sc1")
    a(f"buffer_store_dwordx4 v[{SS+4}:{SS+7}], v{vL16}, s[{SWS}:{SWS+3}], s{sT3} offen offset:1024 sc1")
    a(f"s_lshl_b32 s{sT3}, s{sQB}, 7")
    a(f"s_lshl_b32 s{sT0}, s{sHead}, 2")
    a(f"s_add_u32 s{sT3}, s{sT3}, s{sT0}")
    a(f"s_add_u32 s{sT3}, s{sT3}, {FO}")
    a.c("work for the tail while the stores fly")
    g2_tr(a)
    a(f"v_mov_b64 v[{WFG}:{WFG+1}], 0")
    a(f"v_mov_b64 v[{WFG+2}:{WFG+3}], 0")
    a("s_nop 1")
    for k in range(2):
        a(mf(GACC + 16 * k, WFG, WFG, None))
    signal(a, "F_so", 2, sT3)
    fstamp(a, 3)
    a(f"s_cmp_ge_u32 s{sNT}, 7")
    a("s_cbranch_scc1 F_end")
    a("s_branch F_tail")
    a.label("F_slow")
    S2 = SS + 16
    a(f"v_mov_b32 v{vT+2}, 0xff800000")
    a(f"s_mov_b32 s{sOff}, 0")
    a(f"s_mov_b32 s{sOffV}, 0")
    a(f"s_mov_b64 exec, s[{sUP}:{sUP+1}]")
    a(f"v_mov_b64 v[{QF+6}:{QF+7}], 0")
    a("s_mov_b64 exec, -1")
    a.label("F_sl1")
    kvload(a, 0, SKH, SVH)
    a("s_waitcnt vmcnt(0)")
    a(mf(S2, KV, QF, None))
    a(mf(S2, KV + 4, QF + 4, S2))
    a("s_nop 15")
    maxtree(a, S2, vT + 2, first=False)
    a(f"s_cmp_lt_u32 s{sOff}, {HS}")
    a("s_cbranch_scc1 F_sl1")
    setpads(a, [vT + 2], [QF], vT + 4)
    for i in range(0, 16, 2): a(f"v_mov_b64 v[{R+i}:{R+i+1}], 0")
    a(f"s_mov_b32 s{sOff}, 0")
    a(f"s_mov_b32 s{sOffV}, 0")
    a.label("F_sl2")
    kvload(a, 0, SKH, SVH)
    a("s_waitcnt vmcnt(0)")
    a(mf(S2, KV, QF, None))
    a(mf(S2, KV + 4, QF + 4, S2))
    a("s_nop 15")
    for g in range(4):
        for l in expcvt(S2, PP, g): a(l)
    a("s_nop 1")
    a(mf(R, KV + 8, PP, R))
    a(mf(R, KV + 12, PP + 4, R))
    a(f"s_cmp_lt_u32 s{sOff}, {HS}")
    a("s_cbranch_scc1 F_sl2")
    a("s_nop 15")
    a("s_branch F_fin")

def g2h(a):
    a.label("F_g2")
    a("s_setprio 0")
    fstamp(a, 8)
    g2_ids(a)
    a(f"s_cmp_ge_u32 s{sNT}, 7")
    a("s_cbranch_scc1 F_end")
    a(f"s_load_dwordx2 s[{SWD}:{SWD+1}], s[0:1], 48")
    a(f"s_load_dwordx2 s[{SXO}:{SXO+1}], s[0:1], 16")
    a(f"s_lshl_b32 s{sRing}, s{sTT}, 14")
    a(f"s_add_u32 s{sRing}, s{sRing}, {WOB}")
    g2_tr(a)
    a(f"v_add_u32 v{vTr0+2}, s{sRing}, v{vTr0}")
    a(f"v_add_u32 v{vTr1+2}, s{sRing}, v{vTr1}")
    t1, t2, i_ = vT, vT + 1, vT + 2
    a(f"v_bfe_u32 v{t1}, v{vLane}, 4, 1")
    a(f"v_lshlrev_b32 v{t1}, 2, v{t1}")
    a(f"v_and_b32 v{t2}, 7, v{vLane}")
    a(f"v_xor_b32 v{t1}, v{t1}, v{t2}")
    a(f"v_lshrrev_b32 v{i_}, 3, v{vLane}")
    a(f"v_mul_u32_u24 v{vOff}, 896, v{i_}")
    a(f"v_lshl_add_u32 v{vOff}, v{t1}, 4, v{vOff}")
    for i in range(1, 4):
        a(f"v_add_u32 v{vOff+i}, {i*(7168-1024)}, v{vOff}")
    a(f"v_mov_b64 v[{WFG}:{WFG+1}], 0")
    a(f"v_mov_b64 v[{WFG+2}:{WFG+3}], 0")
    a(f"s_lshl_b32 s{sT2}, s{sNT}, 7")
    a(f"s_mul_i32 s{sWoff}, s{sTT}, {14*32*896}")
    a(f"s_add_u32 s{sWoff}, s{sWoff}, s{sT2}")
    for k in range(4):
        a(mf(GACC + 16 * k, WFG, WFG, None))
    a.c("local token tile 0 = tile w&1")
    a(f"s_mul_i32 s{sA0}, s{sMT}, {2*112*1024}")
    a(f"s_mul_i32 s{sT1}, s{sTT}, {28*1024}")
    a(f"s_add_u32 s{sA0}, s{sA0}, s{sT1}")
    a(f"s_add_u32 s{sA0}, s{sA0}, {WS_H}")
    a(f"s_add_u32 s{sT1}, s{sA0}, {112*1024}")
    a(f"s_bitcmp1_b32 s{sW}, 0")
    a(f"s_cselect_b32 s{sA1}, s{sA0}, s{sT1}")
    a(f"s_cselect_b32 s{sA0}, s{sT1}, s{sA0}")
    a(f"s_mov_b32 s{SWD+2}, {1792*896}")
    a(f"s_mov_b32 s{SWD+3}, 0x20000")
    a(f"s_movk_i32 s{sStep}, {32*896}")
    a(f"s_lshr_b32 s{sT3}, s{sMT}, 1")
    a(f"s_lshl_b32 s{sT3}, s{sT3}, 7")
    a(f"s_add_u32 s{sT3}, s{sT3}, {FH}")
    ldswait(a, "F_bw2", 1, 4)
    a(f"s_and_b32 s{SWD+1}, s{SWD+1}, 0xffff")
    for u in range(4): wdma(a, (u + 2) % 4)
    poll(a, "F_ph", f"s{sT3}", 14, False, int(OPT.get("sh", "4")), 4, 4)
    fstamp(a, 9)
    for u in range(4): actld(a, (u + 2) % 4)
    a(f"s_mov_b32 s{sCnt}, 4")
    a("s_waitcnt vmcnt(4)")
    a("s_branch F_gmid")
    a.label("F_gloop")
    a(f"s_cmp_lg_u32 s{sCnt}, 1")
    a("s_cbranch_scc1 F_gl2")
    a.c("last round: the weight stream continues with wo (heads 4tt..4tt+3), no more activations")
    a(f"s_mov_b32 s{SWD}, s{SXO}")
    a(f"s_and_b32 s{SWD+1}, s{SXO+1}, 0xffff")
    a(f"s_mov_b32 s{SWD+2}, {448*896}")
    a(f"s_movk_i32 s{sStep}, {28*896}")
    a(f"s_mul_i32 s{sWoff}, s{sTT}, {4*28*896}")
    a(f"s_add_u32 s{sWoff}, s{sWoff}, s{sT2}")
    a(f"s_mov_b32 s{sA0}, 0x40000000")
    a(f"s_mov_b32 s{sA1}, 0x40000000")
    a.label("F_gl2")
    for st in range(4):
        if st == 2: a.label("F_gmid")
        a("s_waitcnt vmcnt(24)")
        unit(a, st)
        actld(a, st)
        wdma(a, st)
    a(f"s_sub_u32 s{sCnt}, s{sCnt}, 1")
    a(f"s_cmp_lg_u32 s{sCnt}, 0")
    a("s_cbranch_scc1 F_gloop")
    fstamp(a, 10)
    a.c("pair exchange: the other token tile goes to wave w^1")
    a(f"s_xor_b32 s{sT0}, s{sTT}, 1")
    a(f"s_lshl_b32 s{sT0}, s{sT0}, 13")
    a(f"s_add_u32 s{sT0}, s{sT0}, {XCH}")
    a(f"v_add_u32 v{vT}, s{sT0}, v{vL16}")
    a(f"v_xor_b32 v{vT+1}, 0x2000, v{vT}")
    for i in range(8):
        a(f"ds_write_b128 v{vT}, v[{GACC+32+4*i}:{GACC+32+4*i+3}] offset:{1024*i}")
    ldsadd(a, 7)
    ldswait(a, "F_xw", 7, 4)
    for i in range(8):
        a(f"ds_read_b128 v[{GACC+32+4*i}:{GACC+32+4*i+3}], v{vT+1} offset:{1024*i}")
    a("s_waitcnt vmcnt(0) lgkmcnt(0)")
    ldsadd(a, 8)
    for i in range(32):
        a(f"v_add_f32 v{GACC+i}, v{GACC+i}, v{GACC+32+i}")

def tail(a):
    a.label("F_tail")
    a(f"s_load_dwordx2 s[{SXO}:{SXO+1}], s[0:1], 0")
    a(f"s_load_dwordx2 s[{SWD}:{SWD+1}], s[0:1], 56")
    a(f"s_lshr_b32 s{sT3}, s{sMT}, 1")
    a(f"s_lshl_b32 s{sT3}, s{sT3}, 7")
    a(f"s_add_u32 s{sT3}, s{sT3}, {FO}")
    a.c("token tile 2mt + (w&1); heads 4kq..4kq+3")
    a(f"s_and_b32 s{sT2}, s{sW}, 1")
    a(f"s_lshl_b32 s{sT0}, s{sMT}, 1")
    a(f"s_add_u32 s{sT2}, s{sT2}, s{sT0}")
    a(f"s_lshl_b32 s{sA0}, s{sT2}, 15")
    a(f"s_lshl_b32 s{sT0}, s{sKQ}, 13")
    a(f"s_add_u32 s{sA0}, s{sA0}, s{sT0}")
    a(f"s_add_u32 s{sA0}, s{sA0}, {WS_O}")
    a(f"s_add_u32 s{sA1}, s{sA0}, 4096")
    a(f"s_mul_i32 s{sT2}, s{sT2}, {32*896}")
    a(f"s_lshl_b32 s{sT0}, s{sNT}, 7")
    a(f"s_add_u32 s{sT2}, s{sT2}, s{sT0}")
    a(f"s_lshl_b32 s{sT0}, s{sKQ}, 5")
    a(f"s_add_u32 s{sT2}, s{sT2}, s{sT0}")
    a(f"v_and_b32 v{vXo}, 31, v{vLane}")
    a(f"v_mul_u32_u24 v{vXo}, 896, v{vXo}")
    a(f"v_lshl_add_u32 v{vXo+1}, v{vH}, 3, v{vXo}")
    a(f"v_lshl_add_u32 v{vXo}, v{vH}, 4, v{vXo}")
    a(f"s_lshl_b32 s{sT0}, s{sKQ}, 14")
    a(f"s_add_u32 s{sT0}, s{sT0}, {WOB}")
    a(f"v_add_u32 v{vTr0}, s{sT0}, v{vTr0}")
    a(f"v_add_u32 v{vTr1}, s{sT0}, v{vTr1}")
    a(f"s_mov_b32 s{SXO+2}, {2048*896}")
    a(f"s_mov_b32 s{SXO+3}, 0x20000")
    a(f"s_mov_b32 s{SWD+2}, {2048*896}")
    a(f"s_mov_b32 s{SWD+3}, 0x20000")
    ldswait(a, "F_ww", 8, 4)
    a(f"s_and_b32 s{SXO+1}, s{SXO+1}, 0xffff")
    a(f"s_and_b32 s{SWD+1}, s{SWD+1}, 0xffff")
    a(f"buffer_load_dwordx2 v[{XRES}:{XRES+1}], v{vXo+1}, s[{SXO}:{SXO+3}], s{sT2} offen")
    a(f"buffer_load_dwordx2 v[{XRES+2}:{XRES+3}], v{vXo+1}, s[{SXO}:{SXO+3}], s{sT2} offen offset:16")
    for hd in range(4):
        for s_ in range(2):
            for tau in range(2):
                for t in range(2):
                    d = TW + 16 * hd + 8 * s_ + 4 * tau + 2 * t
                    a(f"ds_read_b64_tr_b16 v[{d}:{d+1}], v{vTr0 if tau == 0 else vTr1} offset:{hd*4096+s_*2048+t*1024}")
    a.c("final inbox addresses: local quarter i -> wave w ^ (2i), slot i-1")
    for i in range(1, 4):
        a(f"s_xor_b32 s{sT0}, s{sW}, {2*i}")
        a(f"s_mul_i32 s{sT0}, s{sT0}, 6144")
        a(f"v_add_u32 v{vOff+i}, s{sT0}, v{vL16}")
    a(f"s_mul_i32 s{sT0}, s{sW}, 6144")
    a(f"v_add_u32 v{vOff}, s{sT0}, v{vL16}")
    ldswait(a, "F_ow", 2, 4)
    poll(a, "F_po", f"s{sT3}", 16, False, int(OPT.get("so", "2")), 5, 4)
    fstamp(a, 4)
    for k in range(8):
        a(f"buffer_load_dwordx4 v[{ACT+4*k}:{ACT+4*k+3}], v{vL16}, s[{SWS}:{SWS+3}], s{sA0 if k < 4 else sA1} offen offset:{1024*(k&3)} sc1")
    R = 64
    a("s_waitcnt vmcnt(8)")
    for i in range(4):
        a(f"v_lshlrev_b32 v{R+2*i}, 16, v{XRES+i}")
        a(f"v_and_b32 v{R+2*i+1}, s{sMask}, v{XRES+i}")
    for k in range(8):
        a(f"s_waitcnt vmcnt({7-k})")
        for tau in range(2):
            acc = GACC + 16 * tau
            a(mf(acc, TW + 8 * k + 4 * tau, ACT + 4 * k, acc))
    fstamp(a, 5)
    a("s_nop 10")
    for i in range(1, 4):
        for c in range(2):
            r = GACC + 8 * i + 4 * c
            a(f"ds_write_b128 v{vOff+i}, v[{r}:{r+3}] offset:{2048*(i-1)+1024*c}")
    for i in range(8): a(f"v_add_f32 v{R+i}, v{R+i}, v{GACC+i}")
    a("s_waitcnt lgkmcnt(0)")
    a("s_barrier")
    D = GACC + 32
    for k in range(6):
        a(f"ds_read_b128 v[{D+4*k}:{D+4*k+3}], v{vOff} offset:{1024*k}")
    for i in range(3):
        a(f"s_waitcnt lgkmcnt({4-2*i})")
        for k in range(8): a(f"v_add_f32 v{R+k}, v{R+k}, v{D+8*i+k}")
    for i in range(4):
        a(f"v_cvt_pk_bf16_f32 v{XRES+i}, v{R+2*i}, v{R+2*i+1}")
    a("s_nop 1")
    a(f"v_permlane32_swap_b32 v{XRES}, v{XRES+2}")
    a(f"v_permlane32_swap_b32 v{XRES+1}, v{XRES+3}")
    a(f"buffer_store_dwordx4 v[{XRES}:{XRES+3}], v{vXo}, s[{SWD}:{SWD+3}], s{sT2} offen")
    a.label("F_end")
    fstamp(a, 7)
    a.stamp_flush(11, 0, sW, 8)
    a("s_endpgm")

def gen_fused(name):
    a = Asm()
    a("s_cmp_ge_u32 s2, 256")
    a("s_cbranch_scc1 F_exit")
    if OPT.get("scr") == "1":
        a("s_lshl_b32 s3, s2, 3")
        a("s_lshr_b32 s2, s2, 5")
        a("s_or_b32 s2, s2, s3")
        a("s_and_b32 s2, s2, 255")
    def endA(a):
        a(f"v_mov_b32 v{vZ}, 0")
        a.c("flag lanes: lane l<10 -> virtual head vh0 + (l>>1), part l&1 (0: holds its first column, 1: its last)")
        vh, col, ad = vT + 4, vT + 5, vT + 6
        a(f"s_mul_i32 s{sT2}, s{sCG}, 96")
        a(f"s_mul_i32 s{sT0}, s{sT2}, 2341")
        a(f"s_lshr_b32 s{sT0}, s{sT0}, 16")
        a(f"v_lshrrev_b32 v{vh}, 1, v{vLane}")
        a(f"v_add_u32 v{vh}, s{sT0}, v{vh}")
        a(f"v_and_b32 v{ad}, 1, v{vLane}")
        a(f"v_mul_u32_u24 v{col}, 27, v{ad}")
        a(f"v_mad_u32_u24 v{col}, v{vh}, 28, v{col}")
        a(f"v_subrev_u32 v{col}, s{sT2}, v{col}")
        a(f"v_cmp_gt_u32 vcc, 96, v{col}")
        a(f"v_lshlrev_b32 v{ad}, 6, v{ad}")
        a(f"v_lshrrev_b32 v{col}, 4, v{vh}")
        a(f"v_lshl_add_u32 v{ad}, v{col}, 7, v{ad}")
        a(f"v_and_b32 v{col}, 15, v{vh}")
        a(f"v_lshl_add_u32 v{ad}, v{col}, 9, v{ad}")
        a(f"v_cndmask_b32 v{ad}, -1, v{ad}, vcc")
        a(f"s_lshl_b32 s{sT3}, s{sRB}, 2")
        a(f"s_add_u32 s{sT3}, s{sT3}, {FQ}")
        xstamp(a, 3)
        a("s_waitcnt vmcnt(12)")
        a(f"s_cmp_lt_u32 s{sCG}, 9")
        a("s_cbranch_scc1 F_bf")
        a("s_waitcnt vmcnt(6)")
        a.label("F_bf")
        xstamp(a, 4)
        a("s_barrier")
        xstamp(a, 5)
        signal(a, "F_sq", 0, sT3, ad)
        fstamp(a, 6)
        attention(a)
    def endB(a):
        xstamp(a, 3)
        a(f"v_mov_b32 v{vZ}, 0")
        a(f"s_lshl_b32 s{sT3}, s{sRB}, 7")
        a(f"s_lshl_b32 s{sT0}, s{sCG}, 2")
        a(f"s_add_u32 s{sT3}, s{sT3}, s{sT0}")
        a(f"s_add_u32 s{sT3}, s{sT3}, {FH}")
        signal(a, "F_sh", 1, sT3)
        g2h(a)
        tail(a)
    def endH(a):
        a.c("helper workgroups: wait for all helpers (flags are cleared by then), then take their roles")
        a(f"v_mov_b32 v{vZ}, 0")
        a.c("touch a slice of w_down / wo")
        a("s_load_dwordx2 s[4:5], s[0:1], 16")
        a("s_load_dwordx2 s[6:7], s[0:1], 48")
        a(f"s_lshl_b32 s{sT0}, s2, 3")
        a(f"s_add_u32 s{sT0}, s{sT0}, s{sW}")
        a(f"v_lshlrev_b32 v{vT+1}, 7, v{vLane}")
        a(f"s_mov_b32 s{SWD+2}, {448*896}")
        a("s_waitcnt lgkmcnt(0)")
        a(f"s_cmp_lt_u32 s{sT0}, 196")
        a(f"s_cselect_b32 s{SWD}, s6, s4")
        a(f"s_cselect_b32 s{SWD+1}, s7, s5")
        a(f"s_cselect_b32 s{SWD+2}, {1792*896}, s{SWD+2}")
        a(f"s_cselect_b32 s{sT1}, 0, 196")
        a(f"s_and_b32 s{SWD+1}, s{SWD+1}, 0xffff")
        a(f"s_mov_b32 s{SWD+3}, 0x20000")
        a(f"s_sub_u32 s{sT0}, s{sT0}, s{sT1}")
        a(f"s_lshl_b32 s{sT0}, s{sT0}, 13")
        a(f"buffer_load_dword v{vT+2}, v{vT+1}, s[{SWD}:{SWD+3}], s{sT0} offen")
        a(f"s_mov_b32 s{sT1}, 0x4000")
        a(f"s_cmp_lg_u32 s{sW}, 0")
        a("s_cbranch_scc1 F_hw_ok")
        a.label("F_hw")
        a("s_sleep 32")
        a(f"buffer_load_dword v{vT}, v{vZ}, s[{SDBG}:{SDBG+3}], 0 offen offset:128 sc1")
        a("s_waitcnt vmcnt(0)")
        a(f"v_readfirstlane_b32 s{sT0}, v{vT}")
        a(f"s_cmp_eq_u32 s{sT0}, 1")
        a("s_cbranch_scc1 F_hw_ok")
        a(f"s_sub_u32 s{sT1}, s{sT1}, 1")
        a("s_cbranch_scc0 F_hw")
        a.label("F_hw_ok")
        a("s_barrier")
        a(f"s_cmp_lt_u32 s{sW}, 4")
        a("s_cbranch_scc1 F_att")
        a("s_branch F_g2")
    p1.FUSED = True
    p1.KNAME = name
    p1.gen_p1(a, endA, endB, endH)
    a.label("F_exit")
    a("s_endpgm")
    return kernel_header(name) + a.text(), kernel_desc(name, 256, 64), LDS_F
```

```python
from asmlib import *
from consts import *
import p1
from p1 import OPT, sW, sRB, sCG, sTT, SWS, SDBG, sMask, vLane, vL16, vH, vZero

INB = 12288
WOB = 49152
XCH = 114688
SYNC = p1.LDS_P1
LDS_F = SYNC + 64
FQ, FH, FO = WS_FLAG, WS_FLAG + 8192, WS_FLAG + 10240

SKH, SKV, SVH, SV, SWD = 4, 8, 16, 20, 24
sHead, sQB, sOff, sOffV, sCnt = 36, 37, 38, 39, 41
sT0, sT1, sT2, sT3 = 42, 43, 44, 45
sMT, sNT, sRing = 47, 48, 49
sVM, sUP = 50, 52
sA0, sA1, sWoff, sStep, sKQ = 54, 55, 40, 14, 15
SXO = 60
vT = 4
vZ = 15
vVo = 14
NB = 4
QF = 16
KV = 48
SS = KV + 16 * NB
PP = SS + 32
OO = PP + 16
vTr0, vTr1 = 16, 17
vOff = 20
XRES = 24
vXo = 28
ACT = 32
WFG = 96
GACC = 128
TW = 192

def fstamp(a, i):
    if OPT.get("st", "2") in ("1", "3") and i < 7:
        return
    a.stamp(i)

def xstamp(a, i):
    if OPT.get("st", "2") == "3":
        a.stamp(i)

def mf(d, a, b, c):
    cs = "0" if c is None else f"v[{c}:{c+15}]"
    return f"v_mfma_f32_32x32x16_bf16 v[{d}:{d+15}], v[{a}:{a+3}], v[{b}:{b+3}], {cs}"

def signal(a, name, cnt_idx, flag_soff_reg, vaddr=None, young=0):
    a(f"v_mov_b32 v{vT}, {SYNC + 4*cnt_idx}")
    a(f"v_mov_b32 v{vT+1}, 1")
    a("s_mov_b64 exec, 1")
    a(f"s_waitcnt vmcnt({young})")
    a(f"ds_add_rtn_u32 v{vT+2}, v{vT}, v{vT+1}")
    a("s_waitcnt lgkmcnt(0)")
    a(f"v_readfirstlane_b32 s{sT0}, v{vT+2}")
    if vaddr is not None: a("s_mov_b64 exec, 0x3ff")
    a(f"s_cmp_lg_u32 s{sT0}, 3")
    a(f"s_cbranch_scc1 {name}_ns")
    a(f"buffer_store_dword v{vT+1}, v{vZ if vaddr is None else vaddr}, s[{SWS}:{SWS+3}], s{flag_soff_reg} offen sc1")
    a.label(f"{name}_ns")
    a("s_mov_b64 exec, -1")

def poll(a, name, soff, nlanes, wide, sleep, rel_idx, poller):
    a(f"s_mov_b32 s{sT1}, 0x8000")
    a(f"v_mov_b32 v{vT+5}, {SYNC + 4*rel_idx}")
    a(f"s_cmp_lg_u32 s{sW}, {poller}")
    a(f"s_cbranch_scc1 {name}_w")
    a(f"s_mov_b64 exec, {hex((1 << nlanes) - 1)}")
    if not wide: a(f"v_lshlrev_b32 v{vT+4}, 2, v{vLane}")
    a.label(f"{name}_l")
    if wide:
        a(f"buffer_load_dwordx4 v[{vT}:{vT+3}], v{vL16}, s[{SWS}:{SWS+3}], {soff} offen sc1")
        a("s_waitcnt vmcnt(0)")
        a(f"v_and_b32 v{vT}, v{vT}, v{vT+1}")
        a(f"v_and_b32 v{vT+2}, v{vT+2}, v{vT+3}")
        a(f"v_and_b32 v{vT}, v{vT}, v{vT+2}")
    else:
        a(f"buffer_load_dword v{vT}, v{vT+4}, s[{SWS}:{SWS+3}], {soff} offen sc1")
        a("s_waitcnt vmcnt(0)")
    a(f"v_cmp_ne_u32 vcc, 1, v{vT}")
    a(f"s_cbranch_vccz {name}_p")
    a(f"s_sub_u32 s{sT1}, s{sT1}, 1")
    a(f"s_cbranch_scc1 {name}_p")
    a(f"s_sleep {sleep}")
    a(f"s_branch {name}_l")
    a.label(f"{name}_p")
    a(f"v_mov_b32 v{vT}, 1")
    a(f"ds_write_b32 v{vT+5}, v{vT}")
    a("s_mov_b64 exec, -1")
    a(f"s_branch {name}_ok")
    a.label(f"{name}_w")
    a(f"s_lshl_b32 s{sT1}, s{sT1}, 4")
    a.label(f"{name}_w2")
    a(f"ds_read_b32 v{vT}, v{vT+5}")
    a("s_waitcnt lgkmcnt(0)")
    a(f"v_readfirstlane_b32 s{sT0}, v{vT}")
    a(f"s_cmp_eq_u32 s{sT0}, 1")
    a(f"s_cbranch_scc1 {name}_ok")
    a(f"s_sub_u32 s{sT1}, s{sT1}, 1")
    a(f"s_cbranch_scc1 {name}_ok")
    a("s_sleep 2")
    a(f"s_branch {name}_w2")
    a.label(f"{name}_ok")

def kvload(a, kb, srd, sv):
    b = KV + 16 * kb
    a(f"buffer_load_dwordx4 v[{b}:{b+3}], v{vL16}, s[{srd}:{srd+3}], s{sOff} offen sc1")
    a(f"buffer_load_dwordx4 v[{b+4}:{b+7}], v{vL16}, s[{srd}:{srd+3}], s{sOff} offen offset:1024 sc1")
    a(f"s_mov_b64 exec, s[{sVM}:{sVM+1}]")
    a(f"buffer_load_dwordx4 v[{b+8}:{b+11}], v{vVo}, s[{sv}:{sv+3}], s{sOffV} offen sc1")
    a(f"s_add_u32 s{sOffV}, s{sOffV}, {VT//2}")
    a(f"buffer_load_dwordx4 v[{b+12}:{b+15}], v{vVo}, s[{sv}:{sv+3}], s{sOffV} offen sc1")
    a(f"s_mov_b64 exec, -1")
    a(f"s_add_u32 s{sOffV}, s{sOffV}, {VT//2}")
    a(f"s_add_u32 s{sOff}, s{sOff}, {TS}")

def maxtree(a, src, dst, first=True):
    if first:
        a(f"v_max3_f32 v{dst}, v{src}, v{src+1}, v{src+2}")
        for i in range(3, 15, 2):
            a(f"v_max3_f32 v{dst}, v{dst}, v{src+i}, v{src+i+1}")
        a(f"v_max_f32 v{dst}, v{dst}, v{src+15}")
    else:
        for i in range(0, 16, 2):
            a(f"v_max3_f32 v{dst}, v{dst}, v{src+i}, v{src+i+1}")

def setpads(a, ms, qs, t):
    n = len(ms)
    for i, m in enumerate(ms): a(f"v_mov_b32 v{t+i}, v{m}")
    a("s_nop 1")
    for i, m in enumerate(ms): a(f"v_permlane32_swap_b32 v{m}, v{t+i}")
    a("s_nop 0")
    for i, m in enumerate(ms): a(f"v_max_f32 v{m}, v{m}, v{t+i}")
    a(f"s_mov_b64 exec, s[{sUP}:{sUP+1}]")
    for i, (m, q) in enumerate(zip(ms, qs)):
        u, w = t + i, t + n + i
        a(f"v_sub_f32 v{m}, 0, v{m}")
        a(f"v_and_b32 v{u}, s{sMask}, v{m}")
        a(f"v_sub_f32 v{u}, v{m}, v{u}")
        a(f"v_lshrrev_b32 v{m}, 16, v{m}")
        a(f"v_and_b32 v{w}, s{sMask}, v{u}")
        a(f"v_or_b32 v{q+6}, v{m}, v{w}")
        a(f"v_sub_f32 v{u}, v{u}, v{w}")
        a(f"v_lshrrev_b32 v{q+7}, 16, v{u}")
    a("s_mov_b64 exec, -1")

def expcvt(S, P, g):
    o = [f"v_exp_f32 v{S+4*g+k}, v{S+4*g+k}" for k in range(4)]
    o += [f"v_cvt_pk_bf16_f32 v{P+2*g+k}, v{S+4*g+2*k}, v{S+4*g+2*k+1}" for k in range(2)]
    return o

def ldswait(a, name, idx, n, sleep=2):
    a(f"v_mov_b32 v{vT+6}, {SYNC+4*idx}")
    a(f"s_mov_b32 s{sT1}, 0x80000")
    a(f"s_branch {name}")
    a.label(name + "_s")
    a(f"s_sleep {sleep}")
    a.label(name)
    a(f"ds_read_b32 v{vT+7}, v{vT+6}")
    a("s_waitcnt lgkmcnt(0)")
    a(f"v_readfirstlane_b32 s{sT0}, v{vT+7}")
    a(f"s_sub_u32 s{sT1}, s{sT1}, 1")
    a(f"s_cselect_b32 s{sT0}, {n}, s{sT0}")
    a(f"s_cmp_lt_u32 s{sT0}, {n}")
    a(f"s_cbranch_scc1 {name}_s")

def ldsadd(a, idx):
    a(f"v_mov_b32 v{vT+6}, {SYNC+4*idx}")
    a(f"v_mov_b32 v{vT+7}, 1")
    a("s_mov_b64 exec, 1")
    a(f"ds_add_u32 v{vT+6}, v{vT+7}")
    a("s_mov_b64 exec, -1")

def g2_ids(a):
    a(f"s_and_b32 s{sMT}, s2, 7")
    a(f"s_lshl_b32 s{sMT}, s{sMT}, 2")
    a(f"s_bfe_u32 s{sT0}, s2, 0x20003")
    a(f"s_add_u32 s{sMT}, s{sMT}, s{sT0}")
    a(f"s_lshr_b32 s{sNT}, s2, 5")
    a(f"s_lshr_b32 s{sKQ}, s{sW}, 1")

def g2_tr(a):
    t1, i_ = vT, vT + 2
    a(f"v_and_b32 v{i_}, 15, v{vLane}")
    a(f"v_lshrrev_b32 v{t1}, 2, v{i_}")
    a(f"v_lshl_add_u32 v{t1}, v{vH}, 2, v{t1}")
    a(f"v_lshlrev_b32 v{vTr0}, 7, v{t1}")
    a(f"v_bfe_u32 v{t1}, v{vLane}, 4, 1")
    a(f"v_lshl_add_u32 v{vTr0}, v{t1}, 5, v{vTr0}")
    a(f"v_and_b32 v{t1}, 3, v{i_}")
    a(f"v_lshl_add_u32 v{vTr0}, v{t1}, 3, v{vTr0}")
    a(f"v_bfe_u32 v{t1}, v{i_}, 3, 1")
    a(f"v_lshl_add_u32 v{vTr0}, v{t1}, 6, v{vTr0}")
    a(f"s_lshl_b32 s{sT0}, s{sKQ}, 5")
    a(f"v_xor_b32 v{vTr0}, s{sT0}, v{vTr0}")
    a(f"v_xor_b32 v{vTr1}, 64, v{vTr0}")

def wdma(a, slot):
    a(f"s_add_u32 m0, s{sRing}, {slot*4096}")
    a("s_nop 0")
    for i in range(4):
        a(f"buffer_load_dwordx4 v{vOff+i}, s[{SWD}:{SWD+3}], s{sWoff} offen offset:{1024*i} lds")
    a(f"s_add_u32 s{sWoff}, s{sWoff}, s{sStep}")

def actld(a, st):
    b = ACT + 16 * st
    a(f"buffer_load_dwordx4 v[{b}:{b+3}], v{vL16}, s[{SWS}:{SWS+3}], s{sA0} offen sc1")
    a(f"buffer_load_dwordx4 v[{b+4}:{b+7}], v{vL16}, s[{SWS}:{SWS+3}], s{sA0} offen offset:1024 sc1")
    a(f"buffer_load_dwordx4 v[{b+8}:{b+11}], v{vL16}, s[{SWS}:{SWS+3}], s{sA1} offen sc1")
    a(f"buffer_load_dwordx4 v[{b+12}:{b+15}], v{vL16}, s[{SWS}:{SWS+3}], s{sA1} offen offset:1024 sc1")
    a(f"s_add_u32 s{sA0}, s{sA0}, 2048")
    a(f"s_add_u32 s{sA1}, s{sA1}, 2048")

def unit(a, slot):
    for s in range(2):
        for tau in range(2):
            for t in range(2):
                d = WFG + 8 * s + 4 * tau + 2 * t
                a(f"ds_read_b64_tr_b16 v[{d}:{d+1}], v{vTr0+2 if tau == 0 else vTr1+2} offset:{slot*4096+s*2048+t*1024}")
    for s in range(2):
        a(f"s_waitcnt lgkmcnt({4 if s == 0 else 0})")
        for tau in range(2):
            for tt in range(2):
                acc = GACC + 16 * (tt * 2 + tau)
                a(mf(acc, WFG + 8 * s + 4 * tau, ACT + 16 * slot + 8 * tt + 4 * s, acc))

def attention(a):
    a.label("F_att")
    fstamp(a, 8)
    a(f"s_and_b32 s{sHead}, s2, 7")
    a(f"s_lshl_b32 s{sHead}, s{sHead}, 1")
    a(f"s_bfe_u32 s{sT0}, s2, 0x10003")
    a(f"s_add_u32 s{sHead}, s{sHead}, s{sT0}")
    a(f"s_lshr_b32 s{sQB}, s2, 4")
    a(f"s_mov_b32 s{sVM}, 0x0fffffff")
    a(f"s_mov_b32 s{sVM+1}, 0x0fffffff")
    a(f"s_mov_b32 s{sUP}, 0")
    a(f"s_mov_b32 s{sUP+1}, -1")
    a(f"v_mov_b32 v{KV+8}, 0x3f803f80")
    a(f"v_mov_b32 v{KV+9}, 0x3f803f80")
    for kb in range(NB):
        for i in range(0, 8, 2):
            if kb or i: a(f"v_mov_b64 v[{KV+16*kb+8+i}:{KV+16*kb+9+i}], v[{KV+8}:{KV+9}]")
    a(f"v_mul_u32_u24 v{vVo}, {VT//4 - 512}, v{vH}")
    a(f"v_add_u32 v{vVo}, v{vVo}, v{vL16}")
    a(f"s_mul_i32 s{sT0}, s{sHead}, 448")
    a(f"v_add_u32 v{vVo}, s{sT0}, v{vVo}")
    a(f"s_lshl_b32 s{sT1}, s{sHead}, 18")
    a(f"s_add_u32 s{SKH}, s{SWS}, s{sT1}")
    a(f"s_addc_u32 s{SKH+1}, s{SWS+1}, 0")
    a(f"s_mov_b32 s{SKH+2}, {HS}")
    a(f"s_mov_b32 s{SKH+3}, 0x20000")
    a(f"s_lshl_b32 s{sT1}, s{sW}, 16")
    a(f"s_add_u32 s{SKV}, s{SKH}, s{sT1}")
    a(f"s_addc_u32 s{SKV+1}, s{SKH+1}, 0")
    a(f"s_mov_b32 s{SKV+2}, {16*TS}")
    a(f"s_mov_b32 s{SKV+3}, 0x20000")
    a(f"s_add_u32 s{SVH}, s{SWS}, {WS_V}")
    a(f"s_addc_u32 s{SVH+1}, s{SWS+1}, 0")
    a(f"s_mov_b32 s{SVH+2}, {64*VT}")
    a(f"s_mov_b32 s{SVH+3}, 0x20000")
    a(f"s_mul_i32 s{sT1}, s{sW}, {16*VT}")
    a(f"s_add_u32 s{SV}, s{SVH}, s{sT1}")
    a(f"s_addc_u32 s{SV+1}, s{SVH+1}, 0")
    a(f"s_mov_b32 s{SV+2}, {16*VT}")
    a(f"s_mov_b32 s{SV+3}, 0x20000")
    a(f"s_mov_b32 s{sOffV}, 0")
    a(f"s_mov_b32 s{sOff}, 0")
    for i in range(0, 8, 2):
        a(f"v_mov_b64 v[{PP+8+i}:{PP+9+i}], 0")
    g2_ids(a)
    for k in OPT.get("zq", "").split("+"):
        if k: a(f"s_sleep {k}")
    a(f"s_lshl_b32 s{sT3}, s{sHead}, 9")
    a(f"s_add_u32 s{sT3}, s{sT3}, {FQ}")
    poll(a, "F_pq", f"s{sT3}", 24, True, int(OPT.get("sq", "3")), 3, 0)
    fstamp(a, 9)
    a(f"s_setprio {OPT.get('pp', '1')}")
    a.c("K tile 0 of the head + Q (local tile j = global (w+j)&3)")
    a(f"buffer_load_dwordx4 v[{PP}:{PP+3}], v{vL16}, s[{SKH}:{SKH+3}], 0 offen sc1")
    a(f"buffer_load_dwordx4 v[{PP+4}:{PP+7}], v{vL16}, s[{SKH}:{SKH+3}], 0 offen offset:1024 sc1")
    a(f"s_lshl_b32 s{sT1}, s{sQB}, 14")
    for j in range(4):
        a(f"s_add_u32 s{sT0}, s{sW}, {j}")
        a(f"s_and_b32 s{sT0}, s{sT0}, 3")
        a(f"s_lshl_b32 s{sT0}, s{sT0}, 12")
        a(f"s_add_u32 s{sT0}, s{sT0}, s{sT1}")
        a(f"buffer_load_dwordx4 v[{QF+8*j}:{QF+8*j+3}], v{vL16}, s[{SKH}:{SKH+3}], s{sT0} offen offset:2048 sc1")
        a(f"buffer_load_dwordx4 v[{QF+8*j+4}:{QF+8*j+7}], v{vL16}, s[{SKH}:{SKH+3}], s{sT0} offen offset:3072 sc1")
    for kb in range(NB - 1):
        kvload(a, kb, SKV, SV)
    a(f"s_waitcnt vmcnt({4*(NB-1)})")
    a(f"s_mov_b64 exec, s[{sUP}:{sUP+1}]")
    for qt in range(4):
        a(f"v_mov_b64 v[{QF+8*qt+6}:{QF+8*qt+7}], 0")
    a("s_mov_b64 exec, -1")
    a("s_nop 1")
    for qt in range(4):
        a(mf(OO + 16 * qt, PP, QF + 8 * qt, None))
        a(mf(OO + 16 * qt, PP + 4, QF + 8 * qt + 4, OO + 16 * qt))
    a.c("shift = largest score among keys 4..7 (upper lanes hold them), cut to bf16; checked after the loop")
    a("s_nop 5")
    a(f"s_mov_b64 exec, s[{sUP}:{sUP+1}]")
    for qt in range(4):
        o = OO + 16 * qt
        a(f"v_max3_f32 v{vT+qt}, v{o}, v{o+1}, v{o+2}")
        a(f"v_max_f32 v{vT+qt}, v{vT+qt}, v{o+3}")
        a(f"v_lshrrev_b32 v{vT+qt}, 16, v{vT+qt}")
        a(f"v_xor_b32 v{QF+8*qt+6}, 0x8000, v{vT+qt}")
    a("s_mov_b64 exec, -1")
    a(f"s_waitcnt vmcnt({4*(NB-2)})")
    a(mf(SS, KV, QF, None))
    a(mf(SS, KV + 4, QF + 4, SS))
    a.c("O = 0 (P[1] is zero)")
    for qt in range(4):
        a(mf(OO + 16 * qt, PP + 8, PP + 8, None))
    a(f"s_mov_b32 s{sCnt}, {16//NB}")
    a("s_nop 6")
    a(f"s_setprio {OPT.get('prio', '1')}")
    fstamp(a, 10)
    a.label("F_aloop")
    for kb in range(NB):
        for qt in range(4):
            n = kb * 4 + qt
            cur, nxt = SS + 16 * (n & 1), SS + 16 * ((n + 1) & 1)
            pc, pp = PP + 8 * (n & 1), PP + 8 * ((n + 1) & 1)
            nkb, nqt = (kb, qt + 1) if qt < 3 else ((kb + 1) % NB, 0)
            pkb, pqt = (kb, qt - 1) if qt > 0 else ((kb - 1) % NB, 3)
            if qt == 3:
                a(f"s_waitcnt vmcnt({4*(NB-2)})")
            K = KV + 16 * nkb
            V = KV + 16 * pkb + 8
            O = OO + 16 * pqt
            mm = [mf(nxt, K, QF + 8 * nqt, None), mf(nxt, K + 4, QF + 8 * nqt + 4, nxt),
                  mf(O, V, pp, O), mf(O, V + 4, pp + 4, O)]
            for g in range(4):
                a(mm[g])
                if g == 3 and qt == 0:
                    kvload(a, pkb, SKV, SV)
                if g == 3 and n == 4 * NB - 1:
                    a(f"s_sub_u32 s{sCnt}, s{sCnt}, 1")
                    a(f"s_cmp_lg_u32 s{sCnt}, 0")
                for l in expcvt(cur, pc, g):
                    a(l)
    a("s_cbranch_scc1 F_aloop")
    V = KV + 16 * (NB - 1) + 8
    O = OO + 48
    a("s_nop 0")
    a(mf(O, V, PP + 8, O))
    a(mf(O, V + 4, PP + 12, O))
    fstamp(a, 1)
    a.c("the B waves are done with the phase-1 LDS image")
    ldswait(a, "F_bw1", 1, 4)
    a.c("send local tiles 1..3 to waves (w+j)&3, inbox slot j-1")
    for j in range(1, 4):
        a(f"s_add_u32 s{sT0}, s{sW}, {j}")
        a(f"s_and_b32 s{sT0}, s{sT0}, 3")
        a(f"s_mul_i32 s{sT0}, s{sT0}, {INB}")
        a(f"v_add_u32 v{vT+j}, s{sT0}, v{vL16}")
    for j in range(1, 4):
        for aa in range(4):
            a(f"ds_write_b128 v{vT+j}, v[{OO+16*j+4*aa}:{OO+16*j+4*aa+3}] offset:{4096*(j-1)+1024*aa}")
    ldsadd(a, 6)
    a(f"s_mul_i32 s{sT0}, s{sW}, {INB}")
    a(f"v_add_u32 v{vT}, s{sT0}, v{vL16}")
    a(f"s_lshl_b32 s{sT3}, s{sQB}, 2")
    a(f"s_add_u32 s{sT3}, s{sT3}, s{sW}")
    a(f"s_lshl_b32 s{sT3}, s{sT3}, 4")
    a(f"s_add_u32 s{sT3}, s{sT3}, s{sHead}")
    a(f"s_lshl_b32 s{sT3}, s{sT3}, 11")
    a(f"s_add_u32 s{sT3}, s{sT3}, {WS_O}")
    ldswait(a, "F_iw", 6, 4, 1)
    fstamp(a, 2)
    R = OO
    for j in range(1, 4):
        for aa in range(4):
            a(f"ds_read_b128 v[{OO+16*j+4*aa}:{OO+16*j+4*aa+3}], v{vT} offset:{4096*(j-1)+1024*aa}")
    for j in range(1, 4):
        a(f"s_waitcnt lgkmcnt({4*(3-j)})")
        for i in range(16): a(f"v_add_f32 v{R+i}, v{R+i}, v{OO+16*j+i}")
    a.c("check of the stand-in shift: every value finite and below 2^100, row sum above 2^-60; else redo with the true row max")
    a(f"v_add_f32 v{vT+2}, abs(v{R}), abs(v{R+1})")
    for i in range(2, 16):
        a(f"v_add_f32 v{vT+2}, v{vT+2}, abs(v{R+i})")
    a(f"v_cmp_lt_f32 vcc, {fhex(2.0**-60)}, v{R+12}")
    a(f"s_mov_b32 s{sT0}, vcc_hi")
    a(f"v_cmp_gt_f32 vcc, {fhex(2.0**100)}, v{vT+2}")
    a(f"s_and_b32 vcc_hi, vcc_hi, s{sT0}")
    a("s_cmp_eq_u64 vcc, -1")
    a("s_cbranch_scc0 F_slow")
    a.label("F_fin")
    a(f"v_mov_b32 v{vT+2}, v{R+12}")
    a(f"v_mov_b32 v{vT+3}, v{R+12}")
    a("s_nop 1")
    a(f"v_permlane32_swap_b32 v{vT+2}, v{vT+3}")
    a("s_nop 0")
    a(f"v_rcp_f32 v{vT+3}, v{vT+3}")
    a(f"s_mov_b64 exec, s[{sUP}:{sUP+1}]")
    a(f"v_mov_b64 v[{R+12}:{R+13}], 0")
    a(f"v_mov_b64 v[{R+14}:{R+15}], 0")
    a("s_mov_b64 exec, -1")
    for i in range(16): a(f"v_mul_f32 v{R+i}, v{R+i}, v{vT+3}")
    for i in range(8): a(f"v_cvt_pk_bf16_f32 v{SS+i}, v{R+2*i}, v{R+2*i+1}")
    a(f"buffer_store_dwordx4 v[{SS}:{SS+3}], v{vL16}, s[{SWS}:{SWS+3}], s{sT3} offen sc1")
    a(f"buffer_store_dwordx4 v[{SS+4}:{SS+7}], v{vL16}, s[{SWS}:{SWS+3}], s{sT3} offen offset:1024 sc1")
    a(f"s_lshl_b32 s{sT3}, s{sQB}, 7")
    a(f"s_lshl_b32 s{sT0}, s{sHead}, 2")
    a(f"s_add_u32 s{sT3}, s{sT3}, s{sT0}")
    a(f"s_add_u32 s{sT3}, s{sT3}, {FO}")
    a.c("work for the tail while the stores fly")
    g2_tr(a)
    a(f"v_mov_b64 v[{WFG}:{WFG+1}], 0")
    a(f"v_mov_b64 v[{WFG+2}:{WFG+3}], 0")
    a("s_nop 1")
    for k in range(2):
        a(mf(GACC + 16 * k, WFG, WFG, None))
    signal(a, "F_so", 2, sT3)
    fstamp(a, 3)
    a(f"s_cmp_ge_u32 s{sNT}, 7")
    a("s_cbranch_scc1 F_end")
    a("s_branch F_tail")
    a.label("F_slow")
    S2 = SS + 16
    a(f"v_mov_b32 v{vT+2}, 0xff800000")
    a(f"s_mov_b32 s{sOff}, 0")
    a(f"s_mov_b32 s{sOffV}, 0")
    a(f"s_mov_b64 exec, s[{sUP}:{sUP+1}]")
    a(f"v_mov_b64 v[{QF+6}:{QF+7}], 0")
    a("s_mov_b64 exec, -1")
    a.label("F_sl1")
    kvload(a, 0, SKH, SVH)
    a("s_waitcnt vmcnt(0)")
    a(mf(S2, KV, QF, None))
    a(mf(S2, KV + 4, QF + 4, S2))
    a("s_nop 15")
    maxtree(a, S2, vT + 2, first=False)
    a(f"s_cmp_lt_u32 s{sOff}, {HS}")
    a("s_cbranch_scc1 F_sl1")
    setpads(a, [vT + 2], [QF], vT + 4)
    for i in range(0, 16, 2): a(f"v_mov_b64 v[{R+i}:{R+i+1}], 0")
    a(f"s_mov_b32 s{sOff}, 0")
    a(f"s_mov_b32 s{sOffV}, 0")
    a.label("F_sl2")
    kvload(a, 0, SKH, SVH)
    a("s_waitcnt vmcnt(0)")
    a(mf(S2, KV, QF, None))
    a(mf(S2, KV + 4, QF + 4, S2))
    a("s_nop 15")
    for g in range(4):
        for l in expcvt(S2, PP, g): a(l)
    a("s_nop 1")
    a(mf(R, KV + 8, PP, R))
    a(mf(R, KV + 12, PP + 4, R))
    a(f"s_cmp_lt_u32 s{sOff}, {HS}")
    a("s_cbranch_scc1 F_sl2")
    a("s_nop 15")
    a("s_branch F_fin")

def g2h(a):
    a.label("F_g2")
    a("s_setprio 0")
    fstamp(a, 8)
    g2_ids(a)
    a(f"s_cmp_ge_u32 s{sNT}, 7")
    a("s_cbranch_scc1 F_end")
    a(f"s_load_dwordx2 s[{SWD}:{SWD+1}], s[0:1], 48")
    a(f"s_load_dwordx2 s[{SXO}:{SXO+1}], s[0:1], 16")
    a(f"s_lshl_b32 s{sRing}, s{sTT}, 14")
    a(f"s_add_u32 s{sRing}, s{sRing}, {WOB}")
    g2_tr(a)
    a(f"v_add_u32 v{vTr0+2}, s{sRing}, v{vTr0}")
    a(f"v_add_u32 v{vTr1+2}, s{sRing}, v{vTr1}")
    t1, t2, i_ = vT, vT + 1, vT + 2
    a(f"v_bfe_u32 v{t1}, v{vLane}, 4, 1")
    a(f"v_lshlrev_b32 v{t1}, 2, v{t1}")
    a(f"v_and_b32 v{t2}, 7, v{vLane}")
    a(f"v_xor_b32 v{t1}, v{t1}, v{t2}")
    a(f"v_lshrrev_b32 v{i_}, 3, v{vLane}")
    a(f"v_mul_u32_u24 v{vOff}, 896, v{i_}")
    a(f"v_lshl_add_u32 v{vOff}, v{t1}, 4, v{vOff}")
    for i in range(1, 4):
        a(f"v_add_u32 v{vOff+i}, {i*(7168-1024)}, v{vOff}")
    a(f"v_mov_b64 v[{WFG}:{WFG+1}], 0")
    a(f"v_mov_b64 v[{WFG+2}:{WFG+3}], 0")
    a(f"s_lshl_b32 s{sT2}, s{sNT}, 7")
    a(f"s_mul_i32 s{sWoff}, s{sTT}, {14*32*896}")
    a(f"s_add_u32 s{sWoff}, s{sWoff}, s{sT2}")
    for k in range(4):
        a(mf(GACC + 16 * k, WFG, WFG, None))
    a.c("local token tile 0 = tile w&1")
    a(f"s_mul_i32 s{sA0}, s{sMT}, {2*112*1024}")
    a(f"s_mul_i32 s{sT1}, s{sTT}, {28*1024}")
    a(f"s_add_u32 s{sA0}, s{sA0}, s{sT1}")
    a(f"s_add_u32 s{sA0}, s{sA0}, {WS_H}")
    a(f"s_add_u32 s{sT1}, s{sA0}, {112*1024}")
    a(f"s_bitcmp1_b32 s{sW}, 0")
    a(f"s_cselect_b32 s{sA1}, s{sA0}, s{sT1}")
    a(f"s_cselect_b32 s{sA0}, s{sT1}, s{sA0}")
    a(f"s_mov_b32 s{SWD+2}, {1792*896}")
    a(f"s_mov_b32 s{SWD+3}, 0x20000")
    a(f"s_movk_i32 s{sStep}, {32*896}")
    a(f"s_lshr_b32 s{sT3}, s{sMT}, 1")
    a(f"s_lshl_b32 s{sT3}, s{sT3}, 7")
    a(f"s_add_u32 s{sT3}, s{sT3}, {FH}")
    ldswait(a, "F_bw2", 1, 4)
    a(f"s_and_b32 s{SWD+1}, s{SWD+1}, 0xffff")
    for u in range(4): wdma(a, (u + 2) % 4)
    poll(a, "F_ph", f"s{sT3}", 14, False, int(OPT.get("sh", "4")), 4, 4)
    fstamp(a, 9)
    for u in range(4): actld(a, (u + 2) % 4)
    a(f"s_mov_b32 s{sCnt}, 4")
    a("s_waitcnt vmcnt(4)")
    a("s_branch F_gmid")
    a.label("F_gloop")
    a(f"s_cmp_lg_u32 s{sCnt}, 1")
    a("s_cbranch_scc1 F_gl2")
    a.c("last round: the weight stream continues with wo (heads 4tt..4tt+3), no more activations")
    a(f"s_mov_b32 s{SWD}, s{SXO}")
    a(f"s_and_b32 s{SWD+1}, s{SXO+1}, 0xffff")
    a(f"s_mov_b32 s{SWD+2}, {448*896}")
    a(f"s_movk_i32 s{sStep}, {28*896}")
    a(f"s_mul_i32 s{sWoff}, s{sTT}, {4*28*896}")
    a(f"s_add_u32 s{sWoff}, s{sWoff}, s{sT2}")
    a(f"s_mov_b32 s{sA0}, 0x40000000")
    a(f"s_mov_b32 s{sA1}, 0x40000000")
    a.label("F_gl2")
    for st in range(4):
        if st == 2: a.label("F_gmid")
        a("s_waitcnt vmcnt(24)")
        unit(a, st)
        actld(a, st)
        wdma(a, st)
    a(f"s_sub_u32 s{sCnt}, s{sCnt}, 1")
    a(f"s_cmp_lg_u32 s{sCnt}, 0")
    a("s_cbranch_scc1 F_gloop")
    fstamp(a, 10)
    a.c("pair exchange: the other token tile goes to wave w^1")
    a(f"s_xor_b32 s{sT0}, s{sTT}, 1")
    a(f"s_lshl_b32 s{sT0}, s{sT0}, 13")
    a(f"s_add_u32 s{sT0}, s{sT0}, {XCH}")
    a(f"v_add_u32 v{vT}, s{sT0}, v{vL16}")
    a(f"v_xor_b32 v{vT+1}, 0x2000, v{vT}")
    for i in range(8):
        a(f"ds_write_b128 v{vT}, v[{GACC+32+4*i}:{GACC+32+4*i+3}] offset:{1024*i}")
    ldsadd(a, 7)
    ldswait(a, "F_xw", 7, 4)
    for i in range(8):
        a(f"ds_read_b128 v[{GACC+32+4*i}:{GACC+32+4*i+3}], v{vT+1} offset:{1024*i}")
    a("s_waitcnt vmcnt(0) lgkmcnt(0)")
    ldsadd(a, 8)
    for i in range(32):
        a(f"v_add_f32 v{GACC+i}, v{GACC+i}, v{GACC+32+i}")

def tail(a):
    a.label("F_tail")
    a(f"s_load_dwordx2 s[{SXO}:{SXO+1}], s[0:1], 0")
    a(f"s_load_dwordx2 s[{SWD}:{SWD+1}], s[0:1], 56")
    a(f"s_lshr_b32 s{sT3}, s{sMT}, 1")
    a(f"s_lshl_b32 s{sT3}, s{sT3}, 7")
    a(f"s_add_u32 s{sT3}, s{sT3}, {FO}")
    a.c("token tile 2mt + (w&1); heads 4kq..4kq+3")
    a(f"s_and_b32 s{sT2}, s{sW}, 1")
    a(f"s_lshl_b32 s{sT0}, s{sMT}, 1")
    a(f"s_add_u32 s{sT2}, s{sT2}, s{sT0}")
    a(f"s_lshl_b32 s{sA0}, s{sT2}, 15")
    a(f"s_lshl_b32 s{sT0}, s{sKQ}, 13")
    a(f"s_add_u32 s{sA0}, s{sA0}, s{sT0}")
    a(f"s_add_u32 s{sA0}, s{sA0}, {WS_O}")
    a(f"s_add_u32 s{sA1}, s{sA0}, 4096")
    a(f"s_mul_i32 s{sT2}, s{sT2}, {32*896}")
    a(f"s_lshl_b32 s{sT0}, s{sNT}, 7")
    a(f"s_add_u32 s{sT2}, s{sT2}, s{sT0}")
    a(f"s_lshl_b32 s{sT0}, s{sKQ}, 5")
    a(f"s_add_u32 s{sT2}, s{sT2}, s{sT0}")
    a(f"v_and_b32 v{vXo}, 31, v{vLane}")
    a(f"v_mul_u32_u24 v{vXo}, 896, v{vXo}")
    a(f"v_lshl_add_u32 v{vXo+1}, v{vH}, 3, v{vXo}")
    a(f"v_lshl_add_u32 v{vXo}, v{vH}, 4, v{vXo}")
    a(f"s_lshl_b32 s{sT0}, s{sKQ}, 14")
    a(f"s_add_u32 s{sT0}, s{sT0}, {WOB}")
    a(f"v_add_u32 v{vTr0}, s{sT0}, v{vTr0}")
    a(f"v_add_u32 v{vTr1}, s{sT0}, v{vTr1}")
    a(f"s_mov_b32 s{SXO+2}, {2048*896}")
    a(f"s_mov_b32 s{SXO+3}, 0x20000")
    a(f"s_mov_b32 s{SWD+2}, {2048*896}")
    a(f"s_mov_b32 s{SWD+3}, 0x20000")
    ldswait(a, "F_ww", 8, 4)
    a(f"s_and_b32 s{SXO+1}, s{SXO+1}, 0xffff")
    a(f"s_and_b32 s{SWD+1}, s{SWD+1}, 0xffff")
    a(f"buffer_load_dwordx2 v[{XRES}:{XRES+1}], v{vXo+1}, s[{SXO}:{SXO+3}], s{sT2} offen")
    a(f"buffer_load_dwordx2 v[{XRES+2}:{XRES+3}], v{vXo+1}, s[{SXO}:{SXO+3}], s{sT2} offen offset:16")
    for hd in range(4):
        for s_ in range(2):
            for tau in range(2):
                for t in range(2):
                    d = TW + 16 * hd + 8 * s_ + 4 * tau + 2 * t
                    a(f"ds_read_b64_tr_b16 v[{d}:{d+1}], v{vTr0 if tau == 0 else vTr1} offset:{hd*4096+s_*2048+t*1024}")
    a.c("final inbox addresses: local quarter i -> wave w ^ (2i), slot i-1")
    for i in range(1, 4):
        a(f"s_xor_b32 s{sT0}, s{sW}, {2*i}")
        a(f"s_mul_i32 s{sT0}, s{sT0}, 6144")
        a(f"v_add_u32 v{vOff+i}, s{sT0}, v{vL16}")
    a(f"s_mul_i32 s{sT0}, s{sW}, 6144")
    a(f"v_add_u32 v{vOff}, s{sT0}, v{vL16}")
    ldswait(a, "F_ow", 2, 4)
    poll(a, "F_po", f"s{sT3}", 16, False, int(OPT.get("so", "2")), 5, 4)
    fstamp(a, 4)
    for k in range(8):
        a(f"buffer_load_dwordx4 v[{ACT+4*k}:{ACT+4*k+3}], v{vL16}, s[{SWS}:{SWS+3}], s{sA0 if k < 4 else sA1} offen offset:{1024*(k&3)} sc1")
    R = 64
    a("s_waitcnt vmcnt(8)")
    for i in range(4):
        a(f"v_lshlrev_b32 v{R+2*i}, 16, v{XRES+i}")
        a(f"v_and_b32 v{R+2*i+1}, s{sMask}, v{XRES+i}")
    for k in range(8):
        a(f"s_waitcnt vmcnt({7-k})")
        for tau in range(2):
            acc = GACC + 16 * tau
            a(mf(acc, TW + 8 * k + 4 * tau, ACT + 4 * k, acc))
    fstamp(a, 5)
    a("s_nop 10")
    for i in range(1, 4):
        for c in range(2):
            r = GACC + 8 * i + 4 * c
            a(f"ds_write_b128 v{vOff+i}, v[{r}:{r+3}] offset:{2048*(i-1)+1024*c}")
    for i in range(8): a(f"v_add_f32 v{R+i}, v{R+i}, v{GACC+i}")
    a("s_waitcnt lgkmcnt(0)")
    a("s_barrier")
    D = GACC + 32
    for k in range(6):
        a(f"ds_read_b128 v[{D+4*k}:{D+4*k+3}], v{vOff} offset:{1024*k}")
    for i in range(3):
        a(f"s_waitcnt lgkmcnt({4-2*i})")
        for k in range(8): a(f"v_add_f32 v{R+k}, v{R+k}, v{D+8*i+k}")
    for i in range(4):
        a(f"v_cvt_pk_bf16_f32 v{XRES+i}, v{R+2*i}, v{R+2*i+1}")
    a("s_nop 1")
    a(f"v_permlane32_swap_b32 v{XRES}, v{XRES+2}")
    a(f"v_permlane32_swap_b32 v{XRES+1}, v{XRES+3}")
    a(f"buffer_store_dwordx4 v[{XRES}:{XRES+3}], v{vXo}, s[{SWD}:{SWD+3}], s{sT2} offen")
    a.label("F_end")
    fstamp(a, 7)
    a.stamp_flush(11, 0, sW, 8)
    a("s_endpgm")

def gen_fused(name):
    a = Asm()
    a("s_cmp_ge_u32 s2, 256")
    a("s_cbranch_scc1 F_exit")
    if OPT.get("scr") == "1":
        a("s_lshl_b32 s3, s2, 3")
        a("s_lshr_b32 s2, s2, 5")
        a("s_or_b32 s2, s2, s3")
        a("s_and_b32 s2, s2, 255")
    if OPT.get("scr") == "2":
        for sh, mul in ((3, 0x35), (4, 0x4d), (3, 1)):
            a(f"s_lshr_b32 s3, s2, {sh}")
            a("s_xor_b32 s2, s2, s3")
            a(f"s_mul_i32 s2, s2, {mul}")
            a("s_and_b32 s2, s2, 255")
    def endA(a):
        a(f"v_mov_b32 v{vZ}, 0")
        a.c("flag lanes: lane l<10 -> virtual head vh0 + (l>>1), part l&1 (0: holds its first column, 1: its last)")
        vh, col, ad = vT + 4, vT + 5, vT + 6
        a(f"s_mul_i32 s{sT2}, s{sCG}, 96")
        a(f"s_mul_i32 s{sT0}, s{sT2}, 2341")
        a(f"s_lshr_b32 s{sT0}, s{sT0}, 16")
        a(f"v_lshrrev_b32 v{vh}, 1, v{vLane}")
        a(f"v_add_u32 v{vh}, s{sT0}, v{vh}")
        a(f"v_and_b32 v{ad}, 1, v{vLane}")
        a(f"v_mul_u32_u24 v{col}, 27, v{ad}")
        a(f"v_mad_u32_u24 v{col}, v{vh}, 28, v{col}")
        a(f"v_subrev_u32 v{col}, s{sT2}, v{col}")
        a(f"v_cmp_gt_u32 vcc, 96, v{col}")
        a(f"v_lshlrev_b32 v{ad}, 6, v{ad}")
        a(f"v_lshrrev_b32 v{col}, 4, v{vh}")
        a(f"v_lshl_add_u32 v{ad}, v{col}, 7, v{ad}")
        a(f"v_and_b32 v{col}, 15, v{vh}")
        a(f"v_lshl_add_u32 v{ad}, v{col}, 9, v{ad}")
        a(f"v_cndmask_b32 v{ad}, -1, v{ad}, vcc")
        a(f"s_lshl_b32 s{sT3}, s{sRB}, 2")
        a(f"s_add_u32 s{sT3}, s{sT3}, {FQ}")
        xstamp(a, 3)
        signal(a, "F_sq", 0, sT3, ad)
        fstamp(a, 6)
        attention(a)
    def endB(a):
        xstamp(a, 3)
        a(f"v_mov_b32 v{vZ}, 0")
        a(f"s_lshl_b32 s{sT3}, s{sRB}, 7")
        a(f"s_lshl_b32 s{sT0}, s{sCG}, 2")
        a(f"s_add_u32 s{sT3}, s{sT3}, s{sT0}")
        a(f"s_add_u32 s{sT3}, s{sT3}, {FH}")
        signal(a, "F_sh", 1, sT3)
        g2h(a)
        tail(a)
    def endH(a):
        a.c("helper workgroups: wait for all helpers (flags are cleared by then), then take their roles")
        a(f"v_mov_b32 v{vZ}, 0")
        a.c("touch a slice of w_down / wo")
        a("s_load_dwordx2 s[4:5], s[0:1], 16")
        a("s_load_dwordx2 s[6:7], s[0:1], 48")
        a(f"s_lshl_b32 s{sT0}, s2, 3")
        a(f"s_add_u32 s{sT0}, s{sT0}, s{sW}")
        a(f"v_lshlrev_b32 v{vT+1}, 7, v{vLane}")
        a(f"s_mov_b32 s{SWD+2}, {448*896}")
        a("s_waitcnt lgkmcnt(0)")
        a(f"s_cmp_lt_u32 s{sT0}, 196")
        a(f"s_cselect_b32 s{SWD}, s6, s4")
        a(f"s_cselect_b32 s{SWD+1}, s7, s5")
        a(f"s_cselect_b32 s{SWD+2}, {1792*896}, s{SWD+2}")
        a(f"s_cselect_b32 s{sT1}, 0, 196")
        a(f"s_and_b32 s{SWD+1}, s{SWD+1}, 0xffff")
        a(f"s_mov_b32 s{SWD+3}, 0x20000")
        a(f"s_sub_u32 s{sT0}, s{sT0}, s{sT1}")
        a(f"s_lshl_b32 s{sT0}, s{sT0}, 13")
        a(f"buffer_load_dword v{vT+2}, v{vT+1}, s[{SWD}:{SWD+3}], s{sT0} offen")
        a(f"s_mov_b32 s{sT1}, 0x4000")
        a(f"s_cmp_lg_u32 s{sW}, 0")
        a("s_cbranch_scc1 F_hw_ok")
        a.label("F_hw")
        a("s_sleep 32")
        a(f"buffer_load_dword v{vT}, v{vZ}, s[{SDBG}:{SDBG+3}], 0 offen offset:128 sc1")
        a("s_waitcnt vmcnt(0)")
        a(f"v_readfirstlane_b32 s{sT0}, v{vT}")
        a(f"s_cmp_eq_u32 s{sT0}, 1")
        a("s_cbranch_scc1 F_hw_ok")
        a(f"s_sub_u32 s{sT1}, s{sT1}, 1")
        a("s_cbranch_scc0 F_hw")
        a.label("F_hw_ok")
        a("s_barrier")
        a(f"s_cmp_lt_u32 s{sW}, 4")
        a("s_cbranch_scc1 F_att")
        a("s_branch F_g2")
    p1.FUSED = True
    p1.KNAME = name
    p1.gen_p1(a, endA, endB, endH)
    a.label("F_exit")
    a("s_endpgm")
    return kernel_header(name) + a.text(), kernel_desc(name, 256, 64), LDS_F
```

```python
from asmlib import *
from consts import *
import math, os
OPT = dict(kv.split("=") for kv in os.environ.get("OPT", "").split(",") if kv)

XR = 0
FR = 98304
QR = 131072
LDS_P1 = QR + 4 * 6144
SC1 = " sc1"
FUSED = False
KNAME = "k1_kernel"

SX, SWQ, SWA, SWS, SDBG = 16, 20, 24, 28, 56
sW, sRB, sCG, sTT = 32, 33, 34, 35
sOffX, sOffA, sOffQ, sRingA, sRingQ, sCnt = 36, 37, 38, 39, 40, 41
sT0, sT1, sT2, sT3 = 42, 43, 44, 45
sMask, sDelta = 46, 47
sTile, sRingX = 48, 49
sE48 = 50
sColA, sColQ, sRowX, sDq = 52, 53, 54, 55
vLane, vL16, vH, vR, vR2, vFlag = 1, 2, 3, 4, 5, 62
vTr0, vTr1 = 7, 8
vOffA, vOffA2, vOffQ = 9, 10, 11
vT = 12
vSt = 28
vOffQ2 = 40
vXk = 48
vOffX = 52
vZero = 54
WF = 64
XB = 96
XC = 112
RR = 192
ACC = 128

def pstamp(a, i):
    if FUSED and OPT.get("st", "2") == "2" and i != 0:
        return
    if OPT.get("st", "2") == "3" and i not in (0, 6):
        return
    a.stamp(i)

def mf(d, a, b):
    return f"v_mfma_f32_32x32x16_bf16 v[{d}:{d+15}], v[{a}:{a+3}], v[{b}:{b+3}], v[{d}:{d+15}]"

def wreadsA(slot, p):
    return [f"ds_read_b64_tr_b16 v[{WF+24*p+12*k+4*j+2*t}:{WF+24*p+12*k+4*j+2*t+1}], v{vTr0} offset:{slot*6144 + 3072*k + 64*j + 768*t}"
            for k in range(2) for j in range(3) for t in range(2)]

def wreadsB(slot, p):
    return [f"ds_read_b64_tr_b16 v[{WF+16*p+4*j+2*t}:{WF+16*p+4*j+2*t+1}], v{vTr0 if (j&1)==0 else vTr1} offset:{slot*8192 + (j>>1)*2048 + 512*t}"
            for j in range(4) for t in range(2)]

def dmaF(slot):
    g1 = [f"s_add_u32 m0, s{sRingA}, {slot*8192}",
          f"s_nop 0",
          f"buffer_load_dwordx4 v{vOffA}, s[{SWA}:{SWA+3}], s{sOffA} offen lds"]
    g2 = [f"buffer_load_dwordx4 v{vOffA2}, s[{SWA}:{SWA+3}], s{sOffA} offen offset:1024 lds",
          f"s_add_u32 s{sOffA}, s{sOffA}, {16*3584}"]
    return g1, g2

def dmaQ(slot):
    g1 = [f"s_add_u32 m0, s{sRingQ}, {slot*6144}",
          f"s_mov_b64 exec, s[{sE48}:{sE48+1}]",
          f"buffer_load_dwordx4 v{vOffQ}, s[{SWQ}:{SWQ+3}], s{sOffQ} offen lds",
          f"s_mov_b64 exec, -1"]
    g2 = [f"s_mov_b64 exec, s[{sE48}:{sE48+1}]",
          f"buffer_load_dwordx4 v{vOffQ2}, s[{SWQ}:{SWQ+3}], s{sOffQ} offen offset:768 lds",
          f"s_mov_b64 exec, -1",
          f"s_add_u32 s{sOffQ}, s{sOffQ}, {32*2688}"]
    return g1, g2

sSM, sSG = 60, 62
sTab = 14

def dmaX(q):
    x1 = [f"s_mov_b32 m0, s{sRingX}",
          f"s_add_u32 s{sRingX}, s{sRingX}, s{sSM+q}",
          f"buffer_load_dwordx4 v{vOffX}, s[{SX}:{SX+3}], s{sOffX} offen lds"]
    x2 = [f"buffer_load_dwordx4 v{vOffX+1}, s[{SX}:{SX+3}], s{sOffX} offen offset:1024 lds",
          f"s_add_u32 s{sOffX}, s{sOffX}, s{sSG+q}"]
    return x1, x2

def mmA(typ, p):
    out = []
    for k in range(2):
        for j in range(3):
            w, x = WF + 24 * p + 12 * k + 4 * j, XC + 8 * p + 4 * k
            out.append(mf(ACC + 16 * j, w, x) if typ[j] == "Q" else mf(ACC + 16 * j, x, w))
    return out

def mmB(p):
    return [mf(ACC + 64 * th + 16 * j, WF + 16 * p + 4 * j, XB + 8 * p + 4 * th) for j in range(4) for th in range(2)]

AXA = 188
AWA = 176
AXB = 28
AWB = 112

def call(a, cnt, lab, target):
    a(f"s_cmp_lg_u32 s{sCnt}, {cnt}")
    a(f"s_cbranch_scc1 {lab}")
    a(f"s_getpc_b64 s[{sT2}:{sT3}]")
    a(f"s_branch {target}")
    a.label(lab)

def ret(a):
    a(f"s_add_u32 s{sT2}, s{sT2}, 4")
    a(f"s_addc_u32 s{sT3}, s{sT3}, 0")
    a(f"s_setpc_b64 s[{sT2}:{sT3}]")

def loopA(a, typ):
    lab = f"P1_loopA_{typ}"
    a.label(lab)
    for q in range(2):
        p = q
        a("s_waitcnt vmcnt(12) lgkmcnt(0)")
        a("s_barrier")
        mm = mmA(typ, p)
        if q == 0:
            a(f"s_cmp_gt_u32 s{sCnt}, 4")
            a(f"s_cbranch_scc1 {lab}_n0")
            a(f"s_getpc_b64 s[{sT2}:{sT3}]")
            a(f"s_branch P1_side")
            a.label(f"{lab}_n0")
        if q == 1: call(a, 1, f"{lab}_n1", "P1_auxA")
        if q == 0:
            tail = [f"s_cmp_eq_u32 s{sCnt}, 2", f"s_cselect_b32 s{sT1}, {(-5*16384) & 0xffffffff}, s{sRowX}",
                    f"v_add_u32 v{vXk}, s{sT1}, v{vXk}", f"v_add_u32 v{vXk+1}, s{sT1}, v{vXk+1}",
                    f"v_add_u32 v{vXk+2}, s{sT1}, v{vXk+2}", f"v_add_u32 v{vXk+3}, s{sT1}, v{vXk+3}",
                    f"v_add_u32 v{vTr0}, s{sDq}, v{vTr0}"]
        else:
            tail = [f"s_add_u32 s{sRingA}, s{sRingA}, s{sDelta}", f"s_add_u32 s{sRingQ}, s{sRingQ}, s{sDq}",
                    f"s_sub_u32 s{sDelta}, 0, s{sDelta}", f"s_sub_u32 s{sDq}, 0, s{sDq}",
                    f"s_sub_u32 s{sCnt}, s{sCnt}, 1", f"s_cmp_lg_u32 s{sCnt}, 0"]
        ks0 = 2 if q == 0 else 0
        rx = [f"ds_read_b128 v[{XC+8*(p^1)+4*k}:{XC+8*(p^1)+4*k+3}], v{vXk+ks0+k}" for k in range(2)]
        wr_ = wreadsA(1 - q, p ^ 1)
        rd = [rx[0]] + wr_[:6] + [rx[1]] + wr_[6:]
        f1, f2 = dmaF(q)
        q1, q2 = dmaQ(q)
        x1, x2 = dmaX(q)
        seq = f1 + rd[:3] + [mm[0]] + f2 + rd[3:6] + [mm[1]] + q1 + rd[6:9] + [mm[2]] + q2 + rd[9:12] + [mm[3]] + x1 + rd[12:] + [mm[4]] + x2 + tail + [mm[5]]
        for l in seq: a(l)
    a(f"s_cbranch_scc1 {lab}")
    a("s_waitcnt vmcnt(21) lgkmcnt(0)")
    a("s_barrier")
    pair_dma(a, QR, 24)
    a("s_waitcnt vmcnt(10)")
    for j in range(3):
        w, x = AWA + 4 * j, AXA
        a(mf(ACC + 16 * j, w, x) if typ[j] == "Q" else mf(ACC + 16 * j, x, w))

def pair_dma(a, base, ks):
    a(f"s_add_u32 s{sRingX}, s{sColQ}, {base}")
    a(f"s_add_u32 s{sOffX}, s{sColA}, {ks*16*3584}")
    for q in range(2):
        for g in dmaX(q):
            for l in g: a(l)

BTAB = [6, 7, 6, 7, 6, 7, 6, 7, 6, 1, 2, 3, 8, 7, 7]
NBAR = int(OPT.get("nbar", "19"))

def loopB(a):
    lab = "P1_loopB"
    a.label(lab)
    for q in range(2):
        p = q
        a(f"s_bitcmp0_b32 s{sDq}, {q}")
        a(f"s_cbranch_scc1 {lab}_b{q}")
        a("s_barrier")
        a.label(f"{lab}_b{q}")
        mm = mmB(p)
        if q == 0:
            tail = [f"s_bitcmp1_b32 s{sCnt}, 0", f"s_cselect_b32 s{sT1}, 16384, 0",
                    f"s_cmp_eq_u32 s{sCnt}, 3", f"s_cselect_b32 s{sT1}, {(-5*16384) & 0xffffffff}, s{sT1}",
                    f"v_xor_b32 v{vXk}, 64, v{vXk}", f"v_add_u32 v{vXk}, s{sT1}, v{vXk}", f"v_xor_b32 v{vXk+1}, 32, v{vXk}",
                    f"s_lshr_b64 s[{sTab}:{sTab+1}], s[{sTab}:{sTab+1}], 4", f"s_and_b32 s{sT1}, s{sTab}, 15", f"s_lshl_b32 s{sT1}, s{sT1}, 14",
                    f"v_add_u32 v{vTr0}, s{sT1}, v{vOffA}", f"v_add_u32 v{vTr1}, s{sT1}, v{vOffA2}"]
        else:
            tail = [f"s_lshr_b32 s{sDq}, s{sDq}, 2", f"s_sub_u32 s{sCnt}, s{sCnt}, 1", f"s_cmp_lg_u32 s{sCnt}, 0"]
        xa = vXk + 1 if q == 0 else vXk
        rx = [f"ds_read_b128 v[{XB+8*(p^1)+4*th}:{XB+8*(p^1)+4*th+3}], v{xa} offset:{4096*th}" for th in range(2)]
        wr_ = wreadsB(1 - q, p ^ 1)
        rd = [rx[0]] + wr_[:2] + [rx[1]] + wr_[2:]
        nr = [2, 2, 2, 2, 2, 0, 0]
        for g in range(8):
            a(mm[g])
            if g == 0 and q == 1:
                call(a, int(OPT.get("sb", "7")), f"{lab}_n1", "P1_auxB")
            if g < 7:
                for l in rd[:nr[g]]: a(l)
                rd = rd[nr[g]:]
            if g == 5:
                for l in tail[:len(tail)//2]: a(l)
            if g == 6:
                for l in tail[len(tail)//2:]: a(l)
        assert not rd
        a("s_waitcnt lgkmcnt(0)")
    a(f"s_cbranch_scc1 {lab}")
    if OPT.get("st") == "3": a.stamp(2)
    a.c("column-sum words still all-ones were not written yet: load again")
    a(f"s_mov_b32 s{sDq}, 0x2000")
    a.label("P1_bchk")
    a("s_waitcnt vmcnt(0)")
    a(f"v_max3_u32 v{vT+4}, v{AWB}, v{AWB+1}, v{AWB+2}")
    for i in range(3, 15, 2):
        a(f"v_max3_u32 v{vT+4}, v{vT+4}, v{AWB+i}, v{AWB+i+1}")
    a(f"v_max_u32 v{vT+4}, v{vT+4}, v{AWB+15}")
    a(f"v_cmp_eq_u32 vcc, -1, v{vT+4}")
    a("s_cbranch_vccz P1_bok")
    a(f"s_sub_u32 s{sDq}, s{sDq}, 1")
    a("s_cbranch_scc1 P1_bok")
    a("s_sleep 8")
    a(f"s_getpc_b64 s[{sT2}:{sT3}]")
    a("s_branch P1_auxB")
    a("s_branch P1_bchk")
    a.label("P1_bok")
    for j in range(4):
        for th in range(2):
            a(mf(ACC + 64 * th + 16 * j, AWB + 4 * j, AXB + 4 * th))

def waitgo(a, name, which, sleep):
    a(f"s_mov_b32 s{sT1}, 0x4000")
    a.label(f"{name}_l")
    a(f"v_readfirstlane_b32 s{sT0}, v{vFlag+which}")
    a(f"s_cmp_eq_u32 s{sT0}, 1")
    a(f"s_cbranch_scc1 {name}_ok")
    a(f"s_sub_u32 s{sT1}, s{sT1}, 1")
    a(f"s_cbranch_scc1 {name}_ok")
    a(f"buffer_load_dwordx2 v[{vFlag}:{vFlag+1}], v{vZero}, s[{SDBG}:{SDBG+3}], 0 offen offset:128 sc1")
    a(f"s_sleep {sleep}")
    a("s_waitcnt vmcnt(0)")
    a(f"s_branch {name}_l")
    a.label(f"{name}_ok")

def aux_blocks(a):
    a.c("A side jobs at the top of bodies 3..6 (cnt 4..1)")
    a.label("P1_side")
    a(f"s_cmp_lg_u32 s{sCnt}, 4")
    a("s_cbranch_scc1 P1_s3")
    a(f"s_lshl_b32 s{sRingX}, s{sTT}, 12")
    ret(a)
    a.label("P1_s3")
    a(f"s_cmp_lg_u32 s{sCnt}, 3")
    a("s_cbranch_scc1 P1_s2")
    a.c("the x stream now carries gate/up rows: k-steps 18,19 -> x slot 1")
    a(f"s_mov_b64 s[{SX}:{SX+1}], s[{SWA}:{SWA+1}]")
    a(f"s_mov_b32 s{SX+2}, s{SWA+2}")
    a(f"v_mov_b32 v{vOffX}, v{vOffA}")
    a(f"v_mov_b32 v{vOffX+1}, v{vOffA2}")
    a(f"s_mov_b32 s{sSM}, 8192")
    a(f"s_mov_b32 s{sSM+1}, 8192")
    a(f"s_mov_b32 s{sSG}, {16*3584}")
    a(f"s_mov_b32 s{sSG+1}, {16*3584}")
    a(f"s_add_u32 s{sRingX}, s{sColQ}, 16384")
    a(f"s_add_u32 s{sOffX}, s{sColA}, {18*16*3584}")
    ret(a)
    a.label("P1_s2")
    a(f"s_cmp_lg_u32 s{sCnt}, 2")
    a("s_cbranch_scc1 P1_s1")
    a(f"s_mov_b32 s{sRingX}, 0x30000")
    a(f"s_mov_b32 s{sOffX}, 0x40000000")
    a(f"s_mov_b32 s{sRingQ}, 0x34000")
    a(f"s_cmp_lg_u32 s{sW}, 0")
    a("s_cbranch_scc1 P1_s2r")
    a(f"buffer_load_dwordx2 v[{vFlag}:{vFlag+1}], v{vZero}, s[{SDBG}:{SDBG+3}], 0 offen offset:128 sc1")
    a.label("P1_s2r")
    ret(a)
    a.label("P1_s1")
    a(f"s_add_u32 s{sRingX}, s{sColQ}, 32768")
    a(f"s_add_u32 s{sOffX}, s{sColA}, {20*16*3584}")
    a(f"s_cmp_lg_u32 s{sW}, 0")
    a("s_cbranch_scc1 P1_s1r")
    waitgo(a, "P1_g1", 0, 8)
    a.label("P1_s1r")
    ret(a)
    a.label("P1_auxA")
    a(f"v_and_b32 v{vT}, 0x1f0, v{vL16}")
    a(f"v_lshl_add_u32 v{vT+1}, v{vH}, 30, v{vT}")
    a(f"s_lshl_b32 s{sT0}, s{sTile}, 9")
    a(f"s_add_u32 s{sT0}, s{sT0}, {WS_AX}")
    a(f"buffer_load_dwordx4 v[{AXA}:{AXA+3}], v{vT+1}, s[{SWS}:{SWS+3}], s{sT0} offen sc1")
    a(f"s_mul_i32 s{sT0}, s{sCG}, {96*16}")
    a(f"s_add_u32 s{sT0}, s{sT0}, {WS_AW}")
    for j in range(3):
        a(f"buffer_load_dwordx4 v[{AWA+4*j}:{AWA+4*j+3}], v{vT}, s[{SWS}:{SWS+3}], s{sT0} offen offset:{512*j} sc1")
    a(f"s_lshl_b32 s{sT0}, s{sTile}, 7")
    a(f"s_add_u32 s{sT0}, s{sT0}, {WS_AR}")
    a(f"v_lshrrev_b32 v{vT+2}, 2, v{vT}")
    a(f"v_lshlrev_b32 v{vT+3}, 4, v{vH}")
    a(f"buffer_load_dword v{vR}, v{vT+2}, s[{SWS}:{SWS+3}], s{sT0} offen sc1")
    for aa in range(4):
        a(f"buffer_load_dwordx4 v[{RR+4*aa}:{RR+4*aa+3}], v{vT+3}, s[{SWS}:{SWS+3}], s{sT0} offen offset:{32*aa} sc1")
    ret(a)
    a.label("P1_auxB")
    if OPT.get("st") == "3": a("s_memtime s[66:67]")
    a(f"v_and_b32 v{vT}, 0x1f0, v{vL16}")
    a(f"v_lshl_add_u32 v{vT+1}, v{vH}, 30, v{vT}")
    a(f"s_and_b32 s{sT1}, s{sTT}, 1")
    a(f"s_lshl_b32 s{sT1}, s{sT1}, 1")
    a(f"s_lshl_b32 s{sT0}, s{sRB}, 2")
    a(f"s_add_u32 s{sT1}, s{sT1}, s{sT0}")
    a(f"s_lshl_b32 s{sT0}, s{sT1}, 9")
    a(f"s_add_u32 s{sT0}, s{sT0}, {WS_AX}")
    for th in range(2):
        a(f"buffer_load_dwordx4 v[{AXB+4*th}:{AXB+4*th+3}], v{vT+1}, s[{SWS}:{SWS+3}], s{sT0} offen offset:{512*th} sc1")
    a(f"s_lshl_b32 s{sT0}, s{sT1}, 7")
    a(f"s_add_u32 s{sT0}, s{sT0}, {WS_AR}")
    a(f"v_lshrrev_b32 v{vT+2}, 2, v{vT}")
    a(f"buffer_load_dword v{vR}, v{vT+2}, s[{SWS}:{SWS+3}], s{sT0} offen sc1")
    a(f"buffer_load_dword v{vR2}, v{vT+2}, s[{SWS}:{SWS+3}], s{sT0} offen offset:128 sc1")
    a(f"s_lshl_b32 s{sT0}, s{sCG}, 1")
    a(f"s_lshr_b32 s{sT1}, s{sTT}, 1")
    a(f"s_add_u32 s{sT0}, s{sT0}, s{sT1}")
    a(f"s_lshl_b32 s{sT0}, s{sT0}, 10")
    a(f"s_add_u32 s{sT0}, s{sT0}, {WS_AW+AW_G}")
    a(f"s_add_u32 s{sT1}, s{sT0}, {AW_U-AW_G}")
    for j in range(4):
        a(f"buffer_load_dwordx4 v[{AWB+4*j}:{AWB+4*j+3}], v{vT}, s[{SWS}:{SWS+3}], s{sT0 if j < 2 else sT1} offen offset:{512*(j&1)} sc1")
    ret(a)

def epi_B(a):
    c0 = -2.0 * math.sqrt(2.0 / math.pi) * math.log2(math.e)
    c1 = c0 * 0.044715
    a.c("epilogue B: gelu(g)*u")
    if OPT.get("gp", "2") != "0": a(f"s_setprio {OPT.get('gp', '2')}")
    a(f"s_and_b32 s{sT1}, s{sTT}, 1")
    a(f"s_lshl_b32 s{sT1}, s{sT1}, 1")
    a(f"s_lshl_b32 s{sT2}, s{sRB}, 2")
    a(f"s_add_u32 s{sT1}, s{sT1}, s{sT2}")
    a(f"s_mul_i32 s{sT1}, s{sT1}, 112")
    a(f"s_lshl_b32 s{sT2}, s{sCG}, 3")
    a(f"s_add_u32 s{sT1}, s{sT1}, s{sT2}")
    a(f"s_lshr_b32 s{sT2}, s{sTT}, 1")
    a(f"s_lshl_b32 s{sT2}, s{sT2}, 2")
    a(f"s_add_u32 s{sT1}, s{sT1}, s{sT2}")
    a(f"s_lshl_b32 s{sT1}, s{sT1}, 10")
    a(f"s_add_u32 s{sT1}, s{sT1}, {WS_H}")
    a(f"s_add_u32 s{sT2}, s{sT1}, {112*1024}")
    KC = 28
    for th in range(2):
        k0, k1, ir2 = KC + 6 * th, KC + 6 * th + 2, KC + 6 * th + 4
        r = vR if th == 0 else vR2
        a(f"v_mul_f32 v{ir2}, v{r}, v{r}")
        a(f"v_mul_f32 v{k0}, {fhex(c0)}, v{r}")
        a(f"v_mul_f32 v{k1}, v{ir2}, v{r}")
        a(f"v_mul_f32 v{k1}, {fhex(c1)}, v{k1}")
        a(f"v_rcp_f32 v{ir2}, v{ir2}")
        a(f"v_mov_b32 v{k0+1}, v{k0}")
        a(f"v_mov_b32 v{k1+1}, v{k1}")
        a(f"v_mov_b32 v{ir2+1}, v{ir2}")
    T = vT
    pr = lambda r: f"v[{r}:{r+1}]"
    for th in range(2):
        k0, k1, ir2 = KC + 6 * th, KC + 6 * th + 2, KC + 6 * th + 4
        for p in range(2):
            G = ACC + 64 * th + 16 * p
            U = G + 32
            out = WF + 8 * (2 * th + p)
            for i0 in range(0, 16, 8):
                for k in range(0, 8, 2): a(f"v_pk_mul_f32 {pr(T+k)}, {pr(G+i0+k)}, {pr(G+i0+k)}")
                for k in range(0, 8, 2): a(f"v_pk_fma_f32 {pr(T+k)}, {pr(T+k)}, {pr(k1)}, {pr(k0)}")
                for k in range(0, 8, 2): a(f"v_pk_mul_f32 {pr(T+k)}, {pr(T+k)}, {pr(G+i0+k)}")
                for k in range(8): a(f"v_exp_f32 v{T+k}, v{T+k}")
                for k in range(0, 8, 2): a(f"v_pk_mul_f32 {pr(U+i0+k)}, {pr(U+i0+k)}, {pr(G+i0+k)}")
                for k in range(0, 8, 2): a(f"v_pk_fma_f32 {pr(T+k)}, {pr(T+k)}, {pr(ir2)}, {pr(ir2)}")
                for k in range(8): a(f"v_rcp_f32 v{T+k}, v{T+k}")
                a("s_nop 0")
                for k in range(0, 8, 2): a(f"v_pk_mul_f32 {pr(U+i0+k)}, {pr(U+i0+k)}, {pr(T+k)}")
                for k in range(4): a(f"v_cvt_pk_bf16_f32 v{out+i0//2+k}, v{U+i0+2*k}, v{U+i0+2*k+1}")
                s = i0 // 8
                so = sT1 if th == 0 else sT2
                a(f"buffer_store_dwordx4 v[{out+4*s}:{out+4*s+3}], v{vL16}, s[{SWS}:{SWS+3}], s{so} offen offset:{(2*p+s)*1024}{STF()}")

def STF():
    return SC1 if OPT.get("sc1", "1") == "1" else ""

def epi_A(a):
    a.c("epilogue A")
    a(f"s_mul_i32 s{sT0}, s{sCG}, 3")
    for j in range(3):
        a(f"s_cmp_lt_u32 s{sT0}, {14-j}")
        a(f"s_cselect_b32 s{sT1}, {fhex(QSCALE)}, 1.0")
        a(f"v_mul_f32 v{vT+6+2*j}, s{sT1}, v{vR}")
        a(f"v_mul_f32 v{vT+7+2*j}, s{sT1}, v{vR}")
    P0, P1 = vT + 4, vT + 5
    a(f"v_mov_b32 v{P0}, 0x3f803f80")
    a(f"v_mov_b32 v{P1}, 0x00003f80")
    a(f"s_mul_i32 s{sT2}, s{sTile}, {VT}")
    a(f"s_lshl_b32 s{sT3}, s{sT0}, 9")
    a(f"s_add_u32 s{sT2}, s{sT2}, s{sT3}")
    a(f"s_add_u32 s{sT2}, s{sT2}, {WS_V - 28*512}")
    a(f"s_add_u32 s{sT3}, s{sT2}, {VT//2}")
    for j in range(3):
        A = ACC + 16 * j
        out = WF + 12 * j
        a(f"s_cmp_ge_u32 s{sT0}, {28-j}")
        a(f"s_cbranch_scc1 P1_eV{j}")
        for i in range(0, 16, 2):
            a(f"v_pk_mul_f32 v[{A+i}:{A+i+1}], v[{A+i}:{A+i+1}], v[{vT+6+2*j}:{vT+7+2*j}]")
        for i in range(8):
            a(f"v_cvt_pk_bf16_f32 v{out+6*(i>>2)+(i&3)}, v{A+2*i}, v{A+2*i+1}")
        for pp in range(2):
            a(f"v_mov_b64 v[{out+6*pp+4}:{out+6*pp+5}], v[{P0}:{P1}]")
            a(f"v_cmp_gt_i32 s[{4+2*pp}:{5+2*pp}], 0, v{vSt+6+2*j+pp}")
        for pp in range(2):
            o = out + 6 * pp
            a(f"v_permlane32_swap_b32 v{o}, v{o+2}")
            a(f"v_permlane32_swap_b32 v{o+1}, v{o+3}")
        if j == 0: bar15(a)
        for pp in range(2):
            o = out + 6 * pp
            a(f"buffer_store_dwordx4 v[{o+2}:{o+5}], v{vSt+6+2*j+pp}, s[{SWS}:{SWS+3}], 0 offen{STF()}")
        a("s_nop 0")
        for pp in range(2):
            o = out + 6 * pp
            a(f"v_cndmask_b32 v{o+2}, v{P0}, v{o+2}, s[{4+2*pp}:{5+2*pp}]")
            a(f"v_cndmask_b32 v{o+3}, v{P1}, v{o+3}, s[{4+2*pp}:{5+2*pp}]")
        for pp in range(2):
            o = out + 6 * pp
            a(f"buffer_store_dwordx4 v[{o}:{o+3}], v{vSt+2*j+pp}, s[{SWS}:{SWS+3}], 0 offen{STF()}")
        if j == 1: a("s_waitcnt vmcnt(8)")
        a(f"s_branch P1_eN{j}")
        a.label(f"P1_eV{j}")
        for i in range(0, 16, 2):
            a(f"v_pk_mul_f32 v[{A+i}:{A+i+1}], v[{A+i}:{A+i+1}], v[{RR+i}:{RR+i+1}]")
        for i in range(8):
            a(f"v_cvt_pk_bf16_f32 v{out+i}, v{A+2*i}, v{A+2*i+1}")
        if j == 0: bar15(a)
        for s in range(2):
            a(f"buffer_store_dwordx4 v[{out+4*s}:{out+4*s+3}], v{vT+12}, s[{SWS}:{SWS+3}], s{sT2+s} offen offset:{512*j}{STF()}")
        if j == 1: a("s_waitcnt vmcnt(4)")
        a.label(f"P1_eN{j}")
        if j == 1:
            if OPT.get("st") == "3": a.stamp(4)
            a("s_barrier")
            if OPT.get("st") == "3": a.stamp(5)

def bar15(a):
    a("s_waitcnt vmcnt(4)")
    if OPT.get("st") == "3": a.stamp(1)
    a("s_barrier")
    pair_dma(a, 3 * 16384, 22)
    pair_dma(a, FR + 16384, 26)
    if OPT.get("st") == "3": a.stamp(2)

def split3(a, src, t, o1, o2, o3):
    a(f"v_and_b32 v{o1}, s{sMask}, v{src}")
    a(f"v_sub_f32 v{t}, v{src}, v{o1}")
    a(f"v_and_b32 v{o2}, s{sMask}, v{t}")
    a(f"v_sub_f32 v{t}, v{t}, v{o2}")
    a(f"v_and_b32 v{o3}, s{sMask}, v{t}")

def helper(a):
    sHid, sU, sPass = sCnt, sRingA, sRingQ
    a.label("P1_help")
    a(f"s_lshl_b32 s{sHid}, s{sRB}, 1")
    a(f"s_add_u32 s{sHid}, s{sHid}, s{sCG}")
    a(f"s_sub_u32 s{sHid}, s{sHid}, 14")
    XD = 64
    WD = 128
    a(f"v_mul_u32_u24 v{vT+1}, 896, v{vT+4}")
    a(f"v_lshl_add_u32 v{vT+3}, v{vT+5}, 4, v{vT+1}")
    a(f"s_lshl_b32 s{sTile}, s{sHid}, 3")
    a(f"s_add_u32 s{sTile}, s{sTile}, s{sW}")
    a(f"s_mul_i32 s{sRowX}, s{sTile}, {8*896}")
    for i in range(7):
        a(f"buffer_load_dwordx4 v[{XD+4*i}:{XD+4*i+3}], v{vT+3}, s[{SX}:{SX+3}], s{sRowX} offen offset:{128*i}")
    a.c("unit loads: wave -> 56 rows, lane -> (row lane>>3, chunk lane&7)")
    a(f"s_mov_b32 s{SWA+3}, 0x20000")
    def uload(u):
        a(f"s_add_u32 s{sU}, s{sHid}, {32*u}")
        if u == 0:
            a(f"s_cmp_lt_u32 s{sU}, 21")
            a(f"s_cselect_b32 s{SWA}, s6, s8")
            a(f"s_cselect_b32 s{SWA+1}, s7, s9")
            a(f"s_cselect_b32 s{sT0}, 0, 21")
            a(f"s_movk_i32 s{sT1}, 3584")
            a(f"s_cselect_b32 s{sT1}, 2688, s{sT1}")
        elif u == 1:
            a(f"s_cmp_lt_u32 s{sU}, 49")
            a(f"s_cselect_b32 s{SWA}, s8, s10")
            a(f"s_cselect_b32 s{SWA+1}, s9, s11")
            a(f"s_cselect_b32 s{sT0}, 21, 49")
            a(f"s_movk_i32 s{sT1}, 3584")
        else:
            a(f"s_mov_b64 s[{SWA}:{SWA+1}], s[10:11]")
            a(f"s_movk_i32 s{sT0}, 49")
        a(f"s_and_b32 s{SWA+1}, s{SWA+1}, 0xffff")
        if u < 2:
            a(f"s_mul_i32 s{SWA+2}, s{sT1}, 448")
            a(f"v_mul_u32_u24 v51, s{sT1}, v{vT+4}")
            a(f"v_lshl_add_u32 v51, v{vT+5}, 4, v51")
            if u == 0:
                a(f"s_mul_i32 s{sT3}, s{sW}, 56")
            else:
                a(f"s_sub_u32 s{sT3}, s{sW}, 1")
                a(f"s_lshl_b32 s{sT3}, s{sT3}, 6")
            a(f"s_mul_i32 s{sT3}, s{sT3}, s{sT1}")
            a(f"s_lshl_b32 s{sT2}, s{sT1}, 3")
        else:
            a(f"s_cmp_lt_u32 s{sU}, 77")
            a(f"s_cselect_b32 s{SWA+2}, s{SWA+2}, 0")
        a(f"s_sub_u32 s{sT0}, s{sU}, s{sT0}")
        a(f"s_lshl_b32 s{sT0}, s{sT0}, 7")
        a(f"s_add_u32 s{sOffA}, s{sT3}, s{sT0}")
        n = 7 if u == 0 else 8
        for i in range(n):
            r = WD + 32 * u + 4 * i
            a(f"buffer_load_dwordx4 v[{r}:{r+3}], v51, s[{SWA}:{SWA+3}], s{sOffA} offen")
            if i < n - 1: a(f"s_add_u32 s{sOffA}, s{sOffA}, s{sT2}")
    uload(0)
    a.c("clear this launch's flags: 384 bytes per helper; mark phase 1 of the B waves as done")
    a(f"s_mul_i32 s{sT0}, s{sHid}, 384")
    a(f"s_add_u32 s{sT0}, s{sT0}, {WS_FLAG}")
    a(f"v_lshlrev_b32 v{vT+7}, 4, v0")
    a(f"v_cmp_gt_u32 vcc, 24, v0")
    a(f"v_mov_b32 v{vT+2}, 0x3f803f80")
    a(f"v_mov_b32 v43, 1.0")
    a(f"v_cndmask_b32 v{vT+7}, -1, v{vT+7}, vcc")
    a(f"buffer_store_dwordx4 v[{vT+8}:{vT+11}], v{vT+7}, s[{SWS}:{SWS+3}], s{sT0} offen sc1")
    a.c("wave w < 3 marks the column-sum block of unit hid + 32w as not written")
    a(f"s_lshl_b32 s{sT0}, s{sW}, 5")
    a(f"s_add_u32 s{sT0}, s{sT0}, s{sHid}")
    a(f"s_cmp_lt_u32 s{sT0}, 77")
    a(f"s_cselect_b32 s{sT1}, {WS_AW}, -1")
    a(f"s_cselect_b32 s{sT0}, s{sT0}, 0")
    a(f"s_lshl_b32 s{sT0}, s{sT0}, 10")
    a(f"s_add_u32 s{sOffQ}, s{sT0}, s{sT1}")
    a(f"v_mov_b64 v[92:93], -1")
    a(f"v_mov_b64 v[94:95], -1")
    a(f"buffer_store_dwordx4 v[92:95], v{vL16}, s[{SWS}:{SWS+3}], s{sOffQ} offen sc1")
    pstamp(a, 1)
    a.c("statistics (two pass)")
    S0, S1, ONE0, ONE1, D0, D1 = 40, 41, 42, 43, 44, 45
    a(f"v_mov_b64 v[{S0}:{S1}], 0")
    a(f"v_mov_b32 v{ONE0}, 0x00003f80")
    a("s_waitcnt vmcnt(9)")
    for i in range(28):
        a(f"v_dot2c_f32_bf16 v{S0+(i&1)}, v{XD+i}, v{vT+2}")
    def red8(r):
        a("s_nop 2")
        a(f"v_add_f32 v{r}, v{S0}, v{S1}")
        a("s_nop 1")
        a(f"v_add_f32_dpp v{r}, v{r}, v{r} quad_perm:[1,0,3,2] row_mask:0xf bank_mask:0xf")
        a("s_nop 1")
        a(f"v_add_f32_dpp v{r}, v{r}, v{r} quad_perm:[2,3,0,1] row_mask:0xf bank_mask:0xf")
        a("s_nop 1")
        a(f"v_add_f32_dpp v{r}, v{r}, v{r} row_half_mirror row_mask:0xf bank_mask:0xf")
    NM = 46
    red8(NM)
    a(f"v_mul_f32 v{NM}, {fhex(-1.0/448)}, v{NM}")
    a(f"v_mov_b64 v[{S0}:{S1}], 0")
    DD = 96
    for i0 in range(0, 28, 4):
        for k in range(4):
            a(f"v_dot2_f32_bf16 v{DD+2*k}, v{XD+i0+k}, v{ONE0}, v{NM}")
            a(f"v_dot2_f32_bf16 v{DD+2*k+1}, v{XD+i0+k}, v{ONE1}, v{NM}")
        a("s_nop 1")
        for k in range(8):
            a(f"v_fmac_f32 v{S0+(k&1)}, v{DD+k}, v{DD+k}")
    RS = 47
    red8(RS)
    a(f"v_mov_b32 v{D0}, {fhex(1e-5)}")
    a(f"v_fmac_f32 v{D0}, {fhex(1.0/448)}, v{RS}")
    a(f"v_rsq_f32 v{RS}, v{D0}")
    m1, m2, m3, O = 48, 49, 50, 56
    split3(a, NM, D0, m1, m2, m3)
    a(f"v_lshrrev_b32 v{D0}, 16, v{m1}")
    a(f"v_lshrrev_b32 v{D1}, 16, v{m2}")
    a(f"v_or_b32 v{O}, v{D0}, v{m1}")
    a(f"v_or_b32 v{O+1}, v{D1}, v{m1}")
    a(f"v_or_b32 v{O+2}, v{D1}, v{m3}")
    a(f"v_or_b32 v{O+3}, v{D1}, v{m3}")
    a(f"v_lshlrev_b32 v{D0}, 4, v{vT+4}")
    a(f"v_lshlrev_b32 v{D1}, 2, v{vT+4}")
    a(f"s_lshl_b32 s{sRowX}, s{sTile}, 7")
    a(f"s_add_u32 s{sRowX}, s{sRowX}, {WS_AX}")
    a(f"s_lshl_b32 s{sColQ}, s{sTile}, 5")
    a(f"s_add_u32 s{sColQ}, s{sColQ}, {WS_AR}")
    a("s_mov_b32 exec_lo, 0x01010101")
    a("s_mov_b32 exec_hi, 0x01010101")
    a(f"buffer_store_dwordx4 v[{O}:{O+3}], v{D0}, s[{SWS}:{SWS+3}], s{sRowX} offen sc1")
    a(f"buffer_store_dword v{RS}, v{D1}, s[{SWS}:{SWS+3}], s{sColQ} offen sc1")
    a("s_mov_b64 exec, -1")
    pstamp(a, 2)
    a.c("column sums: per wave partials [unit][wave*8 + row lane][64] in LDS (row pitch 272B)")
    C = 64
    a(f"s_mul_i32 s{sT0}, s{sW}, {8*272}")
    a(f"v_mul_u32_u24 v{vT+6}, 272, v{vT+4}")
    a(f"v_lshl_add_u32 v{vT+6}, v{vT+5}, 5, v{vT+6}")
    a(f"v_add_u32 v{vT+6}, s{sT0}, v{vT+6}")
    a(f"v_lshl_add_u32 v{vT+7}, v{vLane}, 2, s{sT0}")
    def usum(u, wait):
        for k in range(0, 8, 2): a(f"v_mov_b64 v[{C+k}:{C+k+1}], 0")
        a(f"s_waitcnt vmcnt({wait})")
        for i in range(7 if u == 0 else 8):
            for k in range(4):
                a(f"v_dot2c_f32_bf16 v{C+2*k}, v{WD+32*u+4*i+k}, v{ONE0}")
                a(f"v_dot2c_f32_bf16 v{C+2*k+1}, v{WD+32*u+4*i+k}, v{ONE1}")
        a("s_nop 2")
        a(f"ds_write_b128 v{vT+6}, v[{C}:{C+3}]")
        a(f"ds_write_b128 v{vT+6}, v[{C+4}:{C+7}] offset:16")
        a("s_waitcnt lgkmcnt(0)")
        for k in range(4):
            a(f"ds_read2_b32 v[{C+8+2*k}:{C+9+2*k}], v{vT+7} offset0:{136*(k&1)} offset1:{136*(k&1)+68}" if k < 2 else
              f"ds_read2_b32 v[{C+8+2*k}:{C+9+2*k}], v{vT+1} offset0:{136*(k&1)} offset1:{136*(k&1)+68}")
        a("s_waitcnt lgkmcnt(0)")
        for k in range(4): a(f"v_add_f32 v{C+8+k}, v{C+8+k}, v{C+12+k}")
        a(f"v_add_f32 v{C+8}, v{C+8}, v{C+10}")
        a(f"v_add_f32 v{C+9}, v{C+9}, v{C+11}")
        a(f"v_add_f32 v{C+8}, v{C+8}, v{C+9}")
        a(f"ds_write_b32 v{vT+3}, v{C+8} offset:{32768 + 2048*u}")
    a(f"v_add_u32 v{vT+1}, {4*272}, v{vT+7}")
    a(f"v_lshlrev_b32 v{vT+3}, 2, v0")
    def final(name, lo, hi, ubase):
        a("s_waitcnt lgkmcnt(0)")
        a("s_barrier")
        a(f"s_sub_u32 s{sT0}, s{sW}, {lo}")
        a(f"s_cmp_ge_u32 s{sT0}, {hi-lo}")
        a(f"s_cbranch_scc1 {name}_s")
        a(f"s_lshl_b32 s{sT0}, s{sW}, 11")
        a(f"v_lshl_add_u32 v{D1}, v{vLane}, 2, s{sT0}")
        for k in range(4):
            a(f"ds_read2st64_b32 v[{C+8+2*k}:{C+9+2*k}], v{D1} offset0:{128+8*ubase+2*k} offset1:{128+8*ubase+2*k+1}")
        a("s_waitcnt lgkmcnt(0)")
        for k in range(4): a(f"v_add_f32 v{C+8+k}, v{C+8+k}, v{C+12+k}")
        a(f"v_add_f32 v{C+8}, v{C+8}, v{C+10}")
        a(f"v_add_f32 v{C+9}, v{C+9}, v{C+11}")
        a(f"v_add_f32 v{C+8}, v{C+8}, v{C+9}")
        split3(a, C + 8, D0, 84, 85, 86)
        for k in range(3):
            a(f"v_lshrrev_b32 v{87+k}, 16, v{84+k}")
        a(f"v_or_b32 v92, v87, v85")
        a(f"v_or_b32 v93, v87, v86")
        a(f"v_or_b32 v94, v88, v84")
        a(f"v_or_b32 v95, v89, v85")
        a(f"buffer_store_dwordx4 v[92:95], v{vL16}, s[{SWS}:{SWS+3}], s{sOffQ} offen sc1")
        a.label(f"{name}_s")
    def sig(name, cnt_off, go_off, bar=True):
        if bar:
            a("s_barrier")
            a(f"s_cmp_lg_u32 s{sW}, 7")
            a(f"s_cbranch_scc1 {name}_e")
        a(f"v_mov_b32 v{D0}, 1")
        a("s_mov_b64 exec, 1")
        a(f"buffer_atomic_add v{D0}, v{vZero}, s[{SDBG}:{SDBG+3}], 0 offen offset:{cnt_off} sc0 sc1")
        a("s_waitcnt vmcnt(0)")
        a(f"v_readfirstlane_b32 s{sT0}, v{D0}")
        a(f"v_mov_b32 v{D0}, 1")
        a(f"s_cmp_lg_u32 s{sT0}, 31")
        a(f"s_cbranch_scc1 {name}_n")
        a(f"buffer_store_dword v{D0}, v{vZero}, s[{SDBG}:{SDBG+3}], 0 offen offset:{go_off} sc1")
        a.label(f"{name}_n")
        a("s_mov_b64 exec, -1")
        a.label(f"{name}_e")
    usum(0, 2)
    pstamp(a, 3)
    a("s_waitcnt vmcnt(0)")
    final("P1_h1", 0, 1, 0)
    a(f"s_cmp_lg_u32 s{sW}, 0")
    a("s_cbranch_scc1 P1_h1x")
    a(f"ds_write_b32 v{vT+3}, v{vZero} offset:{32768 + 2048}")
    a(f"ds_write_b32 v{vT+3}, v{vZero} offset:{32768 + 4096}")
    a("s_waitcnt vmcnt(0)")
    sig("P1_h1", 0, 128, False)
    a("s_branch P1_h1y")
    a.label("P1_h1x")
    pstamp(a, 5)
    uload(1)
    uload(2)
    usum(1, 8)
    usum(2, 0)
    a.label("P1_h1y")
    pstamp(a, 4)
    final("P1_h2", 1, 3, 0)
    a(f"v_mov_b32 v{D0}, {LDS_P1+4}")
    a(f"v_mov_b32 v{D1}, 4")
    a(f"ds_write_b32 v{D0}, v{D1}")
    pstamp(a, 6)

def gen_p1(a, endA, endB, endH):
    pstamp(a, 0)
    a("s_load_dwordx4 s[4:7], s[0:1], 0")
    a("s_load_dwordx4 s[8:11], s[0:1], 32")
    a("s_load_dwordx4 s[12:15], s[0:1], 64")
    a(f"v_lshrrev_b32 v{vT}, 6, v0")
    a(f"v_and_b32 v{vLane}, 63, v0")
    a(f"v_readfirstlane_b32 s{sW}, v{vT}")
    a(f"v_lshlrev_b32 v{vL16}, 4, v{vLane}")
    a(f"v_lshrrev_b32 v{vH}, 5, v{vLane}")
    a(f"v_mov_b32 v{vZero}, 0")
    a(f"v_mov_b64 v[{vFlag}:{vFlag+1}], 0")
    a.c("pull the code of all phases into L2: waves 5..7 touch 8KB each")
    a(f"s_getpc_b64 s[{SWQ}:{SWQ+1}]")
    a(f"s_and_b32 s{SWQ}, s{SWQ}, 0xffffff00")
    a(f"s_and_b32 s{SWQ+1}, s{SWQ+1}, 0xffff")
    a(f"s_mov_b32 s{SWQ+2}, CODE_END - {KNAME}")
    a(f"s_mov_b32 s{SWQ+3}, 0x20000")
    a(f"v_lshlrev_b32 v{vT+1}, 7, v0")
    a(f"v_subrev_u32 v{vT+1}, {5*8192}, v{vT+1}")
    a(f"buffer_load_dword v55, v{vT+1}, s[{SWQ}:{SWQ+3}], 0 offen")
    a(f"s_and_b32 s{sT0}, s2, 7")
    a(f"s_lshr_b32 s{sT1}, s2, 3")
    a(f"s_add_u32 s{sT1}, s{sT1}, 28")
    a(f"s_and_b32 s{sT1}, s{sT1}, 31")
    a(f"s_lshr_b32 s{sRB}, s{sT0}, 1")
    a(f"s_lshl_b32 s{sRB}, s{sRB}, 2")
    a(f"s_and_b32 s{sT2}, s{sT1}, 3")
    a(f"s_add_u32 s{sRB}, s{sRB}, s{sT2}")
    a(f"s_and_b32 s{sCG}, s{sT0}, 1")
    a(f"s_lshr_b32 s{sT2}, s{sT1}, 2")
    a(f"s_lshl_b32 s{sT2}, s{sT2}, 1")
    a(f"s_add_u32 s{sCG}, s{sCG}, s{sT2}")
    a(f"s_and_b32 s{sTT}, s{sW}, 3")
    a(f"s_lshl_b32 s{sTile}, s{sRB}, 2")
    a(f"s_add_u32 s{sTile}, s{sTile}, s{sTT}")
    a(f"s_mov_b32 s{sMask}, 0xffff0000")
    a(f"s_mov_b32 s{sCnt}, 7")
    a.c("x dma pattern")
    t1, i_ = vT + 1, vT
    a(f"v_lshrrev_b32 v{vT+4}, 3, v{vLane}")
    a(f"v_mul_u32_u24 v{vOffX}, 896, v{vT+4}")
    a(f"v_lshrrev_b32 v{t1}, 4, v{vLane}")
    a(f"v_and_b32 v{vT+5}, 7, v{vLane}")
    a(f"v_xor_b32 v{t1}, v{t1}, v{vT+5}")
    a(f"v_lshl_add_u32 v{vOffX}, v{t1}, 4, v{vOffX}")
    a(f"v_xor_b32 v{vOffX+1}, 64, v{vOffX}")
    a(f"v_add_u32 v{vOffX+1}, {7168-1024}, v{vOffX+1}")
    a(f"s_movk_i32 s{sSM}, 2048")
    a(f"s_movk_i32 s{sSM+1}, 14336")
    a(f"s_movk_i32 s{sSG}, 14336")
    a(f"s_movk_i32 s{sSG+1}, {128-14336}")
    a(f"s_mul_i32 s{sOffX}, s{sTile}, {32*896}")
    a(f"s_lshl_b32 s{sRingX}, s{sTT}, 12")
    a.c("everything that needs no pointer, while the kernel arguments arrive")
    a(f"v_bfe_u32 v{t1}, v{vLane}, 4, 1")
    a(f"v_lshlrev_b32 v{t1}, 2, v{t1}")
    a(f"v_xor_b32 v{t1}, v{t1}, v{vT+5}")
    a(f"v_mul_u32_u24 v{vOffA}, 3584, v{vT+4}")
    a(f"v_lshl_add_u32 v{vOffA}, v{t1}, 4, v{vOffA}")
    a(f"v_add_u32 v{vOffA2}, {8*3584-1024}, v{vOffA}")
    a(f"s_lshl_b32 s{sOffA}, s{sCG}, 1")
    a(f"s_lshr_b32 s{sT0}, s{sTT}, 1")
    a(f"s_add_u32 s{sOffA}, s{sOffA}, s{sT0}")
    a(f"s_lshl_b32 s{sOffA}, s{sOffA}, 7")
    a(f"s_lshl_b32 s{sColQ}, s{sTT}, 11")
    a(f"s_add_u32 s{sRingA}, s{sColQ}, {FR}")
    a(f"s_mov_b32 s{sColA}, s{sOffA}")
    a(f"v_mul_u32_u24 v{t1}, 43, v{vLane}")
    a(f"v_lshrrev_b32 v{t1}, 9, v{t1}")
    a(f"v_mul_u32_u24 v{vOffQ}, {2688-192}, v{t1}")
    a(f"v_add_u32 v{vOffQ}, v{vOffQ}, v{vL16}")
    a(f"v_add_u32 v{vOffQ2}, {4*2688-768}, v{vOffQ}")
    a(f"s_mul_i32 s{sOffQ}, s{sCG}, 192")
    a(f"s_mul_i32 s{sT0}, s{sTT}, {8*2688}")
    a(f"s_add_u32 s{sOffQ}, s{sOffQ}, s{sT0}")
    a(f"s_mul_i32 s{sRingQ}, s{sTT}, 1536")
    a(f"s_add_u32 s{sRingQ}, s{sRingQ}, {QR}")
    a(f"s_mov_b32 s{sE48}, -1")
    a(f"s_mov_b32 s{sE48+1}, 0xffff")
    a(f"v_mov_b32 v{vT+6}, {LDS_P1}")
    a(f"v_mov_b64 v[{vT+8}:{vT+9}], 0")
    a(f"v_mov_b64 v[{vT+10}:{vT+11}], 0")
    a(f"ds_write_b128 v{vT+6}, v[{vT+8}:{vT+11}]")
    a(f"ds_write_b128 v{vT+6}, v[{vT+8}:{vT+11}] offset:16")
    a(f"ds_write_b128 v{vT+6}, v[{vT+8}:{vT+11}] offset:32")
    a(f"s_lshr_b32 s{sT0}, s{sW}, 2")
    a(f"s_lshl_b32 s{sT1}, s{sT0}, 11")
    a(f"s_add_u32 m0, s{sRingX}, s{sT1}")
    a(f"s_mul_i32 s{sT1}, s{sT0}, 14336")
    a(f"s_add_u32 s{sT1}, s{sT1}, s{sOffX}")
    for d in (SX, SWQ, SWA, SWS, SDBG):
        a(f"s_mov_b32 s{d+3}, 0x20000")
    a(f"s_mov_b32 s{SX+2}, {2048*896}")
    a(f"s_mov_b32 s{SWQ+2}, {448*2688}")
    a(f"s_mov_b32 s{SWA+2}, {448*3584}")
    a(f"s_mov_b32 s{SWS+2}, {WS_END}")
    a(f"s_movk_i32 s{SDBG+2}, 256")
    a("s_waitcnt lgkmcnt(0)")
    a(f"s_mov_b32 s{SX}, s4")
    a(f"s_and_b32 s{SX+1}, s5, 0xffff")
    a(f"s_cmp_ge_u32 s{sCG}, 14")
    a("s_cbranch_scc1 P1_c2")
    a(f"buffer_load_dwordx4 v{vOffX}, s[{SX}:{SX+3}], s{sT1} offen lds")
    a(f"buffer_load_dwordx4 v{vOffX+1}, s[{SX}:{SX+3}], s{sT1} offen offset:1024 lds")
    a.label("P1_c2")
    a(f"s_mov_b32 s{SWQ}, s6")
    a(f"s_and_b32 s{SWQ+1}, s7, 0xffff")
    a(f"s_bitcmp1_b32 s{sW}, 0")
    a(f"s_cselect_b32 s{SWA}, s10, s8")
    a(f"s_cselect_b32 s{SWA+1}, s11, s9")
    a(f"s_and_b32 s{SWA+1}, s{SWA+1}, 0xffff")
    a(f"s_mov_b32 s{SDBG}, s12")
    a(f"s_and_b32 s{SDBG+1}, s13, 0xffff")
    a(f"s_mov_b32 s{SWS}, s14")
    a(f"s_and_b32 s{SWS+1}, s15, 0xffff")
    a(f"s_cmp_ge_u32 s{sCG}, 14")
    a("s_cbranch_scc1 P1_help")
    a(f"s_cmp_lt_u32 s{sW}, 4")
    a("s_cbranch_scc1 P1_A")
    for g in dmaF(0):
        for l in g: a(l)
    a("s_branch P1_B")
    a.label("P1_A")
    a(f"s_add_u32 s{sOffA}, s{sOffA}, {16*3584}")
    a(f"s_add_u32 s{sOffX}, s{sOffX}, 256")
    a(f"s_add_u32 s{sRingX}, s{sRingX}, 32768")
    for sl in range(4):
        for g in dmaQ(sl) + (dmaF(sl) if sl else ()):
            for l in g: a(l)
        if sl >= 2:
            for g in dmaX(sl - 2):
                for l in g: a(l)
    a(f"s_mov_b32 s{sRowX}, 16384")
    a(f"s_mov_b32 s{sDq}, {2*6144}")
    pstamp(a, 1)
    common_addr(a, "A")
    a(f"v_mul_u32_u24 v{vTr0}, 192, v{vT+2}")
    a(f"v_add_u32 v{vTr0}, v{vTr0}, v{vT+3}")
    a(f"v_add_u32 v{vTr0}, {QR}, v{vTr0}")
    for j in range(3):
        a(f"v_mfma_f32_32x32x16_bf16 v[{ACC+16*j}:{ACC+16*j+15}], v[{vT+8}:{vT+11}], v[{vT+8}:{vT+11}], 0")
    a(f"s_lshl_b32 s{sT3}, s{sTile}, 12")
    a.c("Q/K store address table: lane l -> 8-column chunk 12*cg + l")
    g8, m, e, x, tab, tab2 = vT + 4, vT + 5, vT + 6, vT + 7, vT + 8, vT + 9
    a(f"s_mul_i32 s{sT0}, s{sCG}, 12")
    a(f"v_add_u32 v{g8}, s{sT0}, v{vLane}")
    a(f"v_mul_u32_u24 v{m}, 9363, v{g8}")
    a(f"v_lshrrev_b32 v{m}, 16, v{m}")
    a(f"v_mul_u32_u24 v{e}, 7, v{m}")
    a(f"v_sub_u32 v{e}, v{g8}, v{e}")
    a(f"v_and_b32 v{x}, 7, v{m}")
    a(f"v_lshl_add_u32 v{tab}, v{x}, 19, s{sT3}")
    a(f"v_bfe_u32 v{x}, v{m}, 3, 1")
    a(f"v_xor_b32 v{x}, 1, v{x}")
    a(f"v_lshl_add_u32 v{tab}, v{x}, 11, v{tab}")
    a(f"v_add_u32 v{tab2}, {HS + 3*512}, v{tab}")
    a(f"v_lshrrev_b32 v{x}, 2, v{e}")
    a(f"v_lshl_add_u32 v{tab}, v{x}, 18, v{tab}")
    a(f"v_and_b32 v{x}, 3, v{e}")
    a(f"v_lshl_add_u32 v{tab}, v{x}, 9, v{tab}")
    a(f"v_cmp_eq_u32 vcc, 3, v{e}")
    a(f"v_lshlrev_b32 v{x}, 2, v{vH}")
    a(f"v_bfrev_b32 v{m}, 1")
    a(f"v_cndmask_b32 v{tab2}, v{m}, v{tab2}, vcc")
    for k in range(6):
        a(f"ds_bpermute_b32 v{vSt+k}, v{x}, v{tab} offset:{8*k}")
        a(f"ds_bpermute_b32 v{vSt+6+k}, v{x}, v{tab2} offset:{8*k}")
    a(f"v_and_b32 v{x}, 0x1f0, v{vL16}")
    a(f"v_mul_u32_u24 v{vT+12}, {VT//4}, v{vH}")
    a(f"v_add_u32 v{vT+12}, v{vT+12}, v{x}")
    a("s_waitcnt lgkmcnt(0)")
    for k in range(12):
        a(f"v_add_u32 v{vSt+k}, v{vSt+k}, v{x}")
    pstamp(a, 2)
    for k in OPT.get("zz", "").split("+"):
        if k: a(f"s_sleep {k}")
    a("s_waitcnt vmcnt(16)")
    pstamp(a, 3)
    a("s_barrier")
    pstamp(a, 4)
    a(f"ds_read_b128 v[{XC}:{XC+3}], v{vXk}")
    a(f"ds_read_b128 v[{XC+4}:{XC+7}], v{vXk+1}")
    for l in wreadsA(0, 0): a(l)
    a("s_waitcnt vmcnt(12) lgkmcnt(0)")
    pstamp(a, 5)
    a(f"s_cmp_gt_u32 s{sCG}, 9")
    a("s_cbranch_scc1 P1_loopA_VVV")
    a(f"s_cmp_eq_u32 s{sCG}, 9")
    a("s_cbranch_scc1 P1_loopA_QVV")
    loopA(a, "QQQ")
    a("s_branch P1_Aepi")
    loopA(a, "QVV")
    a("s_branch P1_Aepi")
    loopA(a, "VVV")
    a.label("P1_Aepi")
    pstamp(a, 6)
    epi_A(a)
    endA(a)
    aux_blocks(a)
    a.label("P1_B")
    tab = sum(v << (4 * i) for i, v in enumerate(BTAB))
    a(f"s_mov_b32 s{sTab}, {tab & 0xffffffff}")
    a(f"s_mov_b32 s{sTab+1}, {tab >> 32}")
    a(f"s_mov_b32 s{sDq}, {((1 << 16) - 1) | (1 << NBAR)}")
    a(f"s_mov_b32 s{sCnt}, 14")
    pstamp(a, 1)
    common_addr(a, "B")
    a(f"v_lshlrev_b32 v{vTr0}, 7, v{vT+2}")
    a(f"v_add_u32 v{vTr0}, v{vTr0}, v{vT+3}")
    a(f"v_bfe_u32 v{t1}, v{i_}, 3, 1")
    a(f"v_lshl_add_u32 v{vTr0}, v{t1}, 6, v{vTr0}")
    a(f"v_xor_b32 v{vTr1}, 64, v{vTr0}")
    a(f"s_lshr_b32 s{sT0}, s{sTT}, 1")
    a(f"s_lshl_b32 s{sT0}, s{sT0}, 12")
    a(f"v_add_u32 v{vOffA}, s{sT0}, v{vTr0}")
    a(f"v_add_u32 v{vOffA2}, s{sT0}, v{vTr1}")
    a(f"v_add_u32 v{vTr0}, {FR}, v{vOffA}")
    a(f"v_add_u32 v{vTr1}, {FR}, v{vOffA2}")
    for j in range(8):
        a(f"v_mfma_f32_32x32x16_bf16 v[{ACC+16*j}:{ACC+16*j+15}], v[{vT+8}:{vT+11}], v[{vT+8}:{vT+11}], 0")
    a(f"s_add_u32 s{sOffX}, s{sOffX}, 128")
    a(f"s_add_u32 s{sRingX}, s{sRingX}, 16384")
    for q in range(2):
        for g in dmaX(q):
            for l in g: a(l)
    if OPT.get("pf", "0") == "1":
        a.c("touch one slice of x / wqkv / w_gate / w_up so that the whole chip asks memory for them at once")
        a(f"s_cmp_lt_u32 s{sTT}, 2")
        a(f"s_cselect_b32 s{SWA}, s4, s8")
        a(f"s_cselect_b32 s{SWA+1}, s5, s9")
        a(f"s_cselect_b32 s{sT0}, s6, s10")
        a(f"s_cselect_b32 s{sT1}, s7, s11")
        a(f"s_mov_b32 s{SWA+2}, {448*3584}")
        a(f"s_cselect_b32 s{sT2}, {448*2688}, s{SWA+2}")
        a(f"s_cselect_b32 s{SWA+2}, {2048*896}, s{SWA+2}")
        a(f"s_bitcmp1_b32 s{sTT}, 0")
        a(f"s_cselect_b32 s{SWA}, s{sT0}, s{SWA}")
        a(f"s_cselect_b32 s{SWA+1}, s{sT1}, s{SWA+1}")
        a(f"s_cselect_b32 s{SWA+2}, s{sT2}, s{SWA+2}")
        a(f"s_and_b32 s{SWA+1}, s{SWA+1}, 0xffff")
        a(f"s_mov_b32 s{SWA+3}, 0x20000")
        a(f"s_sub_u32 s{sT0}, s2, 32")
        a(f"s_lshl_b32 s{sT0}, s{sT0}, 13")
        a(f"v_lshlrev_b32 v{vT+6}, 7, v{vLane}")
        a(f"buffer_load_dword v55, v{vT+6}, s[{SWA}:{SWA+3}], s{sT0} offen")
    pstamp(a, 2)
    a("s_waitcnt vmcnt(%d)" % (5 if OPT.get("pf", "0") == "1" else 4))
    pstamp(a, 3)
    a("s_barrier")
    pstamp(a, 4)
    a(f"ds_read_b128 v[{XB}:{XB+3}], v{vXk}")
    a(f"ds_read_b128 v[{XB+4}:{XB+7}], v{vXk} offset:4096")
    for l in wreadsB(0, 0): a(l)
    a("s_waitcnt vmcnt(%d) lgkmcnt(0)" % (1 if OPT.get("pf", "0") == "1" else 0))
    pstamp(a, 5)
    loopB(a)
    pstamp(a, 6)
    epi_B(a)
    endB(a)
    helper(a)
    endH(a)

def ffn_setup(a):
    t1 = vT + 1
    a.c("gate/up dma setup: wave tt loads block tt (G0,U0,G1,U1)")
    a(f"s_bitcmp1_b32 s{sW}, 0")
    a(f"s_cselect_b32 s{SWA}, s10, s8")
    a(f"s_cselect_b32 s{SWA+1}, s11, s9")
    a(f"s_and_b32 s{SWA+1}, s{SWA+1}, 0xffff")
    a(f"s_mov_b32 s{SWA+2}, {448*3584}")
    a(f"s_mov_b32 s{SWA+3}, 0x20000")
    a(f"v_bfe_u32 v{t1}, v{vLane}, 4, 1")
    a(f"v_lshlrev_b32 v{t1}, 2, v{t1}")
    a(f"v_xor_b32 v{t1}, v{t1}, v{vT+5}")
    a(f"v_mul_u32_u24 v{vOffA}, 3584, v{vT+4}")
    a(f"v_lshl_add_u32 v{vOffA}, v{t1}, 4, v{vOffA}")
    a(f"v_add_u32 v{vOffA2}, {8*3584-1024}, v{vOffA}")
    a(f"s_lshl_b32 s{sOffA}, s{sCG}, 1")
    a(f"s_lshr_b32 s{sT0}, s{sTT}, 1")
    a(f"s_add_u32 s{sOffA}, s{sOffA}, s{sT0}")
    a(f"s_lshl_b32 s{sOffA}, s{sOffA}, 7")
    a(f"s_lshl_b32 s{sRingA}, s{sTT}, 11")
    a(f"s_add_u32 s{sRingA}, s{sRingA}, {FR}")

def common_addr(a, role):
    t1, i_ = vT + 1, vT
    a.c("x fragment addresses")
    a(f"v_and_b32 v{t1}, 31, v{vLane}")
    a(f"v_bfe_u32 v{vT+2}, v{vLane}, 1, 3")
    a(f"v_xor_b32 v{vT+2}, v{vT+2}, v{vH}")
    a(f"v_lshlrev_b32 v{vT+2}, 4, v{vT+2}")
    a(f"v_lshl_add_u32 v{vXk}, v{t1}, 7, v{vT+2}")
    if role == "A":
        a(f"s_lshl_b32 s{sT0}, s{sTT}, 12")
    else:
        a(f"s_and_b32 s{sT0}, s{sTT}, 1")
        a(f"s_lshl_b32 s{sT0}, s{sT0}, 13")
    a(f"v_add_u32 v{vXk}, s{sT0}, v{vXk}")
    for k in range(1, 4):
        a(f"v_xor_b32 v{vXk+k}, {32*k}, v{vXk}")
    a(f"v_and_b32 v{i_}, 15, v{vLane}")
    a(f"v_lshrrev_b32 v{t1}, 2, v{i_}")
    a(f"v_lshl_add_u32 v{vT+2}, v{vH}, 3, v{t1}")
    a(f"v_bfe_u32 v{t1}, v{vLane}, 4, 1")
    a(f"v_lshlrev_b32 v{vT+3}, 5, v{t1}")
    a(f"v_and_b32 v{t1}, 3, v{i_}")
    a(f"v_lshl_add_u32 v{vT+3}, v{t1}, 3, v{vT+3}")
    a(f"s_mov_b32 s{sDelta}, {2*8192}")

def gen_k1(name):
    a = Asm()
    a(f"s_cmp_ge_u32 s2, 256")
    a(f"s_cbranch_scc1 K1_exit")
    def end(a):
        pstamp(a, 7)
        a.stamp_flush(8, 0, sW, 8)
        a("s_endpgm")
    def endH(a):
        pstamp(a, 8)
        a.stamp_flush(9, 0, sW, 8)
        a("s_endpgm")
    gen_p1(a, end, end, endH)
    a.label("K1_exit")
    a("s_endpgm")
    return kernel_header(name) + a.text(), kernel_desc(name, 256, 64), LDS_P1
```

```python
from asmlib import *
from consts import *
import p1
from p1 import OPT, sW, sRB, sCG, sTT, SWS, SDBG, sMask, vLane, vL16, vH, vZero

INB = 12288
WOB = 49152
XCH = 114688
SYNC = p1.LDS_P1
LDS_F = SYNC + 64 + 4096
FQ, FH, FO = WS_FLAG, WS_FLAG + 8192, WS_FLAG + 10240

SKH, SKV, SVH, SV, SWD = 4, 8, 16, 20, 24
sHead, sQB, sOff, sOffV, sCnt = 36, 37, 38, 39, 41
sT0, sT1, sT2, sT3 = 42, 43, 44, 45
sMT, sNT, sRing = 47, 48, 49
sVM, sUP = 50, 52
sA0, sA1, sWoff, sStep, sKQ = 54, 55, 40, 14, 15
SXO = 60
vT = 4
vZ = 15
vVo = 14
NB = 4
QF = 16
KV = 48
SS = KV + 16 * NB
PP = SS + 32
OO = PP + 16
vTr0, vTr1 = 16, 17
vOff = 20
XRES = 24
vXo = 28
ACT = 32
WFG = 96
GACC = 128
TW = 192

def fstamp(a, i):
    if OPT.get("st", "2") in ("1", "3") and i < 7:
        return
    a.stamp(i)

def xstamp(a, i):
    if OPT.get("st", "2") == "3":
        a.stamp(i)

def mf(d, a, b, c):
    cs = "0" if c is None else f"v[{c}:{c+15}]"
    return f"v_mfma_f32_32x32x16_bf16 v[{d}:{d+15}], v[{a}:{a+3}], v[{b}:{b+3}], {cs}"

def signal(a, name, cnt_idx, flag_soff_reg, vaddr=None, young=0):
    a(f"v_mov_b32 v{vT}, {SYNC + 4*cnt_idx}")
    a(f"v_mov_b32 v{vT+1}, 1")
    a("s_mov_b64 exec, 1")
    a(f"s_waitcnt vmcnt({young})")
    a(f"ds_add_rtn_u32 v{vT+2}, v{vT}, v{vT+1}")
    a("s_waitcnt lgkmcnt(0)")
    a(f"v_readfirstlane_b32 s{sT0}, v{vT+2}")
    if vaddr is not None: a("s_mov_b64 exec, 0x3ff")
    a(f"s_cmp_lg_u32 s{sT0}, 3")
    a(f"s_cbranch_scc1 {name}_ns")
    a(f"buffer_store_dword v{vT+1}, v{vZ if vaddr is None else vaddr}, s[{SWS}:{SWS+3}], s{flag_soff_reg} offen sc1")
    a.label(f"{name}_ns")
    a("s_mov_b64 exec, -1")

def poll(a, name, soff, nlanes, wide, sleep, rel_idx, poller):
    a(f"s_mov_b32 s{sT1}, 0x8000")
    a(f"v_mov_b32 v{vT+5}, {SYNC + 4*rel_idx}")
    a(f"s_cmp_lg_u32 s{sW}, {poller}")
    a(f"s_cbranch_scc1 {name}_w")
    a(f"s_mov_b64 exec, {hex((1 << nlanes) - 1)}")
    if not wide: a(f"v_lshlrev_b32 v{vT+4}, 2, v{vLane}")
    a.label(f"{name}_l")
    if wide:
        a(f"buffer_load_dwordx4 v[{vT}:{vT+3}], v{vL16}, s[{SWS}:{SWS+3}], {soff} offen sc1")
        a("s_waitcnt vmcnt(0)")
        a(f"v_and_b32 v{vT}, v{vT}, v{vT+1}")
        a(f"v_and_b32 v{vT+2}, v{vT+2}, v{vT+3}")
        a(f"v_and_b32 v{vT}, v{vT}, v{vT+2}")
    else:
        a(f"buffer_load_dword v{vT}, v{vT+4}, s[{SWS}:{SWS+3}], {soff} offen sc1")
        a("s_waitcnt vmcnt(0)")
    a(f"v_cmp_ne_u32 vcc, 1, v{vT}")
    a(f"s_cbranch_vccz {name}_p")
    a(f"s_sub_u32 s{sT1}, s{sT1}, 1")
    a(f"s_cbranch_scc1 {name}_p")
    a(f"s_sleep {sleep}")
    a(f"s_branch {name}_l")
    a.label(f"{name}_p")
    a(f"v_mov_b32 v{vT}, 1")
    a(f"ds_write_b32 v{vT+5}, v{vT}")
    a("s_mov_b64 exec, -1")
    a(f"s_branch {name}_ok")
    a.label(f"{name}_w")
    a(f"s_lshl_b32 s{sT1}, s{sT1}, 4")
    a.label(f"{name}_w2")
    a(f"ds_read_b32 v{vT}, v{vT+5}")
    a("s_waitcnt lgkmcnt(0)")
    a(f"v_readfirstlane_b32 s{sT0}, v{vT}")
    a(f"s_cmp_eq_u32 s{sT0}, 1")
    a(f"s_cbranch_scc1 {name}_ok")
    a(f"s_sub_u32 s{sT1}, s{sT1}, 1")
    a(f"s_cbranch_scc1 {name}_ok")
    a("s_sleep 2")
    a(f"s_branch {name}_w2")
    a.label(f"{name}_ok")

def kvload(a, kb, srd, sv):
    b = KV + 16 * kb
    a(f"buffer_load_dwordx4 v[{b}:{b+3}], v{vL16}, s[{srd}:{srd+3}], s{sOff} offen sc1")
    a(f"buffer_load_dwordx4 v[{b+4}:{b+7}], v{vL16}, s[{srd}:{srd+3}], s{sOff} offen offset:1024 sc1")
    a(f"s_mov_b64 exec, s[{sVM}:{sVM+1}]")
    a(f"buffer_load_dwordx4 v[{b+8}:{b+11}], v{vVo}, s[{sv}:{sv+3}], s{sOffV} offen sc1")
    a(f"s_add_u32 s{sOffV}, s{sOffV}, {VT//2}")
    a(f"buffer_load_dwordx4 v[{b+12}:{b+15}], v{vVo}, s[{sv}:{sv+3}], s{sOffV} offen sc1")
    a(f"s_mov_b64 exec, -1")
    a(f"s_add_u32 s{sOffV}, s{sOffV}, {VT//2}")
    a(f"s_add_u32 s{sOff}, s{sOff}, {TS}")

def maxtree(a, src, dst, first=True):
    if first:
        a(f"v_max3_f32 v{dst}, v{src}, v{src+1}, v{src+2}")
        for i in range(3, 15, 2):
            a(f"v_max3_f32 v{dst}, v{dst}, v{src+i}, v{src+i+1}")
        a(f"v_max_f32 v{dst}, v{dst}, v{src+15}")
    else:
        for i in range(0, 16, 2):
            a(f"v_max3_f32 v{dst}, v{dst}, v{src+i}, v{src+i+1}")

def setpads(a, ms, qs, t):
    n = len(ms)
    for i, m in enumerate(ms): a(f"v_mov_b32 v{t+i}, v{m}")
    a("s_nop 1")
    for i, m in enumerate(ms): a(f"v_permlane32_swap_b32 v{m}, v{t+i}")
    a("s_nop 0")
    for i, m in enumerate(ms): a(f"v_max_f32 v{m}, v{m}, v{t+i}")
    a(f"s_mov_b64 exec, s[{sUP}:{sUP+1}]")
    for i, (m, q) in enumerate(zip(ms, qs)):
        u, w = t + i, t + n + i
        a(f"v_sub_f32 v{m}, 0, v{m}")
        a(f"v_and_b32 v{u}, s{sMask}, v{m}")
        a(f"v_sub_f32 v{u}, v{m}, v{u}")
        a(f"v_lshrrev_b32 v{m}, 16, v{m}")
        a(f"v_and_b32 v{w}, s{sMask}, v{u}")
        a(f"v_or_b32 v{q+6}, v{m}, v{w}")
        a(f"v_sub_f32 v{u}, v{u}, v{w}")
        a(f"v_lshrrev_b32 v{q+7}, 16, v{u}")
    a("s_mov_b64 exec, -1")

def expcvt(S, P, g):
    o = [f"v_exp_f32 v{S+4*g+k}, v{S+4*g+k}" for k in range(4)]
    o += [f"v_cvt_pk_bf16_f32 v{P+2*g+k}, v{S+4*g+2*k}, v{S+4*g+2*k+1}" for k in range(2)]
    return o

def ldswait(a, name, idx, n, sleep=2):
    a(f"v_mov_b32 v{vT+6}, {SYNC+4*idx}")
    a(f"s_mov_b32 s{sT1}, 0x80000")
    a(f"s_branch {name}")
    a.label(name + "_s")
    a(f"s_sleep {sleep}")
    a.label(name)
    a(f"ds_read_b32 v{vT+7}, v{vT+6}")
    a("s_waitcnt lgkmcnt(0)")
    a(f"v_readfirstlane_b32 s{sT0}, v{vT+7}")
    a(f"s_sub_u32 s{sT1}, s{sT1}, 1")
    a(f"s_cselect_b32 s{sT0}, {n}, s{sT0}")
    a(f"s_cmp_lt_u32 s{sT0}, {n}")
    a(f"s_cbranch_scc1 {name}_s")

def ldsadd(a, idx):
    a(f"v_mov_b32 v{vT+6}, {SYNC+4*idx}")
    a(f"v_mov_b32 v{vT+7}, 1")
    a("s_mov_b64 exec, 1")
    a(f"ds_add_u32 v{vT+6}, v{vT+7}")
    a("s_mov_b64 exec, -1")

def g2_ids(a):
    a(f"s_and_b32 s{sMT}, s2, 7")
    a(f"s_lshl_b32 s{sMT}, s{sMT}, 2")
    a(f"s_bfe_u32 s{sT0}, s2, 0x20003")
    a(f"s_add_u32 s{sMT}, s{sMT}, s{sT0}")
    a(f"s_lshr_b32 s{sNT}, s2, 5")
    a(f"s_lshr_b32 s{sKQ}, s{sW}, 1")

def g2_tr(a):
    t1, i_ = vT, vT + 2
    a(f"v_and_b32 v{i_}, 15, v{vLane}")
    a(f"v_lshrrev_b32 v{t1}, 2, v{i_}")
    a(f"v_lshl_add_u32 v{t1}, v{vH}, 2, v{t1}")
    a(f"v_lshlrev_b32 v{vTr0}, 7, v{t1}")
    a(f"v_bfe_u32 v{t1}, v{vLane}, 4, 1")
    a(f"v_lshl_add_u32 v{vTr0}, v{t1}, 5, v{vTr0}")
    a(f"v_and_b32 v{t1}, 3, v{i_}")
    a(f"v_lshl_add_u32 v{vTr0}, v{t1}, 3, v{vTr0}")
    a(f"v_bfe_u32 v{t1}, v{i_}, 3, 1")
    a(f"v_lshl_add_u32 v{vTr0}, v{t1}, 6, v{vTr0}")
    a(f"s_lshl_b32 s{sT0}, s{sKQ}, 5")
    a(f"v_xor_b32 v{vTr0}, s{sT0}, v{vTr0}")
    a(f"v_xor_b32 v{vTr1}, 64, v{vTr0}")

def wdma(a, slot):
    a(f"s_add_u32 m0, s{sRing}, {slot*4096}")
    a("s_nop 0")
    for i in range(4):
        a(f"buffer_load_dwordx4 v{vOff+i}, s[{SWD}:{SWD+3}], s{sWoff} offen offset:{1024*i} lds")
    a(f"s_add_u32 s{sWoff}, s{sWoff}, s{sStep}")

def actld(a, st):
    b = ACT + 16 * st
    a(f"buffer_load_dwordx4 v[{b}:{b+3}], v{vL16}, s[{SWS}:{SWS+3}], s{sA0} offen sc1")
    a(f"buffer_load_dwordx4 v[{b+4}:{b+7}], v{vL16}, s[{SWS}:{SWS+3}], s{sA0} offen offset:1024 sc1")
    a(f"buffer_load_dwordx4 v[{b+8}:{b+11}], v{vL16}, s[{SWS}:{SWS+3}], s{sA1} offen sc1")
    a(f"buffer_load_dwordx4 v[{b+12}:{b+15}], v{vL16}, s[{SWS}:{SWS+3}], s{sA1} offen offset:1024 sc1")
    a(f"s_add_u32 s{sA0}, s{sA0}, 2048")
    a(f"s_add_u32 s{sA1}, s{sA1}, 2048")

def unit(a, slot):
    for s in range(2):
        for tau in range(2):
            for t in range(2):
                d = WFG + 8 * s + 4 * tau + 2 * t
                a(f"ds_read_b64_tr_b16 v[{d}:{d+1}], v{vTr0+2 if tau == 0 else vTr1+2} offset:{slot*4096+s*2048+t*1024}")
    for s in range(2):
        a(f"s_waitcnt lgkmcnt({4 if s == 0 else 0})")
        for tau in range(2):
            for tt in range(2):
                acc = GACC + 16 * (tt * 2 + tau)
                a(mf(acc, WFG + 8 * s + 4 * tau, ACT + 16 * slot + 8 * tt + 4 * s, acc))

def attention(a):
    a.label("F_att")
    fstamp(a, 8)
    a(f"s_and_b32 s{sHead}, s2, 7")
    a(f"s_lshl_b32 s{sHead}, s{sHead}, 1")
    a(f"s_bfe_u32 s{sT0}, s2, 0x10003")
    a(f"s_add_u32 s{sHead}, s{sHead}, s{sT0}")
    a(f"s_lshr_b32 s{sQB}, s2, 4")
    a(f"s_mov_b32 s{sVM}, 0x0fffffff")
    a(f"s_mov_b32 s{sVM+1}, 0x0fffffff")
    a(f"s_mov_b32 s{sUP}, 0")
    a(f"s_mov_b32 s{sUP+1}, -1")
    a(f"v_mov_b32 v{KV+8}, 0x3f803f80")
    a(f"v_mov_b32 v{KV+9}, 0x3f803f80")
    for kb in range(NB):
        for i in range(0, 8, 2):
            if kb or i: a(f"v_mov_b64 v[{KV+16*kb+8+i}:{KV+16*kb+9+i}], v[{KV+8}:{KV+9}]")
    a(f"v_mul_u32_u24 v{vVo}, {VT//4 - 512}, v{vH}")
    a(f"v_add_u32 v{vVo}, v{vVo}, v{vL16}")
    a(f"s_mul_i32 s{sT0}, s{sHead}, 448")
    a(f"v_add_u32 v{vVo}, s{sT0}, v{vVo}")
    a(f"s_lshl_b32 s{sT1}, s{sHead}, 18")
    a(f"s_add_u32 s{SKH}, s{SWS}, s{sT1}")
    a(f"s_addc_u32 s{SKH+1}, s{SWS+1}, 0")
    a(f"s_mov_b32 s{SKH+2}, {HS}")
    a(f"s_mov_b32 s{SKH+3}, 0x20000")
    a(f"s_lshl_b32 s{sT1}, s{sW}, 16")
    a(f"s_add_u32 s{SKV}, s{SKH}, s{sT1}")
    a(f"s_addc_u32 s{SKV+1}, s{SKH+1}, 0")
    a(f"s_mov_b32 s{SKV+2}, {16*TS}")
    a(f"s_mov_b32 s{SKV+3}, 0x20000")
    a(f"s_add_u32 s{SVH}, s{SWS}, {WS_V}")
    a(f"s_addc_u32 s{SVH+1}, s{SWS+1}, 0")
    a(f"s_mov_b32 s{SVH+2}, {64*VT}")
    a(f"s_mov_b32 s{SVH+3}, 0x20000")
    a(f"s_mul_i32 s{sT1}, s{sW}, {16*VT}")
    a(f"s_add_u32 s{SV}, s{SVH}, s{sT1}")
    a(f"s_addc_u32 s{SV+1}, s{SVH+1}, 0")
    a(f"s_mov_b32 s{SV+2}, {16*VT}")
    a(f"s_mov_b32 s{SV+3}, 0x20000")
    a(f"s_mov_b32 s{sOffV}, 0")
    a(f"s_mov_b32 s{sOff}, 0")
    for i in range(0, 8, 2):
        a(f"v_mov_b64 v[{PP+8+i}:{PP+9+i}], 0")
    g2_ids(a)
    for k in OPT.get("zq", "").split("+"):
        if k: a(f"s_sleep {k}")
    a(f"s_lshl_b32 s{sT3}, s{sHead}, 9")
    a(f"s_add_u32 s{sT3}, s{sT3}, {FQ}")
    poll(a, "F_pq", f"s{sT3}", 24, True, int(OPT.get("sq", "3")), 3, 0)
    fstamp(a, 9)
    a(f"s_setprio {OPT.get('pp', '1')}")
    a.c("K tile 0 of the head + Q (local tile j = global (w+j)&3)")
    a(f"buffer_load_dwordx4 v[{PP}:{PP+3}], v{vL16}, s[{SKH}:{SKH+3}], 0 offen sc1")
    a(f"buffer_load_dwordx4 v[{PP+4}:{PP+7}], v{vL16}, s[{SKH}:{SKH+3}], 0 offen offset:1024 sc1")
    a(f"s_lshl_b32 s{sT1}, s{sQB}, 14")
    for j in range(4):
        a(f"s_add_u32 s{sT0}, s{sW}, {j}")
        a(f"s_and_b32 s{sT0}, s{sT0}, 3")
        a(f"s_lshl_b32 s{sT0}, s{sT0}, 12")
        a(f"s_add_u32 s{sT0}, s{sT0}, s{sT1}")
        a(f"buffer_load_dwordx4 v[{QF+8*j}:{QF+8*j+3}], v{vL16}, s[{SKH}:{SKH+3}], s{sT0} offen offset:2048 sc1")
        a(f"buffer_load_dwordx4 v[{QF+8*j+4}:{QF+8*j+7}], v{vL16}, s[{SKH}:{SKH+3}], s{sT0} offen offset:3072 sc1")
    for kb in range(NB - 1):
        if kb == int(OPT.get("rel", "3")): ldsadd(a, 10)
        kvload(a, kb, SKV, SV)
    if int(OPT.get("rel", "3")) == 3: ldsadd(a, 10)
    a(f"s_waitcnt vmcnt({4*(NB-1)})")
    a(f"s_mov_b64 exec, s[{sUP}:{sUP+1}]")
    for qt in range(4):
        a(f"v_mov_b64 v[{QF+8*qt+6}:{QF+8*qt+7}], 0")
    a("s_mov_b64 exec, -1")
    a("s_nop 1")
    for qt in range(4):
        a(mf(OO + 16 * qt, PP, QF + 8 * qt, None))
        a(mf(OO + 16 * qt, PP + 4, QF + 8 * qt + 4, OO + 16 * qt))
    a.c("shift = largest score among keys 4..7 (upper lanes hold them), cut to bf16; checked after the loop")
    a("s_nop 5")
    a(f"s_mov_b64 exec, s[{sUP}:{sUP+1}]")
    for qt in range(4):
        o = OO + 16 * qt
        a(f"v_max3_f32 v{vT+qt}, v{o}, v{o+1}, v{o+2}")
        a(f"v_max_f32 v{vT+qt}, v{vT+qt}, v{o+3}")
        a(f"v_lshrrev_b32 v{vT+qt}, 16, v{vT+qt}")
        a(f"v_xor_b32 v{QF+8*qt+6}, 0x8000, v{vT+qt}")
    a("s_mov_b64 exec, -1")
    a(f"s_waitcnt vmcnt({4*(NB-2)})")
    a(mf(SS, KV, QF, None))
    a(mf(SS, KV + 4, QF + 4, SS))
    a.c("O = 0 (P[1] is zero)")
    for qt in range(4):
        a(mf(OO + 16 * qt, PP + 8, PP + 8, None))
    a(f"s_mov_b32 s{sCnt}, {16//NB}")
    a("s_nop 6")
    a(f"s_setprio {OPT.get('prio', '1')}")
    fstamp(a, 10)
    a.label("F_aloop")
    for kb in range(NB):
        for qt in range(4):
            n = kb * 4 + qt
            cur, nxt = SS + 16 * (n & 1), SS + 16 * ((n + 1) & 1)
            pc, pp = PP + 8 * (n & 1), PP + 8 * ((n + 1) & 1)
            nkb, nqt = (kb, qt + 1) if qt < 3 else ((kb + 1) % NB, 0)
            pkb, pqt = (kb, qt - 1) if qt > 0 else ((kb - 1) % NB, 3)
            if qt == 3:
                a(f"s_waitcnt vmcnt({4*(NB-2)})")
            K = KV + 16 * nkb
            V = KV + 16 * pkb + 8
            O = OO + 16 * pqt
            mm = [mf(nxt, K, QF + 8 * nqt, None), mf(nxt, K + 4, QF + 8 * nqt + 4, nxt),
                  mf(O, V, pp, O), mf(O, V + 4, pp + 4, O)]
            for g in range(4):
                a(mm[g])
                if g == 3 and qt == 0:
                    kvload(a, pkb, SKV, SV)
                if g == 3 and n == 4 * NB - 1:
                    a(f"s_sub_u32 s{sCnt}, s{sCnt}, 1")
                    a(f"s_cmp_lg_u32 s{sCnt}, 0")
                for l in expcvt(cur, pc, g):
                    a(l)
    a("s_cbranch_scc1 F_aloop")
    V = KV + 16 * (NB - 1) + 8
    O = OO + 48
    a("s_nop 0")
    a(mf(O, V, PP + 8, O))
    a(mf(O, V + 4, PP + 12, O))
    fstamp(a, 1)
    a.c("the B waves are done with the phase-1 LDS image")
    ldswait(a, "F_bw1", 1, 4)
    a.c("send local tiles 1..3 to waves (w+j)&3, inbox slot j-1")
    for j in range(1, 4):
        a(f"s_add_u32 s{sT0}, s{sW}, {j}")
        a(f"s_and_b32 s{sT0}, s{sT0}, 3")
        a(f"s_mul_i32 s{sT0}, s{sT0}, {INB}")
        a(f"v_add_u32 v{vT+j}, s{sT0}, v{vL16}")
    for j in range(1, 4):
        for aa in range(4):
            a(f"ds_write_b128 v{vT+j}, v[{OO+16*j+4*aa}:{OO+16*j+4*aa+3}] offset:{4096*(j-1)+1024*aa}")
    ldsadd(a, 6)
    a(f"s_mul_i32 s{sT0}, s{sW}, {INB}")
    a(f"v_add_u32 v{vT}, s{sT0}, v{vL16}")
    a(f"s_lshl_b32 s{sT3}, s{sQB}, 2")
    a(f"s_add_u32 s{sT3}, s{sT3}, s{sW}")
    a(f"s_lshl_b32 s{sT3}, s{sT3}, 4")
    a(f"s_add_u32 s{sT3}, s{sT3}, s{sHead}")
    a(f"s_lshl_b32 s{sT3}, s{sT3}, 11")
    a(f"s_add_u32 s{sT3}, s{sT3}, {WS_O}")
    ldswait(a, "F_iw", 6, 4, 1)
    fstamp(a, 2)
    R = OO
    for j in range(1, 4):
        for aa in range(4):
            a(f"ds_read_b128 v[{OO+16*j+4*aa}:{OO+16*j+4*aa+3}], v{vT} offset:{4096*(j-1)+1024*aa}")
    for j in range(1, 4):
        a(f"s_waitcnt lgkmcnt({4*(3-j)})")
        for i in range(16): a(f"v_add_f32 v{R+i}, v{R+i}, v{OO+16*j+i}")
    a.c("check of the stand-in shift: every value finite and below 2^100, row sum above 2^-60; else redo with the true row max")
    a(f"v_add_f32 v{vT+2}, abs(v{R}), abs(v{R+1})")
    for i in range(2, 16):
        a(f"v_add_f32 v{vT+2}, v{vT+2}, abs(v{R+i})")
    a(f"v_cmp_lt_f32 vcc, {fhex(2.0**-60)}, v{R+12}")
    a(f"s_mov_b32 s{sT0}, vcc_hi")
    a(f"v_cmp_gt_f32 vcc, {fhex(2.0**100)}, v{vT+2}")
    a(f"s_and_b32 vcc_hi, vcc_hi, s{sT0}")
    a("s_cmp_eq_u64 vcc, -1")
    a("s_cbranch_scc0 F_slow")
    a.label("F_fin")
    a(f"v_mov_b32 v{vT+2}, v{R+12}")
    a(f"v_mov_b32 v{vT+3}, v{R+12}")
    a("s_nop 1")
    a(f"v_permlane32_swap_b32 v{vT+2}, v{vT+3}")
    a("s_nop 0")
    a(f"v_rcp_f32 v{vT+3}, v{vT+3}")
    a(f"s_mov_b64 exec, s[{sUP}:{sUP+1}]")
    a(f"v_mov_b64 v[{R+12}:{R+13}], 0")
    a(f"v_mov_b64 v[{R+14}:{R+15}], 0")
    a("s_mov_b64 exec, -1")
    for i in range(16): a(f"v_mul_f32 v{R+i}, v{R+i}, v{vT+3}")
    for i in range(8): a(f"v_cvt_pk_bf16_f32 v{SS+i}, v{R+2*i}, v{R+2*i+1}")
    a(f"buffer_store_dwordx4 v[{SS}:{SS+3}], v{vL16}, s[{SWS}:{SWS+3}], s{sT3} offen sc1")
    a(f"buffer_store_dwordx4 v[{SS+4}:{SS+7}], v{vL16}, s[{SWS}:{SWS+3}], s{sT3} offen offset:1024 sc1")
    a(f"s_lshl_b32 s{sT3}, s{sQB}, 7")
    a(f"s_lshl_b32 s{sT0}, s{sHead}, 2")
    a(f"s_add_u32 s{sT3}, s{sT3}, s{sT0}")
    a(f"s_add_u32 s{sT3}, s{sT3}, {FO}")
    a.c("work for the tail while the stores fly")
    g2_tr(a)
    a(f"v_mov_b64 v[{WFG}:{WFG+1}], 0")
    a(f"v_mov_b64 v[{WFG+2}:{WFG+3}], 0")
    a("s_nop 1")
    for k in range(2):
        a(mf(GACC + 16 * k, WFG, WFG, None))
    signal(a, "F_so", 2, sT3)
    fstamp(a, 3)
    a(f"s_cmp_ge_u32 s{sNT}, 7")
    a("s_cbranch_scc1 F_end")
    a("s_branch F_tail")
    a.label("F_slow")
    S2 = SS + 16
    a(f"v_mov_b32 v{vT+2}, 0xff800000")
    a(f"s_mov_b32 s{sOff}, 0")
    a(f"s_mov_b32 s{sOffV}, 0")
    a(f"s_mov_b64 exec, s[{sUP}:{sUP+1}]")
    a(f"v_mov_b64 v[{QF+6}:{QF+7}], 0")
    a("s_mov_b64 exec, -1")
    a.label("F_sl1")
    kvload(a, 0, SKH, SVH)
    a("s_waitcnt vmcnt(0)")
    a(mf(S2, KV, QF, None))
    a(mf(S2, KV + 4, QF + 4, S2))
    a("s_nop 15")
    maxtree(a, S2, vT + 2, first=False)
    a(f"s_cmp_lt_u32 s{sOff}, {HS}")
    a("s_cbranch_scc1 F_sl1")
    setpads(a, [vT + 2], [QF], vT + 4)
    for i in range(0, 16, 2): a(f"v_mov_b64 v[{R+i}:{R+i+1}], 0")
    a(f"s_mov_b32 s{sOff}, 0")
    a(f"s_mov_b32 s{sOffV}, 0")
    a.label("F_sl2")
    kvload(a, 0, SKH, SVH)
    a("s_waitcnt vmcnt(0)")
    a(mf(S2, KV, QF, None))
    a(mf(S2, KV + 4, QF + 4, S2))
    a("s_nop 15")
    for g in range(4):
        for l in expcvt(S2, PP, g): a(l)
    a("s_nop 1")
    a(mf(R, KV + 8, PP, R))
    a(mf(R, KV + 12, PP + 4, R))
    a(f"s_cmp_lt_u32 s{sOff}, {HS}")
    a("s_cbranch_scc1 F_sl2")
    a("s_nop 15")
    a("s_branch F_fin")

def g2h(a):
    a.label("F_g2")
    a(f"s_setprio {OPT.get('bp', '0')}")
    fstamp(a, 8)
    g2_ids(a)
    a(f"s_cmp_ge_u32 s{sNT}, 7")
    a("s_cbranch_scc1 F_end")
    a(f"s_load_dwordx2 s[{SWD}:{SWD+1}], s[0:1], 48")
    a(f"s_load_dwordx2 s[{SXO}:{SXO+1}], s[0:1], 16")
    a(f"s_lshl_b32 s{sRing}, s{sTT}, 14")
    a(f"s_add_u32 s{sRing}, s{sRing}, {WOB}")
    g2_tr(a)
    a(f"v_add_u32 v{vTr0+2}, s{sRing}, v{vTr0}")
    a(f"v_add_u32 v{vTr1+2}, s{sRing}, v{vTr1}")
    t1, t2, i_ = vT, vT + 1, vT + 2
    a(f"v_bfe_u32 v{t1}, v{vLane}, 4, 1")
    a(f"v_lshlrev_b32 v{t1}, 2, v{t1}")
    a(f"v_and_b32 v{t2}, 7, v{vLane}")
    a(f"v_xor_b32 v{t1}, v{t1}, v{t2}")
    a(f"v_lshrrev_b32 v{i_}, 3, v{vLane}")
    a(f"v_mul_u32_u24 v{vOff}, 896, v{i_}")
    a(f"v_lshl_add_u32 v{vOff}, v{t1}, 4, v{vOff}")
    for i in range(1, 4):
        a(f"v_add_u32 v{vOff+i}, {i*(7168-1024)}, v{vOff}")
    a(f"v_mov_b64 v[{WFG}:{WFG+1}], 0")
    a(f"v_mov_b64 v[{WFG+2}:{WFG+3}], 0")
    a(f"s_lshl_b32 s{sT2}, s{sNT}, 7")
    a(f"s_mul_i32 s{sWoff}, s{sTT}, {14*32*896}")
    a(f"s_add_u32 s{sWoff}, s{sWoff}, s{sT2}")
    for k in range(4):
        a(mf(GACC + 16 * k, WFG, WFG, None))
    a.c("local token tile 0 = tile w&1")
    a(f"s_mul_i32 s{sA0}, s{sMT}, {2*112*1024}")
    a(f"s_mul_i32 s{sT1}, s{sTT}, {28*1024}")
    a(f"s_add_u32 s{sA0}, s{sA0}, s{sT1}")
    a(f"s_add_u32 s{sA0}, s{sA0}, {WS_H}")
    a(f"s_add_u32 s{sT1}, s{sA0}, {112*1024}")
    a(f"s_bitcmp1_b32 s{sW}, 0")
    a(f"s_cselect_b32 s{sA1}, s{sA0}, s{sT1}")
    a(f"s_cselect_b32 s{sA0}, s{sT1}, s{sA0}")
    a(f"s_mov_b32 s{SWD+2}, {1792*896}")
    a(f"s_mov_b32 s{SWD+3}, 0x20000")
    a(f"s_movk_i32 s{sStep}, {32*896}")
    a(f"s_lshr_b32 s{sT3}, s{sMT}, 1")
    a(f"s_lshl_b32 s{sT3}, s{sT3}, 7")
    a(f"s_add_u32 s{sT3}, s{sT3}, {FH}")
    ldswait(a, "F_bw2", 1, 4)
    a(f"s_and_b32 s{SWD+1}, s{SWD+1}, 0xffff")
    for u in range(4): wdma(a, (u + 2) % 4)
    poll(a, "F_ph", f"s{sT3}", 14, False, int(OPT.get("sh", "4")), 4, 4)
    fstamp(a, 9)
    for u in range(4): actld(a, (u + 2) % 4)
    a(f"s_mov_b32 s{sCnt}, 4")
    a("s_waitcnt vmcnt(4)")
    a("s_branch F_gmid")
    a.label("F_gloop")
    a(f"s_cmp_lg_u32 s{sCnt}, 1")
    a("s_cbranch_scc1 F_gl2")
    a.c("last round: the weight stream continues with wo (heads 4tt..4tt+3), no more activations")
    a(f"s_mov_b32 s{SWD}, s{SXO}")
    a(f"s_and_b32 s{SWD+1}, s{SXO+1}, 0xffff")
    a(f"s_mov_b32 s{SWD+2}, {448*896}")
    a(f"s_movk_i32 s{sStep}, {28*896}")
    a(f"s_mul_i32 s{sWoff}, s{sTT}, {4*28*896}")
    a(f"s_add_u32 s{sWoff}, s{sWoff}, s{sT2}")
    a(f"s_mov_b32 s{sA0}, 0x40000000")
    a(f"s_mov_b32 s{sA1}, 0x40000000")
    a.label("F_gl2")
    for st in range(4):
        if st == 2: a.label("F_gmid")
        a("s_waitcnt vmcnt(24)")
        unit(a, st)
        actld(a, st)
        wdma(a, st)
    a(f"s_sub_u32 s{sCnt}, s{sCnt}, 1")
    a(f"s_cmp_lg_u32 s{sCnt}, 0")
    a("s_cbranch_scc1 F_gloop")
    fstamp(a, 10)
    a.c("pair exchange: the other token tile goes to wave w^1")
    a(f"s_xor_b32 s{sT0}, s{sTT}, 1")
    a(f"s_lshl_b32 s{sT0}, s{sT0}, 13")
    a(f"s_add_u32 s{sT0}, s{sT0}, {XCH}")
    a(f"v_add_u32 v{vT}, s{sT0}, v{vL16}")
    a(f"v_xor_b32 v{vT+1}, 0x2000, v{vT}")
    for i in range(8):
        a(f"ds_write_b128 v{vT}, v[{GACC+32+4*i}:{GACC+32+4*i+3}] offset:{1024*i}")
    ldsadd(a, 7)
    ldswait(a, "F_xw", 7, 4)
    for i in range(8):
        a(f"ds_read_b128 v[{GACC+32+4*i}:{GACC+32+4*i+3}], v{vT+1} offset:{1024*i}")
    a("s_waitcnt vmcnt(0) lgkmcnt(0)")
    ldsadd(a, 8)
    for i in range(32):
        a(f"v_add_f32 v{GACC+i}, v{GACC+i}, v{GACC+32+i}")

def tail(a):
    a.label("F_tail")
    a(f"s_load_dwordx2 s[{SXO}:{SXO+1}], s[0:1], 0")
    a(f"s_load_dwordx2 s[{SWD}:{SWD+1}], s[0:1], 56")
    a(f"s_lshr_b32 s{sT3}, s{sMT}, 1")
    a(f"s_lshl_b32 s{sT3}, s{sT3}, 7")
    a(f"s_add_u32 s{sT3}, s{sT3}, {FO}")
    a.c("token tile 2mt + (w&1); heads 4kq..4kq+3")
    a(f"s_and_b32 s{sT2}, s{sW}, 1")
    a(f"s_lshl_b32 s{sT0}, s{sMT}, 1")
    a(f"s_add_u32 s{sT2}, s{sT2}, s{sT0}")
    a(f"s_lshl_b32 s{sA0}, s{sT2}, 15")
    a(f"s_lshl_b32 s{sT0}, s{sKQ}, 13")
    a(f"s_add_u32 s{sA0}, s{sA0}, s{sT0}")
    a(f"s_add_u32 s{sA0}, s{sA0}, {WS_O}")
    a(f"s_add_u32 s{sA1}, s{sA0}, 4096")
    a(f"s_mul_i32 s{sT2}, s{sT2}, {32*896}")
    a(f"s_lshl_b32 s{sT0}, s{sNT}, 7")
    a(f"s_add_u32 s{sT2}, s{sT2}, s{sT0}")
    a(f"s_lshl_b32 s{sT0}, s{sKQ}, 5")
    a(f"s_add_u32 s{sT2}, s{sT2}, s{sT0}")
    a(f"v_and_b32 v{vXo}, 31, v{vLane}")
    a(f"v_mul_u32_u24 v{vXo}, 896, v{vXo}")
    a(f"v_lshl_add_u32 v{vXo+1}, v{vH}, 3, v{vXo}")
    a(f"v_lshl_add_u32 v{vXo}, v{vH}, 4, v{vXo}")
    a(f"s_lshl_b32 s{sT0}, s{sKQ}, 14")
    a(f"s_add_u32 s{sT0}, s{sT0}, {WOB}")
    a(f"v_add_u32 v{vTr0}, s{sT0}, v{vTr0}")
    a(f"v_add_u32 v{vTr1}, s{sT0}, v{vTr1}")
    a(f"s_mov_b32 s{SXO+2}, {2048*896}")
    a(f"s_mov_b32 s{SXO+3}, 0x20000")
    a(f"s_mov_b32 s{SWD+2}, {2048*896}")
    a(f"s_mov_b32 s{SWD+3}, 0x20000")
    ldswait(a, "F_ww", 8, 4)
    a(f"s_and_b32 s{SXO+1}, s{SXO+1}, 0xffff")
    a(f"s_and_b32 s{SWD+1}, s{SWD+1}, 0xffff")
    a(f"buffer_load_dwordx2 v[{XRES}:{XRES+1}], v{vXo+1}, s[{SXO}:{SXO+3}], s{sT2} offen")
    a(f"buffer_load_dwordx2 v[{XRES+2}:{XRES+3}], v{vXo+1}, s[{SXO}:{SXO+3}], s{sT2} offen offset:16")
    for hd in range(4):
        for s_ in range(2):
            for tau in range(2):
                for t in range(2):
                    d = TW + 16 * hd + 8 * s_ + 4 * tau + 2 * t
                    a(f"ds_read_b64_tr_b16 v[{d}:{d+1}], v{vTr0 if tau == 0 else vTr1} offset:{hd*4096+s_*2048+t*1024}")
    a.c("final inbox addresses: local quarter i -> wave w ^ (2i), slot i-1")
    for i in range(1, 4):
        a(f"s_xor_b32 s{sT0}, s{sW}, {2*i}")
        a(f"s_mul_i32 s{sT0}, s{sT0}, 6144")
        a(f"v_add_u32 v{vOff+i}, s{sT0}, v{vL16}")
    a(f"s_mul_i32 s{sT0}, s{sW}, 6144")
    a(f"v_add_u32 v{vOff}, s{sT0}, v{vL16}")
    ldswait(a, "F_ow", 2, 4)
    poll(a, "F_po", f"s{sT3}", 16, False, int(OPT.get("so", "2")), 5, 4)
    fstamp(a, 4)
    for k in range(8):
        a(f"buffer_load_dwordx4 v[{ACT+4*k}:{ACT+4*k+3}], v{vL16}, s[{SWS}:{SWS+3}], s{sA0 if k < 4 else sA1} offen offset:{1024*(k&3)} sc1")
    R = 64
    a("s_waitcnt vmcnt(8)")
    for i in range(4):
        a(f"v_lshlrev_b32 v{R+2*i}, 16, v{XRES+i}")
        a(f"v_and_b32 v{R+2*i+1}, s{sMask}, v{XRES+i}")
    for k in range(8):
        a(f"s_waitcnt vmcnt({7-k})")
        for tau in range(2):
            acc = GACC + 16 * tau
            a(mf(acc, TW + 8 * k + 4 * tau, ACT + 4 * k, acc))
    fstamp(a, 5)
    a("s_nop 10")
    for i in range(1, 4):
        for c in range(2):
            r = GACC + 8 * i + 4 * c
            a(f"ds_write_b128 v{vOff+i}, v[{r}:{r+3}] offset:{2048*(i-1)+1024*c}")
    for i in range(8): a(f"v_add_f32 v{R+i}, v{R+i}, v{GACC+i}")
    a("s_waitcnt lgkmcnt(0)")
    a("s_barrier")
    D = GACC + 32
    for k in range(6):
        a(f"ds_read_b128 v[{D+4*k}:{D+4*k+3}], v{vOff} offset:{1024*k}")
    for i in range(3):
        a(f"s_waitcnt lgkmcnt({4-2*i})")
        for k in range(8): a(f"v_add_f32 v{R+k}, v{R+k}, v{D+8*i+k}")
    for i in range(4):
        a(f"v_cvt_pk_bf16_f32 v{XRES+i}, v{R+2*i}, v{R+2*i+1}")
    a("s_nop 1")
    a(f"v_permlane32_swap_b32 v{XRES}, v{XRES+2}")
    a(f"v_permlane32_swap_b32 v{XRES+1}, v{XRES+3}")
    a(f"buffer_store_dwordx4 v[{XRES}:{XRES+3}], v{vXo}, s[{SWD}:{SWD+3}], s{sT2} offen")
    a.label("F_end")
    fstamp(a, 7)
    a.stamp_flush(11, 0, sW, 8)
    a("s_endpgm")

def gen_fused(name):
    a = Asm()
    a("s_cmp_ge_u32 s2, 256")
    a("s_cbranch_scc1 F_exit")
    if OPT.get("scr") == "1":
        a("s_lshl_b32 s3, s2, 3")
        a("s_lshr_b32 s2, s2, 5")
        a("s_or_b32 s2, s2, s3")
        a("s_and_b32 s2, s2, 255")
    if OPT.get("scr") == "2":
        for sh, mul in ((3, 0x35), (4, 0x4d), (3, 1)):
            a(f"s_lshr_b32 s3, s2, {sh}")
            a("s_xor_b32 s2, s2, s3")
            a(f"s_mul_i32 s2, s2, {mul}")
            a("s_and_b32 s2, s2, 255")
    def endA(a):
        a(f"v_mov_b32 v{vZ}, 0")
        a.c("flag lanes: lane l<10 -> virtual head vh0 + (l>>1), part l&1 (0: holds its first column, 1: its last)")
        vh, col, ad = vT + 4, vT + 5, vT + 6
        a(f"s_mul_i32 s{sT2}, s{sCG}, 96")
        a(f"s_mul_i32 s{sT0}, s{sT2}, 2341")
        a(f"s_lshr_b32 s{sT0}, s{sT0}, 16")
        a(f"v_lshrrev_b32 v{vh}, 1, v{vLane}")
        a(f"v_add_u32 v{vh}, s{sT0}, v{vh}")
        a(f"v_and_b32 v{ad}, 1, v{vLane}")
        a(f"v_mul_u32_u24 v{col}, 27, v{ad}")
        a(f"v_mad_u32_u24 v{col}, v{vh}, 28, v{col}")
        a(f"v_subrev_u32 v{col}, s{sT2}, v{col}")
        a(f"v_cmp_gt_u32 vcc, 96, v{col}")
        a(f"v_lshlrev_b32 v{ad}, 6, v{ad}")
        a(f"v_lshrrev_b32 v{col}, 4, v{vh}")
        a(f"v_lshl_add_u32 v{ad}, v{col}, 7, v{ad}")
        a(f"v_and_b32 v{col}, 15, v{vh}")
        a(f"v_lshl_add_u32 v{ad}, v{col}, 9, v{ad}")
        a(f"v_cndmask_b32 v{ad}, -1, v{ad}, vcc")
        a(f"s_lshl_b32 s{sT3}, s{sRB}, 2")
        a(f"s_add_u32 s{sT3}, s{sT3}, {FQ}")
        xstamp(a, 3)
        signal(a, "F_sq", 0, sT3, ad)
        fstamp(a, 6)
        attention(a)
    def endB(a):
        xstamp(a, 3)
        a(f"v_mov_b32 v{vZ}, 0")
        a(f"s_lshl_b32 s{sT3}, s{sRB}, 7")
        a(f"s_lshl_b32 s{sT0}, s{sCG}, 2")
        a(f"s_add_u32 s{sT3}, s{sT3}, s{sT0}")
        a(f"s_add_u32 s{sT3}, s{sT3}, {FH}")
        signal(a, "F_sh", 1, sT3)
        g2h(a)
        tail(a)
    def endH(a):
        a.c("helper workgroups: wait for all helpers (flags are cleared by then), then take their roles")
        a(f"v_mov_b32 v{vZ}, 0")
        a.c("touch a slice of w_down / wo")
        a("s_load_dwordx2 s[4:5], s[0:1], 16")
        a("s_load_dwordx2 s[6:7], s[0:1], 48")
        a(f"s_lshl_b32 s{sT0}, s2, 3")
        a(f"s_add_u32 s{sT0}, s{sT0}, s{sW}")
        a(f"v_lshlrev_b32 v{vT+1}, 7, v{vLane}")
        a(f"s_mov_b32 s{SWD+2}, {448*896}")
        a("s_waitcnt lgkmcnt(0)")
        a(f"s_cmp_lt_u32 s{sT0}, 196")
        a(f"s_cselect_b32 s{SWD}, s6, s4")
        a(f"s_cselect_b32 s{SWD+1}, s7, s5")
        a(f"s_cselect_b32 s{SWD+2}, {1792*896}, s{SWD+2}")
        a(f"s_cselect_b32 s{sT1}, 0, 196")
        a(f"s_and_b32 s{SWD+1}, s{SWD+1}, 0xffff")
        a(f"s_mov_b32 s{SWD+3}, 0x20000")
        a(f"s_sub_u32 s{sT0}, s{sT0}, s{sT1}")
        a(f"s_lshl_b32 s{sT0}, s{sT0}, 13")
        a(f"buffer_load_dword v{vT+2}, v{vT+1}, s[{SWD}:{SWD+3}], s{sT0} offen")
        a(f"s_mov_b32 s{sT1}, 0x4000")
        a(f"s_cmp_lg_u32 s{sW}, 0")
        a("s_cbranch_scc1 F_hw_ok")
        a.label("F_hw")
        a("s_sleep 32")
        a(f"buffer_load_dword v{vT}, v{vZ}, s[{SDBG}:{SDBG+3}], 0 offen offset:128 sc1")
        a("s_waitcnt vmcnt(0)")
        a(f"v_readfirstlane_b32 s{sT0}, v{vT}")
        a(f"s_cmp_eq_u32 s{sT0}, 1")
        a("s_cbranch_scc1 F_hw_ok")
        a(f"s_sub_u32 s{sT1}, s{sT1}, 1")
        a("s_cbranch_scc0 F_hw")
        a.label("F_hw_ok")
        a("s_barrier")
        a(f"s_cmp_lt_u32 s{sW}, 4")
        a("s_cbranch_scc1 F_att")
        a("s_branch F_g2")
    p1.FUSED = True
    p1.KNAME = name
    p1.gen_p1(a, endA, endB, endH)
    a.label("F_exit")
    a("s_endpgm")
    return kernel_header(name) + a.text(), kernel_desc(name, 256, 64), LDS_F
```

```python
from asmlib import *
from consts import *
import math, os
OPT = dict(kv.split("=") for kv in os.environ.get("OPT", "").split(",") if kv)

XR = 0
FR = 98304
QR = 131072
LDS_P1 = QR + 4 * 6144
AUX = LDS_P1 + 64
SC1 = " sc1"
FUSED = False
KNAME = "k1_kernel"

SX, SWQ, SWA, SWS, SDBG = 16, 20, 24, 28, 56
sW, sRB, sCG, sTT = 32, 33, 34, 35
sOffX, sOffA, sOffQ, sRingA, sRingQ, sCnt = 36, 37, 38, 39, 40, 41
sT0, sT1, sT2, sT3 = 42, 43, 44, 45
sMask, sDelta = 46, 47
sTile, sRingX = 48, 49
sE48 = 50
sColA, sColQ, sRowX, sDq = 52, 53, 54, 55
vLane, vL16, vH, vR, vR2, vFlag = 1, 2, 3, 4, 5, 62
vTr0, vTr1 = 7, 8
vOffA, vOffA2, vOffQ = 9, 10, 11
vT = 12
vSt = 28
vOffQ2 = 40
vXk = 48
vOffX = 52
vZero = 54
WF = 64
XB = 96
XC = 112
RR = 192
ACC = 128

def pstamp(a, i):
    if FUSED and OPT.get("st", "2") == "2" and i != 0:
        return
    if OPT.get("st", "2") == "3" and i not in (0, 6):
        return
    a.stamp(i)

def mf(d, a, b):
    return f"v_mfma_f32_32x32x16_bf16 v[{d}:{d+15}], v[{a}:{a+3}], v[{b}:{b+3}], v[{d}:{d+15}]"

def wreadsA(slot, p):
    return [f"ds_read_b64_tr_b16 v[{WF+24*p+12*k+4*j+2*t}:{WF+24*p+12*k+4*j+2*t+1}], v{vTr0} offset:{slot*6144 + 3072*k + 64*j + 768*t}"
            for k in range(2) for j in range(3) for t in range(2)]

def wreadsB(slot, p):
    return [f"ds_read_b64_tr_b16 v[{WF+16*p+4*j+2*t}:{WF+16*p+4*j+2*t+1}], v{vTr0 if (j&1)==0 else vTr1} offset:{slot*8192 + (j>>1)*2048 + 512*t}"
            for j in range(4) for t in range(2)]

def dmaF(slot):
    g1 = [f"s_add_u32 m0, s{sRingA}, {slot*8192}",
          f"s_nop 0",
          f"buffer_load_dwordx4 v{vOffA}, s[{SWA}:{SWA+3}], s{sOffA} offen lds"]
    g2 = [f"buffer_load_dwordx4 v{vOffA2}, s[{SWA}:{SWA+3}], s{sOffA} offen offset:1024 lds",
          f"s_add_u32 s{sOffA}, s{sOffA}, {16*3584}"]
    return g1, g2

def dmaQ(slot):
    g1 = [f"s_add_u32 m0, s{sRingQ}, {slot*6144}",
          f"s_mov_b64 exec, s[{sE48}:{sE48+1}]",
          f"buffer_load_dwordx4 v{vOffQ}, s[{SWQ}:{SWQ+3}], s{sOffQ} offen lds",
          f"s_mov_b64 exec, -1"]
    g2 = [f"s_mov_b64 exec, s[{sE48}:{sE48+1}]",
          f"buffer_load_dwordx4 v{vOffQ2}, s[{SWQ}:{SWQ+3}], s{sOffQ} offen offset:768 lds",
          f"s_mov_b64 exec, -1",
          f"s_add_u32 s{sOffQ}, s{sOffQ}, {32*2688}"]
    return g1, g2

sSM, sSG = 60, 62
sTab = 14

def dmaX(q):
    x1 = [f"s_mov_b32 m0, s{sRingX}",
          f"s_add_u32 s{sRingX}, s{sRingX}, s{sSM+q}",
          f"buffer_load_dwordx4 v{vOffX}, s[{SX}:{SX+3}], s{sOffX} offen lds"]
    x2 = [f"buffer_load_dwordx4 v{vOffX+1}, s[{SX}:{SX+3}], s{sOffX} offen offset:1024 lds",
          f"s_add_u32 s{sOffX}, s{sOffX}, s{sSG+q}"]
    return x1, x2

def mmA(typ, p):
    out = []
    for k in range(2):
        for j in range(3):
            w, x = WF + 24 * p + 12 * k + 4 * j, XC + 8 * p + 4 * k
            out.append(mf(ACC + 16 * j, w, x) if typ[j] == "Q" else mf(ACC + 16 * j, x, w))
    return out

def mmB(p):
    return [mf(ACC + 64 * th + 16 * j, WF + 16 * p + 4 * j, XB + 8 * p + 4 * th) for j in range(4) for th in range(2)]

AXA = 188
AWA = 176
AXB = 28
AWB = 112

def call(a, cnt, lab, target):
    a(f"s_cmp_lg_u32 s{sCnt}, {cnt}")
    a(f"s_cbranch_scc1 {lab}")
    a(f"s_getpc_b64 s[{sT2}:{sT3}]")
    a(f"s_branch {target}")
    a.label(lab)

def ret(a):
    a(f"s_add_u32 s{sT2}, s{sT2}, 4")
    a(f"s_addc_u32 s{sT3}, s{sT3}, 0")
    a(f"s_setpc_b64 s[{sT2}:{sT3}]")

def loopA(a, typ):
    lab = f"P1_loopA_{typ}"
    a.label(lab)
    for q in range(2):
        p = q
        a("s_waitcnt vmcnt(12) lgkmcnt(0)")
        a("s_barrier")
        mm = mmA(typ, p)
        if q == 0:
            a(f"s_cmp_gt_u32 s{sCnt}, 4")
            a(f"s_cbranch_scc1 {lab}_n0")
            a(f"s_getpc_b64 s[{sT2}:{sT3}]")
            a(f"s_branch P1_side")
            a.label(f"{lab}_n0")
        if q == 0:
            tail = [f"s_cmp_eq_u32 s{sCnt}, 2", f"s_cselect_b32 s{sT1}, {(-5*16384) & 0xffffffff}, s{sRowX}",
                    f"v_add_u32 v{vXk}, s{sT1}, v{vXk}", f"v_add_u32 v{vXk+1}, s{sT1}, v{vXk+1}",
                    f"v_add_u32 v{vXk+2}, s{sT1}, v{vXk+2}", f"v_add_u32 v{vXk+3}, s{sT1}, v{vXk+3}",
                    f"v_add_u32 v{vTr0}, s{sDq}, v{vTr0}"]
        else:
            tail = [f"s_add_u32 s{sRingA}, s{sRingA}, s{sDelta}", f"s_add_u32 s{sRingQ}, s{sRingQ}, s{sDq}",
                    f"s_sub_u32 s{sDelta}, 0, s{sDelta}", f"s_sub_u32 s{sDq}, 0, s{sDq}",
                    f"s_sub_u32 s{sCnt}, s{sCnt}, 1", f"s_cmp_lg_u32 s{sCnt}, 0"]
        ks0 = 2 if q == 0 else 0
        rx = [f"ds_read_b128 v[{XC+8*(p^1)+4*k}:{XC+8*(p^1)+4*k+3}], v{vXk+ks0+k}" for k in range(2)]
        wr_ = wreadsA(1 - q, p ^ 1)
        rd = [rx[0]] + wr_[:6] + [rx[1]] + wr_[6:]
        f1, f2 = dmaF(q)
        q1, q2 = dmaQ(q)
        x1, x2 = dmaX(q)
        seq = f1 + rd[:3] + [mm[0]] + f2 + rd[3:6] + [mm[1]] + q1 + rd[6:9] + [mm[2]] + q2 + rd[9:12] + [mm[3]] + x1 + rd[12:] + [mm[4]] + x2 + tail + [mm[5]]
        for l in seq: a(l)
    a(f"s_cbranch_scc1 {lab}")
    a(f"s_getpc_b64 s[{sT2}:{sT3}]")
    a("s_branch P1_auxA")
    for j in range(3):
        w, x = AWA + 4 * j, AXA
        a(mf(ACC + 16 * j, w, x) if typ[j] == "Q" else mf(ACC + 16 * j, x, w))

def pair_dma(a, base, ks):
    a(f"s_add_u32 s{sRingX}, s{sColQ}, {base}")
    a(f"s_add_u32 s{sOffX}, s{sColA}, {ks*16*3584}")
    for q in range(2):
        for g in dmaX(q):
            for l in g: a(l)

BTAB = [6, 7, 6, 7, 6, 7, 6, 7, 6, 1, 2, 3, 8, 7, 7]
NBAR = int(OPT.get("nbar", "19"))
assert 18 <= NBAR <= 21

def loopB(a):
    lab = "P1_loopB"
    a.label(lab)
    for q in range(2):
        p = q
        a(f"s_bitcmp0_b32 s{sDq}, {q}")
        a(f"s_cbranch_scc1 {lab}_b{q}")
        a("s_barrier")
        a.label(f"{lab}_b{q}")
        mm = mmB(p)
        if q == 0:
            tail = [f"s_bitcmp1_b32 s{sCnt}, 0", f"s_cselect_b32 s{sT1}, 16384, 0",
                    f"s_cmp_eq_u32 s{sCnt}, 3", f"s_cselect_b32 s{sT1}, {(-5*16384) & 0xffffffff}, s{sT1}",
                    f"v_xor_b32 v{vXk}, 64, v{vXk}", f"v_add_u32 v{vXk}, s{sT1}, v{vXk}", f"v_xor_b32 v{vXk+1}, 32, v{vXk}",
                    f"s_lshr_b64 s[{sTab}:{sTab+1}], s[{sTab}:{sTab+1}], 4", f"s_and_b32 s{sT1}, s{sTab}, 15", f"s_lshl_b32 s{sT1}, s{sT1}, 14",
                    f"v_add_u32 v{vTr0}, s{sT1}, v{vOffA}", f"v_add_u32 v{vTr1}, s{sT1}, v{vOffA2}"]
        else:
            tail = [f"s_lshr_b32 s{sDq}, s{sDq}, 2", f"s_sub_u32 s{sCnt}, s{sCnt}, 1", f"s_cmp_lg_u32 s{sCnt}, 0"]
        xa = vXk + 1 if q == 0 else vXk
        rx = [f"ds_read_b128 v[{XB+8*(p^1)+4*th}:{XB+8*(p^1)+4*th+3}], v{xa} offset:{4096*th}" for th in range(2)]
        wr_ = wreadsB(1 - q, p ^ 1)
        rd = [rx[0]] + wr_[:2] + [rx[1]] + wr_[2:]
        nr = [2, 2, 2, 2, 2, 0, 0]
        for g in range(8):
            a(mm[g])
            if g == 0 and q == 1:
                a(f"s_cmp_gt_u32 s{sCnt}, s{sColQ}")
                a(f"s_cbranch_scc1 {lab}_n1")
                a(f"s_getpc_b64 s[{sT2}:{sT3}]")
                a(f"s_branch P1_sideB")
                a.label(f"{lab}_n1")
            if g < 7:
                for l in rd[:nr[g]]: a(l)
                rd = rd[nr[g]:]
            if g == 5:
                for l in tail[:len(tail)//2]: a(l)
            if g == 6:
                for l in tail[len(tail)//2:]: a(l)
        assert not rd
        a("s_waitcnt lgkmcnt(0)")
    a(f"s_cbranch_scc1 {lab}")
    if OPT.get("st") == "3": a.stamp(2)
    a.c("column-sum words still all-ones were not written yet: load again")
    a(f"s_mov_b32 s{sDq}, 0x2000")
    a.label("P1_bchk")
    a("s_waitcnt vmcnt(0) lgkmcnt(0)")
    a(f"v_max3_u32 v{vT+4}, v{AWB}, v{AWB+1}, v{AWB+2}")
    for i in range(3, 15, 2):
        a(f"v_max3_u32 v{vT+4}, v{vT+4}, v{AWB+i}, v{AWB+i+1}")
    a(f"v_max_u32 v{vT+4}, v{vT+4}, v{AWB+15}")
    a(f"v_cmp_eq_u32 vcc, -1, v{vT+4}")
    a("s_cbranch_vccz P1_bok")
    a(f"s_sub_u32 s{sDq}, s{sDq}, 1")
    a("s_cbranch_scc1 P1_bok")
    a("s_sleep 8")
    a(f"s_getpc_b64 s[{sT2}:{sT3}]")
    a("s_branch P1_auxB")
    a("s_branch P1_bchk")
    a.label("P1_bok")
    for j in range(4):
        for th in range(2):
            a(mf(ACC + 64 * th + 16 * j, AWB + 4 * j, AXB + 4 * th))

def waitgo(a, name, which, sleep):
    a(f"s_mov_b32 s{sT1}, 0x4000")
    a.label(f"{name}_l")
    a(f"v_readfirstlane_b32 s{sT0}, v{vFlag+which}")
    a(f"s_cmp_eq_u32 s{sT0}, 1")
    a(f"s_cbranch_scc1 {name}_ok")
    a(f"s_sub_u32 s{sT1}, s{sT1}, 1")
    a(f"s_cbranch_scc1 {name}_ok")
    a(f"buffer_load_dwordx2 v[{vFlag}:{vFlag+1}], v{vZero}, s[{SDBG}:{SDBG+3}], 0 offen offset:128 sc1")
    a(f"s_sleep {sleep}")
    a("s_waitcnt vmcnt(0)")
    a(f"s_branch {name}_l")
    a.label(f"{name}_ok")

def aux_blocks(a):
    a.c("A side jobs at the top of bodies 3..6 (cnt 4..1)")
    a.label("P1_side")
    a(f"s_cmp_lg_u32 s{sCnt}, 4")
    a("s_cbranch_scc1 P1_s3")
    a(f"s_lshl_b32 s{sRingX}, s{sTT}, 12")
    ret(a)
    a.label("P1_s3")
    a(f"s_cmp_lg_u32 s{sCnt}, 3")
    a("s_cbranch_scc1 P1_s2")
    a.c("the x stream now carries gate/up rows: k-steps 18,19 -> x slot 1")
    a(f"s_mov_b64 s[{SX}:{SX+1}], s[{SWA}:{SWA+1}]")
    a(f"s_mov_b32 s{SX+2}, s{SWA+2}")
    a(f"v_mov_b32 v{vOffX}, v{vOffA}")
    a(f"v_mov_b32 v{vOffX+1}, v{vOffA2}")
    a(f"s_mov_b32 s{sSM}, 8192")
    a(f"s_mov_b32 s{sSM+1}, 8192")
    a(f"s_mov_b32 s{sSG}, {16*3584}")
    a(f"s_mov_b32 s{sSG+1}, {16*3584}")
    a(f"s_add_u32 s{sRingX}, s{sColQ}, 16384")
    a(f"s_add_u32 s{sOffX}, s{sColA}, {18*16*3584}")
    ret(a)
    a.label("P1_s2")
    a(f"s_cmp_lg_u32 s{sCnt}, 2")
    a("s_cbranch_scc1 P1_s1")
    a(f"s_mov_b32 s{sRingX}, 0x30000")
    a(f"s_mov_b32 s{sOffX}, 0x40000000")
    a(f"s_mov_b32 s{sRingQ}, 0x34000")
    ret(a)
    a.label("P1_s1")
    a(f"s_add_u32 s{sRingX}, s{sColQ}, 32768")
    a(f"s_add_u32 s{sOffX}, s{sColA}, {20*16*3584}")
    ret(a)
    a.label("P1_auxA")
    a(f"v_and_b32 v{vT}, 0x1f0, v{vL16}")
    a(f"s_lshl_b32 s{sT0}, s{sTT}, 9")
    a(f"s_add_u32 s{sT0}, s{sT0}, {AUX}")
    a(f"v_add_u32 v{vT+1}, s{sT0}, v{vT}")
    a(f"s_lshl_b32 s{sT0}, s{sTT}, 7")
    a(f"s_add_u32 s{sT0}, s{sT0}, {AUX+3584}")
    a(f"v_lshrrev_b32 v{vT+2}, 2, v{vT}")
    a(f"v_add_u32 v{vT+2}, s{sT0}, v{vT+2}")
    a(f"v_lshl_add_u32 v{vT+3}, v{vH}, 4, s{sT0}")
    a(f"v_add_u32 v{vT}, {AUX+2048}, v{vT}")
    a(f"v_mov_b64 v[{AXA}:{AXA+1}], 0")
    a(f"v_mov_b64 v[{AXA+2}:{AXA+3}], 0")
    a("s_waitcnt vmcnt(12) lgkmcnt(0)")
    a("s_barrier")
    pair_dma(a, QR, 24)
    bar15(a)
    a(f"v_mov_b32 v{vT+4}, {LDS_P1+36}")
    a(f"s_mov_b32 s{sT1}, 0x100000")
    a.label("P1_aw")
    a(f"ds_read_b32 v{vT+5}, v{vT+4}")
    a("s_waitcnt lgkmcnt(0)")
    a(f"v_readfirstlane_b32 s{sT0}, v{vT+5}")
    a(f"s_sub_u32 s{sT1}, s{sT1}, 1")
    a(f"s_cselect_b32 s{sT0}, 1, s{sT0}")
    a(f"s_cmp_eq_u32 s{sT0}, 1")
    a("s_cbranch_scc1 P1_aw_ok")
    a("s_sleep 2")
    a("s_branch P1_aw")
    a.label("P1_aw_ok")
    a("s_mov_b32 exec_hi, 0")
    a(f"ds_read_b128 v[{AXA}:{AXA+3}], v{vT+1}")
    a("s_mov_b32 exec_hi, -1")
    for j in range(3):
        a(f"ds_read_b128 v[{AWA+4*j}:{AWA+4*j+3}], v{vT} offset:{512*j}")
    a(f"ds_read_b32 v{vR}, v{vT+2}")
    for aa in range(4):
        a(f"ds_read_b128 v[{RR+4*aa}:{RR+4*aa+3}], v{vT+3} offset:{32*aa}")
    a("s_waitcnt lgkmcnt(0)")
    ret(a)
    a.c("B side jobs. wave 4: wait for the helpers' start flag, then fetch their operands until all words are written; put them into LDS")
    AL = 28
    SB = int(OPT.get('sb', '4'))
    a.label("P1_sideB")
    a(f"s_cmp_le_u32 s{sCnt}, {SB}")
    a("s_cbranch_scc1 P1_auxB")
    a(f"s_movk_i32 s{sT1}, 0x2000")
    a.label("P1_sb0")
    a(f"s_cmp_lg_u32 s{sCnt}, 6")
    a("s_cbranch_scc1 P1_sbn")
    a("s_waitcnt vmcnt(0)")
    a.label("P1_sbn")
    a(f"s_getreg_b32 s{sT0}, hwreg(HW_REG_IB_STS)")
    a(f"s_and_b32 s{sT0}, s{sT0}, 0x00c0000f")
    a("s_cbranch_scc1 P1_sbr")
    a(f"v_readfirstlane_b32 s{sT0}, v{vFlag}")
    a(f"s_cmp_eq_u32 s{sT0}, 1")
    a("s_cbranch_scc1 P1_sbd")
    a(f"buffer_load_dwordx2 v[{vFlag}:{vFlag+1}], v{vZero}, s[{SDBG}:{SDBG+3}], 0 offen offset:128 sc1")
    a.label("P1_sba")
    a(f"s_cmp_lg_u32 s{sCnt}, 6")
    a("s_cbranch_scc1 P1_sbr")
    a(f"s_sub_u32 s{sT1}, s{sT1}, 1")
    a("s_cbranch_scc0 P1_sb0")
    a("s_branch P1_sbw")
    a.label("P1_sbr")
    ret(a)
    a.label("P1_sbd")
    a(f"v_max3_u32 v{vT+4}, v{AL}, v{AL+1}, v{AL+2}")
    for i in range(3, 15, 2):
        a(f"v_max3_u32 v{vT+4}, v{vT+4}, v{AL+i}, v{AL+i+1}")
    a(f"v_max_u32 v{vT+4}, v{vT+4}, v{AL+15}")
    a(f"v_cmp_eq_u32 vcc, -1, v{vT+4}")
    a("s_cbranch_vccz P1_sbw")
    a(f"s_lshl_b32 s{sT0}, s{sRB}, 11")
    a(f"s_add_u32 s{sT0}, s{sT0}, {WS_AX}")
    a(f"buffer_load_dwordx4 v[{AL}:{AL+3}], v{vL16}, s[{SWS}:{SWS+3}], s{sT0} offen sc1")
    a(f"buffer_load_dwordx4 v[{AL+4}:{AL+7}], v{vL16}, s[{SWS}:{SWS+3}], s{sT0} offen offset:1024 sc1")
    a(f"s_mul_i32 s{sT0}, s{sCG}, {96*16}")
    a(f"s_add_u32 s{sT0}, s{sT0}, {WS_AW}")
    a(f"buffer_load_dwordx4 v[{AL+8}:{AL+11}], v{vL16}, s[{SWS}:{SWS+3}], s{sT0} offen sc1")
    a("s_mov_b32 exec_hi, 0")
    a(f"buffer_load_dwordx4 v[{AL+12}:{AL+15}], v{vL16}, s[{SWS}:{SWS+3}], s{sT0} offen offset:1024 sc1")
    a(f"s_lshl_b32 s{sT0}, s{sRB}, 9")
    a(f"s_add_u32 s{sT0}, s{sT0}, {WS_AR-512}")
    a("s_not_b64 exec, exec")
    a(f"buffer_load_dwordx4 v[{AL+12}:{AL+15}], v{vL16}, s[{SWS}:{SWS+3}], s{sT0} offen sc1")
    a("s_mov_b64 exec, -1")
    a("s_branch P1_sba")
    a.label("P1_sbw")
    if OPT.get("st") == "3": a("s_memtime s[66:67]")
    a(f"v_add_u32 v{vT+4}, {AUX}, v{vL16}")
    for k in range(4):
        a(f"ds_write_b128 v{vT+4}, v[{AL+4*k}:{AL+4*k+3}] offset:{1024*k}")
    a(f"v_mov_b32 v{vT+4}, {LDS_P1+36}")
    a(f"v_mov_b32 v{vT+5}, 1")
    a(f"ds_write_b32 v{vT+4}, v{vT+5}")
    a(f"s_movk_i32 s{sColQ}, {SB}")
    ret(a)
    a.label("P1_auxB")
    a(f"s_mov_b32 s{sColQ}, 0")
    a(f"v_and_b32 v{vT}, 0x1f0, v{vL16}")
    a(f"s_lshl_b32 s{sT0}, s{sCG}, 1")
    a(f"s_lshr_b32 s{sT1}, s{sTT}, 1")
    a(f"s_add_u32 s{sT0}, s{sT0}, s{sT1}")
    a(f"s_lshl_b32 s{sT0}, s{sT0}, 10")
    a(f"s_add_u32 s{sT0}, s{sT0}, {WS_AW+AW_G}")
    a(f"s_add_u32 s{sT1}, s{sT0}, {AW_U-AW_G}")
    for j in range(4):
        a(f"buffer_load_dwordx4 v[{AWB+4*j}:{AWB+4*j+3}], v{vT}, s[{SWS}:{SWS+3}], s{sT0 if j < 2 else sT1} offen offset:{512*(j&1)} sc1")
    a(f"s_and_b32 s{sT1}, s{sTT}, 1")
    a(f"s_lshl_b32 s{sT0}, s{sT1}, 10")
    a(f"s_add_u32 s{sT0}, s{sT0}, {AUX}")
    a(f"v_add_u32 v{vT+1}, s{sT0}, v{vT}")
    a(f"s_lshl_b32 s{sT0}, s{sT1}, 8")
    a(f"s_add_u32 s{sT0}, s{sT0}, {AUX+3584}")
    a(f"v_lshrrev_b32 v{vT+2}, 2, v{vT}")
    a(f"v_add_u32 v{vT+2}, s{sT0}, v{vT+2}")
    for k in range(0, 8, 2):
        a(f"v_mov_b64 v[{AXB+k}:{AXB+k+1}], 0")
    a(f"ds_read_b32 v{vR}, v{vT+2}")
    a(f"ds_read_b32 v{vR2}, v{vT+2} offset:128")
    a("s_mov_b32 exec_hi, 0")
    for th in range(2):
        a(f"ds_read_b128 v[{AXB+4*th}:{AXB+4*th+3}], v{vT+1} offset:{512*th}")
    a("s_mov_b32 exec_hi, -1")
    ret(a)

def epi_B(a):
    c0 = -2.0 * math.sqrt(2.0 / math.pi) * math.log2(math.e)
    c1 = c0 * 0.044715
    a.c("epilogue B: gelu(g)*u")
    if OPT.get("gp", "2") != "0": a(f"s_setprio {OPT.get('gp', '2')}")
    a(f"s_and_b32 s{sT1}, s{sTT}, 1")
    a(f"s_lshl_b32 s{sT1}, s{sT1}, 1")
    a(f"s_lshl_b32 s{sT2}, s{sRB}, 2")
    a(f"s_add_u32 s{sT1}, s{sT1}, s{sT2}")
    a(f"s_mul_i32 s{sT1}, s{sT1}, 112")
    a(f"s_lshl_b32 s{sT2}, s{sCG}, 3")
    a(f"s_add_u32 s{sT1}, s{sT1}, s{sT2}")
    a(f"s_lshr_b32 s{sT2}, s{sTT}, 1")
    a(f"s_lshl_b32 s{sT2}, s{sT2}, 2")
    a(f"s_add_u32 s{sT1}, s{sT1}, s{sT2}")
    a(f"s_lshl_b32 s{sT1}, s{sT1}, 10")
    a(f"s_add_u32 s{sT1}, s{sT1}, {WS_H}")
    a(f"s_add_u32 s{sT2}, s{sT1}, {112*1024}")
    KC = 28
    for th in range(2):
        k0, k1, ir2 = KC + 6 * th, KC + 6 * th + 2, KC + 6 * th + 4
        r = vR if th == 0 else vR2
        a(f"v_mul_f32 v{ir2}, v{r}, v{r}")
        a(f"v_mul_f32 v{k0}, {fhex(c0)}, v{r}")
        a(f"v_mul_f32 v{k1}, v{ir2}, v{r}")
        a(f"v_mul_f32 v{k1}, {fhex(c1)}, v{k1}")
        a(f"v_rcp_f32 v{ir2}, v{ir2}")
        a(f"v_mov_b32 v{k0+1}, v{k0}")
        a(f"v_mov_b32 v{k1+1}, v{k1}")
        a(f"v_mov_b32 v{ir2+1}, v{ir2}")
    T = vT
    held = []
    pr = lambda r: f"v[{r}:{r+1}]"
    for th in range(2):
        k0, k1, ir2 = KC + 6 * th, KC + 6 * th + 2, KC + 6 * th + 4
        for p in range(2):
            G = ACC + 64 * th + 16 * p
            U = G + 32
            out = WF + 8 * (2 * th + p)
            for i0 in range(0, 16, 8):
                for k in range(0, 8, 2): a(f"v_pk_mul_f32 {pr(T+k)}, {pr(G+i0+k)}, {pr(G+i0+k)}")
                for k in range(0, 8, 2): a(f"v_pk_fma_f32 {pr(T+k)}, {pr(T+k)}, {pr(k1)}, {pr(k0)}")
                for k in range(0, 8, 2): a(f"v_pk_mul_f32 {pr(T+k)}, {pr(T+k)}, {pr(G+i0+k)}")
                for k in range(8): a(f"v_exp_f32 v{T+k}, v{T+k}")
                for k in range(0, 8, 2): a(f"v_pk_mul_f32 {pr(U+i0+k)}, {pr(U+i0+k)}, {pr(G+i0+k)}")
                for k in range(0, 8, 2): a(f"v_pk_fma_f32 {pr(T+k)}, {pr(T+k)}, {pr(ir2)}, {pr(ir2)}")
                for k in range(8): a(f"v_rcp_f32 v{T+k}, v{T+k}")
                a("s_nop 0")
                for k in range(0, 8, 2): a(f"v_pk_mul_f32 {pr(U+i0+k)}, {pr(U+i0+k)}, {pr(T+k)}")
                for k in range(4): a(f"v_cvt_pk_bf16_f32 v{out+i0//2+k}, v{U+i0+2*k}, v{U+i0+2*k+1}")
                s = i0 // 8
                so = sT1 if th == 0 else sT2
                st_ = f"buffer_store_dwordx4 v[{out+4*s}:{out+4*s+3}], v{vL16}, s[{SWS}:{SWS+3}], s{so} offen offset:{(2*p+s)*1024}{STF()}"
                if OPT.get("hold", "1") == "1": held.append(st_)
                else: a(st_)
    if held:
        a.c("the h stores wait until the attention waves have their first loads out")
        a(f"s_setprio {OPT.get('bp', '0')}")
        if OPT.get("st") == "3": a.stamp(4)
        a(f"v_mov_b32 v{vT+8}, {LDS_P1+40}")
        a(f"s_mov_b32 s{sT3}, 0x100000")
        a.label("P1_hw")
        a(f"ds_read_b32 v{vT+9}, v{vT+8}")
        a("s_waitcnt lgkmcnt(0)")
        a(f"v_readfirstlane_b32 s{sT0}, v{vT+9}")
        a(f"s_sub_u32 s{sT3}, s{sT3}, 1")
        a(f"s_cselect_b32 s{sT0}, 4, s{sT0}")
        a(f"s_cmp_ge_u32 s{sT0}, 4")
        a("s_cbranch_scc1 P1_hw_ok")
        a("s_sleep 2")
        a("s_branch P1_hw")
        a.label("P1_hw_ok")
        if OPT.get("st") == "3": a.stamp(5)
        for l in held: a(l)

def STF():
    return SC1 if OPT.get("sc1", "1") == "1" else ""

def epi_A(a):
    a.c("epilogue A")
    a(f"s_mul_i32 s{sT0}, s{sCG}, 3")
    for j in range(3):
        a(f"s_cmp_lt_u32 s{sT0}, {14-j}")
        a(f"s_cselect_b32 s{sT1}, {fhex(QSCALE)}, 1.0")
        a(f"v_mul_f32 v{vT+6+2*j}, s{sT1}, v{vR}")
        a(f"v_mul_f32 v{vT+7+2*j}, s{sT1}, v{vR}")
    P0, P1 = vT + 4, vT + 5
    a(f"v_mov_b32 v{P0}, 0x3f803f80")
    a(f"v_mov_b32 v{P1}, 0x00003f80")
    a(f"s_mul_i32 s{sT2}, s{sTile}, {VT}")
    a(f"s_lshl_b32 s{sT3}, s{sT0}, 9")
    a(f"s_add_u32 s{sT2}, s{sT2}, s{sT3}")
    a(f"s_add_u32 s{sT2}, s{sT2}, {WS_V - 28*512}")
    a(f"s_add_u32 s{sT3}, s{sT2}, {VT//2}")
    for j in range(3):
        A = ACC + 16 * j
        out = WF + 12 * j
        a(f"s_cmp_ge_u32 s{sT0}, {28-j}")
        a(f"s_cbranch_scc1 P1_eV{j}")
        for i in range(0, 16, 2):
            a(f"v_pk_mul_f32 v[{A+i}:{A+i+1}], v[{A+i}:{A+i+1}], v[{vT+6+2*j}:{vT+7+2*j}]")
        for i in range(8):
            a(f"v_cvt_pk_bf16_f32 v{out+6*(i>>2)+(i&3)}, v{A+2*i}, v{A+2*i+1}")
        for pp in range(2):
            a(f"v_mov_b64 v[{out+6*pp+4}:{out+6*pp+5}], v[{P0}:{P1}]")
            a(f"v_cmp_gt_i32 s[{4+2*pp}:{5+2*pp}], 0, v{vSt+6+2*j+pp}")
        for pp in range(2):
            o = out + 6 * pp
            a(f"v_permlane32_swap_b32 v{o}, v{o+2}")
            a(f"v_permlane32_swap_b32 v{o+1}, v{o+3}")
        for pp in range(2):
            o = out + 6 * pp
            a(f"buffer_store_dwordx4 v[{o+2}:{o+5}], v{vSt+6+2*j+pp}, s[{SWS}:{SWS+3}], 0 offen{STF()}")
        a("s_nop 0")
        for pp in range(2):
            o = out + 6 * pp
            a(f"v_cndmask_b32 v{o+2}, v{P0}, v{o+2}, s[{4+2*pp}:{5+2*pp}]")
            a(f"v_cndmask_b32 v{o+3}, v{P1}, v{o+3}, s[{4+2*pp}:{5+2*pp}]")
        for pp in range(2):
            o = out + 6 * pp
            a(f"buffer_store_dwordx4 v[{o}:{o+3}], v{vSt+2*j+pp}, s[{SWS}:{SWS+3}], 0 offen{STF()}")
        if j == 0: a("s_waitcnt vmcnt(4)")
        a(f"s_branch P1_eN{j}")
        a.label(f"P1_eV{j}")
        for i in range(0, 16, 2):
            a(f"v_pk_mul_f32 v[{A+i}:{A+i+1}], v[{A+i}:{A+i+1}], v[{RR+i}:{RR+i+1}]")
        for i in range(8):
            a(f"v_cvt_pk_bf16_f32 v{out+i}, v{A+2*i}, v{A+2*i+1}")
        for s in range(2):
            a(f"buffer_store_dwordx4 v[{out+4*s}:{out+4*s+3}], v{vT+12}, s[{SWS}:{SWS+3}], s{sT2+s} offen offset:{512*j}{STF()}")
        if j == 0: a("s_waitcnt vmcnt(2)")
        a.label(f"P1_eN{j}")
        if j == 0:
            if OPT.get("st") == "3": a.stamp(4)
            a("s_barrier")
            if OPT.get("st") == "3": a.stamp(5)

def bar15(a):
    a("s_waitcnt vmcnt(4)")
    if OPT.get("st") == "3": a.stamp(1)
    a("s_barrier")
    pair_dma(a, 3 * 16384, 22)
    pair_dma(a, FR + 16384, 26)
    if OPT.get("st") == "3": a.stamp(2)

def split3(a, src, t, o1, o2, o3):
    a(f"v_and_b32 v{o1}, s{sMask}, v{src}")
    a(f"v_sub_f32 v{t}, v{src}, v{o1}")
    a(f"v_and_b32 v{o2}, s{sMask}, v{t}")
    a(f"v_sub_f32 v{t}, v{t}, v{o2}")
    a(f"v_and_b32 v{o3}, s{sMask}, v{t}")

def helper(a):
    sHid, sU, sPass = sCnt, sRingA, sRingQ
    a.label("P1_help")
    a(f"s_lshl_b32 s{sHid}, s{sRB}, 1")
    a(f"s_add_u32 s{sHid}, s{sHid}, s{sCG}")
    a(f"s_sub_u32 s{sHid}, s{sHid}, 14")
    a.c("wave 0: clear this launch's flags, mark everything this helper will publish as not written")
    a(f"v_mov_b64 v[92:93], -1")
    a(f"v_mov_b64 v[94:95], -1")
    a(f"s_lshl_b32 s{sT0}, s{sW}, 5")
    a(f"s_add_u32 s{sT0}, s{sT0}, s{sHid}")
    a(f"s_cmp_lt_u32 s{sT0}, 77")
    a(f"s_cselect_b32 s{sT1}, {WS_AW}, -1")
    a(f"s_cselect_b32 s{sT0}, s{sT0}, 0")
    a(f"s_lshl_b32 s{sT0}, s{sT0}, 10")
    a(f"s_add_u32 s{sOffQ}, s{sT0}, s{sT1}")
    a(f"s_cmp_lg_u32 s{sW}, 0")
    a("s_cbranch_scc1 P1_hc")
    a(f"buffer_store_dwordx4 v[92:95], v{vL16}, s[{SWS}:{SWS+3}], s{sOffQ} offen sc1")
    a(f"s_add_u32 s{sT0}, s{sOffQ}, 32768")
    a(f"buffer_store_dwordx4 v[92:95], v{vL16}, s[{SWS}:{SWS+3}], s{sT0} offen sc1")
    a(f"s_add_u32 s{sT0}, s{sOffQ}, 65536")
    a(f"buffer_store_dwordx4 v[92:95], v{vL16}, s[{SWS}:{SWS+3}], s{sT0} offen sc1")
    a(f"s_lshl_b32 s{sT0}, s{sHid}, 10")
    a(f"s_add_u32 s{sT0}, s{sT0}, {WS_AX}")
    a(f"buffer_store_dwordx4 v[92:95], v{vL16}, s[{SWS}:{SWS+3}], s{sT0} offen sc1")
    a(f"s_lshl_b32 s{sT0}, s{sHid}, 8")
    a(f"s_add_u32 s{sT0}, s{sT0}, {WS_AR}")
    a("s_mov_b64 exec, 0xffff")
    a(f"buffer_store_dwordx4 v[92:95], v{vL16}, s[{SWS}:{SWS+3}], s{sT0} offen sc1")
    a(f"s_mul_i32 s{sT0}, s{sHid}, 384")
    a(f"s_add_u32 s{sT0}, s{sT0}, {WS_FLAG}")
    a("s_mov_b64 exec, 0xffffff")
    a(f"buffer_store_dwordx4 v[{vT+8}:{vT+11}], v{vL16}, s[{SWS}:{SWS+3}], s{sT0} offen sc1")
    a(f"v_mov_b32 v61, 1")
    a("s_mov_b64 exec, 1")
    a("s_waitcnt vmcnt(0)")
    a(f"buffer_atomic_add v61, v{vZero}, s[{SDBG}:{SDBG+3}], 0 offen sc0 sc1")
    a("s_waitcnt vmcnt(0)")
    a(f"v_readfirstlane_b32 s{sT0}, v61")
    a(f"v_mov_b32 v61, 1")
    a(f"s_cmp_lg_u32 s{sT0}, 31")
    a("s_cbranch_scc1 P1_hg")
    a(f"buffer_store_dword v61, v{vZero}, s[{SDBG}:{SDBG+3}], 0 offen offset:128 sc1")
    a.label("P1_hg")
    a("s_mov_b64 exec, -1")
    a.label("P1_hc")
    XD = 64
    WD = 128
    a(f"v_mul_u32_u24 v{vT+1}, 896, v{vT+4}")
    a(f"v_lshl_add_u32 v{vT+3}, v{vT+5}, 4, v{vT+1}")
    a(f"s_lshl_b32 s{sTile}, s{sHid}, 3")
    a(f"s_add_u32 s{sTile}, s{sTile}, s{sW}")
    a(f"s_mul_i32 s{sRowX}, s{sTile}, {8*896}")
    for i in range(7):
        a(f"buffer_load_dwordx4 v[{XD+4*i}:{XD+4*i+3}], v{vT+3}, s[{SX}:{SX+3}], s{sRowX} offen offset:{128*i}")
    a.c("unit loads: wave -> 56 rows, lane -> (row lane>>3, chunk lane&7)")
    a(f"s_mov_b32 s{SWA+3}, 0x20000")
    def uload(u):
        a(f"s_add_u32 s{sU}, s{sHid}, {32*u}")
        if u == 0:
            a(f"s_cmp_lt_u32 s{sU}, 21")
            a(f"s_cselect_b32 s{SWA}, s6, s8")
            a(f"s_cselect_b32 s{SWA+1}, s7, s9")
            a(f"s_cselect_b32 s{sT0}, 0, 21")
            a(f"s_movk_i32 s{sT1}, 3584")
            a(f"s_cselect_b32 s{sT1}, 2688, s{sT1}")
        elif u == 1:
            a(f"s_cmp_lt_u32 s{sU}, 49")
            a(f"s_cselect_b32 s{SWA}, s8, s10")
            a(f"s_cselect_b32 s{SWA+1}, s9, s11")
            a(f"s_cselect_b32 s{sT0}, 21, 49")
            a(f"s_movk_i32 s{sT1}, 3584")
        else:
            a(f"s_mov_b64 s[{SWA}:{SWA+1}], s[10:11]")
            a(f"s_movk_i32 s{sT0}, 49")
        a(f"s_and_b32 s{SWA+1}, s{SWA+1}, 0xffff")
        if u < 2:
            a(f"s_mul_i32 s{SWA+2}, s{sT1}, 448")
            a(f"v_mul_u32_u24 v51, s{sT1}, v{vT+4}")
            a(f"v_lshl_add_u32 v51, v{vT+5}, 4, v51")
            if u == 0:
                a(f"s_mul_i32 s{sT3}, s{sW}, 56")
            else:
                a(f"s_sub_u32 s{sT3}, s{sW}, 1")
                a(f"s_lshl_b32 s{sT3}, s{sT3}, 6")
            a(f"s_mul_i32 s{sT3}, s{sT3}, s{sT1}")
            a(f"s_lshl_b32 s{sT2}, s{sT1}, 3")
        else:
            a(f"s_cmp_lt_u32 s{sU}, 77")
            a(f"s_cselect_b32 s{SWA+2}, s{SWA+2}, 0")
        a(f"s_sub_u32 s{sT0}, s{sU}, s{sT0}")
        a(f"s_lshl_b32 s{sT0}, s{sT0}, 7")
        a(f"s_add_u32 s{sOffA}, s{sT3}, s{sT0}")
        n = 7 if u == 0 else 8
        for i in range(n):
            r = WD + 32 * u + 4 * i
            a(f"buffer_load_dwordx4 v[{r}:{r+3}], v51, s[{SWA}:{SWA+3}], s{sOffA} offen")
            if i < n - 1: a(f"s_add_u32 s{sOffA}, s{sOffA}, s{sT2}")
    uload(0)
    a(f"v_mov_b32 v{vT+2}, 0x3f803f80")
    a(f"v_mov_b32 v43, 1.0")
    pstamp(a, 1)
    a.c("statistics (two pass)")
    S0, S1, ONE0, ONE1, D0, D1 = 40, 41, 42, 43, 44, 45
    a(f"v_mov_b64 v[{S0}:{S1}], 0")
    a(f"v_mov_b32 v{ONE0}, 0x00003f80")
    a("s_waitcnt vmcnt(7)")
    for i in range(28):
        a(f"v_dot2c_f32_bf16 v{S0+(i&1)}, v{XD+i}, v{vT+2}")
    def red8(r):
        a("s_nop 2")
        a(f"v_add_f32 v{r}, v{S0}, v{S1}")
        a("s_nop 1")
        a(f"v_add_f32_dpp v{r}, v{r}, v{r} quad_perm:[1,0,3,2] row_mask:0xf bank_mask:0xf")
        a("s_nop 1")
        a(f"v_add_f32_dpp v{r}, v{r}, v{r} quad_perm:[2,3,0,1] row_mask:0xf bank_mask:0xf")
        a("s_nop 1")
        a(f"v_add_f32_dpp v{r}, v{r}, v{r} row_half_mirror row_mask:0xf bank_mask:0xf")
    NM = 46
    red8(NM)
    a(f"v_mul_f32 v{NM}, {fhex(-1.0/448)}, v{NM}")
    a(f"v_mov_b64 v[{S0}:{S1}], 0")
    DD = 96
    for i0 in range(0, 28, 4):
        for k in range(4):
            a(f"v_dot2_f32_bf16 v{DD+2*k}, v{XD+i0+k}, v{ONE0}, v{NM}")
            a(f"v_dot2_f32_bf16 v{DD+2*k+1}, v{XD+i0+k}, v{ONE1}, v{NM}")
        a("s_nop 1")
        for k in range(8):
            a(f"v_fmac_f32 v{S0+(k&1)}, v{DD+k}, v{DD+k}")
    RS = 47
    red8(RS)
    a(f"v_mov_b32 v{D0}, {fhex(1e-5)}")
    a(f"v_fmac_f32 v{D0}, {fhex(1.0/448)}, v{RS}")
    a(f"v_rsq_f32 v{RS}, v{D0}")
    m1, m2, m3, O = 48, 49, 50, 56
    split3(a, NM, D0, m1, m2, m3)
    a(f"v_lshrrev_b32 v{D0}, 16, v{m1}")
    a(f"v_lshrrev_b32 v{D1}, 16, v{m2}")
    a(f"v_or_b32 v{O}, v{D0}, v{m1}")
    a(f"v_or_b32 v{O+1}, v{D1}, v{m1}")
    a(f"v_or_b32 v{O+2}, v{D1}, v{m3}")
    a(f"v_or_b32 v{O+3}, v{D1}, v{m3}")
    a(f"v_lshlrev_b32 v{D0}, 4, v{vT+4}")
    a(f"v_lshlrev_b32 v{D1}, 2, v{vT+4}")
    a(f"s_lshl_b32 s{sRowX}, s{sTile}, 7")
    a(f"s_add_u32 s{sRowX}, s{sRowX}, {WS_AX}")
    a(f"s_lshl_b32 s{sColQ}, s{sTile}, 5")
    a(f"s_add_u32 s{sColQ}, s{sColQ}, {WS_AR}")
    a("s_barrier")
    a("s_mov_b32 exec_lo, 0x01010101")
    a("s_mov_b32 exec_hi, 0x01010101")
    a(f"buffer_store_dwordx4 v[{O}:{O+3}], v{D0}, s[{SWS}:{SWS+3}], s{sRowX} offen sc1")
    a(f"buffer_store_dword v{RS}, v{D1}, s[{SWS}:{SWS+3}], s{sColQ} offen sc1")
    a("s_mov_b64 exec, -1")
    pstamp(a, 2)
    a.c("column sums: per wave partials [unit][wave*8 + row lane][64] in LDS (row pitch 272B)")
    C = 64
    a(f"s_mul_i32 s{sT0}, s{sW}, {8*272}")
    a(f"v_mul_u32_u24 v{vT+6}, 272, v{vT+4}")
    a(f"v_lshl_add_u32 v{vT+6}, v{vT+5}, 5, v{vT+6}")
    a(f"v_add_u32 v{vT+6}, s{sT0}, v{vT+6}")
    a(f"v_lshl_add_u32 v{vT+7}, v{vLane}, 2, s{sT0}")
    def usum(u, wait):
        for k in range(0, 8, 2): a(f"v_mov_b64 v[{C+k}:{C+k+1}], 0")
        a(f"s_waitcnt vmcnt({wait})")
        for i in range(7 if u == 0 else 8):
            for k in range(4):
                a(f"v_dot2c_f32_bf16 v{C+2*k}, v{WD+32*u+4*i+k}, v{ONE0}")
                a(f"v_dot2c_f32_bf16 v{C+2*k+1}, v{WD+32*u+4*i+k}, v{ONE1}")
        a("s_nop 2")
        a(f"ds_write_b128 v{vT+6}, v[{C}:{C+3}]")
        a(f"ds_write_b128 v{vT+6}, v[{C+4}:{C+7}] offset:16")
        a("s_waitcnt lgkmcnt(0)")
        for k in range(4):
            a(f"ds_read2_b32 v[{C+8+2*k}:{C+9+2*k}], v{vT+7} offset0:{136*(k&1)} offset1:{136*(k&1)+68}" if k < 2 else
              f"ds_read2_b32 v[{C+8+2*k}:{C+9+2*k}], v{vT+1} offset0:{136*(k&1)} offset1:{136*(k&1)+68}")
        a("s_waitcnt lgkmcnt(0)")
        for k in range(4): a(f"v_add_f32 v{C+8+k}, v{C+8+k}, v{C+12+k}")
        a(f"v_add_f32 v{C+8}, v{C+8}, v{C+10}")
        a(f"v_add_f32 v{C+9}, v{C+9}, v{C+11}")
        a(f"v_add_f32 v{C+8}, v{C+8}, v{C+9}")
        a(f"ds_write_b32 v{vT+3}, v{C+8} offset:{32768 + 2048*u}")
    a(f"v_add_u32 v{vT+1}, {4*272}, v{vT+7}")
    a(f"v_lshlrev_b32 v{vT+3}, 2, v0")
    def final(name, lo, hi, ubase):
        a("s_waitcnt lgkmcnt(0)")
        a("s_barrier")
        a(f"s_sub_u32 s{sT0}, s{sW}, {lo}")
        a(f"s_cmp_ge_u32 s{sT0}, {hi-lo}")
        a(f"s_cbranch_scc1 {name}_s")
        a(f"s_lshl_b32 s{sT0}, s{sW}, 11")
        a(f"v_lshl_add_u32 v{D1}, v{vLane}, 2, s{sT0}")
        for k in range(4):
            a(f"ds_read2st64_b32 v[{C+8+2*k}:{C+9+2*k}], v{D1} offset0:{128+8*ubase+2*k} offset1:{128+8*ubase+2*k+1}")
        a("s_waitcnt lgkmcnt(0)")
        for k in range(4): a(f"v_add_f32 v{C+8+k}, v{C+8+k}, v{C+12+k}")
        a(f"v_add_f32 v{C+8}, v{C+8}, v{C+10}")
        a(f"v_add_f32 v{C+9}, v{C+9}, v{C+11}")
        a(f"v_add_f32 v{C+8}, v{C+8}, v{C+9}")
        split3(a, C + 8, D0, 84, 85, 86)
        for k in range(3):
            a(f"v_lshrrev_b32 v{87+k}, 16, v{84+k}")
        a(f"v_or_b32 v92, v87, v85")
        a(f"v_or_b32 v93, v87, v86")
        a(f"v_or_b32 v94, v88, v84")
        a(f"v_or_b32 v95, v89, v85")
        a(f"buffer_store_dwordx4 v[92:95], v{vL16}, s[{SWS}:{SWS+3}], s{sOffQ} offen sc1")
        a.label(f"{name}_s")
    def sig(name, cnt_off, go_off, bar=True):
        if bar:
            a("s_barrier")
            a(f"s_cmp_lg_u32 s{sW}, 7")
            a(f"s_cbranch_scc1 {name}_e")
        a(f"v_mov_b32 v{D0}, 1")
        a("s_mov_b64 exec, 1")
        a(f"buffer_atomic_add v{D0}, v{vZero}, s[{SDBG}:{SDBG+3}], 0 offen offset:{cnt_off} sc0 sc1")
        a("s_waitcnt vmcnt(0)")
        a(f"v_readfirstlane_b32 s{sT0}, v{D0}")
        a(f"v_mov_b32 v{D0}, 1")
        a(f"s_cmp_lg_u32 s{sT0}, 31")
        a(f"s_cbranch_scc1 {name}_n")
        a(f"buffer_store_dword v{D0}, v{vZero}, s[{SDBG}:{SDBG+3}], 0 offen offset:{go_off} sc1")
        a.label(f"{name}_n")
        a("s_mov_b64 exec, -1")
        a.label(f"{name}_e")
    usum(0, 2)
    pstamp(a, 3)
    final("P1_h1", 0, 1, 0)
    a(f"s_cmp_lg_u32 s{sW}, 0")
    a("s_cbranch_scc1 P1_h1x")
    a(f"ds_write_b32 v{vT+3}, v{vZero} offset:{32768 + 2048}")
    a(f"ds_write_b32 v{vT+3}, v{vZero} offset:{32768 + 4096}")
    a("s_branch P1_h1y")
    a.label("P1_h1x")
    pstamp(a, 5)
    uload(1)
    uload(2)
    usum(1, 8)
    usum(2, 0)
    a.label("P1_h1y")
    pstamp(a, 4)
    final("P1_h2", 1, 3, 0)
    a(f"v_mov_b32 v{D0}, {LDS_P1+4}")
    a(f"v_mov_b32 v{D1}, 4")
    a(f"ds_write_b32 v{D0}, v{D1}")
    pstamp(a, 6)

def gen_p1(a, endA, endB, endH):
    pstamp(a, 0)
    a("s_load_dwordx4 s[4:7], s[0:1], 0")
    a("s_load_dwordx4 s[8:11], s[0:1], 32")
    a("s_load_dwordx4 s[12:15], s[0:1], 64")
    a(f"v_lshrrev_b32 v{vT}, 6, v0")
    a(f"v_and_b32 v{vLane}, 63, v0")
    a(f"v_readfirstlane_b32 s{sW}, v{vT}")
    a(f"v_lshlrev_b32 v{vL16}, 4, v{vLane}")
    a(f"v_lshrrev_b32 v{vH}, 5, v{vLane}")
    a(f"v_mov_b32 v{vZero}, 0")
    a(f"v_mov_b64 v[{vFlag}:{vFlag+1}], 0")
    a.c("pull the code of all phases into L2: waves 5..7 touch 8KB each")
    a(f"s_getpc_b64 s[{SWQ}:{SWQ+1}]")
    a(f"s_and_b32 s{SWQ}, s{SWQ}, 0xffffff00")
    a(f"s_and_b32 s{SWQ+1}, s{SWQ+1}, 0xffff")
    a(f"s_cmp_lt_u32 s2, {OPT.get('ct', '32')}")
    a(f"s_cselect_b32 s{SWQ+2}, CODE_END - {KNAME}, 0")
    a(f"s_mov_b32 s{SWQ+3}, 0x20000")
    a(f"v_lshlrev_b32 v{vT+1}, 7, v0")
    a(f"v_subrev_u32 v{vT+1}, {5*8192}, v{vT+1}")
    a(f"buffer_load_dword v55, v{vT+1}, s[{SWQ}:{SWQ+3}], 0 offen")
    a(f"s_and_b32 s{sT0}, s2, 7")
    a(f"s_lshr_b32 s{sT1}, s2, 3")
    a(f"s_add_u32 s{sT1}, s{sT1}, 28")
    a(f"s_and_b32 s{sT1}, s{sT1}, 31")
    a(f"s_lshr_b32 s{sRB}, s{sT0}, 1")
    a(f"s_lshl_b32 s{sRB}, s{sRB}, 2")
    a(f"s_and_b32 s{sT2}, s{sT1}, 3")
    a(f"s_add_u32 s{sRB}, s{sRB}, s{sT2}")
    a(f"s_and_b32 s{sCG}, s{sT0}, 1")
    a(f"s_lshr_b32 s{sT2}, s{sT1}, 2")
    a(f"s_lshl_b32 s{sT2}, s{sT2}, 1")
    a(f"s_add_u32 s{sCG}, s{sCG}, s{sT2}")
    a(f"s_and_b32 s{sTT}, s{sW}, 3")
    a(f"s_lshl_b32 s{sTile}, s{sRB}, 2")
    a(f"s_add_u32 s{sTile}, s{sTile}, s{sTT}")
    a(f"s_mov_b32 s{sMask}, 0xffff0000")
    a(f"s_mov_b32 s{sCnt}, 7")
    a.c("x dma pattern")
    t1, i_ = vT + 1, vT
    a(f"v_lshrrev_b32 v{vT+4}, 3, v{vLane}")
    a(f"v_mul_u32_u24 v{vOffX}, 896, v{vT+4}")
    a(f"v_lshrrev_b32 v{t1}, 4, v{vLane}")
    a(f"v_and_b32 v{vT+5}, 7, v{vLane}")
    a(f"v_xor_b32 v{t1}, v{t1}, v{vT+5}")
    a(f"v_lshl_add_u32 v{vOffX}, v{t1}, 4, v{vOffX}")
    a(f"v_xor_b32 v{vOffX+1}, 64, v{vOffX}")
    a(f"v_add_u32 v{vOffX+1}, {7168-1024}, v{vOffX+1}")
    a(f"s_movk_i32 s{sSM}, 2048")
    a(f"s_movk_i32 s{sSM+1}, 14336")
    a(f"s_movk_i32 s{sSG}, 14336")
    a(f"s_movk_i32 s{sSG+1}, {128-14336}")
    a(f"s_mul_i32 s{sOffX}, s{sTile}, {32*896}")
    a(f"s_lshl_b32 s{sRingX}, s{sTT}, 12")
    a.c("everything that needs no pointer, while the kernel arguments arrive")
    a(f"v_bfe_u32 v{t1}, v{vLane}, 4, 1")
    a(f"v_lshlrev_b32 v{t1}, 2, v{t1}")
    a(f"v_xor_b32 v{t1}, v{t1}, v{vT+5}")
    a(f"v_mul_u32_u24 v{vOffA}, 3584, v{vT+4}")
    a(f"v_lshl_add_u32 v{vOffA}, v{t1}, 4, v{vOffA}")
    a(f"v_add_u32 v{vOffA2}, {8*3584-1024}, v{vOffA}")
    a(f"s_lshl_b32 s{sOffA}, s{sCG}, 1")
    a(f"s_lshr_b32 s{sT0}, s{sTT}, 1")
    a(f"s_add_u32 s{sOffA}, s{sOffA}, s{sT0}")
    a(f"s_lshl_b32 s{sOffA}, s{sOffA}, 7")
    a(f"s_lshl_b32 s{sColQ}, s{sTT}, 11")
    a(f"s_add_u32 s{sRingA}, s{sColQ}, {FR}")
    a(f"s_mov_b32 s{sColA}, s{sOffA}")
    a(f"v_mul_u32_u24 v{t1}, 43, v{vLane}")
    a(f"v_lshrrev_b32 v{t1}, 9, v{t1}")
    a(f"v_mul_u32_u24 v{vOffQ}, {2688-192}, v{t1}")
    a(f"v_add_u32 v{vOffQ}, v{vOffQ}, v{vL16}")
    a(f"v_add_u32 v{vOffQ2}, {4*2688-768}, v{vOffQ}")
    a(f"s_mul_i32 s{sOffQ}, s{sCG}, 192")
    a(f"s_mul_i32 s{sT0}, s{sTT}, {8*2688}")
    a(f"s_add_u32 s{sOffQ}, s{sOffQ}, s{sT0}")
    a(f"s_mul_i32 s{sRingQ}, s{sTT}, 1536")
    a(f"s_add_u32 s{sRingQ}, s{sRingQ}, {QR}")
    a(f"s_mov_b32 s{sE48}, -1")
    a(f"s_mov_b32 s{sE48+1}, 0xffff")
    a(f"v_mov_b32 v{vT+6}, {LDS_P1}")
    a(f"v_mov_b64 v[{vT+8}:{vT+9}], 0")
    a(f"v_mov_b64 v[{vT+10}:{vT+11}], 0")
    a(f"ds_write_b128 v{vT+6}, v[{vT+8}:{vT+11}]")
    a(f"ds_write_b128 v{vT+6}, v[{vT+8}:{vT+11}] offset:16")
    a(f"ds_write_b128 v{vT+6}, v[{vT+8}:{vT+11}] offset:32")
    a(f"s_lshr_b32 s{sT0}, s{sW}, 2")
    a(f"s_lshl_b32 s{sT1}, s{sT0}, 11")
    a(f"s_add_u32 m0, s{sRingX}, s{sT1}")
    a(f"s_mul_i32 s{sT1}, s{sT0}, 14336")
    a(f"s_add_u32 s{sT1}, s{sT1}, s{sOffX}")
    for d in (SX, SWQ, SWA, SWS, SDBG):
        a(f"s_mov_b32 s{d+3}, 0x20000")
    a(f"s_mov_b32 s{SX+2}, {2048*896}")
    a(f"s_mov_b32 s{SWQ+2}, {448*2688}")
    a(f"s_mov_b32 s{SWA+2}, {448*3584}")
    a(f"s_mov_b32 s{SWS+2}, {WS_END}")
    a(f"s_movk_i32 s{SDBG+2}, 256")
    a("s_waitcnt lgkmcnt(0)")
    a(f"s_mov_b32 s{SX}, s4")
    a(f"s_and_b32 s{SX+1}, s5, 0xffff")
    a(f"s_cmp_ge_u32 s{sCG}, 14")
    a("s_cbranch_scc1 P1_c2")
    a(f"buffer_load_dwordx4 v{vOffX}, s[{SX}:{SX+3}], s{sT1} offen lds")
    a(f"buffer_load_dwordx4 v{vOffX+1}, s[{SX}:{SX+3}], s{sT1} offen offset:1024 lds")
    a.label("P1_c2")
    a(f"s_mov_b32 s{SWQ}, s6")
    a(f"s_and_b32 s{SWQ+1}, s7, 0xffff")
    a(f"s_bitcmp1_b32 s{sW}, 0")
    a(f"s_cselect_b32 s{SWA}, s10, s8")
    a(f"s_cselect_b32 s{SWA+1}, s11, s9")
    a(f"s_and_b32 s{SWA+1}, s{SWA+1}, 0xffff")
    a(f"s_mov_b32 s{SDBG}, s12")
    a(f"s_and_b32 s{SDBG+1}, s13, 0xffff")
    a(f"s_mov_b32 s{SWS}, s14")
    a(f"s_and_b32 s{SWS+1}, s15, 0xffff")
    a(f"s_cmp_ge_u32 s{sCG}, 14")
    a("s_cbranch_scc1 P1_help")
    a(f"s_cmp_lt_u32 s{sW}, 4")
    a("s_cbranch_scc1 P1_A")
    for g in dmaF(0):
        for l in g: a(l)
    a("s_branch P1_B")
    a.label("P1_A")
    a(f"s_add_u32 s{sOffA}, s{sOffA}, {16*3584}")
    a(f"s_add_u32 s{sOffX}, s{sOffX}, 256")
    a(f"s_add_u32 s{sRingX}, s{sRingX}, 32768")
    def pgroup(sl):
        for g in dmaQ(sl) + (dmaF(sl) if sl else ()):
            for l in g: a(l)
        if sl >= 2:
            for g in dmaX(sl - 2):
                for l in g: a(l)
    PO = OPT.get("po", "1")
    pgroup(0)
    if PO == "0":
        for sl in range(1, 4): pgroup(sl)
    a(f"s_mov_b32 s{sRowX}, 16384")
    a(f"s_mov_b32 s{sDq}, {2*6144}")
    pstamp(a, 1)
    common_addr(a, "A")
    a(f"v_mul_u32_u24 v{vTr0}, 192, v{vT+2}")
    a(f"v_add_u32 v{vTr0}, v{vTr0}, v{vT+3}")
    a(f"v_add_u32 v{vTr0}, {QR}, v{vTr0}")
    for j in range(3):
        a(f"v_mfma_f32_32x32x16_bf16 v[{ACC+16*j}:{ACC+16*j+15}], v[{vT+8}:{vT+11}], v[{vT+8}:{vT+11}], 0")
    a(f"s_lshl_b32 s{sT3}, s{sTile}, 12")
    a.c("Q/K store address table: lane l -> 8-column chunk 12*cg + l")
    g8, m, e, x, tab, tab2 = vT + 4, vT + 5, vT + 6, vT + 7, vT + 8, vT + 9
    a(f"s_mul_i32 s{sT0}, s{sCG}, 12")
    a(f"v_add_u32 v{g8}, s{sT0}, v{vLane}")
    a(f"v_mul_u32_u24 v{m}, 9363, v{g8}")
    a(f"v_lshrrev_b32 v{m}, 16, v{m}")
    a(f"v_mul_u32_u24 v{e}, 7, v{m}")
    a(f"v_sub_u32 v{e}, v{g8}, v{e}")
    a(f"v_and_b32 v{x}, 7, v{m}")
    a(f"v_lshl_add_u32 v{tab}, v{x}, 19, s{sT3}")
    a(f"v_bfe_u32 v{x}, v{m}, 3, 1")
    a(f"v_xor_b32 v{x}, 1, v{x}")
    a(f"v_lshl_add_u32 v{tab}, v{x}, 11, v{tab}")
    a(f"v_add_u32 v{tab2}, {HS + 3*512}, v{tab}")
    a(f"v_lshrrev_b32 v{x}, 2, v{e}")
    a(f"v_lshl_add_u32 v{tab}, v{x}, 18, v{tab}")
    a(f"v_and_b32 v{x}, 3, v{e}")
    a(f"v_lshl_add_u32 v{tab}, v{x}, 9, v{tab}")
    a(f"v_cmp_eq_u32 vcc, 3, v{e}")
    a(f"v_lshlrev_b32 v{x}, 2, v{vH}")
    a(f"v_bfrev_b32 v{m}, 1")
    a(f"v_cndmask_b32 v{tab2}, v{m}, v{tab2}, vcc")
    for k in range(6):
        a(f"ds_bpermute_b32 v{vSt+k}, v{x}, v{tab} offset:{8*k}")
        a(f"ds_bpermute_b32 v{vSt+6+k}, v{x}, v{tab2} offset:{8*k}")
    a(f"v_and_b32 v{x}, 0x1f0, v{vL16}")
    a(f"v_mul_u32_u24 v{vT+12}, {VT//4}, v{vH}")
    a(f"v_add_u32 v{vT+12}, v{vT+12}, v{x}")
    a("s_waitcnt lgkmcnt(0)")
    for k in range(12):
        a(f"v_add_u32 v{vSt+k}, v{vSt+k}, v{x}")
    pstamp(a, 2)
    for k in OPT.get("zz", "").split("+"):
        if k: a(f"s_sleep {k}")
    if PO == "1":
        pgroup(1)
        a("s_waitcnt vmcnt(4)")
    elif PO == "2":
        for sl in range(1, 4): pgroup(sl)
        a("s_waitcnt vmcnt(16)")
    else:
        a("s_waitcnt vmcnt(16)")
    pstamp(a, 3)
    a("s_barrier")
    pstamp(a, 4)
    a(f"ds_read_b128 v[{XC}:{XC+3}], v{vXk}")
    a(f"ds_read_b128 v[{XC+4}:{XC+7}], v{vXk+1}")
    for l in wreadsA(0, 0): a(l)
    if PO == "1":
        pgroup(2)
        pgroup(3)
    pstamp(a, 5)
    a(f"s_cmp_gt_u32 s{sCG}, 9")
    a("s_cbranch_scc1 P1_loopA_VVV")
    a(f"s_cmp_eq_u32 s{sCG}, 9")
    a("s_cbranch_scc1 P1_loopA_QVV")
    loopA(a, "QQQ")
    a("s_branch P1_Aepi")
    loopA(a, "QVV")
    a("s_branch P1_Aepi")
    loopA(a, "VVV")
    a.label("P1_Aepi")
    pstamp(a, 6)
    epi_A(a)
    endA(a)
    aux_blocks(a)
    a.label("P1_B")
    tab = sum(v << (4 * i) for i, v in enumerate(BTAB))
    a(f"s_mov_b32 s{sTab}, {tab & 0xffffffff}")
    a(f"s_mov_b32 s{sTab+1}, {tab >> 32}")
    a(f"s_mov_b32 s{sDq}, {((1 << 16) - 1) | (1 << NBAR)}")
    a(f"s_mov_b32 s{sCnt}, 14")
    a(f"v_mov_b32 v28, -1")
    a(f"s_cmp_eq_u32 s{sW}, 4")
    a(f"s_cselect_b32 s{sColQ}, {int(OPT.get('sg', '12'))}, {int(OPT.get('sb', '4'))}")
    pstamp(a, 1)
    common_addr(a, "B")
    a(f"v_lshlrev_b32 v{vTr0}, 7, v{vT+2}")
    a(f"v_add_u32 v{vTr0}, v{vTr0}, v{vT+3}")
    a(f"v_bfe_u32 v{t1}, v{i_}, 3, 1")
    a(f"v_lshl_add_u32 v{vTr0}, v{t1}, 6, v{vTr0}")
    a(f"v_xor_b32 v{vTr1}, 64, v{vTr0}")
    a(f"s_lshr_b32 s{sT0}, s{sTT}, 1")
    a(f"s_lshl_b32 s{sT0}, s{sT0}, 12")
    a(f"v_add_u32 v{vOffA}, s{sT0}, v{vTr0}")
    a(f"v_add_u32 v{vOffA2}, s{sT0}, v{vTr1}")
    a(f"v_add_u32 v{vTr0}, {FR}, v{vOffA}")
    a(f"v_add_u32 v{vTr1}, {FR}, v{vOffA2}")
    for j in range(8):
        a(f"v_mfma_f32_32x32x16_bf16 v[{ACC+16*j}:{ACC+16*j+15}], v[{vT+8}:{vT+11}], v[{vT+8}:{vT+11}], 0")
    a(f"s_add_u32 s{sOffX}, s{sOffX}, 128")
    a(f"s_add_u32 s{sRingX}, s{sRingX}, 16384")
    for q in range(2):
        for g in dmaX(q):
            for l in g: a(l)
    pstamp(a, 2)
    a("s_waitcnt vmcnt(4)")
    pstamp(a, 3)
    a("s_barrier")
    pstamp(a, 4)
    a(f"ds_read_b128 v[{XB}:{XB+3}], v{vXk}")
    a(f"ds_read_b128 v[{XB+4}:{XB+7}], v{vXk} offset:4096")
    for l in wreadsB(0, 0): a(l)
    a("s_waitcnt vmcnt(0) lgkmcnt(0)")
    if OPT.get("pf", "0") != "0":
        a.c("touch one slice of x / wqkv / w_gate / w_up so that the whole chip asks memory for them at once")
        a(f"s_cmp_lt_u32 s{sTT}, 2")
        a(f"s_cselect_b32 s{SWA}, s4, s8")
        a(f"s_cselect_b32 s{SWA+1}, s5, s9")
        a(f"s_cselect_b32 s{sT0}, s6, s10")
        a(f"s_cselect_b32 s{sT1}, s7, s11")
        a(f"s_mov_b32 s{SWA+2}, {448*3584}")
        a(f"s_cselect_b32 s{sT2}, {448*2688}, s{SWA+2}")
        a(f"s_cselect_b32 s{SWA+2}, {2048*896}, s{SWA+2}")
        a(f"s_bitcmp1_b32 s{sTT}, 0")
        a(f"s_cselect_b32 s{SWA}, s{sT0}, s{SWA}")
        a(f"s_cselect_b32 s{SWA+1}, s{sT1}, s{SWA+1}")
        a(f"s_cselect_b32 s{SWA+2}, s{sT2}, s{SWA+2}")
        a(f"s_and_b32 s{SWA+1}, s{SWA+1}, 0xffff")
        a(f"s_mov_b32 s{SWA+3}, 0x20000")
        if OPT.get("pf") == "3":
            a(f"s_cmp_lt_u32 s{sTT}, 2")
            a(f"s_cselect_b32 s{SWA+2}, s{SWA+2}, 0")
        a(f"s_sub_u32 s{sT0}, s2, 32")
        a(f"s_lshl_b32 s{sT0}, s{sT0}, 13")
        a(f"v_lshlrev_b32 v{vT+6}, 7, v{vLane}")
        a(f"buffer_load_dword v55, v{vT+6}, s[{SWA}:{SWA+3}], s{sT0} offen")
    pstamp(a, 5)
    loopB(a)
    pstamp(a, 6)
    epi_B(a)
    endB(a)
    helper(a)
    endH(a)

def ffn_setup(a):
    t1 = vT + 1
    a.c("gate/up dma setup: wave tt loads block tt (G0,U0,G1,U1)")
    a(f"s_bitcmp1_b32 s{sW}, 0")
    a(f"s_cselect_b32 s{SWA}, s10, s8")
    a(f"s_cselect_b32 s{SWA+1}, s11, s9")
    a(f"s_and_b32 s{SWA+1}, s{SWA+1}, 0xffff")
    a(f"s_mov_b32 s{SWA+2}, {448*3584}")
    a(f"s_mov_b32 s{SWA+3}, 0x20000")
    a(f"v_bfe_u32 v{t1}, v{vLane}, 4, 1")
    a(f"v_lshlrev_b32 v{t1}, 2, v{t1}")
    a(f"v_xor_b32 v{t1}, v{t1}, v{vT+5}")
    a(f"v_mul_u32_u24 v{vOffA}, 3584, v{vT+4}")
    a(f"v_lshl_add_u32 v{vOffA}, v{t1}, 4, v{vOffA}")
    a(f"v_add_u32 v{vOffA2}, {8*3584-1024}, v{vOffA}")
    a(f"s_lshl_b32 s{sOffA}, s{sCG}, 1")
    a(f"s_lshr_b32 s{sT0}, s{sTT}, 1")
    a(f"s_add_u32 s{sOffA}, s{sOffA}, s{sT0}")
    a(f"s_lshl_b32 s{sOffA}, s{sOffA}, 7")
    a(f"s_lshl_b32 s{sRingA}, s{sTT}, 11")
    a(f"s_add_u32 s{sRingA}, s{sRingA}, {FR}")

def common_addr(a, role):
    t1, i_ = vT + 1, vT
    a.c("x fragment addresses")
    a(f"v_and_b32 v{t1}, 31, v{vLane}")
    a(f"v_bfe_u32 v{vT+2}, v{vLane}, 1, 3")
    a(f"v_xor_b32 v{vT+2}, v{vT+2}, v{vH}")
    a(f"v_lshlrev_b32 v{vT+2}, 4, v{vT+2}")
    a(f"v_lshl_add_u32 v{vXk}, v{t1}, 7, v{vT+2}")
    if role == "A":
        a(f"s_lshl_b32 s{sT0}, s{sTT}, 12")
    else:
        a(f"s_and_b32 s{sT0}, s{sTT}, 1")
        a(f"s_lshl_b32 s{sT0}, s{sT0}, 13")
    a(f"v_add_u32 v{vXk}, s{sT0}, v{vXk}")
    for k in range(1, 4):
        a(f"v_xor_b32 v{vXk+k}, {32*k}, v{vXk}")
    a(f"v_and_b32 v{i_}, 15, v{vLane}")
    a(f"v_lshrrev_b32 v{t1}, 2, v{i_}")
    a(f"v_lshl_add_u32 v{vT+2}, v{vH}, 3, v{t1}")
    a(f"v_bfe_u32 v{t1}, v{vLane}, 4, 1")
    a(f"v_lshlrev_b32 v{vT+3}, 5, v{t1}")
    a(f"v_and_b32 v{t1}, 3, v{i_}")
    a(f"v_lshl_add_u32 v{vT+3}, v{t1}, 3, v{vT+3}")
    a(f"s_mov_b32 s{sDelta}, {2*8192}")

def gen_k1(name):
    a = Asm()
    a(f"s_cmp_ge_u32 s2, 256")
    a(f"s_cbranch_scc1 K1_exit")
    def end(a):
        pstamp(a, 7)
        a.stamp_flush(8, 0, sW, 8)
        a("s_endpgm")
    def endH(a):
        pstamp(a, 8)
        a.stamp_flush(9, 0, sW, 8)
        a("s_endpgm")
    gen_p1(a, end, end, endH)
    a.label("K1_exit")
    a("s_endpgm")
    return kernel_header(name) + a.text(), kernel_desc(name, 256, 64), LDS_P1
```

```python
import struct
DIAG = {"on": False}

def f2u(x):
    return struct.unpack("<I", struct.pack("<f", x))[0]

def fhex(x):
    return "0x%08x" % f2u(x)

def vr(a, n=1):
    return f"v{a}" if n == 1 else f"v[{a}:{a+n-1}]"

def sr(a, n=1):
    return f"s{a}" if n == 1 else f"s[{a}:{a+n-1}]"

class Asm:
    def __init__(self):
        self.lines = []
        self.uid = 0
    def __call__(self, s):
        for l in s.strip("\n").split("\n"):
            l = l.strip()
            if l:
                self.lines.append(("" if l.endswith(":") else "    ") + l)
    def c(self, s):
        self.lines.append("    ; " + s)
    def label(self, name):
        self.lines.append(name + ":")
    def newlabel(self, p="L"):
        self.uid += 1
        return f"{p}_{self.uid}"
    def text(self):
        return "\n".join(self.lines) + "\n"
    def stamp(self, idx):
        if not DIAG["on"]:
            return
        import os
        self(f"{'s_memrealtime' if os.environ.get('RT') else 's_memtime'} s[{64+2*idx}:{65+2*idx}]")
        if idx == 0:
            self("s_memrealtime s[88:89]")
        self("s_waitcnt lgkmcnt(0)")
    def stamp_flush(self, n, kidx, swave, wpw):
        if not DIAG["on"]:
            return
        import os
        if os.environ.get("ECHO"):
            i = int(os.environ["ECHO"])
            self(f"s_cmp_lg_u32 s2, {os.environ.get('ECHOG', '100')}")
            self("s_cbranch_scc1 DBG_skip")
            self(f"s_cmp_lg_u32 s{swave}, {os.environ.get('ECHOW', '0')}")
            self("s_cbranch_scc1 DBG_skip")
            self("s_memrealtime s[90:91]")
            self(f"s_sub_u32 s96, s{64+2*i}, s64")
            self("s_waitcnt lgkmcnt(0)")
            self.label("DBG_spin")
            self("s_sleep 1")
            self("s_memrealtime s[92:93]")
            self("s_waitcnt lgkmcnt(0)")
            self("s_sub_u32 s94, s92, s90")
            self("s_cmp_lt_u32 s94, s96")
            self("s_cbranch_scc1 DBG_spin")
            self.label("DBG_skip")
            return
        if os.environ.get("DBGOUT"):
            self("s_memrealtime s[90:91]")
            self("s_load_dwordx2 s[92:93], s[0:1], 64")
            self("s_waitcnt lgkmcnt(0) vmcnt(0)")
            self("s_cmp_lg_u32 s2, 100")
            self("s_cbranch_scc1 DBG_skip")
            self(f"s_cmp_lg_u32 s{swave}, {os.environ['DBGOUT']}")
            self("s_cbranch_scc1 DBG_skip")
            self("s_and_b32 s93, s93, 0xffff")
            self("s_mov_b32 s94, 256")
            self("s_mov_b32 s95, 0x20000")
            self("s_mov_b64 exec, 1")
            self("v_mov_b32 v0, 0")
            for i in range(1, n):
                self(f"s_sub_u32 s96, s{64+2*i}, s64")
                self(f"v_mov_b32 v1, s96")
                self(f"buffer_store_dword v1, v0, s[92:95], 0 offen offset:{4*i}")
                self("s_nop 1")
            self("s_sub_u32 s96, s90, s88")
            self(f"v_mov_b32 v1, s96")
            self(f"buffer_store_dword v1, v0, s[92:95], 0 offen offset:60")
            self.label("DBG_skip")
            return
        self("s_memrealtime s[90:91]")
        self("s_load_dwordx2 s[92:93], s[0:1], 72")
        self("s_waitcnt lgkmcnt(0) vmcnt(0)")
        import os
        self(f"{'s_memrealtime' if os.environ.get('RT') else 's_memtime'} s[86:87]")
        self(f"s_add_u32 s92, s92, {(128<<20) + kidx*(1<<20)}")
        self("s_addc_u32 s93, s93, 0")
        self("s_and_b32 s93, s93, 0xffff")
        self("s_mov_b32 s94, 0x100000")
        self("s_mov_b32 s95, 0x20000")
        self(f"s_mul_i32 s96, s2, {wpw}")
        self(f"s_add_u32 s96, s96, s{swave}")
        self("s_lshl_b32 s96, s96, 6")
        self("s_mov_b64 exec, 1")
        self("s_waitcnt lgkmcnt(0)")
        self("v_mov_b32 v0, 0")
        for i in list(range(n)) + [11, 12, 13]:
            self(f"v_mov_b32 v1, s{64+2*i}")
            self(f"buffer_store_dword v1, v0, s[92:95], s96 offen offset:{4*i}")
            self("s_nop 1")
    def srd(self, d, base, nbytes):
        self(f"s_mov_b32 s{d}, s{base}")
        self(f"s_and_b32 s{d+1}, s{base+1}, 0xffff")
        self(f"s_mov_b32 s{d+2}, {nbytes}")
        self(f"s_mov_b32 s{d+3}, 0x20000")

def interleave(main, fill, counts=None):
    out = []
    n = len(main)
    if counts is None:
        counts = []
        done = 0
        for i in range(n):
            tgt = (len(fill) * (i + 1) + n - 1) // n
            counts.append(tgt - done)
            done = tgt
    k = 0
    for i in range(n):
        out.append(main[i])
        out.extend(fill[k:k + counts[i]])
        k += counts[i]
    out.extend(fill[k:])
    return out

def kernel_header(name):
    return f""".globl {name}
.p2align 8
.type {name},@function
{name}:
"""

def kernel_desc(name, nvgpr, nsgpr=96, accum=None):
    if DIAG["on"]:
        nsgpr = 100
    if accum is None:
        accum = (nvgpr + 3) // 4 * 4
    return f""".p2align 6
.amdhsa_kernel {name}
  .amdhsa_next_free_vgpr {nvgpr}
  .amdhsa_next_free_sgpr {nsgpr}
  .amdhsa_accum_offset {accum}
  .amdhsa_group_segment_fixed_size 0
  .amdhsa_kernarg_size 80
  .amdhsa_user_sgpr_count 2
  .amdhsa_user_sgpr_kernarg_segment_ptr 1
  .amdhsa_system_sgpr_workgroup_id_x 1
.end_amdhsa_kernel
"""
```

```python
from asmlib import *
from consts import *
import p1
from p1 import OPT, sW, sRB, sCG, sTT, SWS, SDBG, sMask, vLane, vL16, vH, vZero

INB = 12288
WOB = 49152
XCH = 114688
SYNC = p1.LDS_P1
LDS_F = SYNC + 64 + 4096
FQ, FH, FO = WS_FLAG, WS_FLAG + 32768, WS_FLAG + 65536

SKH, SKV, SVH, SV, SWD = 4, 8, 16, 20, 24
sHead, sQB, sOff, sOffV, sCnt = 36, 37, 38, 39, 41
sT0, sT1, sT2, sT3 = 42, 43, 44, 45
sMT, sNT, sRing = 47, 48, 49
sVM, sUP = 50, 52
sA0, sA1, sWoff, sStep, sKQ = 54, 55, 40, 14, 15
SXO = 60
vT = 4
vZ = 15
vVo = 14
NB = 4
QF = 16
KV = 48
SS = KV + 16 * NB
PP = SS + 32
OO = PP + 16
vTr0, vTr1 = 16, 17
vOff = 20
XRES = 24
vXo = 28
ACT = 32
WFG = 96
GACC = 128
TW = 192

def fstamp(a, i):
    if OPT.get("st", "2") in ("1", "3") and i < 7:
        return
    a.stamp(i)

def xstamp(a, i):
    if OPT.get("st", "2") == "3":
        a.stamp(i)

def mf(d, a, b, c):
    cs = "0" if c is None else f"v[{c}:{c+15}]"
    return f"v_mfma_f32_32x32x16_bf16 v[{d}:{d+15}], v[{a}:{a+3}], v[{b}:{b+3}], {cs}"

def signal(a, name, cnt_idx, flag_soff_reg, vaddr=None, young=0):
    a(f"v_mov_b32 v{vT}, {SYNC + 4*cnt_idx}")
    a(f"v_mov_b32 v{vT+1}, 1")
    a("s_mov_b64 exec, 1")
    a(f"s_waitcnt vmcnt({young})")
    a(f"ds_add_rtn_u32 v{vT+2}, v{vT}, v{vT+1}")
    a("s_waitcnt lgkmcnt(0)")
    a(f"v_readfirstlane_b32 s{sT0}, v{vT+2}")
    if vaddr is not None: a("s_mov_b64 exec, 0x3ff")
    a(f"s_cmp_lg_u32 s{sT0}, 3")
    a(f"s_cbranch_scc1 {name}_ns")
    a(f"buffer_store_dword v{vT+1}, v{vZ if vaddr is None else vaddr}, s[{SWS}:{SWS+3}], s{flag_soff_reg} offen sc1")
    a.label(f"{name}_ns")
    a("s_mov_b64 exec, -1")

def poll(a, name, soff, nlanes, wide, sleep, rel_idx, poller):
    a(f"s_mov_b32 s{sT1}, 0x8000")
    a(f"v_mov_b32 v{vT+5}, {SYNC + 4*rel_idx}")
    a(f"s_cmp_lg_u32 s{sW}, {poller}")
    a(f"s_cbranch_scc1 {name}_w")
    if nlanes == 32: a("s_mov_b32 exec_hi, 0")
    else: a(f"s_mov_b64 exec, {hex((1 << nlanes) - 1)}")
    if not wide: a(f"v_lshlrev_b32 v{vT+4}, 7, v{vLane}")
    else:
        a(f"v_lshrrev_b32 v{vT+4}, 1, v{vLane}")
        a(f"v_mul_u32_u24 v{vT+4}, 96, v{vT+4}")
        a(f"v_add_u32 v{vT+4}, v{vT+4}, v{vL16}")
    a.label(f"{name}_l")
    if wide:
        a(f"buffer_load_dwordx3 v[{vT}:{vT+2}], v{vT+4}, s[{SWS}:{SWS+3}], {soff} offen sc1")
        a("s_waitcnt vmcnt(0)")
        a(f"v_and_b32 v{vT}, v{vT}, v{vT+1}")
        a(f"v_and_b32 v{vT}, v{vT}, v{vT+2}")
    else:
        a(f"buffer_load_dword v{vT}, v{vT+4}, s[{SWS}:{SWS+3}], {soff} offen sc1")
        a("s_waitcnt vmcnt(0)")
    a(f"v_cmp_ne_u32 vcc, 1, v{vT}")
    a(f"s_cbranch_vccz {name}_p")
    a(f"s_sub_u32 s{sT1}, s{sT1}, 1")
    a(f"s_cbranch_scc1 {name}_p")
    a(f"s_sleep {sleep}")
    a(f"s_branch {name}_l")
    a.label(f"{name}_p")
    a(f"v_mov_b32 v{vT}, 1")
    a(f"ds_write_b32 v{vT+5}, v{vT}")
    a("s_mov_b64 exec, -1")
    a(f"s_branch {name}_ok")
    a.label(f"{name}_w")
    a(f"s_lshl_b32 s{sT1}, s{sT1}, 4")
    a.label(f"{name}_w2")
    a(f"ds_read_b32 v{vT}, v{vT+5}")
    a("s_waitcnt lgkmcnt(0)")
    a(f"v_readfirstlane_b32 s{sT0}, v{vT}")
    a(f"s_cmp_eq_u32 s{sT0}, 1")
    a(f"s_cbranch_scc1 {name}_ok")
    a(f"s_sub_u32 s{sT1}, s{sT1}, 1")
    a(f"s_cbranch_scc1 {name}_ok")
    a("s_sleep 2")
    a(f"s_branch {name}_w2")
    a.label(f"{name}_ok")

def kvload(a, kb, srd, sv):
    b = KV + 16 * kb
    a(f"buffer_load_dwordx4 v[{b}:{b+3}], v{vL16}, s[{srd}:{srd+3}], s{sOff} offen sc1")
    a(f"buffer_load_dwordx4 v[{b+4}:{b+7}], v{vL16}, s[{srd}:{srd+3}], s{sOff} offen offset:1024 sc1")
    a(f"s_mov_b64 exec, s[{sVM}:{sVM+1}]")
    a(f"buffer_load_dwordx4 v[{b+8}:{b+11}], v{vVo}, s[{sv}:{sv+3}], s{sOffV} offen sc1")
    a(f"s_add_u32 s{sOffV}, s{sOffV}, {VT//2}")
    a(f"buffer_load_dwordx4 v[{b+12}:{b+15}], v{vVo}, s[{sv}:{sv+3}], s{sOffV} offen sc1")
    a(f"s_mov_b64 exec, -1")
    a(f"s_add_u32 s{sOffV}, s{sOffV}, {VT//2}")
    a(f"s_add_u32 s{sOff}, s{sOff}, {TS}")
    if srd == SKV and OPT.get("ra", "1") == "1":
        a(f"s_and_b32 s{sOff}, s{sOff}, 0xffff")
        a(f"s_cselect_b32 s{sOffV}, s{sOffV}, 0")

def maxtree(a, src, dst, first=True):
    if first:
        a(f"v_max3_f32 v{dst}, v{src}, v{src+1}, v{src+2}")
        for i in range(3, 15, 2):
            a(f"v_max3_f32 v{dst}, v{dst}, v{src+i}, v{src+i+1}")
        a(f"v_max_f32 v{dst}, v{dst}, v{src+15}")
    else:
        for i in range(0, 16, 2):
            a(f"v_max3_f32 v{dst}, v{dst}, v{src+i}, v{src+i+1}")

def setpads(a, ms, qs, t):
    n = len(ms)
    for i, m in enumerate(ms): a(f"v_mov_b32 v{t+i}, v{m}")
    a("s_nop 1")
    for i, m in enumerate(ms): a(f"v_permlane32_swap_b32 v{m}, v{t+i}")
    a("s_nop 0")
    for i, m in enumerate(ms): a(f"v_max_f32 v{m}, v{m}, v{t+i}")
    a(f"s_mov_b64 exec, s[{sUP}:{sUP+1}]")
    for i, (m, q) in enumerate(zip(ms, qs)):
        u, w = t + i, t + n + i
        a(f"v_sub_f32 v{m}, 0, v{m}")
        a(f"v_and_b32 v{u}, s{sMask}, v{m}")
        a(f"v_sub_f32 v{u}, v{m}, v{u}")
        a(f"v_lshrrev_b32 v{m}, 16, v{m}")
        a(f"v_and_b32 v{w}, s{sMask}, v{u}")
        a(f"v_or_b32 v{q+6}, v{m}, v{w}")
        a(f"v_sub_f32 v{u}, v{u}, v{w}")
        a(f"v_lshrrev_b32 v{q+7}, 16, v{u}")
    a("s_mov_b64 exec, -1")

def expcvt(S, P, g):
    o = [f"v_exp_f32 v{S+4*g+k}, v{S+4*g+k}" for k in range(4)]
    o += [f"v_cvt_pk_bf16_f32 v{P+2*g+k}, v{S+4*g+2*k}, v{S+4*g+2*k+1}" for k in range(2)]
    return o

def ldswait(a, name, idx, n, sleep=2):
    a(f"v_mov_b32 v{vT+6}, {SYNC+4*idx}")
    a(f"s_mov_b32 s{sT1}, 0x80000")
    a(f"s_branch {name}")
    a.label(name + "_s")
    a(f"s_sleep {sleep}")
    a.label(name)
    a(f"ds_read_b32 v{vT+7}, v{vT+6}")
    a("s_waitcnt lgkmcnt(0)")
    a(f"v_readfirstlane_b32 s{sT0}, v{vT+7}")
    a(f"s_sub_u32 s{sT1}, s{sT1}, 1")
    a(f"s_cselect_b32 s{sT0}, {n}, s{sT0}")
    a(f"s_cmp_lt_u32 s{sT0}, {n}")
    a(f"s_cbranch_scc1 {name}_s")

def ldsadd(a, idx):
    a(f"v_mov_b32 v{vT+6}, {SYNC+4*idx}")
    a(f"v_mov_b32 v{vT+7}, 1")
    a("s_mov_b64 exec, 1")
    a(f"ds_add_u32 v{vT+6}, v{vT+7}")
    a("s_mov_b64 exec, -1")

def g2_ids(a):
    a(f"s_and_b32 s{sMT}, s2, 7")
    a(f"s_lshl_b32 s{sMT}, s{sMT}, 2")
    a(f"s_bfe_u32 s{sT0}, s2, 0x20003")
    a(f"s_add_u32 s{sMT}, s{sMT}, s{sT0}")
    a(f"s_lshr_b32 s{sNT}, s2, 5")
    a(f"s_lshr_b32 s{sKQ}, s{sW}, 1")

def g2_tr(a):
    t1, i_ = vT, vT + 2
    a(f"v_and_b32 v{i_}, 15, v{vLane}")
    a(f"v_lshrrev_b32 v{t1}, 2, v{i_}")
    a(f"v_lshl_add_u32 v{t1}, v{vH}, 2, v{t1}")
    a(f"v_lshlrev_b32 v{vTr0}, 7, v{t1}")
    a(f"v_bfe_u32 v{t1}, v{vLane}, 4, 1")
    a(f"v_lshl_add_u32 v{vTr0}, v{t1}, 5, v{vTr0}")
    a(f"v_and_b32 v{t1}, 3, v{i_}")
    a(f"v_lshl_add_u32 v{vTr0}, v{t1}, 3, v{vTr0}")
    a(f"v_bfe_u32 v{t1}, v{i_}, 3, 1")
    a(f"v_lshl_add_u32 v{vTr0}, v{t1}, 6, v{vTr0}")
    a(f"s_lshl_b32 s{sT0}, s{sKQ}, 5")
    a(f"v_xor_b32 v{vTr0}, s{sT0}, v{vTr0}")
    a(f"v_xor_b32 v{vTr1}, 64, v{vTr0}")

def wdma(a, slot):
    a(f"s_add_u32 m0, s{sRing}, {slot*4096}")
    a("s_nop 0")
    for i in range(4):
        a(f"buffer_load_dwordx4 v{vOff+i}, s[{SWD}:{SWD+3}], s{sWoff} offen offset:{1024*i} lds")
    a(f"s_add_u32 s{sWoff}, s{sWoff}, s{sStep}")
    if OPT.get("rg", "1") == "1":
        a(f"s_cmp_eq_u32 s{sWoff}, s{sHead}")
        a(f"s_cselect_b32 s{sWoff}, s{sQB}, s{sWoff}")

def actld(a, st):
    b = ACT + 16 * st
    a(f"buffer_load_dwordx4 v[{b}:{b+3}], v{vL16}, s[{SWS}:{SWS+3}], s{sA0} offen sc1")
    a(f"buffer_load_dwordx4 v[{b+4}:{b+7}], v{vL16}, s[{SWS}:{SWS+3}], s{sA0} offen offset:1024 sc1")
    a(f"buffer_load_dwordx4 v[{b+8}:{b+11}], v{vL16}, s[{SWS}:{SWS+3}], s{sA1} offen sc1")
    a(f"buffer_load_dwordx4 v[{b+12}:{b+15}], v{vL16}, s[{SWS}:{SWS+3}], s{sA1} offen offset:1024 sc1")
    if OPT.get("rg", "1") == "1":
        a(f"s_cmp_eq_u32 s{sA0}, s{sOff}")
        a(f"s_cselect_b32 s{sT0}, {(-13*2048) & 0xffffffff}, s{sOffV}")
        a(f"s_add_u32 s{sA0}, s{sA0}, s{sT0}")
        a(f"s_add_u32 s{sA1}, s{sA1}, s{sT0}")
    else:
        a(f"s_add_u32 s{sA0}, s{sA0}, 2048")
        a(f"s_add_u32 s{sA1}, s{sA1}, 2048")

def unit(a, slot):
    for s in range(2):
        for tau in range(2):
            for t in range(2):
                d = WFG + 8 * s + 4 * tau + 2 * t
                a(f"ds_read_b64_tr_b16 v[{d}:{d+1}], v{vTr0+2 if tau == 0 else vTr1+2} offset:{slot*4096+s*2048+t*1024}")
    for s in range(2):
        a(f"s_waitcnt lgkmcnt({4 if s == 0 else 0})")
        for tau in range(2):
            for tt in range(2):
                acc = GACC + 16 * (tt * 2 + tau)
                a(mf(acc, WFG + 8 * s + 4 * tau, ACT + 16 * slot + 8 * tt + 4 * s, acc))

def attention(a):
    a.label("F_att")
    fstamp(a, 8)
    a(f"s_and_b32 s{sHead}, s2, 7")
    a(f"s_lshl_b32 s{sHead}, s{sHead}, 1")
    a(f"s_bfe_u32 s{sT0}, s2, 0x10003")
    a(f"s_add_u32 s{sHead}, s{sHead}, s{sT0}")
    a(f"s_lshr_b32 s{sQB}, s2, 4")
    a(f"s_mov_b32 s{sVM}, 0x0fffffff")
    a(f"s_mov_b32 s{sVM+1}, 0x0fffffff")
    a(f"s_mov_b32 s{sUP}, 0")
    a(f"s_mov_b32 s{sUP+1}, -1")
    a(f"v_mov_b32 v{KV+8}, 0x3f803f80")
    a(f"v_mov_b32 v{KV+9}, 0x3f803f80")
    for kb in range(NB):
        for i in range(0, 8, 2):
            if kb or i: a(f"v_mov_b64 v[{KV+16*kb+8+i}:{KV+16*kb+9+i}], v[{KV+8}:{KV+9}]")
    a(f"v_mul_u32_u24 v{vVo}, {VT//4 - 512}, v{vH}")
    a(f"v_add_u32 v{vVo}, v{vVo}, v{vL16}")
    a(f"s_mul_i32 s{sT0}, s{sHead}, 448")
    a(f"v_add_u32 v{vVo}, s{sT0}, v{vVo}")
    a(f"s_lshl_b32 s{sT1}, s{sHead}, 18")
    a(f"s_add_u32 s{SKH}, s{SWS}, s{sT1}")
    a(f"s_addc_u32 s{SKH+1}, s{SWS+1}, 0")
    a(f"s_mov_b32 s{SKH+2}, {HS}")
    a(f"s_mov_b32 s{SKH+3}, 0x20000")
    a(f"s_lshl_b32 s{sT1}, s{sW}, 16")
    a(f"s_add_u32 s{SKV}, s{SKH}, s{sT1}")
    a(f"s_addc_u32 s{SKV+1}, s{SKH+1}, 0")
    a(f"s_mov_b32 s{SKV+2}, {16*TS}")
    a(f"s_mov_b32 s{SKV+3}, 0x20000")
    a(f"s_add_u32 s{SVH}, s{SWS}, {WS_V}")
    a(f"s_addc_u32 s{SVH+1}, s{SWS+1}, 0")
    a(f"s_mov_b32 s{SVH+2}, {64*VT}")
    a(f"s_mov_b32 s{SVH+3}, 0x20000")
    a(f"s_mul_i32 s{sT1}, s{sW}, {16*VT}")
    a(f"s_add_u32 s{SV}, s{SVH}, s{sT1}")
    a(f"s_addc_u32 s{SV+1}, s{SVH+1}, 0")
    a(f"s_mov_b32 s{SV+2}, {16*VT}")
    a(f"s_mov_b32 s{SV+3}, 0x20000")
    if OPT.get("ra", "1") == "1":
        a(f"s_mul_i32 s{sOffV}, s{sQB}, {VT}")
        a(f"s_lshl_b32 s{sOff}, s{sQB}, 12")
    else:
        a(f"s_mov_b32 s{sOffV}, 0")
        a(f"s_mov_b32 s{sOff}, 0")
    for i in range(0, 8, 2):
        a(f"v_mov_b64 v[{PP+8+i}:{PP+9+i}], 0")
    g2_ids(a)
    for k in OPT.get("zq", "").split("+"):
        if k: a(f"s_sleep {k}")
    a(f"s_lshl_b32 s{sT3}, s{sHead}, 11")
    a(f"s_add_u32 s{sT3}, s{sT3}, {FQ}")
    poll(a, "F_pq", f"s{sT3}", 32, True, int(OPT.get("sq", "3")), 3, 0)
    fstamp(a, 9)
    a(f"s_setprio {OPT.get('pp', '1')}")
    a.c("K tile 0 of the head + Q (local tile j = global (w+j)&3)")
    a(f"buffer_load_dwordx4 v[{PP}:{PP+3}], v{vL16}, s[{SKH}:{SKH+3}], 0 offen sc1")
    a(f"buffer_load_dwordx4 v[{PP+4}:{PP+7}], v{vL16}, s[{SKH}:{SKH+3}], 0 offen offset:1024 sc1")
    a(f"s_lshl_b32 s{sT1}, s{sQB}, 14")
    for j in range(4):
        a(f"s_add_u32 s{sT0}, s{sW}, {j}")
        a(f"s_and_b32 s{sT0}, s{sT0}, 3")
        a(f"s_lshl_b32 s{sT0}, s{sT0}, 12")
        a(f"s_add_u32 s{sT0}, s{sT0}, s{sT1}")
        a(f"buffer_load_dwordx4 v[{QF+8*j}:{QF+8*j+3}], v{vL16}, s[{SKH}:{SKH+3}], s{sT0} offen offset:2048 sc1")
        a(f"buffer_load_dwordx4 v[{QF+8*j+4}:{QF+8*j+7}], v{vL16}, s[{SKH}:{SKH+3}], s{sT0} offen offset:3072 sc1")
    for kb in range(NB - 1):
        if kb == int(OPT.get("rel", "3")): ldsadd(a, 10)
        kvload(a, kb, SKV, SV)
    if int(OPT.get("rel", "3")) == 3: ldsadd(a, 10)
    a(f"s_waitcnt vmcnt({4*(NB-1)})")
    a(f"s_mov_b64 exec, s[{sUP}:{sUP+1}]")
    for qt in range(4):
        a(f"v_mov_b64 v[{QF+8*qt+6}:{QF+8*qt+7}], 0")
    a("s_mov_b64 exec, -1")
    a("s_nop 1")
    for qt in range(4):
        a(mf(OO + 16 * qt, PP, QF + 8 * qt, None))
        a(mf(OO + 16 * qt, PP + 4, QF + 8 * qt + 4, OO + 16 * qt))
    a.c("shift = largest score among keys 4..7 (upper lanes hold them), cut to bf16; checked after the loop")
    a("s_nop 5")
    a(f"s_mov_b64 exec, s[{sUP}:{sUP+1}]")
    for qt in range(4):
        o = OO + 16 * qt
        a(f"v_max3_f32 v{vT+qt}, v{o}, v{o+1}, v{o+2}")
        a(f"v_max_f32 v{vT+qt}, v{vT+qt}, v{o+3}")
        a(f"v_lshrrev_b32 v{vT+qt}, 16, v{vT+qt}")
        a(f"v_xor_b32 v{QF+8*qt+6}, 0x8000, v{vT+qt}")
    a("s_mov_b64 exec, -1")
    a(f"s_waitcnt vmcnt({4*(NB-2)})")
    a(mf(SS, KV, QF, None))
    a(mf(SS, KV + 4, QF + 4, SS))
    a.c("O = 0 (P[1] is zero)")
    for qt in range(4):
        a(mf(OO + 16 * qt, PP + 8, PP + 8, None))
    a(f"s_mov_b32 s{sCnt}, {16//NB}")
    a("s_nop 6")
    a(f"s_setprio {OPT.get('prio', '1')}")
    fstamp(a, 10)
    a.label("F_aloop")
    for kb in range(NB):
        for qt in range(4):
            n = kb * 4 + qt
            cur, nxt = SS + 16 * (n & 1), SS + 16 * ((n + 1) & 1)
            pc, pp = PP + 8 * (n & 1), PP + 8 * ((n + 1) & 1)
            nkb, nqt = (kb, qt + 1) if qt < 3 else ((kb + 1) % NB, 0)
            pkb, pqt = (kb, qt - 1) if qt > 0 else ((kb - 1) % NB, 3)
            if qt == 3:
                a(f"s_waitcnt vmcnt({4*(NB-2)})")
            K = KV + 16 * nkb
            V = KV + 16 * pkb + 8
            O = OO + 16 * pqt
            mm = [mf(nxt, K, QF + 8 * nqt, None), mf(nxt, K + 4, QF + 8 * nqt + 4, nxt),
                  mf(O, V, pp, O), mf(O, V + 4, pp + 4, O)]
            for g in range(4):
                a(mm[g])
                if g == 3 and qt == 0:
                    kvload(a, pkb, SKV, SV)
                    if kb == 0 and OPT.get("ra", "1") == "1":
                        a(f"s_cmp_eq_u32 s{sCnt}, 1")
                        a(f"s_cselect_b32 s{SKV+2}, 0, s{SKV+2}")
                        a(f"s_cselect_b32 s{SV+2}, 0, s{SV+2}")
                if g == 3 and n == 4 * NB - 1:
                    a(f"s_sub_u32 s{sCnt}, s{sCnt}, 1")
                    a(f"s_cmp_lg_u32 s{sCnt}, 0")
                for l in expcvt(cur, pc, g):
                    a(l)
    a("s_cbranch_scc1 F_aloop")
    V = KV + 16 * (NB - 1) + 8
    O = OO + 48
    a("s_nop 0")
    a(mf(O, V, PP + 8, O))
    a(mf(O, V + 4, PP + 12, O))
    fstamp(a, 1)
    a.c("the B waves are done with the phase-1 LDS image")
    ldswait(a, "F_bw1", 1, 4)
    a.c("send local tiles 1..3 to waves (w+j)&3, inbox slot j-1")
    for j in range(1, 4):
        a(f"s_add_u32 s{sT0}, s{sW}, {j}")
        a(f"s_and_b32 s{sT0}, s{sT0}, 3")
        a(f"s_mul_i32 s{sT0}, s{sT0}, {INB}")
        a(f"v_add_u32 v{vT+j}, s{sT0}, v{vL16}")
    for j in range(1, 4):
        for aa in range(4):
            a(f"ds_write_b128 v{vT+j}, v[{OO+16*j+4*aa}:{OO+16*j+4*aa+3}] offset:{4096*(j-1)+1024*aa}")
    ldsadd(a, 6)
    a(f"s_mul_i32 s{sT0}, s{sW}, {INB}")
    a(f"v_add_u32 v{vT}, s{sT0}, v{vL16}")
    a(f"s_lshl_b32 s{sT3}, s{sQB}, 2")
    a(f"s_add_u32 s{sT3}, s{sT3}, s{sW}")
    a(f"s_lshl_b32 s{sT3}, s{sT3}, 4")
    a(f"s_add_u32 s{sT3}, s{sT3}, s{sHead}")
    a(f"s_lshl_b32 s{sT3}, s{sT3}, 11")
    a(f"s_add_u32 s{sT3}, s{sT3}, {WS_O}")
    ldswait(a, "F_iw", 6, 4, 1)
    fstamp(a, 2)
    R = OO
    for j in range(1, 4):
        for aa in range(4):
            a(f"ds_read_b128 v[{OO+16*j+4*aa}:{OO+16*j+4*aa+3}], v{vT} offset:{4096*(j-1)+1024*aa}")
    for j in range(1, 4):
        a(f"s_waitcnt lgkmcnt({4*(3-j)})")
        for i in range(16): a(f"v_add_f32 v{R+i}, v{R+i}, v{OO+16*j+i}")
    a.c("check of the stand-in shift: every value finite and below 2^100, row sum above 2^-60; else redo with the true row max")
    a(f"v_add_f32 v{vT+2}, abs(v{R}), abs(v{R+1})")
    for i in range(2, 16):
        a(f"v_add_f32 v{vT+2}, v{vT+2}, abs(v{R+i})")
    a(f"v_cmp_lt_f32 vcc, {fhex(2.0**-60)}, v{R+12}")
    a(f"s_mov_b32 s{sT0}, vcc_hi")
    a(f"v_cmp_gt_f32 vcc, {fhex(2.0**100)}, v{vT+2}")
    a(f"s_and_b32 vcc_hi, vcc_hi, s{sT0}")
    a("s_cmp_eq_u64 vcc, -1")
    a("s_cbranch_scc0 F_slow")
    a.label("F_fin")
    a(f"v_mov_b32 v{vT+2}, v{R+12}")
    a(f"v_mov_b32 v{vT+3}, v{R+12}")
    a("s_nop 1")
    a(f"v_permlane32_swap_b32 v{vT+2}, v{vT+3}")
    a("s_nop 0")
    a(f"v_rcp_f32 v{vT+3}, v{vT+3}")
    a(f"s_mov_b64 exec, s[{sUP}:{sUP+1}]")
    a(f"v_mov_b64 v[{R+12}:{R+13}], 0")
    a(f"v_mov_b64 v[{R+14}:{R+15}], 0")
    a("s_mov_b64 exec, -1")
    for i in range(16): a(f"v_mul_f32 v{R+i}, v{R+i}, v{vT+3}")
    for i in range(8): a(f"v_cvt_pk_bf16_f32 v{SS+i}, v{R+2*i}, v{R+2*i+1}")
    a(f"buffer_store_dwordx4 v[{SS}:{SS+3}], v{vL16}, s[{SWS}:{SWS+3}], s{sT3} offen sc1")
    a(f"buffer_store_dwordx4 v[{SS+4}:{SS+7}], v{vL16}, s[{SWS}:{SWS+3}], s{sT3} offen offset:1024 sc1")
    a(f"s_lshl_b32 s{sT3}, s{sQB}, 11")
    a(f"s_lshl_b32 s{sT0}, s{sHead}, 7")
    a(f"s_add_u32 s{sT3}, s{sT3}, s{sT0}")
    a(f"s_add_u32 s{sT3}, s{sT3}, {FO}")
    a.c("work for the tail while the stores fly")
    g2_tr(a)
    a(f"v_mov_b64 v[{WFG}:{WFG+1}], 0")
    a(f"v_mov_b64 v[{WFG+2}:{WFG+3}], 0")
    a("s_nop 1")
    for k in range(2):
        a(mf(GACC + 16 * k, WFG, WFG, None))
    signal(a, "F_so", 2, sT3)
    fstamp(a, 3)
    a(f"s_cmp_ge_u32 s{sNT}, 7")
    a("s_cbranch_scc1 F_end")
    a("s_branch F_tail")
    a.label("F_slow")
    S2 = SS + 16
    a(f"v_mov_b32 v{vT+2}, 0xff800000")
    a(f"s_mov_b32 s{sOff}, 0")
    a(f"s_mov_b32 s{sOffV}, 0")
    a(f"s_mov_b64 exec, s[{sUP}:{sUP+1}]")
    a(f"v_mov_b64 v[{QF+6}:{QF+7}], 0")
    a("s_mov_b64 exec, -1")
    a.label("F_sl1")
    kvload(a, 0, SKH, SVH)
    a("s_waitcnt vmcnt(0)")
    a(mf(S2, KV, QF, None))
    a(mf(S2, KV + 4, QF + 4, S2))
    a("s_nop 15")
    maxtree(a, S2, vT + 2, first=False)
    a(f"s_cmp_lt_u32 s{sOff}, {HS}")
    a("s_cbranch_scc1 F_sl1")
    setpads(a, [vT + 2], [QF], vT + 4)
    for i in range(0, 16, 2): a(f"v_mov_b64 v[{R+i}:{R+i+1}], 0")
    a(f"s_mov_b32 s{sOff}, 0")
    a(f"s_mov_b32 s{sOffV}, 0")
    a.label("F_sl2")
    kvload(a, 0, SKH, SVH)
    a("s_waitcnt vmcnt(0)")
    a(mf(S2, KV, QF, None))
    a(mf(S2, KV + 4, QF + 4, S2))
    a("s_nop 15")
    for g in range(4):
        for l in expcvt(S2, PP, g): a(l)
    a("s_nop 1")
    a(mf(R, KV + 8, PP, R))
    a(mf(R, KV + 12, PP + 4, R))
    a(f"s_cmp_lt_u32 s{sOff}, {HS}")
    a("s_cbranch_scc1 F_sl2")
    a("s_nop 15")
    a("s_branch F_fin")

def g2h(a):
    a.label("F_g2")
    a(f"s_setprio {OPT.get('bp', '0')}")
    fstamp(a, 8)
    g2_ids(a)
    a(f"s_cmp_ge_u32 s{sNT}, 7")
    a("s_cbranch_scc1 F_end")
    a(f"s_load_dwordx2 s[{SWD}:{SWD+1}], s[0:1], 48")
    a(f"s_load_dwordx2 s[{SXO}:{SXO+1}], s[0:1], 16")
    a(f"s_lshl_b32 s{sRing}, s{sTT}, 14")
    a(f"s_add_u32 s{sRing}, s{sRing}, {WOB}")
    g2_tr(a)
    a(f"v_add_u32 v{vTr0+2}, s{sRing}, v{vTr0}")
    a(f"v_add_u32 v{vTr1+2}, s{sRing}, v{vTr1}")
    t1, t2, i_ = vT, vT + 1, vT + 2
    a(f"v_bfe_u32 v{t1}, v{vLane}, 4, 1")
    a(f"v_lshlrev_b32 v{t1}, 2, v{t1}")
    a(f"v_and_b32 v{t2}, 7, v{vLane}")
    a(f"v_xor_b32 v{t1}, v{t1}, v{t2}")
    a(f"v_lshrrev_b32 v{i_}, 3, v{vLane}")
    a(f"v_mul_u32_u24 v{vOff}, 896, v{i_}")
    a(f"v_lshl_add_u32 v{vOff}, v{t1}, 4, v{vOff}")
    for i in range(1, 4):
        a(f"v_add_u32 v{vOff+i}, {i*(7168-1024)}, v{vOff}")
    a(f"v_mov_b64 v[{WFG}:{WFG+1}], 0")
    a(f"v_mov_b64 v[{WFG+2}:{WFG+3}], 0")
    a(f"s_lshl_b32 s{sT2}, s{sNT}, 7")
    a(f"s_mul_i32 s{sWoff}, s{sTT}, {14*32*896}")
    a(f"s_add_u32 s{sWoff}, s{sWoff}, s{sT2}")
    for k in range(4):
        a(mf(GACC + 16 * k, WFG, WFG, None))
    a.c("local token tile 0 = tile w&1")
    a(f"s_mul_i32 s{sA0}, s{sMT}, {2*112*1024}")
    a(f"s_mul_i32 s{sT1}, s{sTT}, {28*1024}")
    a(f"s_add_u32 s{sA0}, s{sA0}, s{sT1}")
    a(f"s_add_u32 s{sA0}, s{sA0}, {WS_H}")
    a(f"s_add_u32 s{sT1}, s{sA0}, {112*1024}")
    a(f"s_bitcmp1_b32 s{sW}, 0")
    a(f"s_cselect_b32 s{sA1}, s{sA0}, s{sT1}")
    a(f"s_cselect_b32 s{sA0}, s{sT1}, s{sA0}")
    a(f"s_mov_b32 s{SWD+2}, {1792*896}")
    a(f"s_mov_b32 s{SWD+3}, 0x20000")
    a(f"s_movk_i32 s{sStep}, {32*896}")
    if OPT.get("rg", "1") == "1":
        a.c("start unit = (2nt + 3.5(mt&3)) mod 14: workgroups sharing h or w_down do not run in lockstep")
        a(f"s_mov_b32 s{sQB}, s{sWoff}")
        a(f"s_add_u32 s{sHead}, s{sWoff}, {14*32*896}")
        a(f"s_add_u32 s{sOff}, s{sA0}, {13*2048}")
        a(f"s_movk_i32 s{sOffV}, 2048")
        a(f"s_and_b32 s{sT0}, s{sMT}, 3")
        a(f"s_mul_i32 s{sT0}, s{sT0}, 7")
        a(f"s_lshr_b32 s{sT0}, s{sT0}, 1")
        a(f"s_lshl_b32 s{sT1}, s{sNT}, 1")
        a(f"s_add_u32 s{sT0}, s{sT0}, s{sT1}")
        a(f"s_cmp_ge_u32 s{sT0}, 14")
        a(f"s_cselect_b32 s{sT1}, 14, 0")
        a(f"s_sub_u32 s{sT0}, s{sT0}, s{sT1}")
        a(f"s_mul_i32 s{sT1}, s{sT0}, {32*896}")
        a(f"s_add_u32 s{sWoff}, s{sWoff}, s{sT1}")
        a(f"s_lshl_b32 s{sT1}, s{sT0}, 11")
        a(f"s_add_u32 s{sA0}, s{sA0}, s{sT1}")
        a(f"s_add_u32 s{sA1}, s{sA1}, s{sT1}")
    a(f"s_lshr_b32 s{sT3}, s{sMT}, 1")
    a(f"s_lshl_b32 s{sT3}, s{sT3}, 11")
    a(f"s_add_u32 s{sT3}, s{sT3}, {FH}")
    ldswait(a, "F_bw2", 1, 4)
    a(f"s_and_b32 s{SWD+1}, s{SWD+1}, 0xffff")
    for u in range(4): wdma(a, (u + 2) % 4)
    poll(a, "F_ph", f"s{sT3}", 14, False, int(OPT.get("sh", "4")), 4, 4)
    fstamp(a, 9)
    for u in range(4): actld(a, (u + 2) % 4)
    a(f"s_mov_b32 s{sCnt}, 4")
    a("s_waitcnt vmcnt(4)")
    a("s_branch F_gmid")
    a.label("F_gloop")
    a(f"s_cmp_lg_u32 s{sCnt}, 1")
    a("s_cbranch_scc1 F_gl2")
    a.c("last round: the weight stream continues with wo (heads 4tt..4tt+3), no more activations")
    a(f"s_mov_b32 s{SWD}, s{SXO}")
    a(f"s_and_b32 s{SWD+1}, s{SXO+1}, 0xffff")
    a(f"s_mov_b32 s{SWD+2}, {448*896}")
    a(f"s_movk_i32 s{sStep}, {28*896}")
    a(f"s_mul_i32 s{sWoff}, s{sTT}, {4*28*896}")
    a(f"s_add_u32 s{sWoff}, s{sWoff}, s{sT2}")
    a(f"s_mov_b32 s{sHead}, -1")
    a(f"s_mov_b32 s{sA0}, 0x40000000")
    a(f"s_mov_b32 s{sA1}, 0x40000000")
    a.label("F_gl2")
    for st in range(4):
        if st == 2: a.label("F_gmid")
        a("s_waitcnt vmcnt(24)")
        unit(a, st)
        actld(a, st)
        wdma(a, st)
    a(f"s_sub_u32 s{sCnt}, s{sCnt}, 1")
    a(f"s_cmp_lg_u32 s{sCnt}, 0")
    a("s_cbranch_scc1 F_gloop")
    fstamp(a, 10)
    a.c("pair exchange: the other token tile goes to wave w^1")
    a(f"s_xor_b32 s{sT0}, s{sTT}, 1")
    a(f"s_lshl_b32 s{sT0}, s{sT0}, 13")
    a(f"s_add_u32 s{sT0}, s{sT0}, {XCH}")
    a(f"v_add_u32 v{vT}, s{sT0}, v{vL16}")
    a(f"v_xor_b32 v{vT+1}, 0x2000, v{vT}")
    for i in range(8):
        a(f"ds_write_b128 v{vT}, v[{GACC+32+4*i}:{GACC+32+4*i+3}] offset:{1024*i}")
    ldsadd(a, 7)
    ldswait(a, "F_xw", 7, 4)
    for i in range(8):
        a(f"ds_read_b128 v[{GACC+32+4*i}:{GACC+32+4*i+3}], v{vT+1} offset:{1024*i}")
    a("s_waitcnt vmcnt(0) lgkmcnt(0)")
    ldsadd(a, 8)
    for i in range(32):
        a(f"v_add_f32 v{GACC+i}, v{GACC+i}, v{GACC+32+i}")

def tail(a):
    a.label("F_tail")
    a(f"s_load_dwordx2 s[{SXO}:{SXO+1}], s[0:1], 0")
    a(f"s_load_dwordx2 s[{SWD}:{SWD+1}], s[0:1], 56")
    a(f"s_lshr_b32 s{sT3}, s{sMT}, 1")
    a(f"s_lshl_b32 s{sT3}, s{sT3}, 11")
    a(f"s_add_u32 s{sT3}, s{sT3}, {FO}")
    a.c("token tile 2mt + (w&1); heads 4kq..4kq+3")
    a(f"s_and_b32 s{sT2}, s{sW}, 1")
    a(f"s_lshl_b32 s{sT0}, s{sMT}, 1")
    a(f"s_add_u32 s{sT2}, s{sT2}, s{sT0}")
    a(f"s_lshl_b32 s{sA0}, s{sT2}, 15")
    a(f"s_lshl_b32 s{sT0}, s{sKQ}, 13")
    a(f"s_add_u32 s{sA0}, s{sA0}, s{sT0}")
    a(f"s_add_u32 s{sA0}, s{sA0}, {WS_O}")
    a(f"s_add_u32 s{sA1}, s{sA0}, 4096")
    a(f"s_mul_i32 s{sT2}, s{sT2}, {32*896}")
    a(f"s_lshl_b32 s{sT0}, s{sNT}, 7")
    a(f"s_add_u32 s{sT2}, s{sT2}, s{sT0}")
    a(f"s_lshl_b32 s{sT0}, s{sKQ}, 5")
    a(f"s_add_u32 s{sT2}, s{sT2}, s{sT0}")
    a(f"v_and_b32 v{vXo}, 31, v{vLane}")
    a(f"v_mul_u32_u24 v{vXo}, 896, v{vXo}")
    a(f"v_lshl_add_u32 v{vXo+1}, v{vH}, 3, v{vXo}")
    a(f"v_lshl_add_u32 v{vXo}, v{vH}, 4, v{vXo}")
    a(f"s_lshl_b32 s{sT0}, s{sKQ}, 14")
    a(f"s_add_u32 s{sT0}, s{sT0}, {WOB}")
    a(f"v_add_u32 v{vTr0}, s{sT0}, v{vTr0}")
    a(f"v_add_u32 v{vTr1}, s{sT0}, v{vTr1}")
    a(f"s_mov_b32 s{SXO+2}, {2048*896}")
    a(f"s_mov_b32 s{SXO+3}, 0x20000")
    a(f"s_mov_b32 s{SWD+2}, {2048*896}")
    a(f"s_mov_b32 s{SWD+3}, 0x20000")
    ldswait(a, "F_ww", 8, 4)
    a(f"s_and_b32 s{SXO+1}, s{SXO+1}, 0xffff")
    a(f"s_and_b32 s{SWD+1}, s{SWD+1}, 0xffff")
    a(f"buffer_load_dwordx2 v[{XRES}:{XRES+1}], v{vXo+1}, s[{SXO}:{SXO+3}], s{sT2} offen")
    a(f"buffer_load_dwordx2 v[{XRES+2}:{XRES+3}], v{vXo+1}, s[{SXO}:{SXO+3}], s{sT2} offen offset:16")
    for hd in range(4):
        for s_ in range(2):
            for tau in range(2):
                for t in range(2):
                    d = TW + 16 * hd + 8 * s_ + 4 * tau + 2 * t
                    a(f"ds_read_b64_tr_b16 v[{d}:{d+1}], v{vTr0 if tau == 0 else vTr1} offset:{hd*4096+s_*2048+t*1024}")
    a.c("final inbox addresses: local quarter i -> wave w ^ (2i), slot i-1")
    for i in range(1, 4):
        a(f"s_xor_b32 s{sT0}, s{sW}, {2*i}")
        a(f"s_mul_i32 s{sT0}, s{sT0}, 6144")
        a(f"v_add_u32 v{vOff+i}, s{sT0}, v{vL16}")
    a(f"s_mul_i32 s{sT0}, s{sW}, 6144")
    a(f"v_add_u32 v{vOff}, s{sT0}, v{vL16}")
    ldswait(a, "F_ow", 2, 4)
    poll(a, "F_po", f"s{sT3}", 16, False, int(OPT.get("so", "2")), 5, 4)
    fstamp(a, 4)
    for k in range(8):
        a(f"buffer_load_dwordx4 v[{ACT+4*k}:{ACT+4*k+3}], v{vL16}, s[{SWS}:{SWS+3}], s{sA0 if k < 4 else sA1} offen offset:{1024*(k&3)} sc1")
    R = 64
    a("s_waitcnt vmcnt(8)")
    for i in range(4):
        a(f"v_lshlrev_b32 v{R+2*i}, 16, v{XRES+i}")
        a(f"v_and_b32 v{R+2*i+1}, s{sMask}, v{XRES+i}")
    for k in range(8):
        a(f"s_waitcnt vmcnt({7-k})")
        for tau in range(2):
            acc = GACC + 16 * tau
            a(mf(acc, TW + 8 * k + 4 * tau, ACT + 4 * k, acc))
    fstamp(a, 5)
    a("s_nop 10")
    for i in range(1, 4):
        for c in range(2):
            r = GACC + 8 * i + 4 * c
            a(f"ds_write_b128 v{vOff+i}, v[{r}:{r+3}] offset:{2048*(i-1)+1024*c}")
    for i in range(8): a(f"v_add_f32 v{R+i}, v{R+i}, v{GACC+i}")
    a("s_waitcnt lgkmcnt(0)")
    a("s_barrier")
    D = GACC + 32
    for k in range(6):
        a(f"ds_read_b128 v[{D+4*k}:{D+4*k+3}], v{vOff} offset:{1024*k}")
    for i in range(3):
        a(f"s_waitcnt lgkmcnt({4-2*i})")
        for k in range(8): a(f"v_add_f32 v{R+k}, v{R+k}, v{D+8*i+k}")
    for i in range(4):
        a(f"v_cvt_pk_bf16_f32 v{XRES+i}, v{R+2*i}, v{R+2*i+1}")
    a("s_nop 1")
    a(f"v_permlane32_swap_b32 v{XRES}, v{XRES+2}")
    a(f"v_permlane32_swap_b32 v{XRES+1}, v{XRES+3}")
    a(f"buffer_store_dwordx4 v[{XRES}:{XRES+3}], v{vXo}, s[{SWD}:{SWD+3}], s{sT2} offen")
    a.label("F_end")
    fstamp(a, 7)
    a.stamp_flush(11, 0, sW, 8)
    a("s_endpgm")

def gen_fused(name):
    a = Asm()
    a("s_cmp_ge_u32 s2, 256")
    a("s_cbranch_scc1 F_exit")
    if OPT.get("scr") == "1":
        a("s_lshl_b32 s3, s2, 3")
        a("s_lshr_b32 s2, s2, 5")
        a("s_or_b32 s2, s2, s3")
        a("s_and_b32 s2, s2, 255")
    if OPT.get("scr") == "2":
        for sh, mul in ((3, 0x35), (4, 0x4d), (3, 1)):
            a(f"s_lshr_b32 s3, s2, {sh}")
            a("s_xor_b32 s2, s2, s3")
            a(f"s_mul_i32 s2, s2, {mul}")
            a("s_and_b32 s2, s2, 255")
    def endA(a):
        a(f"v_mov_b32 v{vZ}, 0")
        a.c("flag lanes: lane l<10 -> virtual head vh0 + (l>>1), part l&1 (0: holds its first column, 1: its last)")
        vh, col, ad = vT + 4, vT + 5, vT + 6
        a(f"s_mul_i32 s{sT2}, s{sCG}, 96")
        a(f"s_mul_i32 s{sT0}, s{sT2}, 2341")
        a(f"s_lshr_b32 s{sT0}, s{sT0}, 16")
        a(f"v_lshrrev_b32 v{vh}, 1, v{vLane}")
        a(f"v_add_u32 v{vh}, s{sT0}, v{vh}")
        a(f"v_and_b32 v{ad}, 1, v{vLane}")
        a(f"v_mul_u32_u24 v{col}, 27, v{ad}")
        a(f"v_mad_u32_u24 v{col}, v{vh}, 28, v{col}")
        a(f"v_subrev_u32 v{col}, s{sT2}, v{col}")
        a(f"v_cmp_gt_u32 vcc, 96, v{col}")
        a(f"v_lshlrev_b32 v{ad}, 4, v{ad}")
        a(f"v_lshrrev_b32 v{col}, 4, v{vh}")
        a(f"v_lshl_add_u32 v{ad}, v{col}, 2, v{ad}")
        a(f"v_and_b32 v{col}, 15, v{vh}")
        a(f"v_lshl_add_u32 v{ad}, v{col}, 11, v{ad}")
        a(f"v_cndmask_b32 v{ad}, -1, v{ad}, vcc")
        a(f"s_lshl_b32 s{sT3}, s{sRB}, 7")
        a(f"s_add_u32 s{sT3}, s{sT3}, {FQ}")
        xstamp(a, 3)
        signal(a, "F_sq", 0, sT3, ad)
        fstamp(a, 6)
        attention(a)
    def endB(a):
        xstamp(a, 3)
        a(f"v_mov_b32 v{vZ}, 0")
        a(f"s_lshl_b32 s{sT3}, s{sRB}, 11")
        a(f"s_lshl_b32 s{sT0}, s{sCG}, 7")
        a(f"s_add_u32 s{sT3}, s{sT3}, s{sT0}")
        a(f"s_add_u32 s{sT3}, s{sT3}, {FH}")
        signal(a, "F_sh", 1, sT3)
        g2h(a)
        tail(a)
    def endH(a):
        a.c("helper workgroups: wait for all helpers (flags are cleared by then), then take their roles")
        a(f"v_mov_b32 v{vZ}, 0")
        a.c("touch a slice of w_down / wo")
        a("s_load_dwordx2 s[4:5], s[0:1], 16")
        a("s_load_dwordx2 s[6:7], s[0:1], 48")
        a(f"s_lshl_b32 s{sT0}, s2, 3")
        a(f"s_add_u32 s{sT0}, s{sT0}, s{sW}")
        a(f"v_lshlrev_b32 v{vT+1}, 7, v{vLane}")
        a(f"s_mov_b32 s{SWD+2}, {448*896}")
        a("s_waitcnt lgkmcnt(0)")
        a(f"s_cmp_lt_u32 s{sT0}, 196")
        a(f"s_cselect_b32 s{SWD}, s6, s4")
        a(f"s_cselect_b32 s{SWD+1}, s7, s5")
        a(f"s_cselect_b32 s{SWD+2}, {1792*896}, s{SWD+2}")
        a(f"s_cselect_b32 s{sT1}, 0, 196")
        a(f"s_and_b32 s{SWD+1}, s{SWD+1}, 0xffff")
        a(f"s_mov_b32 s{SWD+3}, 0x20000")
        a(f"s_sub_u32 s{sT0}, s{sT0}, s{sT1}")
        a(f"s_lshl_b32 s{sT0}, s{sT0}, 13")
        a(f"buffer_load_dword v{vT+2}, v{vT+1}, s[{SWD}:{SWD+3}], s{sT0} offen")
        a(f"s_mov_b32 s{sT1}, 0x4000")
        a(f"s_cmp_lg_u32 s{sW}, 0")
        a("s_cbranch_scc1 F_hw_ok")
        a.label("F_hw")
        a("s_sleep 32")
        a(f"buffer_load_dword v{vT}, v{vZ}, s[{SDBG}:{SDBG+3}], 0 offen offset:128 sc1")
        a("s_waitcnt vmcnt(0)")
        a(f"v_readfirstlane_b32 s{sT0}, v{vT}")
        a(f"s_cmp_eq_u32 s{sT0}, 1")
        a("s_cbranch_scc1 F_hw_ok")
        a(f"s_sub_u32 s{sT1}, s{sT1}, 1")
        a("s_cbranch_scc0 F_hw")
        a.label("F_hw_ok")
        a("s_barrier")
        a(f"s_cmp_lt_u32 s{sW}, 4")
        a("s_cbranch_scc1 F_att")
        a("s_branch F_g2")
    p1.FUSED = True
    p1.KNAME = name
    p1.gen_p1(a, endA, endB, endH)
    a.label("F_exit")
    a("s_endpgm")
    return kernel_header(name) + a.text(), kernel_desc(name, 256, 64), LDS_F
```

```python
from asmlib import *
from consts import *
import math, os
OPT = dict(kv.split("=") for kv in os.environ.get("OPT", "").split(",") if kv)

XR = 0
FR = 98304
QR = 131072
LDS_P1 = QR + 4 * 6144
AUX = LDS_P1 + 64
SC1 = " sc1"
FUSED = False
KNAME = "k1_kernel"

SX, SWQ, SWA, SWS, SDBG = 16, 20, 24, 28, 56
sW, sRB, sCG, sTT = 32, 33, 34, 35
sOffX, sOffA, sOffQ, sRingA, sRingQ, sCnt = 36, 37, 38, 39, 40, 41
sT0, sT1, sT2, sT3 = 42, 43, 44, 45
sMask, sDelta = 46, 47
sTile, sRingX = 48, 49
sE48 = 50
sColA, sColQ, sRowX, sDq = 52, 53, 54, 55
vLane, vL16, vH, vR, vR2, vFlag = 1, 2, 3, 4, 5, 62
vTr0, vTr1 = 7, 8
vOffA, vOffA2, vOffQ = 9, 10, 11
vT = 12
vSt = 28
vOffQ2 = 40
vXk = 48
vOffX = 52
vZero = 54
WF = 64
XB = 96
XC = 112
RR = 192
ACC = 128

def pstamp(a, i):
    if FUSED and OPT.get("st", "2") == "2" and i != 0:
        return
    if OPT.get("st", "2") == "3" and i not in (0, 6):
        return
    a.stamp(i)

def mf(d, a, b):
    return f"v_mfma_f32_32x32x16_bf16 v[{d}:{d+15}], v[{a}:{a+3}], v[{b}:{b+3}], v[{d}:{d+15}]"

def wreadsA(slot, p):
    return [f"ds_read_b64_tr_b16 v[{WF+24*p+12*k+4*j+2*t}:{WF+24*p+12*k+4*j+2*t+1}], v{vTr0} offset:{slot*6144 + 3072*k + 64*j + 768*t}"
            for k in range(2) for j in range(3) for t in range(2)]

def wreadsB(slot, p):
    return [f"ds_read_b64_tr_b16 v[{WF+16*p+4*j+2*t}:{WF+16*p+4*j+2*t+1}], v{vTr0 if (j&1)==0 else vTr1} offset:{slot*8192 + (j>>1)*2048 + 512*t}"
            for j in range(4) for t in range(2)]

def dmaF(slot):
    g1 = [f"s_add_u32 m0, s{sRingA}, {slot*8192}",
          f"s_nop 0",
          f"buffer_load_dwordx4 v{vOffA}, s[{SWA}:{SWA+3}], s{sOffA} offen lds"]
    g2 = [f"buffer_load_dwordx4 v{vOffA2}, s[{SWA}:{SWA+3}], s{sOffA} offen offset:1024 lds",
          f"s_add_u32 s{sOffA}, s{sOffA}, {16*3584}"]
    return g1, g2

def dmaQ(slot):
    g1 = [f"s_add_u32 m0, s{sRingQ}, {slot*6144}",
          f"s_mov_b64 exec, s[{sE48}:{sE48+1}]",
          f"buffer_load_dwordx4 v{vOffQ}, s[{SWQ}:{SWQ+3}], s{sOffQ} offen lds",
          f"s_mov_b64 exec, -1"]
    g2 = [f"s_mov_b64 exec, s[{sE48}:{sE48+1}]",
          f"buffer_load_dwordx4 v{vOffQ2}, s[{SWQ}:{SWQ+3}], s{sOffQ} offen offset:768 lds",
          f"s_mov_b64 exec, -1",
          f"s_add_u32 s{sOffQ}, s{sOffQ}, {32*2688}"]
    return g1, g2

sSM, sSG = 60, 62
sTab = 14

def dmaX(q):
    x1 = [f"s_mov_b32 m0, s{sRingX}",
          f"s_add_u32 s{sRingX}, s{sRingX}, s{sSM+q}",
          f"buffer_load_dwordx4 v{vOffX}, s[{SX}:{SX+3}], s{sOffX} offen lds"]
    x2 = [f"buffer_load_dwordx4 v{vOffX+1}, s[{SX}:{SX+3}], s{sOffX} offen offset:1024 lds",
          f"s_add_u32 s{sOffX}, s{sOffX}, s{sSG+q}"]
    return x1, x2

def mmA(typ, p):
    out = []
    for k in range(2):
        for j in range(3):
            w, x = WF + 24 * p + 12 * k + 4 * j, XC + 8 * p + 4 * k
            out.append(mf(ACC + 16 * j, w, x) if typ[j] == "Q" else mf(ACC + 16 * j, x, w))
    return out

def mmB(p):
    return [mf(ACC + 64 * th + 16 * j, WF + 16 * p + 4 * j, XB + 8 * p + 4 * th) for j in range(4) for th in range(2)]

AXA = 188
AWA = 176
AXB = 28
AWB = 112

def call(a, cnt, lab, target):
    a(f"s_cmp_lg_u32 s{sCnt}, {cnt}")
    a(f"s_cbranch_scc1 {lab}")
    a(f"s_getpc_b64 s[{sT2}:{sT3}]")
    a(f"s_branch {target}")
    a.label(lab)

def ret(a):
    a(f"s_add_u32 s{sT2}, s{sT2}, 4")
    a(f"s_addc_u32 s{sT3}, s{sT3}, 0")
    a(f"s_setpc_b64 s[{sT2}:{sT3}]")

def loopA(a, typ):
    lab = f"P1_loopA_{typ}"
    a.label(lab)
    for q in range(2):
        p = q
        a("s_waitcnt vmcnt(12) lgkmcnt(0)")
        a("s_barrier")
        mm = mmA(typ, p)
        if q == 0:
            a(f"s_cmp_gt_u32 s{sCnt}, 4")
            a(f"s_cbranch_scc1 {lab}_n0")
            a(f"s_getpc_b64 s[{sT2}:{sT3}]")
            a(f"s_branch P1_side")
            a.label(f"{lab}_n0")
        if q == 0:
            tail = [f"s_cmp_eq_u32 s{sCnt}, 2", f"s_cselect_b32 s{sT1}, {(-5*16384) & 0xffffffff}, s{sRowX}",
                    f"v_add_u32 v{vXk}, s{sT1}, v{vXk}", f"v_add_u32 v{vXk+1}, s{sT1}, v{vXk+1}",
                    f"v_add_u32 v{vXk+2}, s{sT1}, v{vXk+2}", f"v_add_u32 v{vXk+3}, s{sT1}, v{vXk+3}",
                    f"v_add_u32 v{vTr0}, s{sDq}, v{vTr0}"]
        else:
            tail = [f"s_add_u32 s{sRingA}, s{sRingA}, s{sDelta}", f"s_add_u32 s{sRingQ}, s{sRingQ}, s{sDq}",
                    f"s_sub_u32 s{sDelta}, 0, s{sDelta}", f"s_sub_u32 s{sDq}, 0, s{sDq}",
                    f"s_sub_u32 s{sCnt}, s{sCnt}, 1", f"s_cmp_lg_u32 s{sCnt}, 0"]
        ks0 = 2 if q == 0 else 0
        rx = [f"ds_read_b128 v[{XC+8*(p^1)+4*k}:{XC+8*(p^1)+4*k+3}], v{vXk+ks0+k}" for k in range(2)]
        wr_ = wreadsA(1 - q, p ^ 1)
        rd = [rx[0]] + wr_[:6] + [rx[1]] + wr_[6:]
        f1, f2 = dmaF(q)
        q1, q2 = dmaQ(q)
        x1, x2 = dmaX(q)
        seq = f1 + rd[:3] + [mm[0]] + f2 + rd[3:6] + [mm[1]] + q1 + rd[6:9] + [mm[2]] + q2 + rd[9:12] + [mm[3]] + x1 + rd[12:] + [mm[4]] + x2 + tail + [mm[5]]
        for l in seq: a(l)
    a(f"s_cbranch_scc1 {lab}")
    a(f"s_getpc_b64 s[{sT2}:{sT3}]")
    a("s_branch P1_auxA")
    for j in range(3):
        w, x = AWA + 4 * j, AXA
        a(mf(ACC + 16 * j, w, x) if typ[j] == "Q" else mf(ACC + 16 * j, x, w))

def pair_dma(a, base, ks):
    a(f"s_add_u32 s{sRingX}, s{sColQ}, {base}")
    a(f"s_add_u32 s{sOffX}, s{sColA}, {ks*16*3584}")
    for q in range(2):
        for g in dmaX(q):
            for l in g: a(l)

BTAB = [6, 7, 6, 7, 6, 7, 6, 7, 6, 1, 2, 3, 8, 7, 7]
NBAR = int(OPT.get("nbar", "19"))
assert 18 <= NBAR <= 21

def loopB(a):
    lab = "P1_loopB"
    a.label(lab)
    for q in range(2):
        p = q
        a(f"s_bitcmp0_b32 s{sDq}, {q}")
        a(f"s_cbranch_scc1 {lab}_b{q}")
        a("s_barrier")
        a.label(f"{lab}_b{q}")
        mm = mmB(p)
        if q == 0:
            tail = [f"s_bitcmp1_b32 s{sCnt}, 0", f"s_cselect_b32 s{sT1}, 16384, 0",
                    f"s_cmp_eq_u32 s{sCnt}, 3", f"s_cselect_b32 s{sT1}, {(-5*16384) & 0xffffffff}, s{sT1}",
                    f"v_xor_b32 v{vXk}, 64, v{vXk}", f"v_add_u32 v{vXk}, s{sT1}, v{vXk}", f"v_xor_b32 v{vXk+1}, 32, v{vXk}",
                    f"s_lshr_b64 s[{sTab}:{sTab+1}], s[{sTab}:{sTab+1}], 4", f"s_and_b32 s{sT1}, s{sTab}, 15", f"s_lshl_b32 s{sT1}, s{sT1}, 14",
                    f"v_add_u32 v{vTr0}, s{sT1}, v{vOffA}", f"v_add_u32 v{vTr1}, s{sT1}, v{vOffA2}"]
        else:
            tail = [f"s_lshr_b32 s{sDq}, s{sDq}, 2", f"s_sub_u32 s{sCnt}, s{sCnt}, 1", f"s_cmp_lg_u32 s{sCnt}, 0"]
        xa = vXk + 1 if q == 0 else vXk
        rx = [f"ds_read_b128 v[{XB+8*(p^1)+4*th}:{XB+8*(p^1)+4*th+3}], v{xa} offset:{4096*th}" for th in range(2)]
        wr_ = wreadsB(1 - q, p ^ 1)
        rd = [rx[0]] + wr_[:2] + [rx[1]] + wr_[2:]
        nr = [2, 2, 2, 2, 2, 0, 0]
        for g in range(8):
            a(mm[g])
            if g == 0 and q == 1:
                a(f"s_cmp_gt_u32 s{sCnt}, s{sColQ}")
                a(f"s_cbranch_scc1 {lab}_n1")
                a(f"s_getpc_b64 s[{sT2}:{sT3}]")
                a(f"s_branch P1_sideB")
                a.label(f"{lab}_n1")
            if g < 7:
                for l in rd[:nr[g]]: a(l)
                rd = rd[nr[g]:]
            if g == 5:
                for l in tail[:len(tail)//2]: a(l)
            if g == 6:
                for l in tail[len(tail)//2:]: a(l)
        assert not rd
        a("s_waitcnt lgkmcnt(0)")
    a(f"s_cbranch_scc1 {lab}")
    if OPT.get("st") == "3": a.stamp(2)
    a.c("column-sum words still all-ones were not written yet: load again")
    a(f"s_mov_b32 s{sDq}, 0x2000")
    a.label("P1_bchk")
    a("s_waitcnt vmcnt(0) lgkmcnt(0)")
    a(f"v_max3_u32 v{vT+4}, v{AWB}, v{AWB+1}, v{AWB+2}")
    for i in range(3, 15, 2):
        a(f"v_max3_u32 v{vT+4}, v{vT+4}, v{AWB+i}, v{AWB+i+1}")
    a(f"v_max_u32 v{vT+4}, v{vT+4}, v{AWB+15}")
    a(f"v_cmp_eq_u32 vcc, -1, v{vT+4}")
    a("s_cbranch_vccz P1_bok")
    a(f"s_sub_u32 s{sDq}, s{sDq}, 1")
    a("s_cbranch_scc1 P1_bok")
    a("s_sleep 8")
    a(f"s_getpc_b64 s[{sT2}:{sT3}]")
    a("s_branch P1_auxB")
    a("s_branch P1_bchk")
    a.label("P1_bok")
    for j in range(4):
        for th in range(2):
            a(mf(ACC + 64 * th + 16 * j, AWB + 4 * j, AXB + 4 * th))

def waitgo(a, name, which, sleep):
    a(f"s_mov_b32 s{sT1}, 0x4000")
    a.label(f"{name}_l")
    a(f"v_readfirstlane_b32 s{sT0}, v{vFlag+which}")
    a(f"s_cmp_eq_u32 s{sT0}, 1")
    a(f"s_cbranch_scc1 {name}_ok")
    a(f"s_sub_u32 s{sT1}, s{sT1}, 1")
    a(f"s_cbranch_scc1 {name}_ok")
    a(f"buffer_load_dwordx2 v[{vFlag}:{vFlag+1}], v{vZero}, s[{SDBG}:{SDBG+3}], 0 offen offset:128 sc1")
    a(f"s_sleep {sleep}")
    a("s_waitcnt vmcnt(0)")
    a(f"s_branch {name}_l")
    a.label(f"{name}_ok")

def aux_blocks(a):
    a.c("A side jobs at the top of bodies 3..6 (cnt 4..1)")
    a.label("P1_side")
    a(f"s_cmp_lg_u32 s{sCnt}, 4")
    a("s_cbranch_scc1 P1_s3")
    a(f"s_lshl_b32 s{sRingX}, s{sTT}, 12")
    ret(a)
    a.label("P1_s3")
    a(f"s_cmp_lg_u32 s{sCnt}, 3")
    a("s_cbranch_scc1 P1_s2")
    a.c("the x stream now carries gate/up rows: k-steps 18,19 -> x slot 1")
    a(f"s_mov_b64 s[{SX}:{SX+1}], s[{SWA}:{SWA+1}]")
    a(f"s_mov_b32 s{SX+2}, s{SWA+2}")
    a(f"v_mov_b32 v{vOffX}, v{vOffA}")
    a(f"v_mov_b32 v{vOffX+1}, v{vOffA2}")
    a(f"s_mov_b32 s{sSM}, 8192")
    a(f"s_mov_b32 s{sSM+1}, 8192")
    a(f"s_mov_b32 s{sSG}, {16*3584}")
    a(f"s_mov_b32 s{sSG+1}, {16*3584}")
    a(f"s_add_u32 s{sRingX}, s{sColQ}, 16384")
    a(f"s_add_u32 s{sOffX}, s{sColA}, {18*16*3584}")
    ret(a)
    a.label("P1_s2")
    a(f"s_cmp_lg_u32 s{sCnt}, 2")
    a("s_cbranch_scc1 P1_s1")
    a(f"s_mov_b32 s{sRingX}, 0x30000")
    a(f"s_mov_b32 s{sOffX}, 0x40000000")
    a(f"s_mov_b32 s{sRingQ}, 0x34000")
    ret(a)
    a.label("P1_s1")
    a(f"s_add_u32 s{sRingX}, s{sColQ}, 32768")
    a(f"s_add_u32 s{sOffX}, s{sColA}, {20*16*3584}")
    ret(a)
    a.label("P1_auxA")
    a(f"v_and_b32 v{vT}, 0x1f0, v{vL16}")
    a(f"s_lshl_b32 s{sT0}, s{sTT}, 9")
    a(f"s_add_u32 s{sT0}, s{sT0}, {AUX}")
    a(f"v_add_u32 v{vT+1}, s{sT0}, v{vT}")
    a(f"s_lshl_b32 s{sT0}, s{sTT}, 7")
    a(f"s_add_u32 s{sT0}, s{sT0}, {AUX+3584}")
    a(f"v_lshrrev_b32 v{vT+2}, 2, v{vT}")
    a(f"v_add_u32 v{vT+2}, s{sT0}, v{vT+2}")
    a(f"v_lshl_add_u32 v{vT+3}, v{vH}, 4, s{sT0}")
    a(f"v_add_u32 v{vT}, {AUX+2048}, v{vT}")
    a(f"v_mov_b64 v[{AXA}:{AXA+1}], 0")
    a(f"v_mov_b64 v[{AXA+2}:{AXA+3}], 0")
    a("s_waitcnt vmcnt(12) lgkmcnt(0)")
    a("s_barrier")
    pair_dma(a, QR, 24)
    bar15(a)
    a(f"v_mov_b32 v{vT+4}, {LDS_P1+36}")
    a(f"s_mov_b32 s{sT1}, 0x100000")
    a.label("P1_aw")
    a(f"ds_read_b32 v{vT+5}, v{vT+4}")
    a("s_waitcnt lgkmcnt(0)")
    a(f"v_readfirstlane_b32 s{sT0}, v{vT+5}")
    a(f"s_sub_u32 s{sT1}, s{sT1}, 1")
    a(f"s_cselect_b32 s{sT0}, 1, s{sT0}")
    a(f"s_cmp_eq_u32 s{sT0}, 1")
    a("s_cbranch_scc1 P1_aw_ok")
    a("s_sleep 2")
    a("s_branch P1_aw")
    a.label("P1_aw_ok")
    a("s_mov_b32 exec_hi, 0")
    a(f"ds_read_b128 v[{AXA}:{AXA+3}], v{vT+1}")
    a("s_mov_b32 exec_hi, -1")
    for j in range(3):
        a(f"ds_read_b128 v[{AWA+4*j}:{AWA+4*j+3}], v{vT} offset:{512*j}")
    a(f"ds_read_b32 v{vR}, v{vT+2}")
    for aa in range(4):
        a(f"ds_read_b128 v[{RR+4*aa}:{RR+4*aa+3}], v{vT+3} offset:{32*aa}")
    a("s_waitcnt lgkmcnt(0)")
    ret(a)
    a.c("B side jobs. wave 4: wait for the helpers' start flag, then fetch their operands until all words are written; put them into LDS")
    AL = 28
    SB = int(OPT.get('sb', '4'))
    a.label("P1_sideB")
    a(f"s_cmp_le_u32 s{sCnt}, {SB}")
    a("s_cbranch_scc1 P1_auxB")
    a(f"s_movk_i32 s{sT1}, 0x2000")
    a.label("P1_sb0")
    a(f"s_cmp_lg_u32 s{sCnt}, 6")
    a("s_cbranch_scc1 P1_sbn")
    a("s_waitcnt vmcnt(0)")
    a.label("P1_sbn")
    a(f"s_getreg_b32 s{sT0}, hwreg(HW_REG_IB_STS)")
    a(f"s_and_b32 s{sT0}, s{sT0}, 0x00c0000f")
    a("s_cbranch_scc1 P1_sbr")
    a(f"v_readfirstlane_b32 s{sT0}, v{vFlag}")
    a(f"s_cmp_eq_u32 s{sT0}, 1")
    a("s_cbranch_scc1 P1_sbd")
    a(f"buffer_load_dwordx2 v[{vFlag}:{vFlag+1}], v{vZero}, s[{SDBG}:{SDBG+3}], 0 offen offset:128 sc1")
    a.label("P1_sba")
    a(f"s_cmp_lg_u32 s{sCnt}, 6")
    a("s_cbranch_scc1 P1_sbr")
    a(f"s_sub_u32 s{sT1}, s{sT1}, 1")
    a("s_cbranch_scc0 P1_sb0")
    a("s_branch P1_sbw")
    a.label("P1_sbr")
    ret(a)
    a.label("P1_sbd")
    a(f"v_max3_u32 v{vT+4}, v{AL}, v{AL+1}, v{AL+2}")
    for i in range(3, 15, 2):
        a(f"v_max3_u32 v{vT+4}, v{vT+4}, v{AL+i}, v{AL+i+1}")
    a(f"v_max_u32 v{vT+4}, v{vT+4}, v{AL+15}")
    a(f"v_cmp_eq_u32 vcc, -1, v{vT+4}")
    a("s_cbranch_vccz P1_sbw")
    a(f"s_lshl_b32 s{sT0}, s{sRB}, 11")
    a(f"s_add_u32 s{sT0}, s{sT0}, {WS_AX}")
    a(f"buffer_load_dwordx4 v[{AL}:{AL+3}], v{vL16}, s[{SWS}:{SWS+3}], s{sT0} offen sc1")
    a(f"buffer_load_dwordx4 v[{AL+4}:{AL+7}], v{vL16}, s[{SWS}:{SWS+3}], s{sT0} offen offset:1024 sc1")
    a(f"s_mul_i32 s{sT0}, s{sCG}, {96*16}")
    a(f"s_add_u32 s{sT0}, s{sT0}, {WS_AW}")
    a(f"buffer_load_dwordx4 v[{AL+8}:{AL+11}], v{vL16}, s[{SWS}:{SWS+3}], s{sT0} offen sc1")
    a("s_mov_b32 exec_hi, 0")
    a(f"buffer_load_dwordx4 v[{AL+12}:{AL+15}], v{vL16}, s[{SWS}:{SWS+3}], s{sT0} offen offset:1024 sc1")
    a(f"s_lshl_b32 s{sT0}, s{sRB}, 9")
    a(f"s_add_u32 s{sT0}, s{sT0}, {WS_AR-512}")
    a("s_not_b64 exec, exec")
    a(f"buffer_load_dwordx4 v[{AL+12}:{AL+15}], v{vL16}, s[{SWS}:{SWS+3}], s{sT0} offen sc1")
    a("s_mov_b64 exec, -1")
    a("s_branch P1_sba")
    a.label("P1_sbw")
    if OPT.get("st") == "3": a("s_memtime s[66:67]")
    a(f"v_add_u32 v{vT+4}, {AUX}, v{vL16}")
    for k in range(4):
        a(f"ds_write_b128 v{vT+4}, v[{AL+4*k}:{AL+4*k+3}] offset:{1024*k}")
    a(f"v_mov_b32 v{vT+4}, {LDS_P1+36}")
    a(f"v_mov_b32 v{vT+5}, 1")
    a(f"ds_write_b32 v{vT+4}, v{vT+5}")
    a(f"s_movk_i32 s{sColQ}, {SB}")
    ret(a)
    a.label("P1_auxB")
    a(f"s_mov_b32 s{sColQ}, 0")
    a(f"v_and_b32 v{vT}, 0x1f0, v{vL16}")
    a(f"s_lshl_b32 s{sT0}, s{sCG}, 1")
    a(f"s_lshr_b32 s{sT1}, s{sTT}, 1")
    a(f"s_add_u32 s{sT0}, s{sT0}, s{sT1}")
    a(f"s_lshl_b32 s{sT0}, s{sT0}, 10")
    a(f"s_add_u32 s{sT0}, s{sT0}, {WS_AW+AW_G}")
    a(f"s_add_u32 s{sT1}, s{sT0}, {AW_U-AW_G}")
    for j in range(4):
        a(f"buffer_load_dwordx4 v[{AWB+4*j}:{AWB+4*j+3}], v{vT}, s[{SWS}:{SWS+3}], s{sT0 if j < 2 else sT1} offen offset:{512*(j&1)} sc1")
    a(f"s_and_b32 s{sT1}, s{sTT}, 1")
    a(f"s_lshl_b32 s{sT0}, s{sT1}, 10")
    a(f"s_add_u32 s{sT0}, s{sT0}, {AUX}")
    a(f"v_add_u32 v{vT+1}, s{sT0}, v{vT}")
    a(f"s_lshl_b32 s{sT0}, s{sT1}, 8")
    a(f"s_add_u32 s{sT0}, s{sT0}, {AUX+3584}")
    a(f"v_lshrrev_b32 v{vT+2}, 2, v{vT}")
    a(f"v_add_u32 v{vT+2}, s{sT0}, v{vT+2}")
    for k in range(0, 8, 2):
        a(f"v_mov_b64 v[{AXB+k}:{AXB+k+1}], 0")
    a(f"ds_read_b32 v{vR}, v{vT+2}")
    a(f"ds_read_b32 v{vR2}, v{vT+2} offset:128")
    a("s_mov_b32 exec_hi, 0")
    for th in range(2):
        a(f"ds_read_b128 v[{AXB+4*th}:{AXB+4*th+3}], v{vT+1} offset:{512*th}")
    a("s_mov_b32 exec_hi, -1")
    ret(a)

def epi_B(a):
    c0 = -2.0 * math.sqrt(2.0 / math.pi) * math.log2(math.e)
    c1 = c0 * 0.044715
    a.c("epilogue B: gelu(g)*u")
    if OPT.get("gp", "2") != "0": a(f"s_setprio {OPT.get('gp', '2')}")
    a(f"s_and_b32 s{sT1}, s{sTT}, 1")
    a(f"s_lshl_b32 s{sT1}, s{sT1}, 1")
    a(f"s_lshl_b32 s{sT2}, s{sRB}, 2")
    a(f"s_add_u32 s{sT1}, s{sT1}, s{sT2}")
    a(f"s_mul_i32 s{sT1}, s{sT1}, 112")
    a(f"s_lshl_b32 s{sT2}, s{sCG}, 3")
    a(f"s_add_u32 s{sT1}, s{sT1}, s{sT2}")
    a(f"s_lshr_b32 s{sT2}, s{sTT}, 1")
    a(f"s_lshl_b32 s{sT2}, s{sT2}, 2")
    a(f"s_add_u32 s{sT1}, s{sT1}, s{sT2}")
    a(f"s_lshl_b32 s{sT1}, s{sT1}, 10")
    a(f"s_add_u32 s{sT1}, s{sT1}, {WS_H}")
    a(f"s_add_u32 s{sT2}, s{sT1}, {112*1024}")
    KC = 28
    for th in range(2):
        k0, k1, ir2 = KC + 6 * th, KC + 6 * th + 2, KC + 6 * th + 4
        r = vR if th == 0 else vR2
        a(f"v_mul_f32 v{ir2}, v{r}, v{r}")
        a(f"v_mul_f32 v{k0}, {fhex(c0)}, v{r}")
        a(f"v_mul_f32 v{k1}, v{ir2}, v{r}")
        a(f"v_mul_f32 v{k1}, {fhex(c1)}, v{k1}")
        a(f"v_rcp_f32 v{ir2}, v{ir2}")
        a(f"v_mov_b32 v{k0+1}, v{k0}")
        a(f"v_mov_b32 v{k1+1}, v{k1}")
        a(f"v_mov_b32 v{ir2+1}, v{ir2}")
    T = vT
    held = []
    pr = lambda r: f"v[{r}:{r+1}]"
    for th in range(2):
        k0, k1, ir2 = KC + 6 * th, KC + 6 * th + 2, KC + 6 * th + 4
        for p in range(2):
            G = ACC + 64 * th + 16 * p
            U = G + 32
            out = WF + 8 * (2 * th + p)
            for i0 in range(0, 16, 8):
                for k in range(0, 8, 2): a(f"v_pk_mul_f32 {pr(T+k)}, {pr(G+i0+k)}, {pr(G+i0+k)}")
                for k in range(0, 8, 2): a(f"v_pk_fma_f32 {pr(T+k)}, {pr(T+k)}, {pr(k1)}, {pr(k0)}")
                for k in range(0, 8, 2): a(f"v_pk_mul_f32 {pr(T+k)}, {pr(T+k)}, {pr(G+i0+k)}")
                for k in range(8): a(f"v_exp_f32 v{T+k}, v{T+k}")
                for k in range(0, 8, 2): a(f"v_pk_mul_f32 {pr(U+i0+k)}, {pr(U+i0+k)}, {pr(G+i0+k)}")
                for k in range(0, 8, 2): a(f"v_pk_fma_f32 {pr(T+k)}, {pr(T+k)}, {pr(ir2)}, {pr(ir2)}")
                for k in range(8): a(f"v_rcp_f32 v{T+k}, v{T+k}")
                a("s_nop 0")
                for k in range(0, 8, 2): a(f"v_pk_mul_f32 {pr(U+i0+k)}, {pr(U+i0+k)}, {pr(T+k)}")
                for k in range(4): a(f"v_cvt_pk_bf16_f32 v{out+i0//2+k}, v{U+i0+2*k}, v{U+i0+2*k+1}")
                s = i0 // 8
                so = sT1 if th == 0 else sT2
                st_ = f"buffer_store_dwordx4 v[{out+4*s}:{out+4*s+3}], v{vL16}, s[{SWS}:{SWS+3}], s{so} offen offset:{(2*p+s)*1024}{STF()}"
                if OPT.get("hold", "1") == "1": held.append(st_)
                else: a(st_)
    if held:
        a.c("the h stores wait until the attention waves have their first loads out")
        a(f"s_setprio {OPT.get('bp', '0')}")
        if OPT.get("st") == "3": a.stamp(4)
        a(f"v_mov_b32 v{vT+8}, {LDS_P1+40}")
        a(f"s_mov_b32 s{sT3}, 0x100000")
        a.label("P1_hw")
        a(f"ds_read_b32 v{vT+9}, v{vT+8}")
        a("s_waitcnt lgkmcnt(0)")
        a(f"v_readfirstlane_b32 s{sT0}, v{vT+9}")
        a(f"s_sub_u32 s{sT3}, s{sT3}, 1")
        a(f"s_cselect_b32 s{sT0}, 4, s{sT0}")
        a(f"s_cmp_ge_u32 s{sT0}, 4")
        a("s_cbranch_scc1 P1_hw_ok")
        a("s_sleep 2")
        a("s_branch P1_hw")
        a.label("P1_hw_ok")
        if OPT.get("st") == "3": a.stamp(5)
        for l in held: a(l)

def STF():
    return SC1 if OPT.get("sc1", "1") == "1" else ""

def epi_A(a):
    a.c("epilogue A")
    a(f"s_mul_i32 s{sT0}, s{sCG}, 3")
    for j in range(3):
        a(f"s_cmp_lt_u32 s{sT0}, {14-j}")
        a(f"s_cselect_b32 s{sT1}, {fhex(QSCALE)}, 1.0")
        a(f"v_mul_f32 v{vT+6+2*j}, s{sT1}, v{vR}")
        a(f"v_mul_f32 v{vT+7+2*j}, s{sT1}, v{vR}")
    P0, P1 = vT + 4, vT + 5
    a(f"v_mov_b32 v{P0}, 0x3f803f80")
    a(f"v_mov_b32 v{P1}, 0x00003f80")
    a(f"s_mul_i32 s{sT2}, s{sTile}, {VT}")
    a(f"s_lshl_b32 s{sT3}, s{sT0}, 9")
    a(f"s_add_u32 s{sT2}, s{sT2}, s{sT3}")
    a(f"s_add_u32 s{sT2}, s{sT2}, {WS_V - 28*512}")
    a(f"s_add_u32 s{sT3}, s{sT2}, {VT//2}")
    for j in range(3):
        A = ACC + 16 * j
        out = WF + 12 * j
        a(f"s_cmp_ge_u32 s{sT0}, {28-j}")
        a(f"s_cbranch_scc1 P1_eV{j}")
        for i in range(0, 16, 2):
            a(f"v_pk_mul_f32 v[{A+i}:{A+i+1}], v[{A+i}:{A+i+1}], v[{vT+6+2*j}:{vT+7+2*j}]")
        for i in range(8):
            a(f"v_cvt_pk_bf16_f32 v{out+6*(i>>2)+(i&3)}, v{A+2*i}, v{A+2*i+1}")
        for pp in range(2):
            a(f"v_mov_b64 v[{out+6*pp+4}:{out+6*pp+5}], v[{P0}:{P1}]")
            a(f"v_cmp_gt_i32 s[{4+2*pp}:{5+2*pp}], 0, v{vSt+6+2*j+pp}")
        for pp in range(2):
            o = out + 6 * pp
            a(f"v_permlane32_swap_b32 v{o}, v{o+2}")
            a(f"v_permlane32_swap_b32 v{o+1}, v{o+3}")
        for pp in range(2):
            o = out + 6 * pp
            a(f"s_cmp_eq_u64 s[{4+2*pp}:{5+2*pp}], -1")
            a(f"s_cbranch_scc1 P1_eS{j}{pp}")
            a(f"buffer_store_dwordx4 v[{o+2}:{o+5}], v{vSt+6+2*j+pp}, s[{SWS}:{SWS+3}], 0 offen{STF()}")
            a(f"s_not_b64 exec, s[{4+2*pp}:{5+2*pp}]")
            a("s_nop 0")
            a(f"v_mov_b64 v[{o+2}:{o+3}], v[{P0}:{P1}]")
            a("s_mov_b64 exec, -1")
            a.label(f"P1_eS{j}{pp}")
            a(f"buffer_store_dwordx4 v[{o}:{o+3}], v{vSt+2*j+pp}, s[{SWS}:{SWS+3}], 0 offen{STF()}")
        if j == 0: a("s_waitcnt vmcnt(2)")
        a(f"s_branch P1_eN{j}")
        a.label(f"P1_eV{j}")
        for i in range(0, 16, 2):
            a(f"v_pk_mul_f32 v[{A+i}:{A+i+1}], v[{A+i}:{A+i+1}], v[{RR+i}:{RR+i+1}]")
        for i in range(8):
            a(f"v_cvt_pk_bf16_f32 v{out+i}, v{A+2*i}, v{A+2*i+1}")
        for s in range(2):
            a(f"buffer_store_dwordx4 v[{out+4*s}:{out+4*s+3}], v{vT+12}, s[{SWS}:{SWS+3}], s{sT2+s} offen offset:{512*j}{STF()}")
        if j == 0: a("s_waitcnt vmcnt(2)")
        a.label(f"P1_eN{j}")
        if j == 0:
            if OPT.get("st") == "3": a.stamp(4)
            a("s_barrier")
            if OPT.get("st") == "3": a.stamp(5)

def bar15(a):
    a("s_waitcnt vmcnt(4)")
    if OPT.get("st") == "3": a.stamp(1)
    a("s_barrier")
    pair_dma(a, 3 * 16384, 22)
    pair_dma(a, FR + 16384, 26)
    if OPT.get("st") == "3": a.stamp(2)

def split3(a, src, t, o1, o2, o3):
    a(f"v_and_b32 v{o1}, s{sMask}, v{src}")
    a(f"v_sub_f32 v{t}, v{src}, v{o1}")
    a(f"v_and_b32 v{o2}, s{sMask}, v{t}")
    a(f"v_sub_f32 v{t}, v{t}, v{o2}")
    a(f"v_and_b32 v{o3}, s{sMask}, v{t}")

def helper(a):
    sHid, sU, sPass = sCnt, sRingA, sRingQ
    a.label("P1_help")
    a(f"s_lshl_b32 s{sHid}, s{sRB}, 1")
    a(f"s_add_u32 s{sHid}, s{sHid}, s{sCG}")
    a(f"s_sub_u32 s{sHid}, s{sHid}, 14")
    a.c("wave 0: clear this launch's flags, mark everything this helper will publish as not written")
    a(f"v_mov_b64 v[92:93], -1")
    a(f"v_mov_b64 v[94:95], -1")
    a(f"s_lshl_b32 s{sT0}, s{sW}, 5")
    a(f"s_add_u32 s{sT0}, s{sT0}, s{sHid}")
    a(f"s_cmp_lt_u32 s{sT0}, 77")
    a(f"s_cselect_b32 s{sT1}, {WS_AW}, -1")
    a(f"s_cselect_b32 s{sT0}, s{sT0}, 0")
    a(f"s_lshl_b32 s{sT0}, s{sT0}, 10")
    a(f"s_add_u32 s{sOffQ}, s{sT0}, s{sT1}")
    a(f"s_cmp_lg_u32 s{sW}, 0")
    a("s_cbranch_scc1 P1_hc")
    a(f"buffer_store_dwordx4 v[92:95], v{vL16}, s[{SWS}:{SWS+3}], s{sOffQ} offen sc1")
    a(f"s_add_u32 s{sT0}, s{sOffQ}, 32768")
    a(f"buffer_store_dwordx4 v[92:95], v{vL16}, s[{SWS}:{SWS+3}], s{sT0} offen sc1")
    a(f"s_add_u32 s{sT0}, s{sOffQ}, 65536")
    a(f"buffer_store_dwordx4 v[92:95], v{vL16}, s[{SWS}:{SWS+3}], s{sT0} offen sc1")
    a(f"s_lshl_b32 s{sT0}, s{sHid}, 10")
    a(f"s_add_u32 s{sT0}, s{sT0}, {WS_AX}")
    a(f"buffer_store_dwordx4 v[92:95], v{vL16}, s[{SWS}:{SWS+3}], s{sT0} offen sc1")
    a(f"s_lshl_b32 s{sT0}, s{sHid}, 8")
    a(f"s_add_u32 s{sT0}, s{sT0}, {WS_AR}")
    a("s_mov_b64 exec, 0xffff")
    a(f"buffer_store_dwordx4 v[92:95], v{vL16}, s[{SWS}:{SWS+3}], s{sT0} offen sc1")
    a(f"s_mul_i32 s{sT0}, s{sHid}, 3072")
    a(f"s_add_u32 s{sT0}, s{sT0}, {WS_FLAG}")
    a(f"s_mov_b64 exec, s[{sE48}:{sE48+1}]")
    a(f"v_lshrrev_b32 v60, 1, v{vLane}")
    a(f"v_mul_u32_u24 v60, 96, v60")
    a(f"v_add_u32 v60, v60, v{vL16}")
    a(f"buffer_store_dwordx4 v[{vT+8}:{vT+11}], v60, s[{SWS}:{SWS+3}], s{sT0} offen sc1")
    a(f"v_mov_b32 v61, 1")
    a("s_mov_b64 exec, 1")
    a("s_waitcnt vmcnt(0)")
    a(f"buffer_atomic_add v61, v{vZero}, s[{SDBG}:{SDBG+3}], 0 offen sc0 sc1")
    a("s_waitcnt vmcnt(0)")
    a(f"v_readfirstlane_b32 s{sT0}, v61")
    a(f"v_mov_b32 v61, 1")
    a(f"s_cmp_lg_u32 s{sT0}, 31")
    a("s_cbranch_scc1 P1_hg")
    a(f"buffer_store_dword v61, v{vZero}, s[{SDBG}:{SDBG+3}], 0 offen offset:128 sc1")
    a.label("P1_hg")
    a("s_mov_b64 exec, -1")
    a.label("P1_hc")
    XD = 64
    WD = 128
    a(f"v_mul_u32_u24 v{vT+1}, 896, v{vT+4}")
    a(f"v_lshl_add_u32 v{vT+3}, v{vT+5}, 4, v{vT+1}")
    a(f"s_lshl_b32 s{sTile}, s{sHid}, 3")
    a(f"s_add_u32 s{sTile}, s{sTile}, s{sW}")
    a(f"s_mul_i32 s{sRowX}, s{sTile}, {8*896}")
    for i in range(7):
        a(f"buffer_load_dwordx4 v[{XD+4*i}:{XD+4*i+3}], v{vT+3}, s[{SX}:{SX+3}], s{sRowX} offen offset:{128*i}")
    a.c("unit loads: wave -> 56 rows, lane -> (row lane>>3, chunk lane&7)")
    a(f"s_mov_b32 s{SWA+3}, 0x20000")
    def uload(u):
        a(f"s_add_u32 s{sU}, s{sHid}, {32*u}")
        if u == 0:
            a(f"s_cmp_lt_u32 s{sU}, 21")
            a(f"s_cselect_b32 s{SWA}, s6, s8")
            a(f"s_cselect_b32 s{SWA+1}, s7, s9")
            a(f"s_cselect_b32 s{sT0}, 0, 21")
            a(f"s_movk_i32 s{sT1}, 3584")
            a(f"s_cselect_b32 s{sT1}, 2688, s{sT1}")
        elif u == 1:
            a(f"s_cmp_lt_u32 s{sU}, 49")
            a(f"s_cselect_b32 s{SWA}, s8, s10")
            a(f"s_cselect_b32 s{SWA+1}, s9, s11")
            a(f"s_cselect_b32 s{sT0}, 21, 49")
            a(f"s_movk_i32 s{sT1}, 3584")
        else:
            a(f"s_mov_b64 s[{SWA}:{SWA+1}], s[10:11]")
            a(f"s_movk_i32 s{sT0}, 49")
        a(f"s_and_b32 s{SWA+1}, s{SWA+1}, 0xffff")
        if u < 2:
            a(f"s_mul_i32 s{SWA+2}, s{sT1}, 448")
            a(f"v_mul_u32_u24 v51, s{sT1}, v{vT+4}")
            a(f"v_lshl_add_u32 v51, v{vT+5}, 4, v51")
            if u == 0:
                a(f"s_mul_i32 s{sT3}, s{sW}, 56")
            else:
                a(f"s_sub_u32 s{sT3}, s{sW}, 1")
                a(f"s_lshl_b32 s{sT3}, s{sT3}, 6")
            a(f"s_mul_i32 s{sT3}, s{sT3}, s{sT1}")
            a(f"s_lshl_b32 s{sT2}, s{sT1}, 3")
        else:
            a(f"s_cmp_lt_u32 s{sU}, 77")
            a(f"s_cselect_b32 s{SWA+2}, s{SWA+2}, 0")
        a(f"s_sub_u32 s{sT0}, s{sU}, s{sT0}")
        a(f"s_lshl_b32 s{sT0}, s{sT0}, 7")
        a(f"s_add_u32 s{sOffA}, s{sT3}, s{sT0}")
        n = 7 if u == 0 else 8
        for i in range(n):
            r = WD + 32 * u + 4 * i
            a(f"buffer_load_dwordx4 v[{r}:{r+3}], v51, s[{SWA}:{SWA+3}], s{sOffA} offen")
            if i < n - 1: a(f"s_add_u32 s{sOffA}, s{sOffA}, s{sT2}")
    uload(0)
    a(f"v_mov_b32 v{vT+2}, 0x3f803f80")
    a(f"v_mov_b32 v43, 1.0")
    pstamp(a, 1)
    a.c("statistics (two pass)")
    S0, S1, ONE0, ONE1, D0, D1 = 40, 41, 42, 43, 44, 45
    a(f"v_mov_b64 v[{S0}:{S1}], 0")
    a(f"v_mov_b32 v{ONE0}, 0x00003f80")
    a("s_waitcnt vmcnt(7)")
    for i in range(28):
        a(f"v_dot2c_f32_bf16 v{S0+(i&1)}, v{XD+i}, v{vT+2}")
    def red8(r):
        a("s_nop 2")
        a(f"v_add_f32 v{r}, v{S0}, v{S1}")
        a("s_nop 1")
        a(f"v_add_f32_dpp v{r}, v{r}, v{r} quad_perm:[1,0,3,2] row_mask:0xf bank_mask:0xf")
        a("s_nop 1")
        a(f"v_add_f32_dpp v{r}, v{r}, v{r} quad_perm:[2,3,0,1] row_mask:0xf bank_mask:0xf")
        a("s_nop 1")
        a(f"v_add_f32_dpp v{r}, v{r}, v{r} row_half_mirror row_mask:0xf bank_mask:0xf")
    NM = 46
    red8(NM)
    a(f"v_mul_f32 v{NM}, {fhex(-1.0/448)}, v{NM}")
    a(f"v_mov_b64 v[{S0}:{S1}], 0")
    DD = 96
    for i0 in range(0, 28, 4):
        for k in range(4):
            a(f"v_dot2_f32_bf16 v{DD+2*k}, v{XD+i0+k}, v{ONE0}, v{NM}")
            a(f"v_dot2_f32_bf16 v{DD+2*k+1}, v{XD+i0+k}, v{ONE1}, v{NM}")
        a("s_nop 1")
        for k in range(8):
            a(f"v_fmac_f32 v{S0+(k&1)}, v{DD+k}, v{DD+k}")
    RS = 47
    red8(RS)
    a(f"v_mov_b32 v{D0}, {fhex(1e-5)}")
    a(f"v_fmac_f32 v{D0}, {fhex(1.0/448)}, v{RS}")
    a(f"v_rsq_f32 v{RS}, v{D0}")
    m1, m2, m3, O = 48, 49, 50, 56
    split3(a, NM, D0, m1, m2, m3)
    a(f"v_lshrrev_b32 v{D0}, 16, v{m1}")
    a(f"v_lshrrev_b32 v{D1}, 16, v{m2}")
    a(f"v_or_b32 v{O}, v{D0}, v{m1}")
    a(f"v_or_b32 v{O+1}, v{D1}, v{m1}")
    a(f"v_or_b32 v{O+2}, v{D1}, v{m3}")
    a(f"v_or_b32 v{O+3}, v{D1}, v{m3}")
    a(f"v_lshlrev_b32 v{D0}, 4, v{vT+4}")
    a(f"v_lshlrev_b32 v{D1}, 2, v{vT+4}")
    a(f"s_lshl_b32 s{sRowX}, s{sTile}, 7")
    a(f"s_add_u32 s{sRowX}, s{sRowX}, {WS_AX}")
    a(f"s_lshl_b32 s{sColQ}, s{sTile}, 5")
    a(f"s_add_u32 s{sColQ}, s{sColQ}, {WS_AR}")
    a("s_barrier")
    a("s_mov_b32 exec_lo, 0x01010101")
    a("s_mov_b32 exec_hi, 0x01010101")
    a(f"buffer_store_dwordx4 v[{O}:{O+3}], v{D0}, s[{SWS}:{SWS+3}], s{sRowX} offen sc1")
    a(f"buffer_store_dword v{RS}, v{D1}, s[{SWS}:{SWS+3}], s{sColQ} offen sc1")
    a("s_mov_b64 exec, -1")
    pstamp(a, 2)
    a.c("column sums: per wave partials [unit][wave*8 + row lane][64] in LDS (row pitch 272B)")
    C = 64
    a(f"s_mul_i32 s{sT0}, s{sW}, {8*272}")
    a(f"v_mul_u32_u24 v{vT+6}, 272, v{vT+4}")
    a(f"v_lshl_add_u32 v{vT+6}, v{vT+5}, 5, v{vT+6}")
    a(f"v_add_u32 v{vT+6}, s{sT0}, v{vT+6}")
    a(f"v_lshl_add_u32 v{vT+7}, v{vLane}, 2, s{sT0}")
    def usum(u, wait):
        for k in range(0, 8, 2): a(f"v_mov_b64 v[{C+k}:{C+k+1}], 0")
        a(f"s_waitcnt vmcnt({wait})")
        for i in range(7 if u == 0 else 8):
            for k in range(4):
                a(f"v_dot2c_f32_bf16 v{C+2*k}, v{WD+32*u+4*i+k}, v{ONE0}")
                a(f"v_dot2c_f32_bf16 v{C+2*k+1}, v{WD+32*u+4*i+k}, v{ONE1}")
        a("s_nop 2")
        a(f"ds_write_b128 v{vT+6}, v[{C}:{C+3}]")
        a(f"ds_write_b128 v{vT+6}, v[{C+4}:{C+7}] offset:16")
        a("s_waitcnt lgkmcnt(0)")
        for k in range(4):
            a(f"ds_read2_b32 v[{C+8+2*k}:{C+9+2*k}], v{vT+7} offset0:{136*(k&1)} offset1:{136*(k&1)+68}" if k < 2 else
              f"ds_read2_b32 v[{C+8+2*k}:{C+9+2*k}], v{vT+1} offset0:{136*(k&1)} offset1:{136*(k&1)+68}")
        a("s_waitcnt lgkmcnt(0)")
        for k in range(4): a(f"v_add_f32 v{C+8+k}, v{C+8+k}, v{C+12+k}")
        a(f"v_add_f32 v{C+8}, v{C+8}, v{C+10}")
        a(f"v_add_f32 v{C+9}, v{C+9}, v{C+11}")
        a(f"v_add_f32 v{C+8}, v{C+8}, v{C+9}")
        a(f"ds_write_b32 v{vT+3}, v{C+8} offset:{32768 + 2048*u}")
    a(f"v_add_u32 v{vT+1}, {4*272}, v{vT+7}")
    a(f"v_lshlrev_b32 v{vT+3}, 2, v0")
    def final(name, lo, hi, ubase):
        a("s_waitcnt lgkmcnt(0)")
        a("s_barrier")
        a(f"s_sub_u32 s{sT0}, s{sW}, {lo}")
        a(f"s_cmp_ge_u32 s{sT0}, {hi-lo}")
        a(f"s_cbranch_scc1 {name}_s")
        a(f"s_lshl_b32 s{sT0}, s{sW}, 11")
        a(f"v_lshl_add_u32 v{D1}, v{vLane}, 2, s{sT0}")
        for k in range(4):
            a(f"ds_read2st64_b32 v[{C+8+2*k}:{C+9+2*k}], v{D1} offset0:{128+8*ubase+2*k} offset1:{128+8*ubase+2*k+1}")
        a("s_waitcnt lgkmcnt(0)")
        for k in range(4): a(f"v_add_f32 v{C+8+k}, v{C+8+k}, v{C+12+k}")
        a(f"v_add_f32 v{C+8}, v{C+8}, v{C+10}")
        a(f"v_add_f32 v{C+9}, v{C+9}, v{C+11}")
        a(f"v_add_f32 v{C+8}, v{C+8}, v{C+9}")
        split3(a, C + 8, D0, 84, 85, 86)
        for k in range(3):
            a(f"v_lshrrev_b32 v{87+k}, 16, v{84+k}")
        a(f"v_or_b32 v92, v87, v85")
        a(f"v_or_b32 v93, v87, v86")
        a(f"v_or_b32 v94, v88, v84")
        a(f"v_or_b32 v95, v89, v85")
        a(f"buffer_store_dwordx4 v[92:95], v{vL16}, s[{SWS}:{SWS+3}], s{sOffQ} offen sc1")
        a.label(f"{name}_s")
    def sig(name, cnt_off, go_off, bar=True):
        if bar:
            a("s_barrier")
            a(f"s_cmp_lg_u32 s{sW}, 7")
            a(f"s_cbranch_scc1 {name}_e")
        a(f"v_mov_b32 v{D0}, 1")
        a("s_mov_b64 exec, 1")
        a(f"buffer_atomic_add v{D0}, v{vZero}, s[{SDBG}:{SDBG+3}], 0 offen offset:{cnt_off} sc0 sc1")
        a("s_waitcnt vmcnt(0)")
        a(f"v_readfirstlane_b32 s{sT0}, v{D0}")
        a(f"v_mov_b32 v{D0}, 1")
        a(f"s_cmp_lg_u32 s{sT0}, 31")
        a(f"s_cbranch_scc1 {name}_n")
        a(f"buffer_store_dword v{D0}, v{vZero}, s[{SDBG}:{SDBG+3}], 0 offen offset:{go_off} sc1")
        a.label(f"{name}_n")
        a("s_mov_b64 exec, -1")
        a.label(f"{name}_e")
    usum(0, 2)
    pstamp(a, 3)
    final("P1_h1", 0, 1, 0)
    a(f"s_cmp_lg_u32 s{sW}, 0")
    a("s_cbranch_scc1 P1_h1x")
    a(f"ds_write_b32 v{vT+3}, v{vZero} offset:{32768 + 2048}")
    a(f"ds_write_b32 v{vT+3}, v{vZero} offset:{32768 + 4096}")
    a("s_branch P1_h1y")
    a.label("P1_h1x")
    pstamp(a, 5)
    uload(1)
    uload(2)
    usum(1, 8)
    usum(2, 0)
    a.label("P1_h1y")
    pstamp(a, 4)
    final("P1_h2", 1, 3, 0)
    a(f"v_mov_b32 v{D0}, {LDS_P1+4}")
    a(f"v_mov_b32 v{D1}, 4")
    a(f"ds_write_b32 v{D0}, v{D1}")
    pstamp(a, 6)

def gen_p1(a, endA, endB, endH):
    pstamp(a, 0)
    a("s_load_dwordx4 s[4:7], s[0:1], 0")
    a("s_load_dwordx4 s[8:11], s[0:1], 32")
    a("s_load_dwordx4 s[12:15], s[0:1], 64")
    a(f"v_lshrrev_b32 v{vT}, 6, v0")
    a(f"v_and_b32 v{vLane}, 63, v0")
    a(f"v_readfirstlane_b32 s{sW}, v{vT}")
    a(f"v_lshlrev_b32 v{vL16}, 4, v{vLane}")
    a(f"v_lshrrev_b32 v{vH}, 5, v{vLane}")
    a(f"v_mov_b32 v{vZero}, 0")
    a(f"v_mov_b64 v[{vFlag}:{vFlag+1}], 0")
    a.c("pull the code of all phases into L2: waves 5..7 touch 8KB each")
    a(f"s_getpc_b64 s[{SWQ}:{SWQ+1}]")
    a(f"s_and_b32 s{SWQ}, s{SWQ}, 0xffffff00")
    a(f"s_and_b32 s{SWQ+1}, s{SWQ+1}, 0xffff")
    a(f"s_cmp_lt_u32 s2, {OPT.get('ct', '32')}")
    a(f"s_cselect_b32 s{SWQ+2}, CODE_END - {KNAME}, 0")
    a(f"s_mov_b32 s{SWQ+3}, 0x20000")
    a(f"v_lshlrev_b32 v{vT+1}, 7, v0")
    a(f"v_subrev_u32 v{vT+1}, {5*8192}, v{vT+1}")
    a(f"buffer_load_dword v55, v{vT+1}, s[{SWQ}:{SWQ+3}], 0 offen")
    a(f"s_and_b32 s{sT0}, s2, 7")
    a(f"s_lshr_b32 s{sT1}, s2, 3")
    a(f"s_add_u32 s{sT1}, s{sT1}, 28")
    a(f"s_and_b32 s{sT1}, s{sT1}, 31")
    a(f"s_lshr_b32 s{sRB}, s{sT0}, 1")
    a(f"s_lshl_b32 s{sRB}, s{sRB}, 2")
    a(f"s_and_b32 s{sT2}, s{sT1}, 3")
    a(f"s_add_u32 s{sRB}, s{sRB}, s{sT2}")
    a(f"s_and_b32 s{sCG}, s{sT0}, 1")
    a(f"s_lshr_b32 s{sT2}, s{sT1}, 2")
    a(f"s_lshl_b32 s{sT2}, s{sT2}, 1")
    a(f"s_add_u32 s{sCG}, s{sCG}, s{sT2}")
    a(f"s_and_b32 s{sTT}, s{sW}, 3")
    a(f"s_lshl_b32 s{sTile}, s{sRB}, 2")
    a(f"s_add_u32 s{sTile}, s{sTile}, s{sTT}")
    a(f"s_mov_b32 s{sMask}, 0xffff0000")
    a(f"s_mov_b32 s{sCnt}, 7")
    a.c("x dma pattern")
    t1, i_ = vT + 1, vT
    a(f"v_lshrrev_b32 v{vT+4}, 3, v{vLane}")
    a(f"v_mul_u32_u24 v{vOffX}, 896, v{vT+4}")
    a(f"v_lshrrev_b32 v{t1}, 4, v{vLane}")
    a(f"v_and_b32 v{vT+5}, 7, v{vLane}")
    a(f"v_xor_b32 v{t1}, v{t1}, v{vT+5}")
    a(f"v_lshl_add_u32 v{vOffX}, v{t1}, 4, v{vOffX}")
    a(f"v_xor_b32 v{vOffX+1}, 64, v{vOffX}")
    a(f"v_add_u32 v{vOffX+1}, {7168-1024}, v{vOffX+1}")
    a(f"s_movk_i32 s{sSM}, 2048")
    a(f"s_movk_i32 s{sSM+1}, 14336")
    a(f"s_movk_i32 s{sSG}, 14336")
    a(f"s_movk_i32 s{sSG+1}, {128-14336}")
    a(f"s_mul_i32 s{sOffX}, s{sTile}, {32*896}")
    a(f"s_lshl_b32 s{sRingX}, s{sTT}, 12")
    a.c("everything that needs no pointer, while the kernel arguments arrive")
    a(f"v_bfe_u32 v{t1}, v{vLane}, 4, 1")
    a(f"v_lshlrev_b32 v{t1}, 2, v{t1}")
    a(f"v_xor_b32 v{t1}, v{t1}, v{vT+5}")
    a(f"v_mul_u32_u24 v{vOffA}, 3584, v{vT+4}")
    a(f"v_lshl_add_u32 v{vOffA}, v{t1}, 4, v{vOffA}")
    a(f"v_add_u32 v{vOffA2}, {8*3584-1024}, v{vOffA}")
    a(f"s_lshl_b32 s{sOffA}, s{sCG}, 1")
    a(f"s_lshr_b32 s{sT0}, s{sTT}, 1")
    a(f"s_add_u32 s{sOffA}, s{sOffA}, s{sT0}")
    a(f"s_lshl_b32 s{sOffA}, s{sOffA}, 7")
    a(f"s_lshl_b32 s{sColQ}, s{sTT}, 11")
    a(f"s_add_u32 s{sRingA}, s{sColQ}, {FR}")
    a(f"s_mov_b32 s{sColA}, s{sOffA}")
    a(f"v_mul_u32_u24 v{t1}, 43, v{vLane}")
    a(f"v_lshrrev_b32 v{t1}, 9, v{t1}")
    a(f"v_mul_u32_u24 v{vOffQ}, {2688-192}, v{t1}")
    a(f"v_add_u32 v{vOffQ}, v{vOffQ}, v{vL16}")
    a(f"v_add_u32 v{vOffQ2}, {4*2688-768}, v{vOffQ}")
    a(f"s_mul_i32 s{sOffQ}, s{sCG}, 192")
    a(f"s_mul_i32 s{sT0}, s{sTT}, {8*2688}")
    a(f"s_add_u32 s{sOffQ}, s{sOffQ}, s{sT0}")
    a(f"s_mul_i32 s{sRingQ}, s{sTT}, 1536")
    a(f"s_add_u32 s{sRingQ}, s{sRingQ}, {QR}")
    a(f"s_mov_b32 s{sE48}, -1")
    a(f"s_mov_b32 s{sE48+1}, 0xffff")
    a(f"v_mov_b32 v{vT+6}, {LDS_P1}")
    a(f"v_mov_b64 v[{vT+8}:{vT+9}], 0")
    a(f"v_mov_b64 v[{vT+10}:{vT+11}], 0")
    a(f"ds_write_b128 v{vT+6}, v[{vT+8}:{vT+11}]")
    a(f"ds_write_b128 v{vT+6}, v[{vT+8}:{vT+11}] offset:16")
    a(f"ds_write_b128 v{vT+6}, v[{vT+8}:{vT+11}] offset:32")
    a(f"s_lshr_b32 s{sT0}, s{sW}, 2")
    a(f"s_lshl_b32 s{sT1}, s{sT0}, 11")
    a(f"s_add_u32 m0, s{sRingX}, s{sT1}")
    a(f"s_mul_i32 s{sT1}, s{sT0}, 14336")
    a(f"s_add_u32 s{sT1}, s{sT1}, s{sOffX}")
    for d in (SX, SWQ, SWA, SWS, SDBG):
        a(f"s_mov_b32 s{d+3}, 0x20000")
    a(f"s_mov_b32 s{SX+2}, {2048*896}")
    a(f"s_mov_b32 s{SWQ+2}, {448*2688}")
    a(f"s_mov_b32 s{SWA+2}, {448*3584}")
    a(f"s_mov_b32 s{SWS+2}, {WS_END}")
    a(f"s_movk_i32 s{SDBG+2}, 256")
    a("s_waitcnt lgkmcnt(0)")
    a(f"s_mov_b32 s{SX}, s4")
    a(f"s_and_b32 s{SX+1}, s5, 0xffff")
    a(f"s_cmp_ge_u32 s{sCG}, 14")
    a("s_cbranch_scc1 P1_c2")
    a(f"buffer_load_dwordx4 v{vOffX}, s[{SX}:{SX+3}], s{sT1} offen lds")
    a(f"buffer_load_dwordx4 v{vOffX+1}, s[{SX}:{SX+3}], s{sT1} offen offset:1024 lds")
    a.label("P1_c2")
    a(f"s_mov_b32 s{SWQ}, s6")
    a(f"s_and_b32 s{SWQ+1}, s7, 0xffff")
    a(f"s_bitcmp1_b32 s{sW}, 0")
    a(f"s_cselect_b32 s{SWA}, s10, s8")
    a(f"s_cselect_b32 s{SWA+1}, s11, s9")
    a(f"s_and_b32 s{SWA+1}, s{SWA+1}, 0xffff")
    a(f"s_mov_b32 s{SDBG}, s12")
    a(f"s_and_b32 s{SDBG+1}, s13, 0xffff")
    a(f"s_mov_b32 s{SWS}, s14")
    a(f"s_and_b32 s{SWS+1}, s15, 0xffff")
    a(f"s_cmp_ge_u32 s{sCG}, 14")
    a("s_cbranch_scc1 P1_help")
    a(f"s_cmp_lt_u32 s{sW}, 4")
    a("s_cbranch_scc1 P1_A")
    for g in dmaF(0):
        for l in g: a(l)
    a("s_branch P1_B")
    a.label("P1_A")
    a(f"s_add_u32 s{sOffA}, s{sOffA}, {16*3584}")
    a(f"s_add_u32 s{sOffX}, s{sOffX}, 256")
    a(f"s_add_u32 s{sRingX}, s{sRingX}, 32768")
    def pgroup(sl):
        for g in dmaQ(sl) + (dmaF(sl) if sl else ()):
            for l in g: a(l)
        if sl >= 2:
            for g in dmaX(sl - 2):
                for l in g: a(l)
    PO = OPT.get("po", "1")
    pgroup(0)
    if PO == "0":
        for sl in range(1, 4): pgroup(sl)
    a(f"s_mov_b32 s{sRowX}, 16384")
    a(f"s_mov_b32 s{sDq}, {2*6144}")
    pstamp(a, 1)
    common_addr(a, "A")
    a(f"v_mul_u32_u24 v{vTr0}, 192, v{vT+2}")
    a(f"v_add_u32 v{vTr0}, v{vTr0}, v{vT+3}")
    a(f"v_add_u32 v{vTr0}, {QR}, v{vTr0}")
    for j in range(3):
        a(f"v_mfma_f32_32x32x16_bf16 v[{ACC+16*j}:{ACC+16*j+15}], v[{vT+8}:{vT+11}], v[{vT+8}:{vT+11}], 0")
    a(f"s_lshl_b32 s{sT3}, s{sTile}, 12")
    a.c("Q/K store address table: lane l -> 8-column chunk 12*cg + l")
    g8, m, e, x, tab, tab2 = vT + 4, vT + 5, vT + 6, vT + 7, vT + 8, vT + 9
    a(f"s_mul_i32 s{sT0}, s{sCG}, 12")
    a(f"v_add_u32 v{g8}, s{sT0}, v{vLane}")
    a(f"v_mul_u32_u24 v{m}, 9363, v{g8}")
    a(f"v_lshrrev_b32 v{m}, 16, v{m}")
    a(f"v_mul_u32_u24 v{e}, 7, v{m}")
    a(f"v_sub_u32 v{e}, v{g8}, v{e}")
    a(f"v_and_b32 v{x}, 7, v{m}")
    a(f"v_lshl_add_u32 v{tab}, v{x}, 19, s{sT3}")
    a(f"v_bfe_u32 v{x}, v{m}, 3, 1")
    a(f"v_xor_b32 v{x}, 1, v{x}")
    a(f"v_lshl_add_u32 v{tab}, v{x}, 11, v{tab}")
    a(f"v_add_u32 v{tab2}, {HS + 3*512}, v{tab}")
    a(f"v_lshrrev_b32 v{x}, 2, v{e}")
    a(f"v_lshl_add_u32 v{tab}, v{x}, 18, v{tab}")
    a(f"v_and_b32 v{x}, 3, v{e}")
    a(f"v_lshl_add_u32 v{tab}, v{x}, 9, v{tab}")
    a(f"v_cmp_eq_u32 vcc, 3, v{e}")
    a(f"v_lshlrev_b32 v{x}, 2, v{vH}")
    a(f"v_bfrev_b32 v{m}, 1")
    a(f"v_cndmask_b32 v{tab2}, v{m}, v{tab2}, vcc")
    for k in range(6):
        a(f"ds_bpermute_b32 v{vSt+k}, v{x}, v{tab} offset:{8*k}")
        a(f"ds_bpermute_b32 v{vSt+6+k}, v{x}, v{tab2} offset:{8*k}")
    a(f"v_and_b32 v{x}, 0x1f0, v{vL16}")
    a(f"v_mul_u32_u24 v{vT+12}, {VT//4}, v{vH}")
    a(f"v_add_u32 v{vT+12}, v{vT+12}, v{x}")
    a("s_waitcnt lgkmcnt(0)")
    for k in range(12):
        a(f"v_add_u32 v{vSt+k}, v{vSt+k}, v{x}")
    pstamp(a, 2)
    for k in OPT.get("zz", "").split("+"):
        if k: a(f"s_sleep {k}")
    if PO == "1":
        pgroup(1)
        a("s_waitcnt vmcnt(4)")
    elif PO == "2":
        for sl in range(1, 4): pgroup(sl)
        a("s_waitcnt vmcnt(16)")
    else:
        a("s_waitcnt vmcnt(16)")
    pstamp(a, 3)
    a("s_barrier")
    pstamp(a, 4)
    a(f"ds_read_b128 v[{XC}:{XC+3}], v{vXk}")
    a(f"ds_read_b128 v[{XC+4}:{XC+7}], v{vXk+1}")
    for l in wreadsA(0, 0): a(l)
    if PO == "1":
        pgroup(2)
        pgroup(3)
    pstamp(a, 5)
    a(f"s_cmp_gt_u32 s{sCG}, 9")
    a("s_cbranch_scc1 P1_loopA_VVV")
    a(f"s_cmp_eq_u32 s{sCG}, 9")
    a("s_cbranch_scc1 P1_loopA_QVV")
    loopA(a, "QQQ")
    a("s_branch P1_Aepi")
    loopA(a, "QVV")
    a("s_branch P1_Aepi")
    loopA(a, "VVV")
    a.label("P1_Aepi")
    pstamp(a, 6)
    epi_A(a)
    endA(a)
    aux_blocks(a)
    a.label("P1_B")
    tab = sum(v << (4 * i) for i, v in enumerate(BTAB))
    a(f"s_mov_b32 s{sTab}, {tab & 0xffffffff}")
    a(f"s_mov_b32 s{sTab+1}, {tab >> 32}")
    a(f"s_mov_b32 s{sDq}, {((1 << 16) - 1) | (1 << NBAR)}")
    a(f"s_mov_b32 s{sCnt}, 14")
    a(f"v_mov_b32 v28, -1")
    a(f"s_cmp_eq_u32 s{sW}, 4")
    a(f"s_cselect_b32 s{sColQ}, {int(OPT.get('sg', '12'))}, {int(OPT.get('sb', '4'))}")
    pstamp(a, 1)
    common_addr(a, "B")
    a(f"v_lshlrev_b32 v{vTr0}, 7, v{vT+2}")
    a(f"v_add_u32 v{vTr0}, v{vTr0}, v{vT+3}")
    a(f"v_bfe_u32 v{t1}, v{i_}, 3, 1")
    a(f"v_lshl_add_u32 v{vTr0}, v{t1}, 6, v{vTr0}")
    a(f"v_xor_b32 v{vTr1}, 64, v{vTr0}")
    a(f"s_lshr_b32 s{sT0}, s{sTT}, 1")
    a(f"s_lshl_b32 s{sT0}, s{sT0}, 12")
    a(f"v_add_u32 v{vOffA}, s{sT0}, v{vTr0}")
    a(f"v_add_u32 v{vOffA2}, s{sT0}, v{vTr1}")
    a(f"v_add_u32 v{vTr0}, {FR}, v{vOffA}")
    a(f"v_add_u32 v{vTr1}, {FR}, v{vOffA2}")
    for j in range(8):
        a(f"v_mfma_f32_32x32x16_bf16 v[{ACC+16*j}:{ACC+16*j+15}], v[{vT+8}:{vT+11}], v[{vT+8}:{vT+11}], 0")
    a(f"s_add_u32 s{sOffX}, s{sOffX}, 128")
    a(f"s_add_u32 s{sRingX}, s{sRingX}, 16384")
    for q in range(2):
        for g in dmaX(q):
            for l in g: a(l)
    pstamp(a, 2)
    a("s_waitcnt vmcnt(4)")
    pstamp(a, 3)
    a("s_barrier")
    pstamp(a, 4)
    a(f"ds_read_b128 v[{XB}:{XB+3}], v{vXk}")
    a(f"ds_read_b128 v[{XB+4}:{XB+7}], v{vXk} offset:4096")
    for l in wreadsB(0, 0): a(l)
    a("s_waitcnt vmcnt(0) lgkmcnt(0)")
    if OPT.get("pf", "0") != "0":
        a.c("touch one slice of x / wqkv / w_gate / w_up so that the whole chip asks memory for them at once")
        a(f"s_cmp_lt_u32 s{sTT}, 2")
        a(f"s_cselect_b32 s{SWA}, s4, s8")
        a(f"s_cselect_b32 s{SWA+1}, s5, s9")
        a(f"s_cselect_b32 s{sT0}, s6, s10")
        a(f"s_cselect_b32 s{sT1}, s7, s11")
        a(f"s_mov_b32 s{SWA+2}, {448*3584}")
        a(f"s_cselect_b32 s{sT2}, {448*2688}, s{SWA+2}")
        a(f"s_cselect_b32 s{SWA+2}, {2048*896}, s{SWA+2}")
        a(f"s_bitcmp1_b32 s{sTT}, 0")
        a(f"s_cselect_b32 s{SWA}, s{sT0}, s{SWA}")
        a(f"s_cselect_b32 s{SWA+1}, s{sT1}, s{SWA+1}")
        a(f"s_cselect_b32 s{SWA+2}, s{sT2}, s{SWA+2}")
        a(f"s_and_b32 s{SWA+1}, s{SWA+1}, 0xffff")
        a(f"s_mov_b32 s{SWA+3}, 0x20000")
        if OPT.get("pf") == "3":
            a(f"s_cmp_lt_u32 s{sTT}, 2")
            a(f"s_cselect_b32 s{SWA+2}, s{SWA+2}, 0")
        a(f"s_sub_u32 s{sT0}, s2, 32")
        a(f"s_lshl_b32 s{sT0}, s{sT0}, 13")
        a(f"v_lshlrev_b32 v{vT+6}, 7, v{vLane}")
        a(f"buffer_load_dword v55, v{vT+6}, s[{SWA}:{SWA+3}], s{sT0} offen")
    pstamp(a, 5)
    loopB(a)
    pstamp(a, 6)
    epi_B(a)
    endB(a)
    helper(a)
    endH(a)

def ffn_setup(a):
    t1 = vT + 1
    a.c("gate/up dma setup: wave tt loads block tt (G0,U0,G1,U1)")
    a(f"s_bitcmp1_b32 s{sW}, 0")
    a(f"s_cselect_b32 s{SWA}, s10, s8")
    a(f"s_cselect_b32 s{SWA+1}, s11, s9")
    a(f"s_and_b32 s{SWA+1}, s{SWA+1}, 0xffff")
    a(f"s_mov_b32 s{SWA+2}, {448*3584}")
    a(f"s_mov_b32 s{SWA+3}, 0x20000")
    a(f"v_bfe_u32 v{t1}, v{vLane}, 4, 1")
    a(f"v_lshlrev_b32 v{t1}, 2, v{t1}")
    a(f"v_xor_b32 v{t1}, v{t1}, v{vT+5}")
    a(f"v_mul_u32_u24 v{vOffA}, 3584, v{vT+4}")
    a(f"v_lshl_add_u32 v{vOffA}, v{t1}, 4, v{vOffA}")
    a(f"v_add_u32 v{vOffA2}, {8*3584-1024}, v{vOffA}")
    a(f"s_lshl_b32 s{sOffA}, s{sCG}, 1")
    a(f"s_lshr_b32 s{sT0}, s{sTT}, 1")
    a(f"s_add_u32 s{sOffA}, s{sOffA}, s{sT0}")
    a(f"s_lshl_b32 s{sOffA}, s{sOffA}, 7")
    a(f"s_lshl_b32 s{sRingA}, s{sTT}, 11")
    a(f"s_add_u32 s{sRingA}, s{sRingA}, {FR}")

def common_addr(a, role):
    t1, i_ = vT + 1, vT
    a.c("x fragment addresses")
    a(f"v_and_b32 v{t1}, 31, v{vLane}")
    a(f"v_bfe_u32 v{vT+2}, v{vLane}, 1, 3")
    a(f"v_xor_b32 v{vT+2}, v{vT+2}, v{vH}")
    a(f"v_lshlrev_b32 v{vT+2}, 4, v{vT+2}")
    a(f"v_lshl_add_u32 v{vXk}, v{t1}, 7, v{vT+2}")
    if role == "A":
        a(f"s_lshl_b32 s{sT0}, s{sTT}, 12")
    else:
        a(f"s_and_b32 s{sT0}, s{sTT}, 1")
        a(f"s_lshl_b32 s{sT0}, s{sT0}, 13")
    a(f"v_add_u32 v{vXk}, s{sT0}, v{vXk}")
    for k in range(1, 4):
        a(f"v_xor_b32 v{vXk+k}, {32*k}, v{vXk}")
    a(f"v_and_b32 v{i_}, 15, v{vLane}")
    a(f"v_lshrrev_b32 v{t1}, 2, v{i_}")
    a(f"v_lshl_add_u32 v{vT+2}, v{vH}, 3, v{t1}")
    a(f"v_bfe_u32 v{t1}, v{vLane}, 4, 1")
    a(f"v_lshlrev_b32 v{vT+3}, 5, v{t1}")
    a(f"v_and_b32 v{t1}, 3, v{i_}")
    a(f"v_lshl_add_u32 v{vT+3}, v{t1}, 3, v{vT+3}")
    a(f"s_mov_b32 s{sDelta}, {2*8192}")

def gen_k1(name):
    a = Asm()
    a(f"s_cmp_ge_u32 s2, 256")
    a(f"s_cbranch_scc1 K1_exit")
    def end(a):
        pstamp(a, 7)
        a.stamp_flush(8, 0, sW, 8)
        a("s_endpgm")
    def endH(a):
        pstamp(a, 8)
        a.stamp_flush(9, 0, sW, 8)
        a("s_endpgm")
    gen_p1(a, end, end, endH)
    a.label("K1_exit")
    a("s_endpgm")
    return kernel_header(name) + a.text(), kernel_desc(name, 256, 64), LDS_P1
```

```python
from asmlib import *
from consts import *
import p1
from p1 import OPT, sW, sRB, sCG, sTT, SWS, SDBG, sMask, vLane, vL16, vH, vZero

INB = 12288
WOB = 49152
XCH = 114688
SYNC = p1.LDS_P1
LDS_F = SYNC + 64 + 4096
FQ, FH, FO = WS_FLAG, WS_FLAG + 32768, WS_FLAG + 65536

SKH, SKV, SVH, SV, SWD = 4, 8, 16, 20, 24
sHead, sQB, sOff, sOffV, sCnt = 36, 37, 38, 39, 41
sT0, sT1, sT2, sT3 = 42, 43, 44, 45
sMT, sNT, sRing = 47, 48, 49
sVM, sUP = 50, 52
sA0, sA1, sWoff, sStep, sKQ = 54, 55, 40, 14, 15
SXO = 60
vT = 4
vZ = 15
vVo = 14
NB = 4
QF = 16
KV = 48
SS = KV + 16 * NB
PP = SS + 32
OO = PP + 16
vTr0, vTr1 = 16, 17
vOff = 20
XRES = 24
vXo = 28
ACT = 32
WFG = 96
GACC = 128
TW = 192

def fstamp(a, i):
    if OPT.get("st", "2") in ("1", "3") and i < 7:
        return
    if OPT.get("st") == "4" and i in (2, 3, 4, 5):
        return
    a.stamp(i)

def xstamp(a, i):
    if OPT.get("st", "2") == "3":
        a.stamp(i)

def mf(d, a, b, c):
    cs = "0" if c is None else f"v[{c}:{c+15}]"
    return f"v_mfma_f32_32x32x16_bf16 v[{d}:{d+15}], v[{a}:{a+3}], v[{b}:{b+3}], {cs}"

def signal(a, name, cnt_idx, flag_soff_reg, vaddr=None, young=0, wb=False):
    a(f"v_mov_b32 v{vT}, {SYNC + 4*cnt_idx}")
    a(f"v_mov_b32 v{vT+1}, 1")
    a("s_mov_b64 exec, 1")
    a(f"s_waitcnt vmcnt({young})")
    a(f"ds_add_rtn_u32 v{vT+2}, v{vT}, v{vT+1}")
    a("s_waitcnt lgkmcnt(0)")
    a(f"v_readfirstlane_b32 s{sT0}, v{vT+2}")
    if vaddr is not None: a("s_mov_b64 exec, 0x3ff")
    a(f"s_cmp_lg_u32 s{sT0}, 3")
    a(f"s_cbranch_scc1 {name}_ns")
    if wb:
        a("buffer_wbl2 sc1")
        a("s_waitcnt vmcnt(0)")
    a(f"buffer_store_dword v{vT+1}, v{vZ if vaddr is None else vaddr}, s[{SWS}:{SWS+3}], s{flag_soff_reg} offen sc1")
    a.label(f"{name}_ns")
    a("s_mov_b64 exec, -1")

def poll(a, name, soff, nlanes, wide, sleep, rel_idx, poller, wsleep=2):
    a(f"s_mov_b32 s{sT1}, 0x8000")
    a(f"v_mov_b32 v{vT+5}, {SYNC + 4*rel_idx}")
    a(f"s_cmp_lg_u32 s{sW}, {poller}")
    a(f"s_cbranch_scc1 {name}_w")
    if nlanes == 32: a("s_mov_b32 exec_hi, 0")
    else: a(f"s_mov_b64 exec, {hex((1 << nlanes) - 1)}")
    if not wide: a(f"v_lshlrev_b32 v{vT+4}, 7, v{vLane}")
    else:
        a(f"v_lshrrev_b32 v{vT+4}, 1, v{vLane}")
        a(f"v_mul_u32_u24 v{vT+4}, 96, v{vT+4}")
        a(f"v_add_u32 v{vT+4}, v{vT+4}, v{vL16}")
    a.label(f"{name}_l")
    if wide:
        a(f"buffer_load_dwordx3 v[{vT}:{vT+2}], v{vT+4}, s[{SWS}:{SWS+3}], {soff} offen sc1")
        a("s_waitcnt vmcnt(0)")
        a(f"v_and_b32 v{vT}, v{vT}, v{vT+1}")
        a(f"v_and_b32 v{vT}, v{vT}, v{vT+2}")
    else:
        a(f"buffer_load_dword v{vT}, v{vT+4}, s[{SWS}:{SWS+3}], {soff} offen sc1")
        a("s_waitcnt vmcnt(0)")
    a(f"v_cmp_ne_u32 vcc, 1, v{vT}")
    a(f"s_cbranch_vccz {name}_p")
    a(f"s_sub_u32 s{sT1}, s{sT1}, 1")
    a(f"s_cbranch_scc1 {name}_p")
    a(f"s_sleep {sleep}")
    a(f"s_branch {name}_l")
    a.label(f"{name}_p")
    a(f"v_mov_b32 v{vT}, 1")
    a(f"ds_write_b32 v{vT+5}, v{vT}")
    a("s_mov_b64 exec, -1")
    a(f"s_branch {name}_ok")
    a.label(f"{name}_w")
    a(f"s_lshl_b32 s{sT1}, s{sT1}, 4")
    a.label(f"{name}_w2")
    a(f"ds_read_b32 v{vT}, v{vT+5}")
    a("s_waitcnt lgkmcnt(0)")
    a(f"v_readfirstlane_b32 s{sT0}, v{vT}")
    a(f"s_cmp_eq_u32 s{sT0}, 1")
    a(f"s_cbranch_scc1 {name}_ok")
    a(f"s_sub_u32 s{sT1}, s{sT1}, 1")
    a(f"s_cbranch_scc1 {name}_ok")
    a(f"s_sleep {wsleep}")
    a(f"s_branch {name}_w2")
    a.label(f"{name}_ok")

def kvload(a, kb, srd, sv):
    b = KV + 16 * kb
    a(f"buffer_load_dwordx4 v[{b}:{b+3}], v{vL16}, s[{srd}:{srd+3}], s{sOff} offen sc1")
    a(f"buffer_load_dwordx4 v[{b+4}:{b+7}], v{vL16}, s[{srd}:{srd+3}], s{sOff} offen offset:1024 sc1")
    a(f"s_mov_b64 exec, s[{sVM}:{sVM+1}]")
    a(f"buffer_load_dwordx4 v[{b+8}:{b+11}], v{vVo}, s[{sv}:{sv+3}], s{sOffV} offen sc1")
    a(f"s_add_u32 s{sOffV}, s{sOffV}, {VT//2}")
    a(f"buffer_load_dwordx4 v[{b+12}:{b+15}], v{vVo}, s[{sv}:{sv+3}], s{sOffV} offen sc1")
    a(f"s_mov_b64 exec, -1")
    a(f"s_add_u32 s{sOffV}, s{sOffV}, {VT//2}")
    a(f"s_add_u32 s{sOff}, s{sOff}, {TS}")
    if srd == SKV and OPT.get("ra", "0") == "1":
        a(f"s_and_b32 s{sOff}, s{sOff}, 0xffff")
        a(f"s_cselect_b32 s{sOffV}, s{sOffV}, 0")

def maxtree(a, src, dst, first=True):
    if first:
        a(f"v_max3_f32 v{dst}, v{src}, v{src+1}, v{src+2}")
        for i in range(3, 15, 2):
            a(f"v_max3_f32 v{dst}, v{dst}, v{src+i}, v{src+i+1}")
        a(f"v_max_f32 v{dst}, v{dst}, v{src+15}")
    else:
        for i in range(0, 16, 2):
            a(f"v_max3_f32 v{dst}, v{dst}, v{src+i}, v{src+i+1}")

def setpads(a, ms, qs, t):
    n = len(ms)
    for i, m in enumerate(ms): a(f"v_mov_b32 v{t+i}, v{m}")
    a("s_nop 1")
    for i, m in enumerate(ms): a(f"v_permlane32_swap_b32 v{m}, v{t+i}")
    a("s_nop 0")
    for i, m in enumerate(ms): a(f"v_max_f32 v{m}, v{m}, v{t+i}")
    a(f"s_mov_b64 exec, s[{sUP}:{sUP+1}]")
    for i, (m, q) in enumerate(zip(ms, qs)):
        u, w = t + i, t + n + i
        a(f"v_sub_f32 v{m}, 0, v{m}")
        a(f"v_and_b32 v{u}, s{sMask}, v{m}")
        a(f"v_sub_f32 v{u}, v{m}, v{u}")
        a(f"v_lshrrev_b32 v{m}, 16, v{m}")
        a(f"v_and_b32 v{w}, s{sMask}, v{u}")
        a(f"v_or_b32 v{q+6}, v{m}, v{w}")
        a(f"v_sub_f32 v{u}, v{u}, v{w}")
        a(f"v_lshrrev_b32 v{q+7}, 16, v{u}")
    a("s_mov_b64 exec, -1")

def expcvt(S, P, g):
    o = [f"v_exp_f32 v{S+4*g+k}, v{S+4*g+k}" for k in range(4)]
    o += [f"v_cvt_pk_bf16_f32 v{P+2*g+k}, v{S+4*g+2*k}, v{S+4*g+2*k+1}" for k in range(2)]
    return o

def fillpat(S, P, g):
    pat = OPT.get("pat", "2")
    if pat == "0":
        return expcvt(S, P, g)
    E = [f"v_exp_f32 v{S+k}, v{S+k}" for k in range(16)]
    C = [f"v_cvt_pk_bf16_f32 v{P+k}, v{S+2*k}, v{S+2*k+1}" for k in range(8)]
    if pat == "1":
        return [E[0:3], E[3:8] + C[0:4], E[8:11], E[11:16] + C[4:8]][g]
    if pat == "2":
        return [E[0:3], E[3:6], E[6:9], E[9:16] + C][g]
    if pat == "3":
        return [E[0:2] + [], E[2:4] + C[0:2], E[4:6] + C[2:3], E[6:16] + C[3:8]][g]
    if pat == "4":
        return [E[0:3], E[3:5] + C[0:2], E[5:7] + C[2:3], E[7:16] + C[3:8]][g]

def ldswait(a, name, idx, n, sleep=2):
    a(f"v_mov_b32 v{vT+6}, {SYNC+4*idx}")
    a(f"s_mov_b32 s{sT1}, 0x80000")
    a(f"s_branch {name}")
    a.label(name + "_s")
    a(f"s_sleep {sleep}")
    a.label(name)
    a(f"ds_read_b32 v{vT+7}, v{vT+6}")
    a("s_waitcnt lgkmcnt(0)")
    a(f"v_readfirstlane_b32 s{sT0}, v{vT+7}")
    a(f"s_sub_u32 s{sT1}, s{sT1}, 1")
    a(f"s_cselect_b32 s{sT0}, {n}, s{sT0}")
    a(f"s_cmp_lt_u32 s{sT0}, {n}")
    a(f"s_cbranch_scc1 {name}_s")

def ldsadd(a, idx):
    a(f"v_mov_b32 v{vT+6}, {SYNC+4*idx}")
    a(f"v_mov_b32 v{vT+7}, 1")
    a("s_mov_b64 exec, 1")
    a(f"ds_add_u32 v{vT+6}, v{vT+7}")
    a("s_mov_b64 exec, -1")

def g2_ids(a):
    a(f"s_and_b32 s{sMT}, s2, 7")
    a(f"s_lshl_b32 s{sMT}, s{sMT}, 2")
    a(f"s_bfe_u32 s{sT0}, s2, 0x20003")
    a(f"s_add_u32 s{sMT}, s{sMT}, s{sT0}")
    a(f"s_lshr_b32 s{sNT}, s2, 5")
    a(f"s_lshr_b32 s{sKQ}, s{sW}, 1")

def g2_tr(a):
    t1, i_ = vT, vT + 2
    a(f"v_and_b32 v{i_}, 15, v{vLane}")
    a(f"v_lshrrev_b32 v{t1}, 2, v{i_}")
    a(f"v_lshl_add_u32 v{t1}, v{vH}, 2, v{t1}")
    a(f"v_lshlrev_b32 v{vTr0}, 7, v{t1}")
    a(f"v_bfe_u32 v{t1}, v{vLane}, 4, 1")
    a(f"v_lshl_add_u32 v{vTr0}, v{t1}, 5, v{vTr0}")
    a(f"v_and_b32 v{t1}, 3, v{i_}")
    a(f"v_lshl_add_u32 v{vTr0}, v{t1}, 3, v{vTr0}")
    a(f"v_bfe_u32 v{t1}, v{i_}, 3, 1")
    a(f"v_lshl_add_u32 v{vTr0}, v{t1}, 6, v{vTr0}")
    a(f"s_lshl_b32 s{sT0}, s{sKQ}, 5")
    a(f"v_xor_b32 v{vTr0}, s{sT0}, v{vTr0}")
    a(f"v_xor_b32 v{vTr1}, 64, v{vTr0}")

def wdma(a, slot):
    a(f"s_add_u32 m0, s{sRing}, {slot*4096}")
    a("s_nop 0")
    for i in range(4):
        a(f"buffer_load_dwordx4 v{vOff+i}, s[{SWD}:{SWD+3}], s{sWoff} offen offset:{1024*i} lds")
    a(f"s_add_u32 s{sWoff}, s{sWoff}, s{sStep}")
    if OPT.get("rg", "0") == "1":
        a(f"s_cmp_eq_u32 s{sWoff}, s{sHead}")
        a(f"s_cselect_b32 s{sWoff}, s{sQB}, s{sWoff}")

def actld(a, st):
    b = ACT + 16 * st
    a(f"buffer_load_dwordx4 v[{b}:{b+3}], v{vL16}, s[{SWS}:{SWS+3}], s{sA0} offen sc1")
    a(f"buffer_load_dwordx4 v[{b+4}:{b+7}], v{vL16}, s[{SWS}:{SWS+3}], s{sA0} offen offset:1024 sc1")
    a(f"buffer_load_dwordx4 v[{b+8}:{b+11}], v{vL16}, s[{SWS}:{SWS+3}], s{sA1} offen sc1")
    a(f"buffer_load_dwordx4 v[{b+12}:{b+15}], v{vL16}, s[{SWS}:{SWS+3}], s{sA1} offen offset:1024 sc1")
    if OPT.get("rg", "0") == "1":
        a(f"s_cmp_eq_u32 s{sA0}, s{sOff}")
        a(f"s_cselect_b32 s{sT0}, {(-13*2048) & 0xffffffff}, s{sOffV}")
        a(f"s_add_u32 s{sA0}, s{sA0}, s{sT0}")
        a(f"s_add_u32 s{sA1}, s{sA1}, s{sT0}")
    else:
        a(f"s_add_u32 s{sA0}, s{sA0}, 2048")
        a(f"s_add_u32 s{sA1}, s{sA1}, 2048")

def unit(a, slot):
    for s in range(2):
        for tau in range(2):
            for t in range(2):
                d = WFG + 8 * s + 4 * tau + 2 * t
                a(f"ds_read_b64_tr_b16 v[{d}:{d+1}], v{vTr0+2 if tau == 0 else vTr1+2} offset:{slot*4096+s*2048+t*1024}")
    for s in range(2):
        a(f"s_waitcnt lgkmcnt({4 if s == 0 else 0})")
        for tau in range(2):
            for tt in range(2):
                acc = GACC + 16 * (tt * 2 + tau)
                a(mf(acc, WFG + 8 * s + 4 * tau, ACT + 16 * slot + 8 * tt + 4 * s, acc))

def attention(a):
    a.label("F_att")
    fstamp(a, 8)
    a(f"s_and_b32 s{sHead}, s2, 7")
    a(f"s_lshl_b32 s{sHead}, s{sHead}, 1")
    a(f"s_bfe_u32 s{sT0}, s2, 0x10003")
    a(f"s_add_u32 s{sHead}, s{sHead}, s{sT0}")
    a(f"s_lshr_b32 s{sQB}, s2, 4")
    a(f"s_mov_b32 s{sVM}, 0x0fffffff")
    a(f"s_mov_b32 s{sVM+1}, 0x0fffffff")
    a(f"s_mov_b32 s{sUP}, 0")
    a(f"s_mov_b32 s{sUP+1}, -1")
    a(f"v_mov_b32 v{KV+8}, 0x3f803f80")
    a(f"v_mov_b32 v{KV+9}, 0x3f803f80")
    for kb in range(NB):
        for i in range(0, 8, 2):
            if kb or i: a(f"v_mov_b64 v[{KV+16*kb+8+i}:{KV+16*kb+9+i}], v[{KV+8}:{KV+9}]")
    a(f"v_mul_u32_u24 v{vVo}, {VT//4 - 512}, v{vH}")
    a(f"v_add_u32 v{vVo}, v{vVo}, v{vL16}")
    a(f"s_mul_i32 s{sT0}, s{sHead}, 448")
    a(f"v_add_u32 v{vVo}, s{sT0}, v{vVo}")
    a(f"v_add_u32 v{vVo-1}, {VT//2}, v{vVo}")
    a(f"s_lshl_b32 s{sT1}, s{sHead}, 18")
    a(f"s_add_u32 s{SKH}, s{SWS}, s{sT1}")
    a(f"s_addc_u32 s{SKH+1}, s{SWS+1}, 0")
    a(f"s_mov_b32 s{SKH+2}, {HS}")
    a(f"s_mov_b32 s{SKH+3}, 0x20000")
    a(f"s_lshl_b32 s{sT1}, s{sW}, 16")
    a(f"s_add_u32 s{SKV}, s{SKH}, s{sT1}")
    a(f"s_addc_u32 s{SKV+1}, s{SKH+1}, 0")
    a(f"s_mov_b32 s{SKV+2}, {16*TS}")
    a(f"s_mov_b32 s{SKV+3}, 0x20000")
    a(f"s_add_u32 s{SVH}, s{SWS}, {WS_V}")
    a(f"s_addc_u32 s{SVH+1}, s{SWS+1}, 0")
    a(f"s_mov_b32 s{SVH+2}, {64*VT}")
    a(f"s_mov_b32 s{SVH+3}, 0x20000")
    a(f"s_mul_i32 s{sT1}, s{sW}, {16*VT}")
    a(f"s_add_u32 s{SV}, s{SVH}, s{sT1}")
    a(f"s_addc_u32 s{SV+1}, s{SVH+1}, 0")
    a(f"s_mov_b32 s{SV+2}, {16*VT}")
    a(f"s_mov_b32 s{SV+3}, 0x20000")
    if OPT.get("ra", "0") == "1":
        a(f"s_mul_i32 s{sOffV}, s{sQB}, {VT}")
        a(f"s_lshl_b32 s{sOff}, s{sQB}, 12")
    else:
        a(f"s_mov_b32 s{sOffV}, 0")
        a(f"s_mov_b32 s{sOff}, 0")
    for i in range(0, 8, 2):
        a(f"v_mov_b64 v[{PP+8+i}:{PP+9+i}], 0")
    g2_ids(a)
    for k in OPT.get("zq", "").split("+"):
        if k: a(f"s_sleep {k}")
    a(f"s_lshl_b32 s{sT3}, s{sHead}, 11")
    a(f"s_add_u32 s{sT3}, s{sT3}, {FQ}")
    poll(a, "F_pq", f"s{sT3}", 32, True, int(OPT.get("sq", "3")), 3, 0)
    fstamp(a, 9)
    a(f"s_setprio {OPT.get('pp', '1')}")
    a.c("K tile 0 of the head + Q (local tile j = global (w+j)&3)")
    a(f"buffer_load_dwordx4 v[{PP}:{PP+3}], v{vL16}, s[{SKH}:{SKH+3}], 0 offen sc1")
    a(f"buffer_load_dwordx4 v[{PP+4}:{PP+7}], v{vL16}, s[{SKH}:{SKH+3}], 0 offen offset:1024 sc1")
    a(f"s_lshl_b32 s{sT1}, s{sQB}, 14")
    for j in range(4):
        a(f"s_add_u32 s{sT0}, s{sW}, {j}")
        a(f"s_and_b32 s{sT0}, s{sT0}, 3")
        a(f"s_lshl_b32 s{sT0}, s{sT0}, 12")
        a(f"s_add_u32 s{sT0}, s{sT0}, s{sT1}")
        a(f"buffer_load_dwordx4 v[{QF+8*j}:{QF+8*j+3}], v{vL16}, s[{SKH}:{SKH+3}], s{sT0} offen offset:2048 sc1")
        a(f"buffer_load_dwordx4 v[{QF+8*j+4}:{QF+8*j+7}], v{vL16}, s[{SKH}:{SKH+3}], s{sT0} offen offset:3072 sc1")
    for kb in range(NB - 1):
        if kb == int(OPT.get("rel", "3")): ldsadd(a, 10)
        kvload(a, kb, SKV, SV)
    if int(OPT.get("rel", "3")) == 3: ldsadd(a, 10)
    a(f"s_waitcnt vmcnt({4*(NB-1)})")
    a(f"s_mov_b64 exec, s[{sUP}:{sUP+1}]")
    for qt in range(4):
        a(f"v_mov_b64 v[{QF+8*qt+6}:{QF+8*qt+7}], 0")
    a("s_mov_b64 exec, -1")
    a("s_nop 1")
    for qt in range(4):
        a(mf(OO + 16 * qt, PP, QF + 8 * qt, None))
        a(mf(OO + 16 * qt, PP + 4, QF + 8 * qt + 4, OO + 16 * qt))
    a.c("shift = largest score among keys 4..7 (upper lanes hold them), cut to bf16; checked after the loop")
    a("s_nop 5")
    a(f"s_mov_b64 exec, s[{sUP}:{sUP+1}]")
    for qt in range(4):
        o = OO + 16 * qt
        a(f"v_max3_f32 v{vT+qt}, v{o}, v{o+1}, v{o+2}")
        a(f"v_max_f32 v{vT+qt}, v{vT+qt}, v{o+3}")
        a(f"v_lshrrev_b32 v{vT+qt}, 16, v{vT+qt}")
        a(f"v_xor_b32 v{QF+8*qt+6}, 0x8000, v{vT+qt}")
    a("s_mov_b64 exec, -1")
    a(f"s_waitcnt vmcnt({4*(NB-2)})")
    a(mf(SS, KV, QF, None))
    a(mf(SS, KV + 4, QF + 4, SS))
    a.c("O = 0 (P[1] is zero)")
    for qt in range(4):
        a(mf(OO + 16 * qt, PP + 8, PP + 8, None))
    a.c("send local tiles 1..3 to waves (w+j)&3, inbox slot j-1")
    for j in range(1, 4):
        a(f"s_add_u32 s{sT0}, s{sW}, {j}")
        a(f"s_and_b32 s{sT0}, s{sT0}, 3")
        a(f"s_mul_i32 s{sT0}, s{sT0}, {INB}")
        a(f"v_add_u32 v{vT+j}, s{sT0}, v{vL16}")
    a(f"s_mov_b32 s{sCnt}, {16//NB}")
    a(f"s_setprio {OPT.get('prio', '1')}")
    fstamp(a, 10)
    if OPT.get("al"):
        a(".p2alignl 6, 0xbf800000")
        for k in range(int(OPT.get("al")) - 1): a("s_nop 0")
    a.label("F_aloop")
    if OPT.get("st") == "4":
        for c_ in (3, 2, 1):
            a(f"s_cmp_lg_u32 s{sCnt}, {c_}")
            a(f"s_cbranch_scc1 F_ls{c_}")
            a(f"s_memtime s[{64+2*(5-c_)}:{65+2*(5-c_)}]")
            a.label(f"F_ls{c_}")
    for kb in range(NB):
        for qt in range(4):
            n = kb * 4 + qt
            cur, nxt = SS + 16 * (n & 1), SS + 16 * ((n + 1) & 1)
            pc, pp = PP + 8 * (n & 1), PP + 8 * ((n + 1) & 1)
            nkb, nqt = (kb, qt + 1) if qt < 3 else ((kb + 1) % NB, 0)
            pkb, pqt = (kb, qt - 1) if qt > 0 else ((kb - 1) % NB, 3)
            if qt == 3:
                a(f"s_waitcnt vmcnt({4*(NB-2)})")
            K = KV + 16 * nkb
            V = KV + 16 * pkb + 8
            O = OO + 16 * pqt
            mm = [mf(nxt, K, QF + 8 * nqt, None), mf(nxt, K + 4, QF + 8 * nqt + 4, nxt),
                  mf(O, V, pp, O), mf(O, V + 4, pp + 4, O)]
            lb = KV + 16 * ((kb - 1) % NB)
            extra = []
            if qt == 0:
                extra = [[f"buffer_load_dwordx4 v[{lb}:{lb+3}], v{vL16}, s[{SKV}:{SKV+3}], s{sOff} offen sc1"],
                         [f"buffer_load_dwordx4 v[{lb+4}:{lb+7}], v{vL16}, s[{SKV}:{SKV+3}], s{sOff} offen offset:1024 sc1"],
                         [f"s_add_u32 s{sOff}, s{sOff}, {TS}"]]
            if qt == 1:
                extra = [[f"s_mov_b64 exec, s[{sVM}:{sVM+1}]",
                          f"buffer_load_dwordx4 v[{lb+8}:{lb+11}], v{vVo}, s[{SV}:{SV+3}], s{sOffV} offen sc1",
                          f"buffer_load_dwordx4 v[{lb+12}:{lb+15}], v{vVo-1}, s[{SV}:{SV+3}], s{sOffV} offen sc1",
                          "s_mov_b64 exec, -1"],
                         [f"s_add_u32 s{sOffV}, s{sOffV}, {VT}"]]
            if n == 4 * NB - 1:
                extra = [[f"s_sub_u32 s{sCnt}, s{sCnt}, 1"], [f"s_cmp_lg_u32 s{sCnt}, 0"]]
            for g in range(4):
                a(mm[g])
                fl = fillpat(cur, pc, g)
                if g == 3:
                    out = []
                    for k, l in enumerate(fl):
                        out.append(l)
                        if k % 2 == 0 and extra: out += extra.pop(0)
                    fl = out
                for l in fl:
                    a(l)
            if kb == 0 and qt == 2:
                a(f"s_cmp_lg_u32 s{sCnt}, 1")
                a("s_cbranch_scc1 F_bw0")
                a.c("last pass: the B waves are done with the phase-1 LDS image (inbox space)")
                ldswait(a, "F_bw1", 1, 4)
                a.label("F_bw0")
    a("s_cbranch_scc1 F_aloop")
    V = KV + 16 * (NB - 1) + 8
    O = OO + 48
    a("s_nop 0")
    a(mf(O, V, PP + 8, O))
    a(mf(O, V + 4, PP + 12, O))
    fstamp(a, 1)
    if OPT.get("trig", "2") == "4": ldsadd(a, 11)
    a("s_nop 3")
    for j in range(1, 4):
        for aa in range(4):
            a(f"ds_write_b128 v{vT+j}, v[{OO+16*j+4*aa}:{OO+16*j+4*aa+3}] offset:{4096*(j-1)+1024*aa}")
    ldsadd(a, 6)
    a(f"s_mul_i32 s{sT0}, s{sW}, {INB}")
    a(f"v_add_u32 v{vT}, s{sT0}, v{vL16}")
    a(f"s_lshl_b32 s{sT3}, s{sQB}, 2")
    a(f"s_add_u32 s{sT3}, s{sT3}, s{sW}")
    a(f"s_lshl_b32 s{sT3}, s{sT3}, 4")
    a(f"s_add_u32 s{sT3}, s{sT3}, s{sHead}")
    a(f"s_lshl_b32 s{sT3}, s{sT3}, 11")
    a(f"s_add_u32 s{sT3}, s{sT3}, {WS_O}")
    ldswait(a, "F_iw", 6, 4, 1)
    fstamp(a, 2)
    R = OO
    for j in range(1, 4):
        for aa in range(4):
            a(f"ds_read_b128 v[{OO+16*j+4*aa}:{OO+16*j+4*aa+3}], v{vT} offset:{4096*(j-1)+1024*aa}")
    for j in range(1, 4):
        a(f"s_waitcnt lgkmcnt({4*(3-j)})")
        for i in range(0, 16, 2): a(f"v_pk_add_f32 v[{R+i}:{R+i+1}], v[{R+i}:{R+i+1}], v[{OO+16*j+i}:{OO+16*j+i+1}]")
    a.c("check of the stand-in shift: every value finite and below 2^100, row sum above 2^-60; else redo with the true row max")
    a(f"v_add_f32 v{vT+2}, abs(v{R}), abs(v{R+1})")
    for i in range(2, 16):
        a(f"v_add_f32 v{vT+2}, v{vT+2}, abs(v{R+i})")
    a(f"v_cmp_lt_f32 vcc, {fhex(2.0**-60)}, v{R+12}")
    a(f"s_mov_b32 s{sT0}, vcc_hi")
    a(f"v_cmp_gt_f32 vcc, {fhex(2.0**100)}, v{vT+2}")
    a(f"s_and_b32 vcc_hi, vcc_hi, s{sT0}")
    a("s_cmp_eq_u64 vcc, -1")
    a("s_cbranch_scc0 F_slow")
    a.label("F_fin")
    a(f"v_mov_b32 v{vT+2}, v{R+12}")
    a(f"v_mov_b32 v{vT+3}, v{R+12}")
    a("s_nop 1")
    a(f"v_permlane32_swap_b32 v{vT+2}, v{vT+3}")
    a("s_nop 0")
    a(f"v_rcp_f32 v{vT+2}, v{vT+3}")
    a(f"v_rcp_f32 v{vT+3}, v{vT+3}")
    a(f"s_mov_b64 exec, s[{sUP}:{sUP+1}]")
    a(f"v_mov_b64 v[{R+12}:{R+13}], 0")
    a(f"v_mov_b64 v[{R+14}:{R+15}], 0")
    a("s_mov_b64 exec, -1")
    for i in range(0, 16, 2): a(f"v_pk_mul_f32 v[{R+i}:{R+i+1}], v[{R+i}:{R+i+1}], v[{vT+2}:{vT+3}]")
    for i in range(8): a(f"v_cvt_pk_bf16_f32 v{SS+i}, v{R+2*i}, v{R+2*i+1}")
    a(f"buffer_store_dwordx4 v[{SS}:{SS+3}], v{vL16}, s[{SWS}:{SWS+3}], s{sT3} offen sc1")
    a(f"buffer_store_dwordx4 v[{SS+4}:{SS+7}], v{vL16}, s[{SWS}:{SWS+3}], s{sT3} offen offset:1024 sc1")
    a(f"s_lshl_b32 s{sT3}, s{sQB}, 11")
    a(f"s_lshl_b32 s{sT0}, s{sHead}, 7")
    a(f"s_add_u32 s{sT3}, s{sT3}, s{sT0}")
    a(f"s_add_u32 s{sT3}, s{sT3}, {FO}")
    a.c("work for the tail while the stores fly")
    g2_tr(a)
    a(f"v_mov_b64 v[{WFG}:{WFG+1}], 0")
    a(f"v_mov_b64 v[{WFG+2}:{WFG+3}], 0")
    a("s_nop 1")
    for k in range(2):
        a(mf(GACC + 16 * k, WFG, WFG, None))
    if OPT.get("pw", "1") == "1":
        ldsadd(a, 2)
        a(f"v_mov_b32 v{vT+1}, 1")
        a(f"s_lshl_b32 s{sT0}, s{sW}, 2")
        a(f"s_add_u32 s{sT3}, s{sT3}, s{sT0}")
        a("s_mov_b64 exec, 1")
        a("s_waitcnt vmcnt(0)")
        a(f"buffer_store_dword v{vT+1}, v{vZ}, s[{SWS}:{SWS+3}], s{sT3} offen sc1")
        a("s_mov_b64 exec, -1")
    else:
        signal(a, "F_so", 2, sT3)
    fstamp(a, 3)
    a(f"s_cmp_ge_u32 s{sNT}, 7")
    a("s_cbranch_scc1 F_end")
    a("s_branch F_tail")
    a.label("F_slow")
    S2 = SS + 16
    a(f"v_mov_b32 v{vT+2}, 0xff800000")
    a(f"s_mov_b32 s{sOff}, 0")
    a(f"s_mov_b32 s{sOffV}, 0")
    a(f"s_mov_b64 exec, s[{sUP}:{sUP+1}]")
    a(f"v_mov_b64 v[{QF+6}:{QF+7}], 0")
    a("s_mov_b64 exec, -1")
    a.label("F_sl1")
    kvload(a, 0, SKH, SVH)
    a("s_waitcnt vmcnt(0)")
    a(mf(S2, KV, QF, None))
    a(mf(S2, KV + 4, QF + 4, S2))
    a("s_nop 15")
    maxtree(a, S2, vT + 2, first=False)
    a(f"s_cmp_lt_u32 s{sOff}, {HS}")
    a("s_cbranch_scc1 F_sl1")
    setpads(a, [vT + 2], [QF], vT + 4)
    for i in range(0, 16, 2): a(f"v_mov_b64 v[{R+i}:{R+i+1}], 0")
    a(f"s_mov_b32 s{sOff}, 0")
    a(f"s_mov_b32 s{sOffV}, 0")
    a.label("F_sl2")
    kvload(a, 0, SKH, SVH)
    a("s_waitcnt vmcnt(0)")
    a(mf(S2, KV, QF, None))
    a(mf(S2, KV + 4, QF + 4, S2))
    a("s_nop 15")
    for g in range(4):
        for l in expcvt(S2, PP, g): a(l)
    a("s_nop 1")
    a(mf(R, KV + 8, PP, R))
    a(mf(R, KV + 12, PP + 4, R))
    a(f"s_cmp_lt_u32 s{sOff}, {HS}")
    a("s_cbranch_scc1 F_sl2")
    a("s_nop 15")
    a("s_branch F_fin")

def g2h(a):
    a.label("F_g2")
    a(f"s_setprio {OPT.get('bp', '0')}")
    fstamp(a, 8)
    g2_ids(a)
    a(f"s_cmp_ge_u32 s{sNT}, 7")
    a("s_cbranch_scc1 F_end")
    a(f"s_load_dwordx2 s[{SWD}:{SWD+1}], s[0:1], 48")
    a(f"s_load_dwordx2 s[{SXO}:{SXO+1}], s[0:1], 16")
    a(f"s_lshl_b32 s{sRing}, s{sTT}, 14")
    a(f"s_add_u32 s{sRing}, s{sRing}, {WOB}")
    g2_tr(a)
    a(f"v_add_u32 v{vTr0+2}, s{sRing}, v{vTr0}")
    a(f"v_add_u32 v{vTr1+2}, s{sRing}, v{vTr1}")
    t1, t2, i_ = vT, vT + 1, vT + 2
    a(f"v_bfe_u32 v{t1}, v{vLane}, 4, 1")
    a(f"v_lshlrev_b32 v{t1}, 2, v{t1}")
    a(f"v_and_b32 v{t2}, 7, v{vLane}")
    a(f"v_xor_b32 v{t1}, v{t1}, v{t2}")
    a(f"v_lshrrev_b32 v{i_}, 3, v{vLane}")
    a(f"v_mul_u32_u24 v{vOff}, 896, v{i_}")
    a(f"v_lshl_add_u32 v{vOff}, v{t1}, 4, v{vOff}")
    for i in range(1, 4):
        a(f"v_add_u32 v{vOff+i}, {i*(7168-1024)}, v{vOff}")
    a(f"v_mov_b64 v[{WFG}:{WFG+1}], 0")
    a(f"v_mov_b64 v[{WFG+2}:{WFG+3}], 0")
    a(f"s_lshl_b32 s{sT2}, s{sNT}, 7")
    a(f"s_mul_i32 s{sWoff}, s{sTT}, {14*32*896}")
    a(f"s_add_u32 s{sWoff}, s{sWoff}, s{sT2}")
    for k in range(4):
        a(mf(GACC + 16 * k, WFG, WFG, None))
    a.c("local token tile 0 = tile w&1")
    a(f"s_mul_i32 s{sA0}, s{sMT}, {2*112*1024}")
    a(f"s_mul_i32 s{sT1}, s{sTT}, {28*1024}")
    a(f"s_add_u32 s{sA0}, s{sA0}, s{sT1}")
    a(f"s_add_u32 s{sA0}, s{sA0}, {WS_H}")
    a(f"s_add_u32 s{sT1}, s{sA0}, {112*1024}")
    a(f"s_bitcmp1_b32 s{sW}, 0")
    a(f"s_cselect_b32 s{sA1}, s{sA0}, s{sT1}")
    a(f"s_cselect_b32 s{sA0}, s{sT1}, s{sA0}")
    a(f"s_mov_b32 s{SWD+2}, {1792*896}")
    a(f"s_mov_b32 s{SWD+3}, 0x20000")
    a(f"s_movk_i32 s{sStep}, {32*896}")
    if OPT.get("rg", "0") == "1":
        a.c("start unit = (2nt + 3.5(mt&3)) mod 14: workgroups sharing h or w_down do not run in lockstep")
        a(f"s_mov_b32 s{sQB}, s{sWoff}")
        a(f"s_add_u32 s{sHead}, s{sWoff}, {14*32*896}")
        a(f"s_add_u32 s{sOff}, s{sA0}, {13*2048}")
        a(f"s_movk_i32 s{sOffV}, 2048")
        a(f"s_and_b32 s{sT0}, s{sMT}, 3")
        a(f"s_mul_i32 s{sT0}, s{sT0}, 7")
        a(f"s_lshr_b32 s{sT0}, s{sT0}, 1")
        a(f"s_lshl_b32 s{sT1}, s{sNT}, 1")
        a(f"s_add_u32 s{sT0}, s{sT0}, s{sT1}")
        a(f"s_cmp_ge_u32 s{sT0}, 14")
        a(f"s_cselect_b32 s{sT1}, 14, 0")
        a(f"s_sub_u32 s{sT0}, s{sT0}, s{sT1}")
        a(f"s_mul_i32 s{sT1}, s{sT0}, {32*896}")
        a(f"s_add_u32 s{sWoff}, s{sWoff}, s{sT1}")
        a(f"s_lshl_b32 s{sT1}, s{sT0}, 11")
        a(f"s_add_u32 s{sA0}, s{sA0}, s{sT1}")
        a(f"s_add_u32 s{sA1}, s{sA1}, s{sT1}")
    a(f"s_lshr_b32 s{sT3}, s{sMT}, 1")
    a(f"s_lshl_b32 s{sT3}, s{sT3}, 11")
    a(f"s_add_u32 s{sT3}, s{sT3}, {FH}")
    ldswait(a, "F_bw2", 1, 4)
    a(f"s_and_b32 s{SWD+1}, s{SWD+1}, 0xffff")
    for u in range(4): wdma(a, (u + 2) % 4)
    poll(a, "F_ph", f"s{sT3}", 14, False, int(OPT.get("sh", "4")), 4, 4, 4)
    a(f"s_setprio {OPT.get('bl', '0')}")
    fstamp(a, 9)
    for u in range(4): actld(a, (u + 2) % 4)
    a(f"s_mov_b32 s{sCnt}, 4")
    a("s_waitcnt vmcnt(4)")
    a("s_branch F_gmid")
    a.label("F_gloop")
    if OPT.get("gate", "0") != "0":
        a.c("the rest runs when the attention waves are (nearly) through: it then hides in their hand-off")
        a(f"s_cmp_lg_u32 s{sCnt}, {OPT.get('gate', '2')}")
        a("s_cbranch_scc1 F_gg")
        ldswait(a, "F_gw", 11, int(OPT.get("gn", "1")), 8)
        a.label("F_gg")
    a(f"s_cmp_lg_u32 s{sCnt}, 1")
    a("s_cbranch_scc1 F_gl2")
    a.c("last round: the weight stream continues with wo (heads 4tt..4tt+3), no more activations")
    a(f"s_mov_b32 s{SWD}, s{SXO}")
    a(f"s_and_b32 s{SWD+1}, s{SXO+1}, 0xffff")
    a(f"s_mov_b32 s{SWD+2}, {448*896}")
    a(f"s_movk_i32 s{sStep}, {28*896}")
    a(f"s_mul_i32 s{sWoff}, s{sTT}, {4*28*896}")
    a(f"s_add_u32 s{sWoff}, s{sWoff}, s{sT2}")
    a(f"s_mov_b32 s{sHead}, -1")
    a(f"s_mov_b32 s{sA0}, 0x40000000")
    a(f"s_mov_b32 s{sA1}, 0x40000000")
    a.label("F_gl2")
    for st in range(4):
        if st == 2: a.label("F_gmid")
        a("s_waitcnt vmcnt(24)")
        if OPT.get("x") != "1": unit(a, st)
        else: a("s_sleep 6")
        if OPT.get("x") != "2":
            actld(a, st)
            wdma(a, st)
        else: a("s_sleep 5")
    a(f"s_sub_u32 s{sCnt}, s{sCnt}, 1")
    a(f"s_cmp_lg_u32 s{sCnt}, 0")
    a("s_cbranch_scc1 F_gloop")
    a(f"s_setprio {OPT.get('be', '0')}")
    fstamp(a, 10)
    a.c("pair exchange: the other token tile goes to wave w^1")
    a(f"s_xor_b32 s{sT0}, s{sTT}, 1")
    a(f"s_lshl_b32 s{sT0}, s{sT0}, 13")
    a(f"s_add_u32 s{sT0}, s{sT0}, {XCH}")
    a(f"v_add_u32 v{vT}, s{sT0}, v{vL16}")
    a(f"v_xor_b32 v{vT+1}, 0x2000, v{vT}")
    for i in range(8):
        a(f"ds_write_b128 v{vT}, v[{GACC+32+4*i}:{GACC+32+4*i+3}] offset:{1024*i}")
    ldsadd(a, 7)
    ldswait(a, "F_xw", 7, 4, 4)
    for i in range(8):
        a(f"ds_read_b128 v[{GACC+32+4*i}:{GACC+32+4*i+3}], v{vT+1} offset:{1024*i}")
    a("s_waitcnt vmcnt(0) lgkmcnt(0)")
    ldsadd(a, 8)
    for i in range(0, 32, 2):
        a(f"v_pk_add_f32 v[{GACC+i}:{GACC+i+1}], v[{GACC+i}:{GACC+i+1}], v[{GACC+32+i}:{GACC+33+i}]")

def tail(a):
    a.label("F_tail")
    a(f"s_load_dwordx2 s[{SXO}:{SXO+1}], s[0:1], 0")
    a(f"s_load_dwordx2 s[{SWD}:{SWD+1}], s[0:1], 56")
    a(f"s_lshr_b32 s{sT3}, s{sMT}, 1")
    a(f"s_lshl_b32 s{sT3}, s{sT3}, 11")
    a(f"s_add_u32 s{sT3}, s{sT3}, {FO}")
    a.c("token tile 2mt + (w&1); heads 4kq..4kq+3")
    a(f"s_and_b32 s{sT2}, s{sW}, 1")
    a(f"s_lshl_b32 s{sT0}, s{sMT}, 1")
    a(f"s_add_u32 s{sT2}, s{sT2}, s{sT0}")
    a(f"s_lshl_b32 s{sA0}, s{sT2}, 15")
    a(f"s_lshl_b32 s{sT0}, s{sKQ}, 13")
    a(f"s_add_u32 s{sA0}, s{sA0}, s{sT0}")
    a(f"s_add_u32 s{sA0}, s{sA0}, {WS_O}")
    a(f"s_add_u32 s{sA1}, s{sA0}, 4096")
    a(f"s_mul_i32 s{sT2}, s{sT2}, {32*896}")
    a(f"s_lshl_b32 s{sT0}, s{sNT}, 7")
    a(f"s_add_u32 s{sT2}, s{sT2}, s{sT0}")
    a(f"s_lshl_b32 s{sT0}, s{sKQ}, 5")
    a(f"s_add_u32 s{sT2}, s{sT2}, s{sT0}")
    a(f"v_and_b32 v{vXo}, 31, v{vLane}")
    a(f"v_mul_u32_u24 v{vXo}, 896, v{vXo}")
    a(f"v_lshl_add_u32 v{vXo+1}, v{vH}, 3, v{vXo}")
    a(f"v_lshl_add_u32 v{vXo}, v{vH}, 4, v{vXo}")
    a(f"s_lshl_b32 s{sT0}, s{sKQ}, 14")
    a(f"s_add_u32 s{sT0}, s{sT0}, {WOB}")
    a(f"v_add_u32 v{vTr0}, s{sT0}, v{vTr0}")
    a(f"v_add_u32 v{vTr1}, s{sT0}, v{vTr1}")
    a(f"s_mov_b32 s{SXO+2}, {2048*896}")
    a(f"s_mov_b32 s{SXO+3}, 0x20000")
    a(f"s_mov_b32 s{SWD+2}, {2048*896}")
    a(f"s_mov_b32 s{SWD+3}, 0x20000")
    ldswait(a, "F_ww", 8, 4)
    a(f"s_and_b32 s{SXO+1}, s{SXO+1}, 0xffff")
    a(f"s_and_b32 s{SWD+1}, s{SWD+1}, 0xffff")
    a(f"buffer_load_dwordx2 v[{XRES}:{XRES+1}], v{vXo+1}, s[{SXO}:{SXO+3}], s{sT2} offen")
    a(f"buffer_load_dwordx2 v[{XRES+2}:{XRES+3}], v{vXo+1}, s[{SXO}:{SXO+3}], s{sT2} offen offset:16")
    for hd in range(4):
        for s_ in range(2):
            for tau in range(2):
                for t in range(2):
                    d = TW + 16 * hd + 8 * s_ + 4 * tau + 2 * t
                    a(f"ds_read_b64_tr_b16 v[{d}:{d+1}], v{vTr0 if tau == 0 else vTr1} offset:{hd*4096+s_*2048+t*1024}")
    a.c("final inbox addresses: local quarter i -> wave w ^ (2i), slot i-1")
    for i in range(1, 4):
        a(f"s_xor_b32 s{sT0}, s{sW}, {2*i}")
        a(f"s_mul_i32 s{sT0}, s{sT0}, 6144")
        a(f"v_add_u32 v{vOff+i}, s{sT0}, v{vL16}")
    a(f"s_mul_i32 s{sT0}, s{sW}, 6144")
    a(f"v_add_u32 v{vOff}, s{sT0}, v{vL16}")
    ldswait(a, "F_ow", 2, 4, 4)
    if OPT.get("pw", "1") == "1":
        a.c("flags of heads 4kq..4kq+3 for q tile 2(mt&1) + (w&1)")
        a(f"s_lshl_b32 s{sT0}, s{sKQ}, 9")
        a(f"s_add_u32 s{sT3}, s{sT3}, s{sT0}")
        a(f"s_and_b32 s{sT0}, s{sMT}, 1")
        a(f"s_lshl_b32 s{sT0}, s{sT0}, 3")
        a(f"s_add_u32 s{sT3}, s{sT3}, s{sT0}")
        a(f"s_and_b32 s{sT0}, s{sW}, 1")
        a(f"s_lshl_b32 s{sT0}, s{sT0}, 2")
        a(f"s_add_u32 s{sT3}, s{sT3}, s{sT0}")
        a(f"v_lshlrev_b32 v{vT+4}, 7, v{vLane}")
        a(f"s_mov_b32 s{sT1}, 0x8000")
        a("s_mov_b64 exec, 0xf")
        a.label("F_po_l")
        a(f"buffer_load_dword v{vT}, v{vT+4}, s[{SWS}:{SWS+3}], s{sT3} offen sc1")
        a("s_waitcnt vmcnt(0)")
        a(f"v_cmp_ne_u32 vcc, 1, v{vT}")
        a("s_cbranch_vccz F_po_ok")
        a(f"s_sub_u32 s{sT1}, s{sT1}, 1")
        a("s_cbranch_scc1 F_po_ok")
        a(f"s_sleep {OPT.get('so', '2')}")
        a("s_branch F_po_l")
        a.label("F_po_ok")
        a("s_mov_b64 exec, -1")
    else:
        poll(a, "F_po", f"s{sT3}", 16, False, int(OPT.get("so", "2")), 5, 4)
    fstamp(a, 4)
    for k in range(8):
        a(f"buffer_load_dwordx4 v[{ACT+4*k}:{ACT+4*k+3}], v{vL16}, s[{SWS}:{SWS+3}], s{sA0 if k < 4 else sA1} offen offset:{1024*(k&3)} sc1")
    R = 64
    a("s_waitcnt vmcnt(8)")
    for i in range(4):
        a(f"v_lshlrev_b32 v{R+2*i}, 16, v{XRES+i}")
        a(f"v_and_b32 v{R+2*i+1}, s{sMask}, v{XRES+i}")
    for k in range(8):
        a(f"s_waitcnt vmcnt({7-k})")
        for tau in range(2):
            acc = GACC + 16 * tau
            a(mf(acc, TW + 8 * k + 4 * tau, ACT + 4 * k, acc))
    fstamp(a, 5)
    a("s_nop 10")
    for i in range(1, 4):
        for c in range(2):
            r = GACC + 8 * i + 4 * c
            a(f"ds_write_b128 v{vOff+i}, v[{r}:{r+3}] offset:{2048*(i-1)+1024*c}")
    for i in range(8): a(f"v_add_f32 v{R+i}, v{R+i}, v{GACC+i}")
    a("s_waitcnt lgkmcnt(0)")
    a("s_barrier")
    D = GACC + 32
    for k in range(6):
        a(f"ds_read_b128 v[{D+4*k}:{D+4*k+3}], v{vOff} offset:{1024*k}")
    for i in range(3):
        a(f"s_waitcnt lgkmcnt({4-2*i})")
        for k in range(8): a(f"v_add_f32 v{R+k}, v{R+k}, v{D+8*i+k}")
    for i in range(4):
        a(f"v_cvt_pk_bf16_f32 v{XRES+i}, v{R+2*i}, v{R+2*i+1}")
    a("s_nop 1")
    a(f"v_permlane32_swap_b32 v{XRES}, v{XRES+2}")
    a(f"v_permlane32_swap_b32 v{XRES+1}, v{XRES+3}")
    a(f"buffer_store_dwordx4 v[{XRES}:{XRES+3}], v{vXo}, s[{SWD}:{SWD+3}], s{sT2} offen" + {"0": "", "1": " nt", "2": " sc1", "3": " sc0 sc1"}[OPT.get("os", "0")])
    a.label("F_end")
    fstamp(a, 7)
    a.stamp_flush(11, 0, sW, 8)
    a("s_endpgm")

def gen_fused(name):
    a = Asm()
    a("s_cmp_ge_u32 s2, 256")
    a("s_cbranch_scc1 F_exit")
    if OPT.get("scr") == "1":
        a("s_lshl_b32 s3, s2, 3")
        a("s_lshr_b32 s2, s2, 5")
        a("s_or_b32 s2, s2, s3")
        a("s_and_b32 s2, s2, 255")
    if OPT.get("scr") == "2":
        for sh, mul in ((3, 0x35), (4, 0x4d), (3, 1)):
            a(f"s_lshr_b32 s3, s2, {sh}")
            a("s_xor_b32 s2, s2, s3")
            a(f"s_mul_i32 s2, s2, {mul}")
            a("s_and_b32 s2, s2, 255")
    def endA(a):
        a(f"v_mov_b32 v{vZ}, 0")
        a.c("flag lanes: lane l<10 -> virtual head vh0 + (l>>1), part l&1 (0: holds its first column, 1: its last)")
        vh, col, ad = vT + 4, vT + 5, vT + 6
        a(f"s_mul_i32 s{sT2}, s{sCG}, 96")
        a(f"s_mul_i32 s{sT0}, s{sT2}, 2341")
        a(f"s_lshr_b32 s{sT0}, s{sT0}, 16")
        a(f"v_lshrrev_b32 v{vh}, 1, v{vLane}")
        a(f"v_add_u32 v{vh}, s{sT0}, v{vh}")
        a(f"v_and_b32 v{ad}, 1, v{vLane}")
        a(f"v_mul_u32_u24 v{col}, 27, v{ad}")
        a(f"v_mad_u32_u24 v{col}, v{vh}, 28, v{col}")
        a(f"v_subrev_u32 v{col}, s{sT2}, v{col}")
        a(f"v_cmp_gt_u32 vcc, 96, v{col}")
        a(f"v_lshlrev_b32 v{ad}, 4, v{ad}")
        a(f"v_lshrrev_b32 v{col}, 4, v{vh}")
        a(f"v_lshl_add_u32 v{ad}, v{col}, 2, v{ad}")
        a(f"v_and_b32 v{col}, 15, v{vh}")
        a(f"v_lshl_add_u32 v{ad}, v{col}, 11, v{ad}")
        a(f"v_cndmask_b32 v{ad}, -1, v{ad}, vcc")
        a(f"s_lshl_b32 s{sT3}, s{sRB}, 7")
        a(f"s_add_u32 s{sT3}, s{sT3}, {FQ}")
        xstamp(a, 3)
        signal(a, "F_sq", 0, sT3, ad, wb=OPT.get("sc1") == "0")
        fstamp(a, 6)
        attention(a)
    def endB(a):
        xstamp(a, 3)
        a(f"v_mov_b32 v{vZ}, 0")
        a(f"s_lshl_b32 s{sT3}, s{sRB}, 11")
        a(f"s_lshl_b32 s{sT0}, s{sCG}, 7")
        a(f"s_add_u32 s{sT3}, s{sT3}, s{sT0}")
        a(f"s_add_u32 s{sT3}, s{sT3}, {FH}")
        signal(a, "F_sh", 1, sT3, wb=OPT.get("hwb") == "1")
        g2h(a)
        tail(a)
    def endH(a):
        a.c("helper workgroups: wait for all helpers (flags are cleared by then), then take their roles")
        a(f"v_mov_b32 v{vZ}, 0")
        a.c("touch a slice of w_down / wo")
        a("s_load_dwordx2 s[4:5], s[0:1], 16")
        a("s_load_dwordx2 s[6:7], s[0:1], 48")
        a(f"s_lshl_b32 s{sT0}, s2, 3")
        a(f"s_add_u32 s{sT0}, s{sT0}, s{sW}")
        a(f"v_lshlrev_b32 v{vT+1}, 7, v{vLane}")
        a(f"s_mov_b32 s{SWD+2}, {448*896}")
        a("s_waitcnt lgkmcnt(0)")
        a(f"s_cmp_lt_u32 s{sT0}, 196")
        a(f"s_cselect_b32 s{SWD}, s6, s4")
        a(f"s_cselect_b32 s{SWD+1}, s7, s5")
        a(f"s_cselect_b32 s{SWD+2}, {1792*896}, s{SWD+2}")
        a(f"s_cselect_b32 s{sT1}, 0, 196")
        a(f"s_and_b32 s{SWD+1}, s{SWD+1}, 0xffff")
        a(f"s_mov_b32 s{SWD+3}, 0x20000")
        a(f"s_sub_u32 s{sT0}, s{sT0}, s{sT1}")
        a(f"s_lshl_b32 s{sT0}, s{sT0}, 13")
        a(f"buffer_load_dword v{vT+2}, v{vT+1}, s[{SWD}:{SWD+3}], s{sT0} offen")
        a(f"s_mov_b32 s{sT1}, 0x4000")
        a(f"s_cmp_lg_u32 s{sW}, 0")
        a("s_cbranch_scc1 F_hw_ok")
        a.label("F_hw")
        a("s_sleep 32")
        a(f"buffer_load_dword v{vT}, v{vZ}, s[{SDBG}:{SDBG+3}], 0 offen offset:128 sc1")
        a("s_waitcnt vmcnt(0)")
        a(f"v_readfirstlane_b32 s{sT0}, v{vT}")
        a(f"s_cmp_eq_u32 s{sT0}, 1")
        a("s_cbranch_scc1 F_hw_ok")
        a(f"s_sub_u32 s{sT1}, s{sT1}, 1")
        a("s_cbranch_scc0 F_hw")
        a.label("F_hw_ok")
        a("s_barrier")
        a(f"s_cmp_lt_u32 s{sW}, 4")
        a("s_cbranch_scc1 F_att")
        a("s_branch F_g2")
    p1.FUSED = True
    p1.KNAME = name
    p1.gen_p1(a, endA, endB, endH)
    a.label("F_exit")
    a("s_endpgm")
    return kernel_header(name) + a.text(), kernel_desc(name, 256, 64), LDS_F
```

```python
from asmlib import *
from consts import *
import math, os
OPT = dict(kv.split("=") for kv in os.environ.get("OPT", "").split(",") if kv)

XR = 0
FR = 98304
QR = 131072
LDS_P1 = QR + 4 * 6144
AUX = LDS_P1 + 64
SC1 = " sc1"
FUSED = False
KNAME = "k1_kernel"

SX, SWQ, SWA, SWS, SDBG = 16, 20, 24, 28, 56
sW, sRB, sCG, sTT = 32, 33, 34, 35
sOffX, sOffA, sOffQ, sRingA, sRingQ, sCnt = 36, 37, 38, 39, 40, 41
sT0, sT1, sT2, sT3 = 42, 43, 44, 45
sMask, sDelta = 46, 47
sTile, sRingX = 48, 49
sE48 = 50
sColA, sColQ, sRowX, sDq = 52, 53, 54, 55
vLane, vL16, vH, vR, vR2, vFlag = 1, 2, 3, 4, 5, 62
vTr0, vTr1 = 7, 8
vOffA, vOffA2, vOffQ = 9, 10, 11
vT = 12
vSt = 28
vOffQ2 = 40
vXk = 48
vOffX = 52
vZero = 54
WF = 64
XB = 96
XC = 112
RR = 192
ACC = 128

def pstamp(a, i):
    if FUSED and OPT.get("st", "2") in ("2", "4") and i != 0:
        return
    if OPT.get("st", "2") == "3" and i not in (0, 6):
        return
    a.stamp(i)

def mf(d, a, b):
    return f"v_mfma_f32_32x32x16_bf16 v[{d}:{d+15}], v[{a}:{a+3}], v[{b}:{b+3}], v[{d}:{d+15}]"

def wreadsA(slot, p):
    return [f"ds_read_b64_tr_b16 v[{WF+24*p+12*k+4*j+2*t}:{WF+24*p+12*k+4*j+2*t+1}], v{vTr0} offset:{slot*6144 + 3072*k + 64*j + 768*t}"
            for k in range(2) for j in range(3) for t in range(2)]

def wreadsB(slot, p):
    return [f"ds_read_b64_tr_b16 v[{WF+16*p+4*j+2*t}:{WF+16*p+4*j+2*t+1}], v{vTr0 if (j&1)==0 else vTr1} offset:{slot*8192 + (j>>1)*2048 + 512*t}"
            for j in range(4) for t in range(2)]

def dmaF(slot):
    g1 = [f"s_add_u32 m0, s{sRingA}, {slot*8192}",
          f"s_nop 0",
          f"buffer_load_dwordx4 v{vOffA}, s[{SWA}:{SWA+3}], s{sOffA} offen lds"]
    g2 = [f"buffer_load_dwordx4 v{vOffA2}, s[{SWA}:{SWA+3}], s{sOffA} offen offset:1024 lds",
          f"s_add_u32 s{sOffA}, s{sOffA}, {16*3584}"]
    return g1, g2

def dmaQ(slot):
    g1 = [f"s_add_u32 m0, s{sRingQ}, {slot*6144}",
          f"s_mov_b64 exec, s[{sE48}:{sE48+1}]",
          f"buffer_load_dwordx4 v{vOffQ}, s[{SWQ}:{SWQ+3}], s{sOffQ} offen lds",
          f"s_mov_b64 exec, -1"]
    g2 = [f"s_mov_b64 exec, s[{sE48}:{sE48+1}]",
          f"buffer_load_dwordx4 v{vOffQ2}, s[{SWQ}:{SWQ+3}], s{sOffQ} offen offset:768 lds",
          f"s_mov_b64 exec, -1",
          f"s_add_u32 s{sOffQ}, s{sOffQ}, {32*2688}"]
    return g1, g2

sSM, sSG = 60, 62
sTab = 14

def dmaX(q):
    x1 = [f"s_mov_b32 m0, s{sRingX}",
          f"s_add_u32 s{sRingX}, s{sRingX}, s{sSM+q}",
          f"buffer_load_dwordx4 v{vOffX}, s[{SX}:{SX+3}], s{sOffX} offen lds"]
    x2 = [f"buffer_load_dwordx4 v{vOffX+1}, s[{SX}:{SX+3}], s{sOffX} offen offset:1024 lds",
          f"s_add_u32 s{sOffX}, s{sOffX}, s{sSG+q}"]
    return x1, x2

def mmA(typ, p):
    out = []
    for k in range(2):
        for j in range(3):
            w, x = WF + 24 * p + 12 * k + 4 * j, XC + 8 * p + 4 * k
            out.append(mf(ACC + 16 * j, w, x) if typ[j] == "Q" else mf(ACC + 16 * j, x, w))
    return out

def mmB(p):
    return [mf(ACC + 64 * th + 16 * j, WF + 16 * p + 4 * j, XB + 8 * p + 4 * th) for j in range(4) for th in range(2)]

AXA = 188
AWA = 176
AXB = 28
AWB = 112

def call(a, cnt, lab, target):
    a(f"s_cmp_lg_u32 s{sCnt}, {cnt}")
    a(f"s_cbranch_scc1 {lab}")
    a(f"s_getpc_b64 s[{sT2}:{sT3}]")
    a(f"s_branch {target}")
    a.label(lab)

def ret(a):
    a(f"s_add_u32 s{sT2}, s{sT2}, 4")
    a(f"s_addc_u32 s{sT3}, s{sT3}, 0")
    a(f"s_setpc_b64 s[{sT2}:{sT3}]")

def loopA(a, typ):
    lab = f"P1_loopA_{typ}"
    a.label(lab)
    for q in range(2):
        p = q
        a("s_waitcnt vmcnt(12) lgkmcnt(0)")
        a("s_barrier")
        mm = mmA(typ, p)
        if q == 0:
            a(f"s_cmp_gt_u32 s{sCnt}, 4")
            a(f"s_cbranch_scc1 {lab}_n0")
            a(f"s_getpc_b64 s[{sT2}:{sT3}]")
            a(f"s_branch P1_side")
            a.label(f"{lab}_n0")
        if q == 0:
            tail = [f"s_cmp_eq_u32 s{sCnt}, 2", f"s_cselect_b32 s{sT1}, {(-5*16384) & 0xffffffff}, s{sRowX}",
                    f"v_add_u32 v{vXk}, s{sT1}, v{vXk}", f"v_add_u32 v{vXk+1}, s{sT1}, v{vXk+1}",
                    f"v_add_u32 v{vXk+2}, s{sT1}, v{vXk+2}", f"v_add_u32 v{vXk+3}, s{sT1}, v{vXk+3}",
                    f"v_add_u32 v{vTr0}, s{sDq}, v{vTr0}"]
        else:
            tail = [f"s_add_u32 s{sRingA}, s{sRingA}, s{sDelta}", f"s_add_u32 s{sRingQ}, s{sRingQ}, s{sDq}",
                    f"s_sub_u32 s{sDelta}, 0, s{sDelta}", f"s_sub_u32 s{sDq}, 0, s{sDq}",
                    f"s_sub_u32 s{sCnt}, s{sCnt}, 1", f"s_cmp_lg_u32 s{sCnt}, 0"]
        ks0 = 2 if q == 0 else 0
        rx = [f"ds_read_b128 v[{XC+8*(p^1)+4*k}:{XC+8*(p^1)+4*k+3}], v{vXk+ks0+k}" for k in range(2)]
        wr_ = wreadsA(1 - q, p ^ 1)
        rd = [rx[0]] + wr_[:6] + [rx[1]] + wr_[6:]
        f1, f2 = dmaF(q)
        q1, q2 = dmaQ(q)
        x1, x2 = dmaX(q)
        seq = f1 + rd[:3] + [mm[0]] + f2 + rd[3:6] + [mm[1]] + q1 + rd[6:9] + [mm[2]] + q2 + rd[9:12] + [mm[3]] + x1 + rd[12:] + [mm[4]] + x2 + tail + [mm[5]]
        for l in seq: a(l)
    a(f"s_cbranch_scc1 {lab}")
    a(f"s_getpc_b64 s[{sT2}:{sT3}]")
    a("s_branch P1_auxA")
    for j in range(3):
        w, x = AWA + 4 * j, AXA
        a(mf(ACC + 16 * j, w, x) if typ[j] == "Q" else mf(ACC + 16 * j, x, w))

def pair_dma(a, base, ks):
    a(f"s_add_u32 s{sRingX}, s{sColQ}, {base}")
    a(f"s_add_u32 s{sOffX}, s{sColA}, {ks*16*3584}")
    for q in range(2):
        for g in dmaX(q):
            for l in g: a(l)

BTAB = [6, 7, 6, 7, 6, 7, 6, 7, 6, 1, 2, 3, 8, 7, 7]
NBAR = int(OPT.get("nbar", "19"))
assert 18 <= NBAR <= 21

def loopB(a):
    lab = "P1_loopB"
    if OPT.get("bl_"):
        a(".p2alignl 6, 0xbf800000")
        for k in range(int(OPT.get("bl_")) - 1): a("s_nop 0")
    a.label(lab)
    for q in range(2):
        p = q
        a(f"s_bitcmp0_b32 s{sDq}, {q}")
        a(f"s_cbranch_scc1 {lab}_b{q}")
        a("s_barrier")
        a.label(f"{lab}_b{q}")
        mm = mmB(p)
        if q == 0:
            tail = [f"s_bitcmp1_b32 s{sCnt}, 0", f"s_cselect_b32 s{sT1}, 16384, 0",
                    f"s_cmp_eq_u32 s{sCnt}, 3", f"s_cselect_b32 s{sT1}, {(-5*16384) & 0xffffffff}, s{sT1}",
                    f"v_xor_b32 v{vXk}, 64, v{vXk}", f"v_add_u32 v{vXk}, s{sT1}, v{vXk}", f"v_xor_b32 v{vXk+1}, 32, v{vXk}",
                    f"s_lshr_b64 s[{sTab}:{sTab+1}], s[{sTab}:{sTab+1}], 4", f"s_and_b32 s{sT1}, s{sTab}, 15", f"s_lshl_b32 s{sT1}, s{sT1}, 14",
                    f"v_add_u32 v{vTr0}, s{sT1}, v{vOffA}", f"v_add_u32 v{vTr1}, s{sT1}, v{vOffA2}"]
        else:
            tail = [f"s_lshr_b32 s{sDq}, s{sDq}, 2", f"s_sub_u32 s{sCnt}, s{sCnt}, 1", f"s_cmp_lg_u32 s{sCnt}, 0"]
        xa = vXk + 1 if q == 0 else vXk
        rx = [f"ds_read_b128 v[{XB+8*(p^1)+4*th}:{XB+8*(p^1)+4*th+3}], v{xa} offset:{4096*th}" for th in range(2)]
        wr_ = wreadsB(1 - q, p ^ 1)
        rd = [rx[0]] + wr_[:2] + [rx[1]] + wr_[2:]
        nr = [2, 2, 2, 2, 2, 0, 0]
        for g in range(8):
            a(mm[g])
            if g == 0 and (q == 1 or OPT.get("s2", "1") == "1"):
                a(f"s_cmp_gt_u32 s{sCnt}, s{sColQ}")
                a(f"s_cbranch_scc1 {lab}_n{q}")
                a(f"s_getpc_b64 s[{sT2}:{sT3}]")
                a(f"s_branch P1_sideB" + ("" if q == 1 else "q"))
                a.label(f"{lab}_n{q}")
            if g < 7:
                for l in rd[:nr[g]]: a(l)
                rd = rd[nr[g]:]
            if g == 5:
                for l in tail[:len(tail)//2]: a(l)
            if g == 6:
                for l in tail[len(tail)//2:]: a(l)
        assert not rd
        a("s_waitcnt lgkmcnt(0)")
    a(f"s_cbranch_scc1 {lab}")
    if OPT.get("st") == "3": a.stamp(2)
    a.c("column-sum words still all-ones were not written yet: load again")
    a(f"s_mov_b32 s{sDq}, 0x2000")
    a.label("P1_bchk")
    a("s_waitcnt vmcnt(0) lgkmcnt(0)")
    a(f"v_max3_u32 v{vT+4}, v{AWB}, v{AWB+1}, v{AWB+2}")
    for i in range(3, 15, 2):
        a(f"v_max3_u32 v{vT+4}, v{vT+4}, v{AWB+i}, v{AWB+i+1}")
    a(f"v_max_u32 v{vT+4}, v{vT+4}, v{AWB+15}")
    a(f"v_cmp_eq_u32 vcc, -1, v{vT+4}")
    a("s_cbranch_vccz P1_bok")
    a(f"s_sub_u32 s{sDq}, s{sDq}, 1")
    a("s_cbranch_scc1 P1_bok")
    a("s_sleep 8")
    a(f"s_getpc_b64 s[{sT2}:{sT3}]")
    a("s_branch P1_auxB")
    a("s_branch P1_bchk")
    a.label("P1_bok")
    for j in range(4):
        for th in range(2):
            a(mf(ACC + 64 * th + 16 * j, AWB + 4 * j, AXB + 4 * th))

def waitgo(a, name, which, sleep):
    a(f"s_mov_b32 s{sT1}, 0x4000")
    a.label(f"{name}_l")
    a(f"v_readfirstlane_b32 s{sT0}, v{vFlag+which}")
    a(f"s_cmp_eq_u32 s{sT0}, 1")
    a(f"s_cbranch_scc1 {name}_ok")
    a(f"s_sub_u32 s{sT1}, s{sT1}, 1")
    a(f"s_cbranch_scc1 {name}_ok")
    a(f"buffer_load_dwordx2 v[{vFlag}:{vFlag+1}], v{vZero}, s[{SDBG}:{SDBG+3}], 0 offen offset:128 sc1")
    a(f"s_sleep {sleep}")
    a("s_waitcnt vmcnt(0)")
    a(f"s_branch {name}_l")
    a.label(f"{name}_ok")

def aux_blocks(a):
    a.c("A side jobs at the top of bodies 3..6 (cnt 4..1)")
    a.label("P1_side")
    a(f"s_cmp_lg_u32 s{sCnt}, 4")
    a("s_cbranch_scc1 P1_s3")
    a(f"s_lshl_b32 s{sRingX}, s{sTT}, 12")
    ret(a)
    a.label("P1_s3")
    a(f"s_cmp_lg_u32 s{sCnt}, 3")
    a("s_cbranch_scc1 P1_s2")
    a.c("the x stream now carries gate/up rows: k-steps 18,19 -> x slot 1")
    a(f"s_mov_b64 s[{SX}:{SX+1}], s[{SWA}:{SWA+1}]")
    a(f"s_mov_b32 s{SX+2}, s{SWA+2}")
    a(f"v_mov_b32 v{vOffX}, v{vOffA}")
    a(f"v_mov_b32 v{vOffX+1}, v{vOffA2}")
    a(f"s_mov_b32 s{sSM}, 8192")
    a(f"s_mov_b32 s{sSM+1}, 8192")
    a(f"s_mov_b32 s{sSG}, {16*3584}")
    a(f"s_mov_b32 s{sSG+1}, {16*3584}")
    a(f"s_add_u32 s{sRingX}, s{sColQ}, 16384")
    a(f"s_add_u32 s{sOffX}, s{sColA}, {18*16*3584}")
    ret(a)
    a.label("P1_s2")
    a(f"s_cmp_lg_u32 s{sCnt}, 2")
    a("s_cbranch_scc1 P1_s1")
    a(f"s_mov_b32 s{sRingX}, 0x30000")
    a(f"s_mov_b32 s{sOffX}, 0x40000000")
    a(f"s_mov_b32 s{sRingQ}, 0x34000")
    ret(a)
    a.label("P1_s1")
    a(f"s_add_u32 s{sRingX}, s{sColQ}, 32768")
    a(f"s_add_u32 s{sOffX}, s{sColA}, {20*16*3584}")
    ret(a)
    a.label("P1_auxA")
    a(f"v_and_b32 v{vT}, 0x1f0, v{vL16}")
    a(f"s_lshl_b32 s{sT0}, s{sTT}, 9")
    a(f"s_add_u32 s{sT0}, s{sT0}, {AUX}")
    a(f"v_add_u32 v{vT+1}, s{sT0}, v{vT}")
    a(f"s_lshl_b32 s{sT0}, s{sTT}, 7")
    a(f"s_add_u32 s{sT0}, s{sT0}, {AUX+3584}")
    a(f"v_lshrrev_b32 v{vT+2}, 2, v{vT}")
    a(f"v_add_u32 v{vT+2}, s{sT0}, v{vT+2}")
    a(f"v_lshl_add_u32 v{vT+3}, v{vH}, 4, s{sT0}")
    a(f"v_add_u32 v{vT}, {AUX+2048}, v{vT}")
    a(f"v_mov_b64 v[{AXA}:{AXA+1}], 0")
    a(f"v_mov_b64 v[{AXA+2}:{AXA+3}], 0")
    a("s_waitcnt vmcnt(12) lgkmcnt(0)")
    a("s_barrier")
    pair_dma(a, QR, 24)
    a(f"v_mov_b32 v{vT+4}, {LDS_P1+36}")
    a(f"s_mov_b32 s{sT1}, 0x100000")
    a.label("P1_aw")
    a(f"ds_read_b32 v{vT+5}, v{vT+4}")
    a("s_waitcnt lgkmcnt(0)")
    a(f"v_readfirstlane_b32 s{sT0}, v{vT+5}")
    a(f"s_sub_u32 s{sT1}, s{sT1}, 1")
    a(f"s_cselect_b32 s{sT0}, 1, s{sT0}")
    a(f"s_cmp_eq_u32 s{sT0}, 1")
    a("s_cbranch_scc1 P1_aw_ok")
    a("s_sleep 2")
    a("s_branch P1_aw")
    a.label("P1_aw_ok")
    a("s_mov_b32 exec_hi, 0")
    a(f"ds_read_b128 v[{AXA}:{AXA+3}], v{vT+1}")
    a("s_mov_b32 exec_hi, -1")
    for j in range(3):
        a(f"ds_read_b128 v[{AWA+4*j}:{AWA+4*j+3}], v{vT} offset:{512*j}")
    a(f"ds_read_b32 v{vR}, v{vT+2}")
    for aa in range(4):
        a(f"ds_read_b128 v[{RR+4*aa}:{RR+4*aa+3}], v{vT+3} offset:{32*aa}")
    a("s_waitcnt lgkmcnt(0)")
    ret(a)
    a.c("B side jobs. wave 4: wait for the helpers' start flag, then fetch their operands until all words are written; put them into LDS")
    AL = 28
    SB = int(OPT.get('sb', '4'))
    a.label("P1_sideBq")
    a(f"s_cmp_le_u32 s{sCnt}, 8")
    a("s_cbranch_scc1 P1_sbr")
    a.label("P1_sideB")
    a(f"s_cmp_le_u32 s{sCnt}, {SB}")
    a("s_cbranch_scc1 P1_auxB")
    a(f"s_movk_i32 s{sT1}, 0x2000")
    a.label("P1_sb0")
    a(f"s_cmp_lg_u32 s{sCnt}, 8")
    a("s_cbranch_scc1 P1_sbn")
    a("s_waitcnt vmcnt(0)")
    a.label("P1_sbn")
    a(f"s_getreg_b32 s{sT0}, hwreg(HW_REG_IB_STS)")
    a(f"s_and_b32 s{sT0}, s{sT0}, 0x00c0000f")
    a("s_cbranch_scc1 P1_sbr")
    a(f"v_readfirstlane_b32 s{sT0}, v{vFlag}")
    a(f"s_cmp_eq_u32 s{sT0}, 1")
    a("s_cbranch_scc1 P1_sbd")
    a(f"buffer_load_dwordx2 v[{vFlag}:{vFlag+1}], v{vZero}, s[{SDBG}:{SDBG+3}], 0 offen offset:128 sc1")
    a.label("P1_sba")
    a(f"s_cmp_lg_u32 s{sCnt}, 8")
    a("s_cbranch_scc1 P1_sbr")
    a(f"s_sub_u32 s{sT1}, s{sT1}, 1")
    a("s_cbranch_scc0 P1_sb0")
    a("s_branch P1_sbw")
    a.label("P1_sbr")
    ret(a)
    a.label("P1_sbd")
    a(f"v_max3_u32 v{vT+4}, v{AL}, v{AL+1}, v{AL+2}")
    for i in range(3, 15, 2):
        a(f"v_max3_u32 v{vT+4}, v{vT+4}, v{AL+i}, v{AL+i+1}")
    a(f"v_max_u32 v{vT+4}, v{vT+4}, v{AL+15}")
    a(f"v_cmp_eq_u32 vcc, -1, v{vT+4}")
    a("s_cbranch_vccz P1_sbw")
    a(f"s_lshl_b32 s{sT0}, s{sRB}, 11")
    a(f"s_add_u32 s{sT0}, s{sT0}, {WS_AX}")
    a(f"buffer_load_dwordx4 v[{AL}:{AL+3}], v{vL16}, s[{SWS}:{SWS+3}], s{sT0} offen sc1")
    a(f"buffer_load_dwordx4 v[{AL+4}:{AL+7}], v{vL16}, s[{SWS}:{SWS+3}], s{sT0} offen offset:1024 sc1")
    a(f"s_mul_i32 s{sT0}, s{sCG}, {96*16}")
    a(f"s_add_u32 s{sT0}, s{sT0}, {WS_AW}")
    a(f"buffer_load_dwordx4 v[{AL+8}:{AL+11}], v{vL16}, s[{SWS}:{SWS+3}], s{sT0} offen sc1")
    a("s_mov_b32 exec_hi, 0")
    a(f"buffer_load_dwordx4 v[{AL+12}:{AL+15}], v{vL16}, s[{SWS}:{SWS+3}], s{sT0} offen offset:1024 sc1")
    a(f"s_lshl_b32 s{sT0}, s{sRB}, 9")
    a(f"s_add_u32 s{sT0}, s{sT0}, {WS_AR-512}")
    a("s_not_b64 exec, exec")
    a(f"buffer_load_dwordx4 v[{AL+12}:{AL+15}], v{vL16}, s[{SWS}:{SWS+3}], s{sT0} offen sc1")
    a("s_mov_b64 exec, -1")
    a("s_branch P1_sba")
    a.label("P1_sbw")
    if OPT.get("st") == "3": a("s_memtime s[66:67]")
    a(f"v_add_u32 v{vT+4}, {AUX}, v{vL16}")
    for k in range(4):
        a(f"ds_write_b128 v{vT+4}, v[{AL+4*k}:{AL+4*k+3}] offset:{1024*k}")
    a(f"v_mov_b32 v{vT+4}, {LDS_P1+36}")
    a(f"v_mov_b32 v{vT+5}, 1")
    a(f"ds_write_b32 v{vT+4}, v{vT+5}")
    a(f"s_movk_i32 s{sColQ}, {SB}")
    ret(a)
    a.label("P1_auxB")
    a(f"s_mov_b32 s{sColQ}, 0")
    a(f"v_and_b32 v{vT}, 0x1f0, v{vL16}")
    a(f"s_lshl_b32 s{sT0}, s{sCG}, 1")
    a(f"s_lshr_b32 s{sT1}, s{sTT}, 1")
    a(f"s_add_u32 s{sT0}, s{sT0}, s{sT1}")
    a(f"s_lshl_b32 s{sT0}, s{sT0}, 10")
    a(f"s_add_u32 s{sT0}, s{sT0}, {WS_AW+AW_G}")
    a(f"s_add_u32 s{sT1}, s{sT0}, {AW_U-AW_G}")
    for j in range(4):
        a(f"buffer_load_dwordx4 v[{AWB+4*j}:{AWB+4*j+3}], v{vT}, s[{SWS}:{SWS+3}], s{sT0 if j < 2 else sT1} offen offset:{512*(j&1)} sc1")
    a(f"s_and_b32 s{sT1}, s{sTT}, 1")
    a(f"s_lshl_b32 s{sT0}, s{sT1}, 10")
    a(f"s_add_u32 s{sT0}, s{sT0}, {AUX}")
    a(f"v_add_u32 v{vT+1}, s{sT0}, v{vT}")
    a(f"s_lshl_b32 s{sT0}, s{sT1}, 8")
    a(f"s_add_u32 s{sT0}, s{sT0}, {AUX+3584}")
    a(f"v_lshrrev_b32 v{vT+2}, 2, v{vT}")
    a(f"v_add_u32 v{vT+2}, s{sT0}, v{vT+2}")
    for k in range(0, 8, 2):
        a(f"v_mov_b64 v[{AXB+k}:{AXB+k+1}], 0")
    a(f"ds_read_b32 v{vR}, v{vT+2}")
    a(f"ds_read_b32 v{vR2}, v{vT+2} offset:128")
    a("s_mov_b32 exec_hi, 0")
    for th in range(2):
        a(f"ds_read_b128 v[{AXB+4*th}:{AXB+4*th+3}], v{vT+1} offset:{512*th}")
    a("s_mov_b32 exec_hi, -1")
    ret(a)

def epi_B(a):
    c0 = -2.0 * math.sqrt(2.0 / math.pi) * math.log2(math.e)
    c1 = c0 * 0.044715
    a.c("epilogue B: gelu(g)*u")
    if OPT.get("gp", "2") != "0": a(f"s_setprio {OPT.get('gp', '2')}")
    a(f"s_and_b32 s{sT1}, s{sTT}, 1")
    a(f"s_lshl_b32 s{sT1}, s{sT1}, 1")
    a(f"s_lshl_b32 s{sT2}, s{sRB}, 2")
    a(f"s_add_u32 s{sT1}, s{sT1}, s{sT2}")
    a(f"s_mul_i32 s{sT1}, s{sT1}, 112")
    a(f"s_lshl_b32 s{sT2}, s{sCG}, 3")
    a(f"s_add_u32 s{sT1}, s{sT1}, s{sT2}")
    a(f"s_lshr_b32 s{sT2}, s{sTT}, 1")
    a(f"s_lshl_b32 s{sT2}, s{sT2}, 2")
    a(f"s_add_u32 s{sT1}, s{sT1}, s{sT2}")
    a(f"s_lshl_b32 s{sT1}, s{sT1}, 10")
    a(f"s_add_u32 s{sT1}, s{sT1}, {WS_H}")
    a(f"s_add_u32 s{sT2}, s{sT1}, {112*1024}")
    KC = 28
    for th in range(2):
        k0, k1, ir2 = KC + 6 * th, KC + 6 * th + 2, KC + 6 * th + 4
        r = vR if th == 0 else vR2
        a(f"v_mul_f32 v{ir2}, v{r}, v{r}")
        a(f"v_mul_f32 v{k0}, {fhex(c0)}, v{r}")
        a(f"v_mul_f32 v{k1}, v{ir2}, v{r}")
        a(f"v_mul_f32 v{k1}, {fhex(c1)}, v{k1}")
        a(f"v_rcp_f32 v{ir2}, v{ir2}")
        a(f"v_mov_b32 v{k0+1}, v{k0}")
        a(f"v_mov_b32 v{k1+1}, v{k1}")
        a(f"v_mov_b32 v{ir2+1}, v{ir2}")
    T = vT
    held = []
    pr = lambda r: f"v[{r}:{r+1}]"
    for th in range(2):
        k0, k1, ir2 = KC + 6 * th, KC + 6 * th + 2, KC + 6 * th + 4
        for p in range(2):
            G = ACC + 64 * th + 16 * p
            U = G + 32
            out = WF + 8 * (2 * th + p)
            for i0 in range(0, 16, 8):
                for k in range(0, 8, 2): a(f"v_pk_mul_f32 {pr(T+k)}, {pr(G+i0+k)}, {pr(G+i0+k)}")
                for k in range(0, 8, 2): a(f"v_pk_fma_f32 {pr(T+k)}, {pr(T+k)}, {pr(k1)}, {pr(k0)}")
                for k in range(0, 8, 2): a(f"v_pk_mul_f32 {pr(T+k)}, {pr(T+k)}, {pr(G+i0+k)}")
                for k in range(8): a(f"v_exp_f32 v{T+k}, v{T+k}")
                for k in range(0, 8, 2): a(f"v_pk_mul_f32 {pr(U+i0+k)}, {pr(U+i0+k)}, {pr(G+i0+k)}")
                for k in range(0, 8, 2): a(f"v_pk_fma_f32 {pr(T+k)}, {pr(T+k)}, {pr(ir2)}, {pr(ir2)}")
                for k in range(8): a(f"v_rcp_f32 v{T+k}, v{T+k}")
                a("s_nop 0")
                for k in range(0, 8, 2): a(f"v_pk_mul_f32 {pr(U+i0+k)}, {pr(U+i0+k)}, {pr(T+k)}")
                for k in range(4): a(f"v_cvt_pk_bf16_f32 v{out+i0//2+k}, v{U+i0+2*k}, v{U+i0+2*k+1}")
                s = i0 // 8
                so = sT1 if th == 0 else sT2
                st_ = f"buffer_store_dwordx4 v[{out+4*s}:{out+4*s+3}], v{vL16}, s[{SWS}:{SWS+3}], s{so} offen offset:{(2*p+s)*1024}" + ("" if OPT.get("hwb") == "1" else " sc1")
                if OPT.get("hold", "1") == "1": held.append(st_)
                else: a(st_)
    if held:
        a.c("the h stores wait until the attention waves have their first loads out")
        a(f"s_setprio {OPT.get('bp', '0')}")
        if OPT.get("st") == "3": a.stamp(4)
        a(f"v_mov_b32 v{vT+8}, {LDS_P1+40}")
        a(f"s_mov_b32 s{sT3}, 0x100000")
        a.label("P1_hw")
        a(f"ds_read_b32 v{vT+9}, v{vT+8}")
        a("s_waitcnt lgkmcnt(0)")
        a(f"v_readfirstlane_b32 s{sT0}, v{vT+9}")
        a(f"s_sub_u32 s{sT3}, s{sT3}, 1")
        a(f"s_cselect_b32 s{sT0}, 4, s{sT0}")
        a(f"s_cmp_ge_u32 s{sT0}, 4")
        a("s_cbranch_scc1 P1_hw_ok")
        a("s_sleep 2")
        a("s_branch P1_hw")
        a.label("P1_hw_ok")
        if OPT.get("st") == "3": a.stamp(5)
        for k, l in enumerate(held):
            a(l)
            if OPT.get("pace", "0") != "0" and k < 7: a(f"s_sleep {OPT.get('pace')}")

def STF():
    return SC1 if OPT.get("sc1", "1") == "1" else ""

def epi_A(a):
    a.c("epilogue A")
    a(f"s_mul_i32 s{sT0}, s{sCG}, 3")
    for j in range(3):
        a(f"s_cmp_lt_u32 s{sT0}, {14-j}")
        a(f"s_cselect_b32 s{sT1}, {fhex(QSCALE)}, 1.0")
        a(f"v_mul_f32 v{vT+6+2*j}, s{sT1}, v{vR}")
        a(f"v_mul_f32 v{vT+7+2*j}, s{sT1}, v{vR}")
    P0, P1 = vT + 4, vT + 5
    a(f"v_mov_b32 v{P0}, 0x3f803f80")
    a(f"v_mov_b32 v{P1}, 0x00003f80")
    a(f"s_mul_i32 s{sT2}, s{sTile}, {VT}")
    a(f"s_lshl_b32 s{sT3}, s{sT0}, 9")
    a(f"s_add_u32 s{sT2}, s{sT2}, s{sT3}")
    a(f"s_add_u32 s{sT2}, s{sT2}, {WS_V - 28*512}")
    a(f"s_add_u32 s{sT3}, s{sT2}, {VT//2}")
    for j in range(3):
        A = ACC + 16 * j
        out = WF + 12 * j
        a(f"s_cmp_ge_u32 s{sT0}, {28-j}")
        a(f"s_cbranch_scc1 P1_eV{j}")
        for i in range(0, 16, 2):
            a(f"v_pk_mul_f32 v[{A+i}:{A+i+1}], v[{A+i}:{A+i+1}], v[{vT+6+2*j}:{vT+7+2*j}]")
        for i in range(8):
            a(f"v_cvt_pk_bf16_f32 v{out+6*(i>>2)+(i&3)}, v{A+2*i}, v{A+2*i+1}")
        for pp in range(2):
            a(f"v_mov_b64 v[{out+6*pp+4}:{out+6*pp+5}], v[{P0}:{P1}]")
            a(f"v_cmp_gt_i32 s[{4+2*pp}:{5+2*pp}], 0, v{vSt+6+2*j+pp}")
        for pp in range(2):
            o = out + 6 * pp
            a(f"v_permlane32_swap_b32 v{o}, v{o+2}")
            a(f"v_permlane32_swap_b32 v{o+1}, v{o+3}")
        if j == 0: bar15(a)
        for pp in range(2):
            o = out + 6 * pp
            a(f"s_cmp_eq_u64 s[{4+2*pp}:{5+2*pp}], -1")
            a(f"s_cbranch_scc1 P1_eS{j}{pp}")
            a(f"buffer_store_dwordx4 v[{o+2}:{o+5}], v{vSt+6+2*j+pp}, s[{SWS}:{SWS+3}], 0 offen{STF()}")
            a(f"s_not_b64 exec, s[{4+2*pp}:{5+2*pp}]")
            a("s_nop 0")
            a(f"v_mov_b64 v[{o+2}:{o+3}], v[{P0}:{P1}]")
            a("s_mov_b64 exec, -1")
            a.label(f"P1_eS{j}{pp}")
            a(f"buffer_store_dwordx4 v[{o}:{o+3}], v{vSt+2*j+pp}, s[{SWS}:{SWS+3}], 0 offen{STF()}")
        if j == 1: a("s_waitcnt vmcnt(4)")
        a(f"s_branch P1_eN{j}")
        a.label(f"P1_eV{j}")
        for i in range(0, 16, 2):
            a(f"v_pk_mul_f32 v[{A+i}:{A+i+1}], v[{A+i}:{A+i+1}], v[{RR+i}:{RR+i+1}]")
        for i in range(8):
            a(f"v_cvt_pk_bf16_f32 v{out+i}, v{A+2*i}, v{A+2*i+1}")
        if j == 0: bar15(a)
        for s in range(2):
            a(f"buffer_store_dwordx4 v[{out+4*s}:{out+4*s+3}], v{vT+12}, s[{SWS}:{SWS+3}], s{sT2+s} offen offset:{512*j}{STF()}")
        if j == 1: a("s_waitcnt vmcnt(4)")
        a.label(f"P1_eN{j}")
        if j == 1:
            if OPT.get("st") == "3": a.stamp(4)
            a("s_barrier")
            if OPT.get("st") == "3": a.stamp(5)

def bar15(a):
    a("s_waitcnt vmcnt(4)")
    if OPT.get("st") == "3": a.stamp(1)
    a("s_barrier")
    pair_dma(a, 3 * 16384, 22)
    pair_dma(a, FR + 16384, 26)
    if OPT.get("st") == "3": a.stamp(2)

def split3(a, src, t, o1, o2, o3):
    a(f"v_and_b32 v{o1}, s{sMask}, v{src}")
    a(f"v_sub_f32 v{t}, v{src}, v{o1}")
    a(f"v_and_b32 v{o2}, s{sMask}, v{t}")
    a(f"v_sub_f32 v{t}, v{t}, v{o2}")
    a(f"v_and_b32 v{o3}, s{sMask}, v{t}")

def helper(a):
    sHid, sU, sPass = sCnt, sRingA, sRingQ
    a.label("P1_help")
    a(f"s_lshl_b32 s{sHid}, s{sRB}, 1")
    a(f"s_add_u32 s{sHid}, s{sHid}, s{sCG}")
    a(f"s_sub_u32 s{sHid}, s{sHid}, 14")
    a.c("wave 0: clear this launch's flags, mark everything this helper will publish as not written")
    a(f"v_mov_b64 v[92:93], -1")
    a(f"v_mov_b64 v[94:95], -1")
    a(f"s_lshl_b32 s{sT0}, s{sW}, 5")
    a(f"s_add_u32 s{sT0}, s{sT0}, s{sHid}")
    a(f"s_cmp_lt_u32 s{sT0}, 77")
    a(f"s_cselect_b32 s{sT1}, {WS_AW}, -1")
    a(f"s_cselect_b32 s{sT0}, s{sT0}, 0")
    a(f"s_lshl_b32 s{sT0}, s{sT0}, 10")
    a(f"s_add_u32 s{sOffQ}, s{sT0}, s{sT1}")
    a(f"s_cmp_lg_u32 s{sW}, 0")
    a("s_cbranch_scc1 P1_hc")
    a(f"buffer_store_dwordx4 v[92:95], v{vL16}, s[{SWS}:{SWS+3}], s{sOffQ} offen sc1")
    a(f"s_add_u32 s{sT0}, s{sOffQ}, 32768")
    a(f"buffer_store_dwordx4 v[92:95], v{vL16}, s[{SWS}:{SWS+3}], s{sT0} offen sc1")
    a(f"s_add_u32 s{sT0}, s{sOffQ}, 65536")
    a(f"buffer_store_dwordx4 v[92:95], v{vL16}, s[{SWS}:{SWS+3}], s{sT0} offen sc1")
    a(f"s_lshl_b32 s{sT0}, s{sHid}, 10")
    a(f"s_add_u32 s{sT0}, s{sT0}, {WS_AX}")
    a(f"buffer_store_dwordx4 v[92:95], v{vL16}, s[{SWS}:{SWS+3}], s{sT0} offen sc1")
    a(f"s_lshl_b32 s{sT0}, s{sHid}, 8")
    a(f"s_add_u32 s{sT0}, s{sT0}, {WS_AR}")
    a("s_mov_b64 exec, 0xffff")
    a(f"buffer_store_dwordx4 v[92:95], v{vL16}, s[{SWS}:{SWS+3}], s{sT0} offen sc1")
    a(f"s_mul_i32 s{sT0}, s{sHid}, 3072")
    a(f"s_add_u32 s{sT0}, s{sT0}, {WS_FLAG}")
    a(f"s_mov_b64 exec, s[{sE48}:{sE48+1}]")
    a(f"v_lshrrev_b32 v60, 1, v{vLane}")
    a(f"v_mul_u32_u24 v60, 96, v60")
    a(f"v_add_u32 v60, v60, v{vL16}")
    a(f"buffer_store_dwordx4 v[{vT+8}:{vT+11}], v60, s[{SWS}:{SWS+3}], s{sT0} offen sc1")
    a(f"v_mov_b32 v61, 1")
    a("s_mov_b64 exec, 1")
    a("s_waitcnt vmcnt(0)")
    a(f"buffer_atomic_add v61, v{vZero}, s[{SDBG}:{SDBG+3}], 0 offen sc0 sc1")
    a("s_waitcnt vmcnt(0)")
    a(f"v_readfirstlane_b32 s{sT0}, v61")
    a(f"v_mov_b32 v61, 1")
    a(f"s_cmp_lg_u32 s{sT0}, 31")
    a("s_cbranch_scc1 P1_hg")
    a(f"buffer_store_dword v61, v{vZero}, s[{SDBG}:{SDBG+3}], 0 offen offset:128 sc1")
    a.label("P1_hg")
    a("s_mov_b64 exec, -1")
    a.label("P1_hc")
    XD = 64
    WD = 128
    a(f"v_mul_u32_u24 v{vT+1}, 896, v{vT+4}")
    a(f"v_lshl_add_u32 v{vT+3}, v{vT+5}, 4, v{vT+1}")
    a(f"s_lshl_b32 s{sTile}, s{sHid}, 3")
    a(f"s_add_u32 s{sTile}, s{sTile}, s{sW}")
    a(f"s_mul_i32 s{sRowX}, s{sTile}, {8*896}")
    for i in range(7):
        a(f"buffer_load_dwordx4 v[{XD+4*i}:{XD+4*i+3}], v{vT+3}, s[{SX}:{SX+3}], s{sRowX} offen offset:{128*i}")
    a.c("unit loads: wave -> 56 rows, lane -> (row lane>>3, chunk lane&7)")
    a(f"s_mov_b32 s{SWA+3}, 0x20000")
    def uload(u):
        a(f"s_add_u32 s{sU}, s{sHid}, {32*u}")
        if u == 0:
            a(f"s_cmp_lt_u32 s{sU}, 21")
            a(f"s_cselect_b32 s{SWA}, s6, s8")
            a(f"s_cselect_b32 s{SWA+1}, s7, s9")
            a(f"s_cselect_b32 s{sT0}, 0, 21")
            a(f"s_movk_i32 s{sT1}, 3584")
            a(f"s_cselect_b32 s{sT1}, 2688, s{sT1}")
        elif u == 1:
            a(f"s_cmp_lt_u32 s{sU}, 49")
            a(f"s_cselect_b32 s{SWA}, s8, s10")
            a(f"s_cselect_b32 s{SWA+1}, s9, s11")
            a(f"s_cselect_b32 s{sT0}, 21, 49")
            a(f"s_movk_i32 s{sT1}, 3584")
        else:
            a(f"s_mov_b64 s[{SWA}:{SWA+1}], s[10:11]")
            a(f"s_movk_i32 s{sT0}, 49")
        a(f"s_and_b32 s{SWA+1}, s{SWA+1}, 0xffff")
        if u < 2:
            a(f"s_mul_i32 s{SWA+2}, s{sT1}, 448")
            a(f"v_mul_u32_u24 v51, s{sT1}, v{vT+4}")
            a(f"v_lshl_add_u32 v51, v{vT+5}, 4, v51")
            if u == 0:
                a(f"s_mul_i32 s{sT3}, s{sW}, 56")
            else:
                a(f"s_sub_u32 s{sT3}, s{sW}, 1")
                a(f"s_lshl_b32 s{sT3}, s{sT3}, 6")
            a(f"s_mul_i32 s{sT3}, s{sT3}, s{sT1}")
            a(f"s_lshl_b32 s{sT2}, s{sT1}, 3")
        else:
            a(f"s_cmp_lt_u32 s{sU}, 77")
            a(f"s_cselect_b32 s{SWA+2}, s{SWA+2}, 0")
        a(f"s_sub_u32 s{sT0}, s{sU}, s{sT0}")
        a(f"s_lshl_b32 s{sT0}, s{sT0}, 7")
        a(f"s_add_u32 s{sOffA}, s{sT3}, s{sT0}")
        n = 7 if u == 0 else 8
        for i in range(n):
            r = WD + 32 * u + 4 * i
            a(f"buffer_load_dwordx4 v[{r}:{r+3}], v51, s[{SWA}:{SWA+3}], s{sOffA} offen")
            if i < n - 1: a(f"s_add_u32 s{sOffA}, s{sOffA}, s{sT2}")
    uload(0)
    HP = OPT.get("hp", "0") != "0"
    if HP:
        a.c("touch a slice of w_gate / w_up early")
        a(f"s_mul_i32 s{sT0}, s{sTile}, 6272")
        a(f"v_lshlrev_b32 v59, 7, v{vLane}")
        a(f"s_mov_b32 s{SWQ+2}, {448*3584}")
        a("s_mov_b32 exec_hi, 0x1ffff")
        for p_ in (8, 10):
            a(f"s_mov_b32 s{SWQ}, s{p_}")
            a(f"s_and_b32 s{SWQ+1}, s{p_+1}, 0xffff")
            a(f"buffer_load_dword v55, v59, s[{SWQ}:{SWQ+3}], s{sT0} offen")
        a("s_mov_b32 exec_hi, -1")
    a(f"v_mov_b32 v{vT+2}, 0x3f803f80")
    a(f"v_mov_b32 v43, 1.0")
    pstamp(a, 1)
    a.c("statistics (two pass)")
    S0, S1, ONE0, ONE1, D0, D1 = 40, 41, 42, 43, 44, 45
    a(f"v_mov_b64 v[{S0}:{S1}], 0")
    a(f"v_mov_b32 v{ONE0}, 0x00003f80")
    a(f"s_waitcnt vmcnt({9 if HP else 7})")
    for i in range(28):
        a(f"v_dot2c_f32_bf16 v{S0+(i&1)}, v{XD+i}, v{vT+2}")
    def red8(r):
        a("s_nop 2")
        a(f"v_add_f32 v{r}, v{S0}, v{S1}")
        a("s_nop 1")
        a(f"v_add_f32_dpp v{r}, v{r}, v{r} quad_perm:[1,0,3,2] row_mask:0xf bank_mask:0xf")
        a("s_nop 1")
        a(f"v_add_f32_dpp v{r}, v{r}, v{r} quad_perm:[2,3,0,1] row_mask:0xf bank_mask:0xf")
        a("s_nop 1")
        a(f"v_add_f32_dpp v{r}, v{r}, v{r} row_half_mirror row_mask:0xf bank_mask:0xf")
    NM = 46
    red8(NM)
    a(f"v_mul_f32 v{NM}, {fhex(-1.0/448)}, v{NM}")
    a(f"v_mov_b64 v[{S0}:{S1}], 0")
    DD = 96
    for i0 in range(0, 28, 4):
        for k in range(4):
            a(f"v_dot2_f32_bf16 v{DD+2*k}, v{XD+i0+k}, v{ONE0}, v{NM}")
            a(f"v_dot2_f32_bf16 v{DD+2*k+1}, v{XD+i0+k}, v{ONE1}, v{NM}")
        a("s_nop 1")
        for k in range(8):
            a(f"v_fmac_f32 v{S0+(k&1)}, v{DD+k}, v{DD+k}")
    RS = 47
    red8(RS)
    a(f"v_mov_b32 v{D0}, {fhex(1e-5)}")
    a(f"v_fmac_f32 v{D0}, {fhex(1.0/448)}, v{RS}")
    a(f"v_rsq_f32 v{RS}, v{D0}")
    m1, m2, m3, O = 48, 49, 50, 56
    split3(a, NM, D0, m1, m2, m3)
    a(f"v_lshrrev_b32 v{D0}, 16, v{m1}")
    a(f"v_lshrrev_b32 v{D1}, 16, v{m2}")
    a(f"v_or_b32 v{O}, v{D0}, v{m1}")
    a(f"v_or_b32 v{O+1}, v{D1}, v{m1}")
    a(f"v_or_b32 v{O+2}, v{D1}, v{m3}")
    a(f"v_or_b32 v{O+3}, v{D1}, v{m3}")
    a(f"v_lshlrev_b32 v{D0}, 4, v{vT+4}")
    a(f"v_lshlrev_b32 v{D1}, 2, v{vT+4}")
    a(f"s_lshl_b32 s{sRowX}, s{sTile}, 7")
    a(f"s_add_u32 s{sRowX}, s{sRowX}, {WS_AX}")
    a(f"s_lshl_b32 s{sColQ}, s{sTile}, 5")
    a(f"s_add_u32 s{sColQ}, s{sColQ}, {WS_AR}")
    a("s_barrier")
    a("s_mov_b32 exec_lo, 0x01010101")
    a("s_mov_b32 exec_hi, 0x01010101")
    a(f"buffer_store_dwordx4 v[{O}:{O+3}], v{D0}, s[{SWS}:{SWS+3}], s{sRowX} offen sc1")
    a(f"buffer_store_dword v{RS}, v{D1}, s[{SWS}:{SWS+3}], s{sColQ} offen sc1")
    a("s_mov_b64 exec, -1")
    pstamp(a, 2)
    a.c("column sums: per wave partials [unit][wave*8 + row lane][64] in LDS (row pitch 272B)")
    C = 64
    a(f"s_mul_i32 s{sT0}, s{sW}, {8*272}")
    a(f"v_mul_u32_u24 v{vT+6}, 272, v{vT+4}")
    a(f"v_lshl_add_u32 v{vT+6}, v{vT+5}, 5, v{vT+6}")
    a(f"v_add_u32 v{vT+6}, s{sT0}, v{vT+6}")
    a(f"v_lshl_add_u32 v{vT+7}, v{vLane}, 2, s{sT0}")
    def usum(u, wait):
        for k in range(0, 8, 2): a(f"v_mov_b64 v[{C+k}:{C+k+1}], 0")
        a(f"s_waitcnt vmcnt({wait})")
        for i in range(7 if u == 0 else 8):
            for k in range(4):
                a(f"v_dot2c_f32_bf16 v{C+2*k}, v{WD+32*u+4*i+k}, v{ONE0}")
                a(f"v_dot2c_f32_bf16 v{C+2*k+1}, v{WD+32*u+4*i+k}, v{ONE1}")
        a("s_nop 2")
        a(f"ds_write_b128 v{vT+6}, v[{C}:{C+3}]")
        a(f"ds_write_b128 v{vT+6}, v[{C+4}:{C+7}] offset:16")
        a("s_waitcnt lgkmcnt(0)")
        for k in range(4):
            a(f"ds_read2_b32 v[{C+8+2*k}:{C+9+2*k}], v{vT+7} offset0:{136*(k&1)} offset1:{136*(k&1)+68}" if k < 2 else
              f"ds_read2_b32 v[{C+8+2*k}:{C+9+2*k}], v{vT+1} offset0:{136*(k&1)} offset1:{136*(k&1)+68}")
        a("s_waitcnt lgkmcnt(0)")
        for k in range(4): a(f"v_add_f32 v{C+8+k}, v{C+8+k}, v{C+12+k}")
        a(f"v_add_f32 v{C+8}, v{C+8}, v{C+10}")
        a(f"v_add_f32 v{C+9}, v{C+9}, v{C+11}")
        a(f"v_add_f32 v{C+8}, v{C+8}, v{C+9}")
        a(f"ds_write_b32 v{vT+3}, v{C+8} offset:{32768 + 2048*u}")
    a(f"v_add_u32 v{vT+1}, {4*272}, v{vT+7}")
    a(f"v_lshlrev_b32 v{vT+3}, 2, v0")
    def final(name, lo, hi, ubase):
        a("s_waitcnt lgkmcnt(0)")
        a("s_barrier")
        a(f"s_sub_u32 s{sT0}, s{sW}, {lo}")
        a(f"s_cmp_ge_u32 s{sT0}, {hi-lo}")
        a(f"s_cbranch_scc1 {name}_s")
        a(f"s_lshl_b32 s{sT0}, s{sW}, 11")
        a(f"v_lshl_add_u32 v{D1}, v{vLane}, 2, s{sT0}")
        for k in range(4):
            a(f"ds_read2st64_b32 v[{C+8+2*k}:{C+9+2*k}], v{D1} offset0:{128+8*ubase+2*k} offset1:{128+8*ubase+2*k+1}")
        a("s_waitcnt lgkmcnt(0)")
        for k in range(4): a(f"v_add_f32 v{C+8+k}, v{C+8+k}, v{C+12+k}")
        a(f"v_add_f32 v{C+8}, v{C+8}, v{C+10}")
        a(f"v_add_f32 v{C+9}, v{C+9}, v{C+11}")
        a(f"v_add_f32 v{C+8}, v{C+8}, v{C+9}")
        split3(a, C + 8, D0, 84, 85, 86)
        for k in range(3):
            a(f"v_lshrrev_b32 v{87+k}, 16, v{84+k}")
        a(f"v_or_b32 v92, v87, v85")
        a(f"v_or_b32 v93, v87, v86")
        a(f"v_or_b32 v94, v88, v84")
        a(f"v_or_b32 v95, v89, v85")
        a(f"buffer_store_dwordx4 v[92:95], v{vL16}, s[{SWS}:{SWS+3}], s{sOffQ} offen sc1")
        a.label(f"{name}_s")
    def sig(name, cnt_off, go_off, bar=True):
        if bar:
            a("s_barrier")
            a(f"s_cmp_lg_u32 s{sW}, 7")
            a(f"s_cbranch_scc1 {name}_e")
        a(f"v_mov_b32 v{D0}, 1")
        a("s_mov_b64 exec, 1")
        a(f"buffer_atomic_add v{D0}, v{vZero}, s[{SDBG}:{SDBG+3}], 0 offen offset:{cnt_off} sc0 sc1")
        a("s_waitcnt vmcnt(0)")
        a(f"v_readfirstlane_b32 s{sT0}, v{D0}")
        a(f"v_mov_b32 v{D0}, 1")
        a(f"s_cmp_lg_u32 s{sT0}, 31")
        a(f"s_cbranch_scc1 {name}_n")
        a(f"buffer_store_dword v{D0}, v{vZero}, s[{SDBG}:{SDBG+3}], 0 offen offset:{go_off} sc1")
        a.label(f"{name}_n")
        a("s_mov_b64 exec, -1")
        a.label(f"{name}_e")
    usum(0, 4 if HP else 2)
    pstamp(a, 3)
    final("P1_h1", 0, 1, 0)
    a(f"s_cmp_lg_u32 s{sW}, 0")
    a("s_cbranch_scc1 P1_h1x")
    a(f"ds_write_b32 v{vT+3}, v{vZero} offset:{32768 + 2048}")
    a(f"ds_write_b32 v{vT+3}, v{vZero} offset:{32768 + 4096}")
    a("s_branch P1_h1y")
    a.label("P1_h1x")
    pstamp(a, 5)
    uload(1)
    uload(2)
    usum(1, 8)
    usum(2, 0)
    a.label("P1_h1y")
    pstamp(a, 4)
    final("P1_h2", 1, 3, 0)
    a(f"v_mov_b32 v{D0}, {LDS_P1+4}")
    a(f"v_mov_b32 v{D1}, 4")
    a(f"ds_write_b32 v{D0}, v{D1}")
    pstamp(a, 6)

def gen_p1(a, endA, endB, endH):
    pstamp(a, 0)
    a("s_load_dwordx4 s[4:7], s[0:1], 0")
    a("s_load_dwordx4 s[8:11], s[0:1], 32")
    a("s_load_dwordx4 s[12:15], s[0:1], 64")
    a(f"v_lshrrev_b32 v{vT}, 6, v0")
    a(f"v_and_b32 v{vLane}, 63, v0")
    a(f"v_readfirstlane_b32 s{sW}, v{vT}")
    a(f"v_lshlrev_b32 v{vL16}, 4, v{vLane}")
    a(f"v_lshrrev_b32 v{vH}, 5, v{vLane}")
    a(f"v_mov_b32 v{vZero}, 0")
    a(f"v_mov_b64 v[{vFlag}:{vFlag+1}], 0")
    a.c("pull the code of all phases into L2: waves 5..7 touch 8KB each")
    a(f"s_getpc_b64 s[{SWQ}:{SWQ+1}]")
    a(f"s_and_b32 s{SWQ}, s{SWQ}, 0xffffff00")
    a(f"s_and_b32 s{SWQ+1}, s{SWQ+1}, 0xffff")
    a(f"s_cmp_lt_u32 s2, {OPT.get('ct', '32')}")
    a(f"s_cselect_b32 s{SWQ+2}, CODE_END - {KNAME}, 0")
    a(f"s_mov_b32 s{SWQ+3}, 0x20000")
    a(f"v_lshlrev_b32 v{vT+1}, 7, v0")
    a(f"v_subrev_u32 v{vT+1}, {5*8192}, v{vT+1}")
    a(f"buffer_load_dword v55, v{vT+1}, s[{SWQ}:{SWQ+3}], 0 offen")
    a(f"s_and_b32 s{sT0}, s2, 7")
    a(f"s_lshr_b32 s{sT1}, s2, 3")
    a(f"s_add_u32 s{sT1}, s{sT1}, 28")
    a(f"s_and_b32 s{sT1}, s{sT1}, 31")
    a(f"s_lshr_b32 s{sRB}, s{sT0}, 1")
    a(f"s_lshl_b32 s{sRB}, s{sRB}, 2")
    a(f"s_and_b32 s{sT2}, s{sT1}, 3")
    a(f"s_add_u32 s{sRB}, s{sRB}, s{sT2}")
    a(f"s_and_b32 s{sCG}, s{sT0}, 1")
    a(f"s_lshr_b32 s{sT2}, s{sT1}, 2")
    a(f"s_lshl_b32 s{sT2}, s{sT2}, 1")
    a(f"s_add_u32 s{sCG}, s{sCG}, s{sT2}")
    a(f"s_and_b32 s{sTT}, s{sW}, 3")
    a(f"s_lshl_b32 s{sTile}, s{sRB}, 2")
    a(f"s_add_u32 s{sTile}, s{sTile}, s{sTT}")
    a(f"s_mov_b32 s{sMask}, 0xffff0000")
    a(f"s_mov_b32 s{sCnt}, 7")
    a.c("x dma pattern")
    t1, i_ = vT + 1, vT
    a(f"v_lshrrev_b32 v{vT+4}, 3, v{vLane}")
    a(f"v_mul_u32_u24 v{vOffX}, 896, v{vT+4}")
    a(f"v_lshrrev_b32 v{t1}, 4, v{vLane}")
    a(f"v_and_b32 v{vT+5}, 7, v{vLane}")
    a(f"v_xor_b32 v{t1}, v{t1}, v{vT+5}")
    a(f"v_lshl_add_u32 v{vOffX}, v{t1}, 4, v{vOffX}")
    a(f"v_xor_b32 v{vOffX+1}, 64, v{vOffX}")
    a(f"v_add_u32 v{vOffX+1}, {7168-1024}, v{vOffX+1}")
    a(f"s_movk_i32 s{sSM}, 2048")
    a(f"s_movk_i32 s{sSM+1}, 14336")
    a(f"s_movk_i32 s{sSG}, 14336")
    a(f"s_movk_i32 s{sSG+1}, {128-14336}")
    a(f"s_mul_i32 s{sOffX}, s{sTile}, {32*896}")
    a(f"s_lshl_b32 s{sRingX}, s{sTT}, 12")
    a.c("everything that needs no pointer, while the kernel arguments arrive")
    a(f"v_bfe_u32 v{t1}, v{vLane}, 4, 1")
    a(f"v_lshlrev_b32 v{t1}, 2, v{t1}")
    a(f"v_xor_b32 v{t1}, v{t1}, v{vT+5}")
    a(f"v_mul_u32_u24 v{vOffA}, 3584, v{vT+4}")
    a(f"v_lshl_add_u32 v{vOffA}, v{t1}, 4, v{vOffA}")
    a(f"v_add_u32 v{vOffA2}, {8*3584-1024}, v{vOffA}")
    a(f"s_lshl_b32 s{sOffA}, s{sCG}, 1")
    a(f"s_lshr_b32 s{sT0}, s{sTT}, 1")
    a(f"s_add_u32 s{sOffA}, s{sOffA}, s{sT0}")
    a(f"s_lshl_b32 s{sOffA}, s{sOffA}, 7")
    a(f"s_lshl_b32 s{sColQ}, s{sTT}, 11")
    a(f"s_add_u32 s{sRingA}, s{sColQ}, {FR}")
    a(f"s_mov_b32 s{sColA}, s{sOffA}")
    a(f"v_mul_u32_u24 v{t1}, 43, v{vLane}")
    a(f"v_lshrrev_b32 v{t1}, 9, v{t1}")
    a(f"v_mul_u32_u24 v{vOffQ}, {2688-192}, v{t1}")
    a(f"v_add_u32 v{vOffQ}, v{vOffQ}, v{vL16}")
    a(f"v_add_u32 v{vOffQ2}, {4*2688-768}, v{vOffQ}")
    a(f"s_mul_i32 s{sOffQ}, s{sCG}, 192")
    a(f"s_mul_i32 s{sT0}, s{sTT}, {8*2688}")
    a(f"s_add_u32 s{sOffQ}, s{sOffQ}, s{sT0}")
    a(f"s_mul_i32 s{sRingQ}, s{sTT}, 1536")
    a(f"s_add_u32 s{sRingQ}, s{sRingQ}, {QR}")
    a(f"s_mov_b32 s{sE48}, -1")
    a(f"s_mov_b32 s{sE48+1}, 0xffff")
    a(f"v_mov_b32 v{vT+6}, {LDS_P1}")
    a(f"v_mov_b64 v[{vT+8}:{vT+9}], 0")
    a(f"v_mov_b64 v[{vT+10}:{vT+11}], 0")
    a(f"ds_write_b128 v{vT+6}, v[{vT+8}:{vT+11}]")
    a(f"ds_write_b128 v{vT+6}, v[{vT+8}:{vT+11}] offset:16")
    a(f"ds_write_b128 v{vT+6}, v[{vT+8}:{vT+11}] offset:32")
    a(f"s_lshr_b32 s{sT0}, s{sW}, 2")
    a(f"s_lshl_b32 s{sT1}, s{sT0}, 11")
    a(f"s_add_u32 m0, s{sRingX}, s{sT1}")
    a(f"s_mul_i32 s{sT1}, s{sT0}, 14336")
    a(f"s_add_u32 s{sT1}, s{sT1}, s{sOffX}")
    for d in (SX, SWQ, SWA, SWS, SDBG):
        a(f"s_mov_b32 s{d+3}, 0x20000")
    a(f"s_mov_b32 s{SX+2}, {2048*896}")
    a(f"s_mov_b32 s{SWQ+2}, {448*2688}")
    a(f"s_mov_b32 s{SWA+2}, {448*3584}")
    a(f"s_mov_b32 s{SWS+2}, {WS_END}")
    a(f"s_movk_i32 s{SDBG+2}, 256")
    a("s_waitcnt lgkmcnt(0)")
    a(f"s_mov_b32 s{SX}, s4")
    a(f"s_and_b32 s{SX+1}, s5, 0xffff")
    a(f"s_cmp_ge_u32 s{sCG}, 14")
    a("s_cbranch_scc1 P1_c2")
    a(f"buffer_load_dwordx4 v{vOffX}, s[{SX}:{SX+3}], s{sT1} offen lds")
    a(f"buffer_load_dwordx4 v{vOffX+1}, s[{SX}:{SX+3}], s{sT1} offen offset:1024 lds")
    a.label("P1_c2")
    a(f"s_mov_b32 s{SWQ}, s6")
    a(f"s_and_b32 s{SWQ+1}, s7, 0xffff")
    a(f"s_bitcmp1_b32 s{sW}, 0")
    a(f"s_cselect_b32 s{SWA}, s10, s8")
    a(f"s_cselect_b32 s{SWA+1}, s11, s9")
    a(f"s_and_b32 s{SWA+1}, s{SWA+1}, 0xffff")
    a(f"s_mov_b32 s{SDBG}, s12")
    a(f"s_and_b32 s{SDBG+1}, s13, 0xffff")
    a(f"s_mov_b32 s{SWS}, s14")
    a(f"s_and_b32 s{SWS+1}, s15, 0xffff")
    a(f"s_cmp_ge_u32 s{sCG}, 14")
    a("s_cbranch_scc1 P1_help")
    a(f"s_cmp_lt_u32 s{sW}, 4")
    a("s_cbranch_scc1 P1_A")
    for g in dmaF(0):
        for l in g: a(l)
    a("s_branch P1_B")
    a.label("P1_A")
    a(f"s_add_u32 s{sOffA}, s{sOffA}, {16*3584}")
    a(f"s_add_u32 s{sOffX}, s{sOffX}, 256")
    a(f"s_add_u32 s{sRingX}, s{sRingX}, 32768")
    def pgroup(sl):
        for g in dmaQ(sl) + (dmaF(sl) if sl else ()):
            for l in g: a(l)
        if sl >= 2:
            for g in dmaX(sl - 2):
                for l in g: a(l)
    PO = OPT.get("po", "1")
    pgroup(0)
    if PO == "0":
        for sl in range(1, 4): pgroup(sl)
    a(f"s_mov_b32 s{sRowX}, 16384")
    a(f"s_mov_b32 s{sDq}, {2*6144}")
    pstamp(a, 1)
    common_addr(a, "A")
    a(f"v_mul_u32_u24 v{vTr0}, 192, v{vT+2}")
    a(f"v_add_u32 v{vTr0}, v{vTr0}, v{vT+3}")
    a(f"v_add_u32 v{vTr0}, {QR}, v{vTr0}")
    for j in range(3):
        a(f"v_mfma_f32_32x32x16_bf16 v[{ACC+16*j}:{ACC+16*j+15}], v[{vT+8}:{vT+11}], v[{vT+8}:{vT+11}], 0")
    a(f"s_lshl_b32 s{sT3}, s{sTile}, 12")
    a.c("Q/K store address table: lane l -> 8-column chunk 12*cg + l")
    g8, m, e, x, tab, tab2 = vT + 4, vT + 5, vT + 6, vT + 7, vT + 8, vT + 9
    a(f"s_mul_i32 s{sT0}, s{sCG}, 12")
    a(f"v_add_u32 v{g8}, s{sT0}, v{vLane}")
    a(f"v_mul_u32_u24 v{m}, 9363, v{g8}")
    a(f"v_lshrrev_b32 v{m}, 16, v{m}")
    a(f"v_mul_u32_u24 v{e}, 7, v{m}")
    a(f"v_sub_u32 v{e}, v{g8}, v{e}")
    a(f"v_and_b32 v{x}, 7, v{m}")
    a(f"v_lshl_add_u32 v{tab}, v{x}, 19, s{sT3}")
    a(f"v_bfe_u32 v{x}, v{m}, 3, 1")
    a(f"v_xor_b32 v{x}, 1, v{x}")
    a(f"v_lshl_add_u32 v{tab}, v{x}, 11, v{tab}")
    a(f"v_add_u32 v{tab2}, {HS + 3*512}, v{tab}")
    a(f"v_lshrrev_b32 v{x}, 2, v{e}")
    a(f"v_lshl_add_u32 v{tab}, v{x}, 18, v{tab}")
    a(f"v_and_b32 v{x}, 3, v{e}")
    a(f"v_lshl_add_u32 v{tab}, v{x}, 9, v{tab}")
    a(f"v_cmp_eq_u32 vcc, 3, v{e}")
    a(f"v_lshlrev_b32 v{x}, 2, v{vH}")
    a(f"v_bfrev_b32 v{m}, 1")
    a(f"v_cndmask_b32 v{tab2}, v{m}, v{tab2}, vcc")
    for k in range(6):
        a(f"ds_bpermute_b32 v{vSt+k}, v{x}, v{tab} offset:{8*k}")
        a(f"ds_bpermute_b32 v{vSt+6+k}, v{x}, v{tab2} offset:{8*k}")
    a(f"v_and_b32 v{x}, 0x1f0, v{vL16}")
    a(f"v_mul_u32_u24 v{vT+12}, {VT//4}, v{vH}")
    a(f"v_add_u32 v{vT+12}, v{vT+12}, v{x}")
    a("s_waitcnt lgkmcnt(0)")
    for k in range(12):
        a(f"v_add_u32 v{vSt+k}, v{vSt+k}, v{x}")
    pstamp(a, 2)
    for k in OPT.get("zz", "").split("+"):
        if k: a(f"s_sleep {k}")
    if PO == "1":
        pgroup(1)
        a("s_waitcnt vmcnt(4)")
    elif PO == "2":
        for sl in range(1, 4): pgroup(sl)
        a("s_waitcnt vmcnt(16)")
    else:
        a("s_waitcnt vmcnt(16)")
    pstamp(a, 3)
    a("s_barrier")
    pstamp(a, 4)
    a(f"ds_read_b128 v[{XC}:{XC+3}], v{vXk}")
    a(f"ds_read_b128 v[{XC+4}:{XC+7}], v{vXk+1}")
    for l in wreadsA(0, 0): a(l)
    if PO == "1":
        pgroup(2)
        pgroup(3)
    pstamp(a, 5)
    a(f"s_cmp_gt_u32 s{sCG}, 9")
    a("s_cbranch_scc1 P1_loopA_VVV")
    a(f"s_cmp_eq_u32 s{sCG}, 9")
    a("s_cbranch_scc1 P1_loopA_QVV")
    loopA(a, "QQQ")
    a("s_branch P1_Aepi")
    loopA(a, "QVV")
    a("s_branch P1_Aepi")
    loopA(a, "VVV")
    a.label("P1_Aepi")
    pstamp(a, 6)
    epi_A(a)
    endA(a)
    aux_blocks(a)
    a.label("P1_B")
    tab = sum(v << (4 * i) for i, v in enumerate(BTAB))
    a(f"s_mov_b32 s{sTab}, {tab & 0xffffffff}")
    a(f"s_mov_b32 s{sTab+1}, {tab >> 32}")
    a(f"s_mov_b32 s{sDq}, {((1 << 16) - 1) | (1 << NBAR)}")
    a(f"s_mov_b32 s{sCnt}, 14")
    a(f"v_mov_b32 v28, -1")
    a(f"s_cmp_eq_u32 s{sW}, 4")
    a(f"s_cselect_b32 s{sColQ}, {int(OPT.get('sg', '12'))}, {int(OPT.get('sb', '4'))}")
    pstamp(a, 1)
    common_addr(a, "B")
    a(f"v_lshlrev_b32 v{vTr0}, 7, v{vT+2}")
    a(f"v_add_u32 v{vTr0}, v{vTr0}, v{vT+3}")
    a(f"v_bfe_u32 v{t1}, v{i_}, 3, 1")
    a(f"v_lshl_add_u32 v{vTr0}, v{t1}, 6, v{vTr0}")
    a(f"v_xor_b32 v{vTr1}, 64, v{vTr0}")
    a(f"s_lshr_b32 s{sT0}, s{sTT}, 1")
    a(f"s_lshl_b32 s{sT0}, s{sT0}, 12")
    a(f"v_add_u32 v{vOffA}, s{sT0}, v{vTr0}")
    a(f"v_add_u32 v{vOffA2}, s{sT0}, v{vTr1}")
    a(f"v_add_u32 v{vTr0}, {FR}, v{vOffA}")
    a(f"v_add_u32 v{vTr1}, {FR}, v{vOffA2}")
    for j in range(8):
        a(f"v_mfma_f32_32x32x16_bf16 v[{ACC+16*j}:{ACC+16*j+15}], v[{vT+8}:{vT+11}], v[{vT+8}:{vT+11}], 0")
    a(f"s_add_u32 s{sOffX}, s{sOffX}, 128")
    a(f"s_add_u32 s{sRingX}, s{sRingX}, 16384")
    for q in range(2):
        for g in dmaX(q):
            for l in g: a(l)
    pstamp(a, 2)
    a("s_waitcnt vmcnt(4)")
    pstamp(a, 3)
    a("s_barrier")
    pstamp(a, 4)
    a(f"ds_read_b128 v[{XB}:{XB+3}], v{vXk}")
    a(f"ds_read_b128 v[{XB+4}:{XB+7}], v{vXk} offset:4096")
    for l in wreadsB(0, 0): a(l)
    a("s_waitcnt vmcnt(0) lgkmcnt(0)")
    if OPT.get("pf", "0") != "0":
        a.c("touch one slice of x / wqkv / w_gate / w_up so that the whole chip asks memory for them at once")
        a(f"s_cmp_lt_u32 s{sTT}, 2")
        a(f"s_cselect_b32 s{SWA}, s4, s8")
        a(f"s_cselect_b32 s{SWA+1}, s5, s9")
        a(f"s_cselect_b32 s{sT0}, s6, s10")
        a(f"s_cselect_b32 s{sT1}, s7, s11")
        a(f"s_mov_b32 s{SWA+2}, {448*3584}")
        a(f"s_cselect_b32 s{sT2}, {448*2688}, s{SWA+2}")
        a(f"s_cselect_b32 s{SWA+2}, {2048*896}, s{SWA+2}")
        a(f"s_bitcmp1_b32 s{sTT}, 0")
        a(f"s_cselect_b32 s{SWA}, s{sT0}, s{SWA}")
        a(f"s_cselect_b32 s{SWA+1}, s{sT1}, s{SWA+1}")
        a(f"s_cselect_b32 s{SWA+2}, s{sT2}, s{SWA+2}")
        a(f"s_and_b32 s{SWA+1}, s{SWA+1}, 0xffff")
        a(f"s_mov_b32 s{SWA+3}, 0x20000")
        if OPT.get("pf") == "3":
            a(f"s_cmp_lt_u32 s{sTT}, 2")
            a(f"s_cselect_b32 s{SWA+2}, s{SWA+2}, 0")
        a(f"s_sub_u32 s{sT0}, s2, 32")
        a(f"s_lshl_b32 s{sT0}, s{sT0}, 13")
        a(f"v_lshlrev_b32 v{vT+6}, 7, v{vLane}")
        a(f"buffer_load_dword v55, v{vT+6}, s[{SWA}:{SWA+3}], s{sT0} offen")
    pstamp(a, 5)
    loopB(a)
    pstamp(a, 6)
    epi_B(a)
    endB(a)
    helper(a)
    endH(a)

def ffn_setup(a):
    t1 = vT + 1
    a.c("gate/up dma setup: wave tt loads block tt (G0,U0,G1,U1)")
    a(f"s_bitcmp1_b32 s{sW}, 0")
    a(f"s_cselect_b32 s{SWA}, s10, s8")
    a(f"s_cselect_b32 s{SWA+1}, s11, s9")
    a(f"s_and_b32 s{SWA+1}, s{SWA+1}, 0xffff")
    a(f"s_mov_b32 s{SWA+2}, {448*3584}")
    a(f"s_mov_b32 s{SWA+3}, 0x20000")
    a(f"v_bfe_u32 v{t1}, v{vLane}, 4, 1")
    a(f"v_lshlrev_b32 v{t1}, 2, v{t1}")
    a(f"v_xor_b32 v{t1}, v{t1}, v{vT+5}")
    a(f"v_mul_u32_u24 v{vOffA}, 3584, v{vT+4}")
    a(f"v_lshl_add_u32 v{vOffA}, v{t1}, 4, v{vOffA}")
    a(f"v_add_u32 v{vOffA2}, {8*3584-1024}, v{vOffA}")
    a(f"s_lshl_b32 s{sOffA}, s{sCG}, 1")
    a(f"s_lshr_b32 s{sT0}, s{sTT}, 1")
    a(f"s_add_u32 s{sOffA}, s{sOffA}, s{sT0}")
    a(f"s_lshl_b32 s{sOffA}, s{sOffA}, 7")
    a(f"s_lshl_b32 s{sRingA}, s{sTT}, 11")
    a(f"s_add_u32 s{sRingA}, s{sRingA}, {FR}")

def common_addr(a, role):
    t1, i_ = vT + 1, vT
    a.c("x fragment addresses")
    a(f"v_and_b32 v{t1}, 31, v{vLane}")
    a(f"v_bfe_u32 v{vT+2}, v{vLane}, 1, 3")
    a(f"v_xor_b32 v{vT+2}, v{vT+2}, v{vH}")
    a(f"v_lshlrev_b32 v{vT+2}, 4, v{vT+2}")
    a(f"v_lshl_add_u32 v{vXk}, v{t1}, 7, v{vT+2}")
    if role == "A":
        a(f"s_lshl_b32 s{sT0}, s{sTT}, 12")
    else:
        a(f"s_and_b32 s{sT0}, s{sTT}, 1")
        a(f"s_lshl_b32 s{sT0}, s{sT0}, 13")
    a(f"v_add_u32 v{vXk}, s{sT0}, v{vXk}")
    for k in range(1, 4):
        a(f"v_xor_b32 v{vXk+k}, {32*k}, v{vXk}")
    a(f"v_and_b32 v{i_}, 15, v{vLane}")
    a(f"v_lshrrev_b32 v{t1}, 2, v{i_}")
    a(f"v_lshl_add_u32 v{vT+2}, v{vH}, 3, v{t1}")
    a(f"v_bfe_u32 v{t1}, v{vLane}, 4, 1")
    a(f"v_lshlrev_b32 v{vT+3}, 5, v{t1}")
    a(f"v_and_b32 v{t1}, 3, v{i_}")
    a(f"v_lshl_add_u32 v{vT+3}, v{t1}, 3, v{vT+3}")
    a(f"s_mov_b32 s{sDelta}, {2*8192}")

def gen_k1(name):
    a = Asm()
    a(f"s_cmp_ge_u32 s2, 256")
    a(f"s_cbranch_scc1 K1_exit")
    def end(a):
        pstamp(a, 7)
        a.stamp_flush(8, 0, sW, 8)
        a("s_endpgm")
    def endH(a):
        pstamp(a, 8)
        a.stamp_flush(9, 0, sW, 8)
        a("s_endpgm")
    gen_p1(a, end, end, endH)
    a.label("K1_exit")
    a("s_endpgm")
    return kernel_header(name) + a.text(), kernel_desc(name, 256, 64), LDS_P1
```

```python
import sys
sys.path.insert(0, "gen")
from p1 import gen_k1
from k2 import gen_k2
from k3 import gen_k3

HDR = """; out = x + MHA(LN(x)) + GEGLU-FFN(LN(x)) on gfx950, one persistent launch (generated by gen/gen.py)
; Hand-offs between workgroups: write-through (sc1) stores, drained, then a flag; flags are cleared by the helpers first.
"""
def build(path):
    import os
    if os.environ.get("MODE", "fused") == "fused":
        from fused import gen_fused
        name = "parallel_sum__mha_block__glu_gated_geglu__prompt_kernel"
        c, d, lds = gen_fused(name)
        s = HDR + f"; @launch grid=(256,1,1) block=(512,1,1) lds={lds}\n" + '.amdgcn_target "amdgcn-amd-amdhsa--gfx950"\n.text\n' + c + 'CODE_END:\n.section .rodata,"a"\n' + d
        from p1 import OPT
        nt = OPT.get("nt", "")
        out = []
        for l in s.split("\n"):
            if l.endswith(" lds") and " sc1" not in l:
                if ("x" in nt and "s[16:19]" in l) or ("q" in nt and "s[20:23]" in l) or ("f" in nt and "s[24:27]" in l and ("v9," in l or "v10," in l)):
                    l = l[:-4] + " nt lds"
            if "h" in nt and l.startswith("    buffer_load_dwordx4 v[") and ("v51, s[24:27]" in l or "v15, s[16:19]" in l):
                l += " nt"
            out.append(l)
        s = "\n".join(out)
        open(path, "w").write(s)
        return
    ks = [("k1_kernel", gen_k1, 256, 512), ("k2_kernel", gen_k2, 256, 256), ("k3_kernel", gen_k3, 224, 512)]
    code, desc, launch = "", "", ""
    for name, g, grid, blk in ks:
        c, d, lds = g(name)
        code += c
        desc += d
        launch += f"; @launch kernel={name} grid=({grid},1,1) block=({blk},1,1) lds={lds}\n"
    s = HDR + launch + '.amdgcn_target "amdgcn-amd-amdhsa--gfx950"\n.text\n' + code + 'CODE_END:\n.section .rodata,"a"\n' + desc
    open(path, "w").write(s)
if __name__ == "__main__":
    import asmlib
    if "--diag" in sys.argv:
        asmlib.DIAG["on"] = True
        sys.argv.remove("--diag")
    build(sys.argv[1] if len(sys.argv) > 1 else "parallel_sum__mha_block__glu_gated_geglu__prompt.s")
```

```python
from asmlib import *
from consts import *
import math, os
OPT = dict(kv.split("=") for kv in os.environ.get("OPT", "").split(",") if kv)

XR = 0
FR = 98304
QR = 131072
LDS_P1 = QR + 4 * 6144
AUX = LDS_P1 + 64
SC1 = " sc1"
FUSED = False
KNAME = "k1_kernel"

SX, SWQ, SWA, SWS, SDBG = 16, 20, 24, 28, 56
sW, sRB, sCG, sTT = 32, 33, 34, 35
sOffX, sOffA, sOffQ, sRingA, sRingQ, sCnt = 36, 37, 38, 39, 40, 41
sT0, sT1, sT2, sT3 = 42, 43, 44, 45
sMask, sDelta = 46, 47
sTile, sRingX = 48, 49
sE48 = 50
sColA, sColQ, sRowX, sDq = 52, 53, 54, 55
vLane, vL16, vH, vR, vR2, vFlag = 1, 2, 3, 4, 5, 62
vTr0, vTr1 = 7, 8
vOffA, vOffA2, vOffQ = 9, 10, 11
vT = 12
vSt = 28
vOffQ2 = 40
vXk = 48
vOffX = 52
vZero = 54
WF = 64
XB = 96
XC = 112
RR = 192
ACC = 128

def pstamp(a, i):
    if FUSED and OPT.get("st", "2") in ("2", "4") and i != 0:
        return
    if OPT.get("st", "2") == "3" and i not in (0, 6):
        return
    a.stamp(i)

def mf(d, a, b):
    return f"v_mfma_f32_32x32x16_bf16 v[{d}:{d+15}], v[{a}:{a+3}], v[{b}:{b+3}], v[{d}:{d+15}]"

def wreadsA(slot, p):
    return [f"ds_read_b64_tr_b16 v[{WF+24*p+12*k+4*j+2*t}:{WF+24*p+12*k+4*j+2*t+1}], v{vTr0} offset:{slot*6144 + 3072*k + 64*j + 768*t}"
            for k in range(2) for j in range(3) for t in range(2)]

def wreadsB(slot, p):
    return [f"ds_read_b64_tr_b16 v[{WF+16*p+4*j+2*t}:{WF+16*p+4*j+2*t+1}], v{vTr0 if (j&1)==0 else vTr1} offset:{slot*8192 + (j>>1)*2048 + 512*t}"
            for j in range(4) for t in range(2)]

def dmaF(slot):
    g1 = [f"s_add_u32 m0, s{sRingA}, {slot*8192}",
          f"s_nop 0",
          f"buffer_load_dwordx4 v{vOffA}, s[{SWA}:{SWA+3}], s{sOffA} offen lds"]
    g2 = [f"buffer_load_dwordx4 v{vOffA2}, s[{SWA}:{SWA+3}], s{sOffA} offen offset:1024 lds",
          f"s_add_u32 s{sOffA}, s{sOffA}, {16*3584}"] + wrap(sOffA, 448 * 3584)
    return g1, g2

def dmaQ(slot):
    g1 = [f"s_add_u32 m0, s{sRingQ}, {slot*6144}",
          f"s_mov_b64 exec, s[{sE48}:{sE48+1}]",
          f"buffer_load_dwordx4 v{vOffQ}, s[{SWQ}:{SWQ+3}], s{sOffQ} offen lds",
          f"s_mov_b64 exec, -1"]
    g2 = [f"s_mov_b64 exec, s[{sE48}:{sE48+1}]",
          f"buffer_load_dwordx4 v{vOffQ2}, s[{SWQ}:{SWQ+3}], s{sOffQ} offen offset:768 lds",
          f"s_mov_b64 exec, -1",
          f"s_add_u32 s{sOffQ}, s{sOffQ}, {32*2688}"] + wrap(sOffQ, 448 * 2688)
    return g1, g2

sSM, sSG = 60, 62
sTab = 14
sXc, sRotA = 12, 13
ROT = OPT.get("rot", "5") != "0"

def wrap(reg, lim):
    return [f"s_cmp_ge_u32 s{reg}, {lim}", f"s_cselect_b32 s{sRotA}, {lim}, 0", f"s_sub_u32 s{reg}, s{reg}, s{sRotA}"] if ROT else []

def dmaX(q):
    x1 = [f"s_mov_b32 m0, s{sRingX}",
          f"s_add_u32 s{sRingX}, s{sRingX}, s{sSM+q}",
          f"buffer_load_dwordx4 v{vOffX}, s[{SX}:{SX+3}], s{sOffX} offen lds"]
    x2 = [f"buffer_load_dwordx4 v{vOffX+1}, s[{SX}:{SX+3}], s{sOffX} offen offset:1024 lds",
          f"s_add_u32 s{sOffX}, s{sOffX}, s{sSG+q}"]
    return x1, x2

def xwrap():
    if not ROT: return []
    return [f"s_add_u32 s{sXc}, s{sXc}, 128", f"s_cmp_eq_u32 s{sXc}, 896", f"s_cselect_b32 s{sXc}, 0, s{sXc}",
            f"s_cselect_b32 s{sT1}, 896, 0", f"s_sub_u32 s{sSG+1}, {(128-14336) & 0xffffffff}, s{sT1}"]

def foff(dst, ks):
    o = [f"s_add_u32 s{dst}, s{sColA}, {ks*16*3584}"]
    return o + wrap(dst, 448 * 3584)

def mmA(typ, p):
    out = []
    for k in range(2):
        for j in range(3):
            w, x = WF + 24 * p + 12 * k + 4 * j, XC + 8 * p + 4 * k
            out.append(mf(ACC + 16 * j, w, x) if typ[j] == "Q" else mf(ACC + 16 * j, x, w))
    return out

def mmB(p):
    return [mf(ACC + 64 * th + 16 * j, WF + 16 * p + 4 * j, XB + 8 * p + 4 * th) for j in range(4) for th in range(2)]

AXA = 188
AWA = 176
AXB = 28
AWB = 112

def call(a, cnt, lab, target):
    a(f"s_cmp_lg_u32 s{sCnt}, {cnt}")
    a(f"s_cbranch_scc1 {lab}")
    a(f"s_getpc_b64 s[{sT2}:{sT3}]")
    a(f"s_branch {target}")
    a.label(lab)

def ret(a):
    a(f"s_add_u32 s{sT2}, s{sT2}, 4")
    a(f"s_addc_u32 s{sT3}, s{sT3}, 0")
    a(f"s_setpc_b64 s[{sT2}:{sT3}]")

def loopA(a, typ):
    lab = f"P1_loopA_{typ}"
    a.label(lab)
    for q in range(2):
        p = q
        a("s_waitcnt vmcnt(12) lgkmcnt(0)")
        a("s_barrier")
        mm = mmA(typ, p)
        if q == 0:
            a(f"s_cmp_gt_u32 s{sCnt}, 4")
            a(f"s_cbranch_scc1 {lab}_n0")
            a(f"s_getpc_b64 s[{sT2}:{sT3}]")
            a(f"s_branch P1_side")
            a.label(f"{lab}_n0")
        if q == 0:
            tail = [f"s_cmp_eq_u32 s{sCnt}, 2", f"s_cselect_b32 s{sT1}, {(-5*16384) & 0xffffffff}, s{sRowX}",
                    f"v_add_u32 v{vXk}, s{sT1}, v{vXk}", f"v_add_u32 v{vXk+1}, s{sT1}, v{vXk+1}",
                    f"v_add_u32 v{vXk+2}, s{sT1}, v{vXk+2}", f"v_add_u32 v{vXk+3}, s{sT1}, v{vXk+3}",
                    f"v_add_u32 v{vTr0}, s{sDq}, v{vTr0}"] + xwrap()
        else:
            tail = [f"s_add_u32 s{sRingA}, s{sRingA}, s{sDelta}", f"s_add_u32 s{sRingQ}, s{sRingQ}, s{sDq}",
                    f"s_sub_u32 s{sDelta}, 0, s{sDelta}", f"s_sub_u32 s{sDq}, 0, s{sDq}",
                    f"s_sub_u32 s{sCnt}, s{sCnt}, 1", f"s_cmp_lg_u32 s{sCnt}, 0"]
        ks0 = 2 if q == 0 else 0
        rx = [f"ds_read_b128 v[{XC+8*(p^1)+4*k}:{XC+8*(p^1)+4*k+3}], v{vXk+ks0+k}" for k in range(2)]
        wr_ = wreadsA(1 - q, p ^ 1)
        rd = [rx[0]] + wr_[:6] + [rx[1]] + wr_[6:]
        f1, f2 = dmaF(q)
        q1, q2 = dmaQ(q)
        x1, x2 = dmaX(q)
        seq = f1 + rd[:3] + [mm[0]] + f2 + rd[3:6] + [mm[1]] + q1 + rd[6:9] + [mm[2]] + q2 + rd[9:12] + [mm[3]] + x1 + rd[12:] + [mm[4]] + x2 + tail + [mm[5]]
        for l in seq: a(l)
    a(f"s_cbranch_scc1 {lab}")
    a(f"s_getpc_b64 s[{sT2}:{sT3}]")
    a("s_branch P1_auxA")
    for j in range(3):
        w, x = AWA + 4 * j, AXA
        a(mf(ACC + 16 * j, w, x) if typ[j] == "Q" else mf(ACC + 16 * j, x, w))

def pair_dma(a, base, ks):
    a(f"s_add_u32 s{sRingX}, s{sColQ}, {base}")
    for l in foff(sOffX, ks): a(l)
    for q in range(2):
        for g in dmaX(q):
            for l in g: a(l)

BTAB = [6, 7, 6, 7, 6, 7, 6, 7, 6, 1, 2, 3, 8, 7, 7]
NBAR = int(OPT.get("nbar", "19"))
assert 18 <= NBAR <= 21

def loopB(a):
    lab = "P1_loopB"
    if OPT.get("bl_"):
        a(".p2alignl 6, 0xbf800000")
        for k in range(int(OPT.get("bl_")) - 1): a("s_nop 0")
    a.label(lab)
    for q in range(2):
        p = q
        a(f"s_bitcmp0_b32 s{sDq}, {q}")
        a(f"s_cbranch_scc1 {lab}_b{q}")
        a("s_barrier")
        a.label(f"{lab}_b{q}")
        mm = mmB(p)
        if q == 0:
            tail = [f"s_bitcmp1_b32 s{sCnt}, 0", f"s_cselect_b32 s{sT1}, 16384, 0",
                    f"s_cmp_eq_u32 s{sCnt}, 3", f"s_cselect_b32 s{sT1}, {(-5*16384) & 0xffffffff}, s{sT1}",
                    f"v_xor_b32 v{vXk}, 64, v{vXk}", f"v_add_u32 v{vXk}, s{sT1}, v{vXk}", f"v_xor_b32 v{vXk+1}, 32, v{vXk}",
                    f"s_lshr_b64 s[{sTab}:{sTab+1}], s[{sTab}:{sTab+1}], 4", f"s_and_b32 s{sT1}, s{sTab}, 15", f"s_lshl_b32 s{sT1}, s{sT1}, 14",
                    f"v_add_u32 v{vTr0}, s{sT1}, v{vOffA}", f"v_add_u32 v{vTr1}, s{sT1}, v{vOffA2}"]
        else:
            tail = [f"s_lshr_b32 s{sDq}, s{sDq}, 2", f"s_sub_u32 s{sCnt}, s{sCnt}, 1", f"s_cmp_lg_u32 s{sCnt}, 0"]
        xa = vXk + 1 if q == 0 else vXk
        rx = [f"ds_read_b128 v[{XB+8*(p^1)+4*th}:{XB+8*(p^1)+4*th+3}], v{xa} offset:{4096*th}" for th in range(2)]
        wr_ = wreadsB(1 - q, p ^ 1)
        rd = [rx[0]] + wr_[:2] + [rx[1]] + wr_[2:]
        nr = [2, 2, 2, 2, 2, 0, 0]
        for g in range(8):
            a(mm[g])
            if g == 0 and (q == 1 or OPT.get("s2", "1") == "1"):
                a(f"s_cmp_gt_u32 s{sCnt}, s{sColQ}")
                a(f"s_cbranch_scc1 {lab}_n{q}")
                a(f"s_getpc_b64 s[{sT2}:{sT3}]")
                a(f"s_branch P1_sideB" + ("" if q == 1 else "q"))
                a.label(f"{lab}_n{q}")
            if g < 7:
                for l in rd[:nr[g]]: a(l)
                rd = rd[nr[g]:]
            if g == 5:
                for l in tail[:len(tail)//2]: a(l)
            if g == 6:
                for l in tail[len(tail)//2:]: a(l)
        assert not rd
        a("s_waitcnt lgkmcnt(0)")
    a(f"s_cbranch_scc1 {lab}")
    if OPT.get("st") == "3": a.stamp(2)
    a.c("column-sum words still all-ones were not written yet: load again")
    a(f"s_mov_b32 s{sDq}, 0x2000")
    a.label("P1_bchk")
    a("s_waitcnt vmcnt(0) lgkmcnt(0)")
    a(f"v_max3_u32 v{vT+4}, v{AWB}, v{AWB+1}, v{AWB+2}")
    for i in range(3, 15, 2):
        a(f"v_max3_u32 v{vT+4}, v{vT+4}, v{AWB+i}, v{AWB+i+1}")
    a(f"v_max_u32 v{vT+4}, v{vT+4}, v{AWB+15}")
    a(f"v_cmp_eq_u32 vcc, -1, v{vT+4}")
    a("s_cbranch_vccz P1_bok")
    a(f"s_sub_u32 s{sDq}, s{sDq}, 1")
    a("s_cbranch_scc1 P1_bok")
    a("s_sleep 8")
    a(f"s_getpc_b64 s[{sT2}:{sT3}]")
    a("s_branch P1_auxB")
    a("s_branch P1_bchk")
    a.label("P1_bok")
    for j in range(4):
        for th in range(2):
            a(mf(ACC + 64 * th + 16 * j, AWB + 4 * j, AXB + 4 * th))

def waitgo(a, name, which, sleep):
    a(f"s_mov_b32 s{sT1}, 0x4000")
    a.label(f"{name}_l")
    a(f"v_readfirstlane_b32 s{sT0}, v{vFlag+which}")
    a(f"s_cmp_eq_u32 s{sT0}, 1")
    a(f"s_cbranch_scc1 {name}_ok")
    a(f"s_sub_u32 s{sT1}, s{sT1}, 1")
    a(f"s_cbranch_scc1 {name}_ok")
    a(f"buffer_load_dwordx2 v[{vFlag}:{vFlag+1}], v{vZero}, s[{SDBG}:{SDBG+3}], 0 offen offset:128 sc1")
    a(f"s_sleep {sleep}")
    a("s_waitcnt vmcnt(0)")
    a(f"s_branch {name}_l")
    a.label(f"{name}_ok")

def aux_blocks(a):
    a.c("A side jobs at the top of bodies 3..6 (cnt 4..1)")
    a.label("P1_side")
    a(f"s_cmp_lg_u32 s{sCnt}, 4")
    a("s_cbranch_scc1 P1_s3")
    a(f"s_lshl_b32 s{sRingX}, s{sTT}, 12")
    ret(a)
    a.label("P1_s3")
    a(f"s_cmp_lg_u32 s{sCnt}, 3")
    a("s_cbranch_scc1 P1_s2")
    a.c("the x stream now carries gate/up rows: k-steps 18,19 -> x slot 1")
    a(f"s_mov_b64 s[{SX}:{SX+1}], s[{SWA}:{SWA+1}]")
    a(f"s_mov_b32 s{SX+2}, s{SWA+2}")
    a(f"v_mov_b32 v{vOffX}, v{vOffA}")
    a(f"v_mov_b32 v{vOffX+1}, v{vOffA2}")
    a(f"s_mov_b32 s{sSM}, 8192")
    a(f"s_mov_b32 s{sSM+1}, 8192")
    a(f"s_mov_b32 s{sSG}, {16*3584}")
    a(f"s_mov_b32 s{sSG+1}, {16*3584}")
    a(f"s_add_u32 s{sRingX}, s{sColQ}, 16384")
    for l in foff(sOffX, 18): a(l)
    ret(a)
    a.label("P1_s2")
    a(f"s_cmp_lg_u32 s{sCnt}, 2")
    a("s_cbranch_scc1 P1_s1")
    a(f"s_mov_b32 s{sRingX}, 0x30000")
    a(f"s_mov_b32 s{sOffX}, 0x40000000")
    a(f"s_mov_b32 s{sRingQ}, 0x34000")
    a(f"s_mov_b32 s{SWQ+2}, 0")
    ret(a)
    a.label("P1_s1")
    a(f"s_add_u32 s{sRingX}, s{sColQ}, 32768")
    for l in foff(sOffX, 20): a(l)
    ret(a)
    a.label("P1_auxA")
    a(f"v_and_b32 v{vT}, 0x1f0, v{vL16}")
    a(f"s_lshl_b32 s{sT0}, s{sTT}, 9")
    a(f"s_add_u32 s{sT0}, s{sT0}, {AUX}")
    a(f"v_add_u32 v{vT+1}, s{sT0}, v{vT}")
    a(f"s_lshl_b32 s{sT0}, s{sTT}, 7")
    a(f"s_add_u32 s{sT0}, s{sT0}, {AUX+3584}")
    a(f"v_lshrrev_b32 v{vT+2}, 2, v{vT}")
    a(f"v_add_u32 v{vT+2}, s{sT0}, v{vT+2}")
    a(f"v_lshl_add_u32 v{vT+3}, v{vH}, 4, s{sT0}")
    a(f"v_add_u32 v{vT}, {AUX+2048}, v{vT}")
    a(f"v_mov_b64 v[{AXA}:{AXA+1}], 0")
    a(f"v_mov_b64 v[{AXA+2}:{AXA+3}], 0")
    a("s_waitcnt vmcnt(12) lgkmcnt(0)")
    a("s_barrier")
    pair_dma(a, QR, 24)
    a(f"v_mov_b32 v{vT+4}, {LDS_P1+36}")
    a(f"s_mov_b32 s{sT1}, 0x100000")
    a.label("P1_aw")
    a(f"ds_read_b32 v{vT+5}, v{vT+4}")
    a("s_waitcnt lgkmcnt(0)")
    a(f"v_readfirstlane_b32 s{sT0}, v{vT+5}")
    a(f"s_sub_u32 s{sT1}, s{sT1}, 1")
    a(f"s_cselect_b32 s{sT0}, 1, s{sT0}")
    a(f"s_cmp_eq_u32 s{sT0}, 1")
    a("s_cbranch_scc1 P1_aw_ok")
    a("s_sleep 2")
    a("s_branch P1_aw")
    a.label("P1_aw_ok")
    a("s_mov_b32 exec_hi, 0")
    a(f"ds_read_b128 v[{AXA}:{AXA+3}], v{vT+1}")
    a("s_mov_b32 exec_hi, -1")
    for j in range(3):
        a(f"ds_read_b128 v[{AWA+4*j}:{AWA+4*j+3}], v{vT} offset:{512*j}")
    a(f"ds_read_b32 v{vR}, v{vT+2}")
    for aa in range(4):
        a(f"ds_read_b128 v[{RR+4*aa}:{RR+4*aa+3}], v{vT+3} offset:{32*aa}")
    a("s_waitcnt lgkmcnt(0)")
    ret(a)
    a.c("B side jobs. wave 4: wait for the helpers' start flag, then fetch their operands until all words are written; put them into LDS")
    AL = 28
    SB = int(OPT.get('sb', '4'))
    a.label("P1_sideBq")
    a(f"s_cmp_le_u32 s{sCnt}, 8")
    a("s_cbranch_scc1 P1_sbr")
    a.label("P1_sideB")
    a(f"s_cmp_le_u32 s{sCnt}, {SB}")
    a("s_cbranch_scc1 P1_auxB")
    a(f"s_movk_i32 s{sT1}, 0x2000")
    a.label("P1_sb0")
    a(f"s_cmp_lg_u32 s{sCnt}, 8")
    a("s_cbranch_scc1 P1_sbn")
    a("s_waitcnt vmcnt(0)")
    a.label("P1_sbn")
    a(f"s_getreg_b32 s{sT0}, hwreg(HW_REG_IB_STS)")
    a(f"s_and_b32 s{sT0}, s{sT0}, 0x00c0000f")
    a("s_cbranch_scc1 P1_sbr")
    a(f"v_readfirstlane_b32 s{sT0}, v{vFlag}")
    a(f"s_cmp_eq_u32 s{sT0}, 1")
    a("s_cbranch_scc1 P1_sbd")
    a(f"buffer_load_dwordx2 v[{vFlag}:{vFlag+1}], v{vZero}, s[{SDBG}:{SDBG+3}], 0 offen offset:128 sc1")
    a.label("P1_sba")
    a(f"s_cmp_lg_u32 s{sCnt}, 8")
    a("s_cbranch_scc1 P1_sbr")
    a(f"s_sub_u32 s{sT1}, s{sT1}, 1")
    a("s_cbranch_scc0 P1_sb0")
    a("s_branch P1_sbw")
    a.label("P1_sbr")
    ret(a)
    a.label("P1_sbd")
    a(f"v_max3_u32 v{vT+4}, v{AL}, v{AL+1}, v{AL+2}")
    for i in range(3, 15, 2):
        a(f"v_max3_u32 v{vT+4}, v{vT+4}, v{AL+i}, v{AL+i+1}")
    a(f"v_max_u32 v{vT+4}, v{vT+4}, v{AL+15}")
    a(f"v_cmp_eq_u32 vcc, -1, v{vT+4}")
    a("s_cbranch_vccz P1_sbw")
    a(f"s_lshl_b32 s{sT0}, s{sRB}, 11")
    a(f"s_add_u32 s{sT0}, s{sT0}, {WS_AX}")
    a(f"buffer_load_dwordx4 v[{AL}:{AL+3}], v{vL16}, s[{SWS}:{SWS+3}], s{sT0} offen sc1")
    a(f"buffer_load_dwordx4 v[{AL+4}:{AL+7}], v{vL16}, s[{SWS}:{SWS+3}], s{sT0} offen offset:1024 sc1")
    a(f"s_mul_i32 s{sT0}, s{sCG}, {96*16}")
    a(f"s_add_u32 s{sT0}, s{sT0}, {WS_AW}")
    a(f"buffer_load_dwordx4 v[{AL+8}:{AL+11}], v{vL16}, s[{SWS}:{SWS+3}], s{sT0} offen sc1")
    a("s_mov_b32 exec_hi, 0")
    a(f"buffer_load_dwordx4 v[{AL+12}:{AL+15}], v{vL16}, s[{SWS}:{SWS+3}], s{sT0} offen offset:1024 sc1")
    a(f"s_lshl_b32 s{sT0}, s{sRB}, 9")
    a(f"s_add_u32 s{sT0}, s{sT0}, {WS_AR-512}")
    a("s_not_b64 exec, exec")
    a(f"buffer_load_dwordx4 v[{AL+12}:{AL+15}], v{vL16}, s[{SWS}:{SWS+3}], s{sT0} offen sc1")
    a("s_mov_b64 exec, -1")
    a("s_branch P1_sba")
    a.label("P1_sbw")
    if OPT.get("st") == "3": a("s_memtime s[66:67]")
    a(f"v_add_u32 v{vT+4}, {AUX}, v{vL16}")
    for k in range(4):
        a(f"ds_write_b128 v{vT+4}, v[{AL+4*k}:{AL+4*k+3}] offset:{1024*k}")
    a(f"v_mov_b32 v{vT+4}, {LDS_P1+36}")
    a(f"v_mov_b32 v{vT+5}, 1")
    a(f"ds_write_b32 v{vT+4}, v{vT+5}")
    a(f"s_movk_i32 s{sColQ}, {SB}")
    ret(a)
    a.label("P1_auxB")
    a(f"s_mov_b32 s{sColQ}, 0")
    a(f"v_and_b32 v{vT}, 0x1f0, v{vL16}")
    a(f"s_lshl_b32 s{sT0}, s{sCG}, 1")
    a(f"s_lshr_b32 s{sT1}, s{sTT}, 1")
    a(f"s_add_u32 s{sT0}, s{sT0}, s{sT1}")
    a(f"s_lshl_b32 s{sT0}, s{sT0}, 10")
    a(f"s_add_u32 s{sT0}, s{sT0}, {WS_AW+AW_G}")
    a(f"s_add_u32 s{sT1}, s{sT0}, {AW_U-AW_G}")
    for j in range(4):
        a(f"buffer_load_dwordx4 v[{AWB+4*j}:{AWB+4*j+3}], v{vT}, s[{SWS}:{SWS+3}], s{sT0 if j < 2 else sT1} offen offset:{512*(j&1)} sc1")
    a(f"s_and_b32 s{sT1}, s{sTT}, 1")
    a(f"s_lshl_b32 s{sT0}, s{sT1}, 10")
    a(f"s_add_u32 s{sT0}, s{sT0}, {AUX}")
    a(f"v_add_u32 v{vT+1}, s{sT0}, v{vT}")
    a(f"s_lshl_b32 s{sT0}, s{sT1}, 8")
    a(f"s_add_u32 s{sT0}, s{sT0}, {AUX+3584}")
    a(f"v_lshrrev_b32 v{vT+2}, 2, v{vT}")
    a(f"v_add_u32 v{vT+2}, s{sT0}, v{vT+2}")
    for k in range(0, 8, 2):
        a(f"v_mov_b64 v[{AXB+k}:{AXB+k+1}], 0")
    a(f"ds_read_b32 v{vR}, v{vT+2}")
    a(f"ds_read_b32 v{vR2}, v{vT+2} offset:128")
    a("s_mov_b32 exec_hi, 0")
    for th in range(2):
        a(f"ds_read_b128 v[{AXB+4*th}:{AXB+4*th+3}], v{vT+1} offset:{512*th}")
    a("s_mov_b32 exec_hi, -1")
    ret(a)

def epi_B(a):
    c0 = -2.0 * math.sqrt(2.0 / math.pi) * math.log2(math.e)
    c1 = c0 * 0.044715
    a.c("epilogue B: gelu(g)*u")
    if OPT.get("gp", "2") != "0": a(f"s_setprio {OPT.get('gp', '2')}")
    a(f"s_and_b32 s{sT1}, s{sTT}, 1")
    a(f"s_lshl_b32 s{sT1}, s{sT1}, 1")
    a(f"s_lshl_b32 s{sT2}, s{sRB}, 2")
    a(f"s_add_u32 s{sT1}, s{sT1}, s{sT2}")
    a(f"s_mul_i32 s{sT1}, s{sT1}, 112")
    a(f"s_lshl_b32 s{sT2}, s{sCG}, 3")
    a(f"s_add_u32 s{sT1}, s{sT1}, s{sT2}")
    a(f"s_lshr_b32 s{sT2}, s{sTT}, 1")
    a(f"s_lshl_b32 s{sT2}, s{sT2}, 2")
    a(f"s_add_u32 s{sT1}, s{sT1}, s{sT2}")
    a(f"s_lshl_b32 s{sT1}, s{sT1}, 10")
    a(f"s_add_u32 s{sT1}, s{sT1}, {WS_H}")
    a(f"s_add_u32 s{sT2}, s{sT1}, {112*1024}")
    KC = 28
    for th in range(2):
        k0, k1, ir2 = KC + 6 * th, KC + 6 * th + 2, KC + 6 * th + 4
        r = vR if th == 0 else vR2
        a(f"v_mul_f32 v{ir2}, v{r}, v{r}")
        a(f"v_mul_f32 v{k0}, {fhex(c0)}, v{r}")
        a(f"v_mul_f32 v{k1}, v{ir2}, v{r}")
        a(f"v_mul_f32 v{k1}, {fhex(c1)}, v{k1}")
        a(f"v_rcp_f32 v{ir2}, v{ir2}")
        a(f"v_mov_b32 v{k0+1}, v{k0}")
        a(f"v_mov_b32 v{k1+1}, v{k1}")
        a(f"v_mov_b32 v{ir2+1}, v{ir2}")
    T = vT
    held = []
    pr = lambda r: f"v[{r}:{r+1}]"
    for th in range(2):
        k0, k1, ir2 = KC + 6 * th, KC + 6 * th + 2, KC + 6 * th + 4
        for p in range(2):
            G = ACC + 64 * th + 16 * p
            U = G + 32
            out = WF + 8 * (2 * th + p)
            for i0 in range(0, 16, 8):
                for k in range(0, 8, 2): a(f"v_pk_mul_f32 {pr(T+k)}, {pr(G+i0+k)}, {pr(G+i0+k)}")
                for k in range(0, 8, 2): a(f"v_pk_fma_f32 {pr(T+k)}, {pr(T+k)}, {pr(k1)}, {pr(k0)}")
                for k in range(0, 8, 2): a(f"v_pk_mul_f32 {pr(T+k)}, {pr(T+k)}, {pr(G+i0+k)}")
                for k in range(8): a(f"v_exp_f32 v{T+k}, v{T+k}")
                for k in range(0, 8, 2): a(f"v_pk_mul_f32 {pr(U+i0+k)}, {pr(U+i0+k)}, {pr(G+i0+k)}")
                for k in range(0, 8, 2): a(f"v_pk_fma_f32 {pr(T+k)}, {pr(T+k)}, {pr(ir2)}, {pr(ir2)}")
                for k in range(8): a(f"v_rcp_f32 v{T+k}, v{T+k}")
                a("s_nop 0")
                for k in range(0, 8, 2): a(f"v_pk_mul_f32 {pr(U+i0+k)}, {pr(U+i0+k)}, {pr(T+k)}")
                for k in range(4): a(f"v_cvt_pk_bf16_f32 v{out+i0//2+k}, v{U+i0+2*k}, v{U+i0+2*k+1}")
                s = i0 // 8
                so = sT1 if th == 0 else sT2
                st_ = f"buffer_store_dwordx4 v[{out+4*s}:{out+4*s+3}], v{vL16}, s[{SWS}:{SWS+3}], s{so} offen offset:{(2*p+s)*1024}" + ("" if OPT.get("hwb") == "1" else " sc1")
                if OPT.get("hold", "1") == "1": held.append(st_)
                else: a(st_)
    if held:
        a.c("the h stores wait until the attention waves have their first loads out")
        a(f"s_setprio {OPT.get('bp', '0')}")
        if OPT.get("st") == "3": a.stamp(4)
        a(f"v_mov_b32 v{vT+8}, {LDS_P1+40}")
        a(f"s_mov_b32 s{sT3}, 0x100000")
        a.label("P1_hw")
        a(f"ds_read_b32 v{vT+9}, v{vT+8}")
        a("s_waitcnt lgkmcnt(0)")
        a(f"v_readfirstlane_b32 s{sT0}, v{vT+9}")
        a(f"s_sub_u32 s{sT3}, s{sT3}, 1")
        a(f"s_cselect_b32 s{sT0}, 4, s{sT0}")
        a(f"s_cmp_ge_u32 s{sT0}, 4")
        a("s_cbranch_scc1 P1_hw_ok")
        a("s_sleep 2")
        a("s_branch P1_hw")
        a.label("P1_hw_ok")
        if OPT.get("st") == "3": a.stamp(5)
        for k, l in enumerate(held):
            a(l)
            if OPT.get("pace", "0") != "0" and k < 7: a(f"s_sleep {OPT.get('pace')}")

def STF():
    return SC1 if OPT.get("sc1", "1") == "1" else ""

def epi_A(a):
    a.c("epilogue A")
    a(f"s_mul_i32 s{sT0}, s{sCG}, 3")
    for j in range(3):
        a(f"s_cmp_lt_u32 s{sT0}, {14-j}")
        a(f"s_cselect_b32 s{sT1}, {fhex(QSCALE)}, 1.0")
        a(f"v_mul_f32 v{vT+6+2*j}, s{sT1}, v{vR}")
        a(f"v_mul_f32 v{vT+7+2*j}, s{sT1}, v{vR}")
    P0, P1 = vT + 4, vT + 5
    a(f"v_mov_b32 v{P0}, 0x3f803f80")
    a(f"v_mov_b32 v{P1}, 0x00003f80")
    a(f"s_mul_i32 s{sT2}, s{sTile}, {VT}")
    a(f"s_lshl_b32 s{sT3}, s{sT0}, 9")
    a(f"s_add_u32 s{sT2}, s{sT2}, s{sT3}")
    a(f"s_add_u32 s{sT2}, s{sT2}, {WS_V - 28*512}")
    a(f"s_add_u32 s{sT3}, s{sT2}, {VT//2}")
    for j in range(3):
        A = ACC + 16 * j
        out = WF + 12 * j
        a(f"s_cmp_ge_u32 s{sT0}, {28-j}")
        a(f"s_cbranch_scc1 P1_eV{j}")
        for i in range(0, 16, 2):
            a(f"v_pk_mul_f32 v[{A+i}:{A+i+1}], v[{A+i}:{A+i+1}], v[{vT+6+2*j}:{vT+7+2*j}]")
        for i in range(8):
            a(f"v_cvt_pk_bf16_f32 v{out+6*(i>>2)+(i&3)}, v{A+2*i}, v{A+2*i+1}")
        for pp in range(2):
            a(f"v_mov_b64 v[{out+6*pp+4}:{out+6*pp+5}], v[{P0}:{P1}]")
            a(f"v_cmp_gt_i32 s[{4+2*pp}:{5+2*pp}], 0, v{vSt+6+2*j+pp}")
        for pp in range(2):
            o = out + 6 * pp
            a(f"v_permlane32_swap_b32 v{o}, v{o+2}")
            a(f"v_permlane32_swap_b32 v{o+1}, v{o+3}")
        if j == 0: bar15(a)
        for pp in range(2):
            o = out + 6 * pp
            a(f"s_cmp_eq_u64 s[{4+2*pp}:{5+2*pp}], -1")
            a(f"s_cbranch_scc1 P1_eS{j}{pp}")
            a(f"buffer_store_dwordx4 v[{o+2}:{o+5}], v{vSt+6+2*j+pp}, s[{SWS}:{SWS+3}], 0 offen{STF()}")
            a(f"s_not_b64 exec, s[{4+2*pp}:{5+2*pp}]")
            a("s_nop 0")
            a(f"v_mov_b64 v[{o+2}:{o+3}], v[{P0}:{P1}]")
            a("s_mov_b64 exec, -1")
            a.label(f"P1_eS{j}{pp}")
            a(f"buffer_store_dwordx4 v[{o}:{o+3}], v{vSt+2*j+pp}, s[{SWS}:{SWS+3}], 0 offen{STF()}")
        if j == 1: a("s_waitcnt vmcnt(4)")
        a(f"s_branch P1_eN{j}")
        a.label(f"P1_eV{j}")
        for i in range(0, 16, 2):
            a(f"v_pk_mul_f32 v[{A+i}:{A+i+1}], v[{A+i}:{A+i+1}], v[{RR+i}:{RR+i+1}]")
        for i in range(8):
            a(f"v_cvt_pk_bf16_f32 v{out+i}, v{A+2*i}, v{A+2*i+1}")
        if j == 0: bar15(a)
        for s in range(2):
            a(f"buffer_store_dwordx4 v[{out+4*s}:{out+4*s+3}], v{vT+12}, s[{SWS}:{SWS+3}], s{sT2+s} offen offset:{512*j}{STF()}")
        if j == 1: a("s_waitcnt vmcnt(4)")
        a.label(f"P1_eN{j}")
        if j == 1:
            if OPT.get("st") == "3": a.stamp(4)
            a("s_barrier")
            if OPT.get("st") == "3": a.stamp(5)

def bar15(a):
    a("s_waitcnt vmcnt(4)")
    if OPT.get("st") == "3": a.stamp(1)
    a("s_barrier")
    pair_dma(a, 3 * 16384, 22)
    pair_dma(a, FR + 16384, 26)
    if OPT.get("st") == "3": a.stamp(2)

def split3(a, src, t, o1, o2, o3):
    a(f"v_and_b32 v{o1}, s{sMask}, v{src}")
    a(f"v_sub_f32 v{t}, v{src}, v{o1}")
    a(f"v_and_b32 v{o2}, s{sMask}, v{t}")
    a(f"v_sub_f32 v{t}, v{t}, v{o2}")
    a(f"v_and_b32 v{o3}, s{sMask}, v{t}")

def helper(a):
    sHid, sU, sPass = sCnt, sRingA, sRingQ
    a.label("P1_help")
    a(f"s_lshl_b32 s{sHid}, s{sRB}, 1")
    a(f"s_add_u32 s{sHid}, s{sHid}, s{sCG}")
    a(f"s_sub_u32 s{sHid}, s{sHid}, 14")
    a.c("wave 0: clear this launch's flags, mark everything this helper will publish as not written")
    a(f"v_mov_b64 v[92:93], -1")
    a(f"v_mov_b64 v[94:95], -1")
    a(f"s_lshl_b32 s{sT0}, s{sW}, 5")
    a(f"s_add_u32 s{sT0}, s{sT0}, s{sHid}")
    a(f"s_cmp_lt_u32 s{sT0}, 77")
    a(f"s_cselect_b32 s{sT1}, {WS_AW}, -1")
    a(f"s_cselect_b32 s{sT0}, s{sT0}, 0")
    a(f"s_lshl_b32 s{sT0}, s{sT0}, 10")
    a(f"s_add_u32 s{sOffQ}, s{sT0}, s{sT1}")
    a(f"s_cmp_lg_u32 s{sW}, 0")
    a("s_cbranch_scc1 P1_hc")
    a(f"buffer_store_dwordx4 v[92:95], v{vL16}, s[{SWS}:{SWS+3}], s{sOffQ} offen sc1")
    a(f"s_add_u32 s{sT0}, s{sOffQ}, 32768")
    a(f"buffer_store_dwordx4 v[92:95], v{vL16}, s[{SWS}:{SWS+3}], s{sT0} offen sc1")
    a(f"s_add_u32 s{sT0}, s{sOffQ}, 65536")
    a(f"buffer_store_dwordx4 v[92:95], v{vL16}, s[{SWS}:{SWS+3}], s{sT0} offen sc1")
    a(f"s_lshl_b32 s{sT0}, s{sHid}, 10")
    a(f"s_add_u32 s{sT0}, s{sT0}, {WS_AX}")
    a(f"buffer_store_dwordx4 v[92:95], v{vL16}, s[{SWS}:{SWS+3}], s{sT0} offen sc1")
    a(f"s_lshl_b32 s{sT0}, s{sHid}, 8")
    a(f"s_add_u32 s{sT0}, s{sT0}, {WS_AR}")
    a("s_mov_b64 exec, 0xffff")
    a(f"buffer_store_dwordx4 v[92:95], v{vL16}, s[{SWS}:{SWS+3}], s{sT0} offen sc1")
    a(f"s_mul_i32 s{sT0}, s{sHid}, 3072")
    a(f"s_add_u32 s{sT0}, s{sT0}, {WS_FLAG}")
    a(f"s_mov_b64 exec, s[{sE48}:{sE48+1}]")
    a(f"v_lshrrev_b32 v60, 1, v{vLane}")
    a(f"v_mul_u32_u24 v60, 96, v60")
    a(f"v_add_u32 v60, v60, v{vL16}")
    a(f"buffer_store_dwordx4 v[{vT+8}:{vT+11}], v60, s[{SWS}:{SWS+3}], s{sT0} offen sc1")
    a(f"v_mov_b32 v61, 1")
    a("s_mov_b64 exec, 1")
    a("s_waitcnt vmcnt(0)")
    a(f"buffer_atomic_add v61, v{vZero}, s[{SDBG}:{SDBG+3}], 0 offen sc0 sc1")
    a("s_waitcnt vmcnt(0)")
    a(f"v_readfirstlane_b32 s{sT0}, v61")
    a(f"v_mov_b32 v61, 1")
    a(f"s_cmp_lg_u32 s{sT0}, 31")
    a("s_cbranch_scc1 P1_hg")
    a(f"buffer_store_dword v61, v{vZero}, s[{SDBG}:{SDBG+3}], 0 offen offset:128 sc1")
    a.label("P1_hg")
    a("s_mov_b64 exec, -1")
    a.label("P1_hc")
    XD = 64
    WD = 128
    a(f"v_mul_u32_u24 v{vT+1}, 896, v{vT+4}")
    a(f"v_lshl_add_u32 v{vT+3}, v{vT+5}, 4, v{vT+1}")
    a(f"s_lshl_b32 s{sTile}, s{sHid}, 3")
    a(f"s_add_u32 s{sTile}, s{sTile}, s{sW}")
    a(f"s_mul_i32 s{sRowX}, s{sTile}, {8*896}")
    for i in range(7):
        a(f"buffer_load_dwordx4 v[{XD+4*i}:{XD+4*i+3}], v{vT+3}, s[{SX}:{SX+3}], s{sRowX} offen offset:{128*i}")
    a.c("unit loads: wave -> 56 rows, lane -> (row lane>>3, chunk lane&7)")
    a(f"s_mov_b32 s{SWA+3}, 0x20000")
    def uload(u):
        a(f"s_add_u32 s{sU}, s{sHid}, {32*u}")
        if u == 0:
            a(f"s_cmp_lt_u32 s{sU}, 21")
            a(f"s_cselect_b32 s{SWA}, s6, s8")
            a(f"s_cselect_b32 s{SWA+1}, s7, s9")
            a(f"s_cselect_b32 s{sT0}, 0, 21")
            a(f"s_movk_i32 s{sT1}, 3584")
            a(f"s_cselect_b32 s{sT1}, 2688, s{sT1}")
        elif u == 1:
            a(f"s_cmp_lt_u32 s{sU}, 49")
            a(f"s_cselect_b32 s{SWA}, s8, s10")
            a(f"s_cselect_b32 s{SWA+1}, s9, s11")
            a(f"s_cselect_b32 s{sT0}, 21, 49")
            a(f"s_movk_i32 s{sT1}, 3584")
        else:
            a(f"s_mov_b64 s[{SWA}:{SWA+1}], s[10:11]")
            a(f"s_movk_i32 s{sT0}, 49")
        a(f"s_and_b32 s{SWA+1}, s{SWA+1}, 0xffff")
        if u < 2:
            a(f"s_mul_i32 s{SWA+2}, s{sT1}, 448")
            a(f"v_mul_u32_u24 v51, s{sT1}, v{vT+4}")
            a(f"v_lshl_add_u32 v51, v{vT+5}, 4, v51")
            if u == 0:
                a(f"s_mul_i32 s{sT3}, s{sW}, 56")
            else:
                a(f"s_sub_u32 s{sT3}, s{sW}, 1")
                a(f"s_lshl_b32 s{sT3}, s{sT3}, 6")
            a(f"s_mul_i32 s{sT3}, s{sT3}, s{sT1}")
            a(f"s_lshl_b32 s{sT2}, s{sT1}, 3")
        else:
            a(f"s_cmp_lt_u32 s{sU}, 77")
            a(f"s_cselect_b32 s{SWA+2}, s{SWA+2}, 0")
        a(f"s_sub_u32 s{sT0}, s{sU}, s{sT0}")
        a(f"s_lshl_b32 s{sT0}, s{sT0}, 7")
        a(f"s_add_u32 s{sOffA}, s{sT3}, s{sT0}")
        n = 7 if u == 0 else 8
        for i in range(n):
            r = WD + 32 * u + 4 * i
            a(f"buffer_load_dwordx4 v[{r}:{r+3}], v51, s[{SWA}:{SWA+3}], s{sOffA} offen")
            if i < n - 1: a(f"s_add_u32 s{sOffA}, s{sOffA}, s{sT2}")
    uload(0)
    HP = OPT.get("hp", "0") != "0"
    if HP:
        a.c("touch a slice of w_gate / w_up early")
        a(f"s_mul_i32 s{sT0}, s{sTile}, 6272")
        a(f"v_lshlrev_b32 v59, 7, v{vLane}")
        a(f"s_mov_b32 s{SWQ+2}, {448*3584}")
        a("s_mov_b32 exec_hi, 0x1ffff")
        for p_ in (8, 10):
            a(f"s_mov_b32 s{SWQ}, s{p_}")
            a(f"s_and_b32 s{SWQ+1}, s{p_+1}, 0xffff")
            a(f"buffer_load_dword v55, v59, s[{SWQ}:{SWQ+3}], s{sT0} offen")
        a("s_mov_b32 exec_hi, -1")
    a(f"v_mov_b32 v{vT+2}, 0x3f803f80")
    a(f"v_mov_b32 v43, 1.0")
    pstamp(a, 1)
    a.c("statistics (two pass)")
    S0, S1, ONE0, ONE1, D0, D1 = 40, 41, 42, 43, 44, 45
    a(f"v_mov_b64 v[{S0}:{S1}], 0")
    a(f"v_mov_b32 v{ONE0}, 0x00003f80")
    a(f"s_waitcnt vmcnt({9 if HP else 7})")
    for i in range(28):
        a(f"v_dot2c_f32_bf16 v{S0+(i&1)}, v{XD+i}, v{vT+2}")
    def red8(r):
        a("s_nop 2")
        a(f"v_add_f32 v{r}, v{S0}, v{S1}")
        a("s_nop 1")
        a(f"v_add_f32_dpp v{r}, v{r}, v{r} quad_perm:[1,0,3,2] row_mask:0xf bank_mask:0xf")
        a("s_nop 1")
        a(f"v_add_f32_dpp v{r}, v{r}, v{r} quad_perm:[2,3,0,1] row_mask:0xf bank_mask:0xf")
        a("s_nop 1")
        a(f"v_add_f32_dpp v{r}, v{r}, v{r} row_half_mirror row_mask:0xf bank_mask:0xf")
    NM = 46
    red8(NM)
    a(f"v_mul_f32 v{NM}, {fhex(-1.0/448)}, v{NM}")
    a(f"v_mov_b64 v[{S0}:{S1}], 0")
    DD = 96
    for i0 in range(0, 28, 4):
        for k in range(4):
            a(f"v_dot2_f32_bf16 v{DD+2*k}, v{XD+i0+k}, v{ONE0}, v{NM}")
            a(f"v_dot2_f32_bf16 v{DD+2*k+1}, v{XD+i0+k}, v{ONE1}, v{NM}")
        a("s_nop 1")
        for k in range(8):
            a(f"v_fmac_f32 v{S0+(k&1)}, v{DD+k}, v{DD+k}")
    RS = 47
    red8(RS)
    a(f"v_mov_b32 v{D0}, {fhex(1e-5)}")
    a(f"v_fmac_f32 v{D0}, {fhex(1.0/448)}, v{RS}")
    a(f"v_rsq_f32 v{RS}, v{D0}")
    m1, m2, m3, O = 48, 49, 50, 56
    split3(a, NM, D0, m1, m2, m3)
    a(f"v_lshrrev_b32 v{D0}, 16, v{m1}")
    a(f"v_lshrrev_b32 v{D1}, 16, v{m2}")
    a(f"v_or_b32 v{O}, v{D0}, v{m1}")
    a(f"v_or_b32 v{O+1}, v{D1}, v{m1}")
    a(f"v_or_b32 v{O+2}, v{D1}, v{m3}")
    a(f"v_or_b32 v{O+3}, v{D1}, v{m3}")
    a(f"v_lshlrev_b32 v{D0}, 4, v{vT+4}")
    a(f"v_lshlrev_b32 v{D1}, 2, v{vT+4}")
    a(f"s_lshl_b32 s{sRowX}, s{sTile}, 7")
    a(f"s_add_u32 s{sRowX}, s{sRowX}, {WS_AX}")
    a(f"s_lshl_b32 s{sColQ}, s{sTile}, 5")
    a(f"s_add_u32 s{sColQ}, s{sColQ}, {WS_AR}")
    a("s_barrier")
    a("s_mov_b32 exec_lo, 0x01010101")
    a("s_mov_b32 exec_hi, 0x01010101")
    a(f"buffer_store_dwordx4 v[{O}:{O+3}], v{D0}, s[{SWS}:{SWS+3}], s{sRowX} offen sc1")
    a(f"buffer_store_dword v{RS}, v{D1}, s[{SWS}:{SWS+3}], s{sColQ} offen sc1")
    a("s_mov_b64 exec, -1")
    pstamp(a, 2)
    a.c("column sums: per wave partials [unit][wave*8 + row lane][64] in LDS (row pitch 272B)")
    C = 64
    a(f"s_mul_i32 s{sT0}, s{sW}, {8*272}")
    a(f"v_mul_u32_u24 v{vT+6}, 272, v{vT+4}")
    a(f"v_lshl_add_u32 v{vT+6}, v{vT+5}, 5, v{vT+6}")
    a(f"v_add_u32 v{vT+6}, s{sT0}, v{vT+6}")
    a(f"v_lshl_add_u32 v{vT+7}, v{vLane}, 2, s{sT0}")
    def usum(u, wait):
        for k in range(0, 8, 2): a(f"v_mov_b64 v[{C+k}:{C+k+1}], 0")
        a(f"s_waitcnt vmcnt({wait})")
        for i in range(7 if u == 0 else 8):
            for k in range(4):
                a(f"v_dot2c_f32_bf16 v{C+2*k}, v{WD+32*u+4*i+k}, v{ONE0}")
                a(f"v_dot2c_f32_bf16 v{C+2*k+1}, v{WD+32*u+4*i+k}, v{ONE1}")
        a("s_nop 2")
        a(f"ds_write_b128 v{vT+6}, v[{C}:{C+3}]")
        a(f"ds_write_b128 v{vT+6}, v[{C+4}:{C+7}] offset:16")
        a("s_waitcnt lgkmcnt(0)")
        for k in range(4):
            a(f"ds_read2_b32 v[{C+8+2*k}:{C+9+2*k}], v{vT+7} offset0:{136*(k&1)} offset1:{136*(k&1)+68}" if k < 2 else
              f"ds_read2_b32 v[{C+8+2*k}:{C+9+2*k}], v{vT+1} offset0:{136*(k&1)} offset1:{136*(k&1)+68}")
        a("s_waitcnt lgkmcnt(0)")
        for k in range(4): a(f"v_add_f32 v{C+8+k}, v{C+8+k}, v{C+12+k}")
        a(f"v_add_f32 v{C+8}, v{C+8}, v{C+10}")
        a(f"v_add_f32 v{C+9}, v{C+9}, v{C+11}")
        a(f"v_add_f32 v{C+8}, v{C+8}, v{C+9}")
        a(f"ds_write_b32 v{vT+3}, v{C+8} offset:{32768 + 2048*u}")
    a(f"v_add_u32 v{vT+1}, {4*272}, v{vT+7}")
    a(f"v_lshlrev_b32 v{vT+3}, 2, v0")
    def final(name, lo, hi, ubase):
        a("s_waitcnt lgkmcnt(0)")
        a("s_barrier")
        a(f"s_sub_u32 s{sT0}, s{sW}, {lo}")
        a(f"s_cmp_ge_u32 s{sT0}, {hi-lo}")
        a(f"s_cbranch_scc1 {name}_s")
        a(f"s_lshl_b32 s{sT0}, s{sW}, 11")
        a(f"v_lshl_add_u32 v{D1}, v{vLane}, 2, s{sT0}")
        for k in range(4):
            a(f"ds_read2st64_b32 v[{C+8+2*k}:{C+9+2*k}], v{D1} offset0:{128+8*ubase+2*k} offset1:{128+8*ubase+2*k+1}")
        a("s_waitcnt lgkmcnt(0)")
        for k in range(4): a(f"v_add_f32 v{C+8+k}, v{C+8+k}, v{C+12+k}")
        a(f"v_add_f32 v{C+8}, v{C+8}, v{C+10}")
        a(f"v_add_f32 v{C+9}, v{C+9}, v{C+11}")
        a(f"v_add_f32 v{C+8}, v{C+8}, v{C+9}")
        split3(a, C + 8, D0, 84, 85, 86)
        for k in range(3):
            a(f"v_lshrrev_b32 v{87+k}, 16, v{84+k}")
        a(f"v_or_b32 v92, v87, v85")
        a(f"v_or_b32 v93, v87, v86")
        a(f"v_or_b32 v94, v88, v84")
        a(f"v_or_b32 v95, v89, v85")
        a(f"buffer_store_dwordx4 v[92:95], v{vL16}, s[{SWS}:{SWS+3}], s{sOffQ} offen sc1")
        a.label(f"{name}_s")
    def sig(name, cnt_off, go_off, bar=True):
        if bar:
            a("s_barrier")
            a(f"s_cmp_lg_u32 s{sW}, 7")
            a(f"s_cbranch_scc1 {name}_e")
        a(f"v_mov_b32 v{D0}, 1")
        a("s_mov_b64 exec, 1")
        a(f"buffer_atomic_add v{D0}, v{vZero}, s[{SDBG}:{SDBG+3}], 0 offen offset:{cnt_off} sc0 sc1")
        a("s_waitcnt vmcnt(0)")
        a(f"v_readfirstlane_b32 s{sT0}, v{D0}")
        a(f"v_mov_b32 v{D0}, 1")
        a(f"s_cmp_lg_u32 s{sT0}, 31")
        a(f"s_cbranch_scc1 {name}_n")
        a(f"buffer_store_dword v{D0}, v{vZero}, s[{SDBG}:{SDBG+3}], 0 offen offset:{go_off} sc1")
        a.label(f"{name}_n")
        a("s_mov_b64 exec, -1")
        a.label(f"{name}_e")
    usum(0, 4 if HP else 2)
    pstamp(a, 3)
    final("P1_h1", 0, 1, 0)
    a(f"s_cmp_lg_u32 s{sW}, 0")
    a("s_cbranch_scc1 P1_h1x")
    a(f"ds_write_b32 v{vT+3}, v{vZero} offset:{32768 + 2048}")
    a(f"ds_write_b32 v{vT+3}, v{vZero} offset:{32768 + 4096}")
    a("s_branch P1_h1y")
    a.label("P1_h1x")
    pstamp(a, 5)
    uload(1)
    uload(2)
    usum(1, 8)
    usum(2, 0)
    a.label("P1_h1y")
    pstamp(a, 4)
    final("P1_h2", 1, 3, 0)
    a(f"v_mov_b32 v{D0}, {LDS_P1+4}")
    a(f"v_mov_b32 v{D1}, 4")
    a(f"ds_write_b32 v{D0}, v{D1}")
    pstamp(a, 6)

def gen_p1(a, endA, endB, endH):
    pstamp(a, 0)
    a("s_load_dwordx4 s[4:7], s[0:1], 0")
    a("s_load_dwordx4 s[8:11], s[0:1], 32")
    a("s_load_dwordx4 s[12:15], s[0:1], 64")
    a(f"v_lshrrev_b32 v{vT}, 6, v0")
    a(f"v_and_b32 v{vLane}, 63, v0")
    a(f"v_readfirstlane_b32 s{sW}, v{vT}")
    a(f"v_lshlrev_b32 v{vL16}, 4, v{vLane}")
    a(f"v_lshrrev_b32 v{vH}, 5, v{vLane}")
    a(f"v_mov_b32 v{vZero}, 0")
    a(f"v_mov_b64 v[{vFlag}:{vFlag+1}], 0")
    a.c("pull the code of all phases into L2: waves 5..7 touch 8KB each")
    a(f"s_getpc_b64 s[{SWQ}:{SWQ+1}]")
    a(f"s_and_b32 s{SWQ}, s{SWQ}, 0xffffff00")
    a(f"s_and_b32 s{SWQ+1}, s{SWQ+1}, 0xffff")
    a(f"s_cmp_lt_u32 s2, {OPT.get('ct', '32')}")
    a(f"s_cselect_b32 s{SWQ+2}, CODE_END - {KNAME}, 0")
    a(f"s_mov_b32 s{SWQ+3}, 0x20000")
    a(f"v_lshlrev_b32 v{vT+1}, 7, v0")
    a(f"v_subrev_u32 v{vT+1}, {5*8192}, v{vT+1}")
    a(f"buffer_load_dword v55, v{vT+1}, s[{SWQ}:{SWQ+3}], 0 offen")
    a(f"s_and_b32 s{sT0}, s2, 7")
    a(f"s_lshr_b32 s{sT1}, s2, 3")
    a(f"s_add_u32 s{sT1}, s{sT1}, 28")
    a(f"s_and_b32 s{sT1}, s{sT1}, 31")
    a(f"s_lshr_b32 s{sRB}, s{sT0}, 1")
    a(f"s_lshl_b32 s{sRB}, s{sRB}, 2")
    a(f"s_and_b32 s{sT2}, s{sT1}, 3")
    a(f"s_add_u32 s{sRB}, s{sRB}, s{sT2}")
    a(f"s_and_b32 s{sCG}, s{sT0}, 1")
    a(f"s_lshr_b32 s{sT2}, s{sT1}, 2")
    a(f"s_lshl_b32 s{sT2}, s{sT2}, 1")
    a(f"s_add_u32 s{sCG}, s{sCG}, s{sT2}")
    a(f"s_and_b32 s{sTT}, s{sW}, 3")
    a(f"s_lshl_b32 s{sTile}, s{sRB}, 2")
    a(f"s_add_u32 s{sTile}, s{sTile}, s{sTT}")
    a(f"s_mov_b32 s{sMask}, 0xffff0000")
    a(f"s_mov_b32 s{sCnt}, 7")
    a.c("x dma pattern")
    t1, i_ = vT + 1, vT
    a(f"v_lshrrev_b32 v{vT+4}, 3, v{vLane}")
    a(f"v_mul_u32_u24 v{vOffX}, 896, v{vT+4}")
    a(f"v_lshrrev_b32 v{t1}, 4, v{vLane}")
    a(f"v_and_b32 v{vT+5}, 7, v{vLane}")
    a(f"v_xor_b32 v{t1}, v{t1}, v{vT+5}")
    a(f"v_lshl_add_u32 v{vOffX}, v{t1}, 4, v{vOffX}")
    a(f"v_xor_b32 v{vOffX+1}, 64, v{vOffX}")
    a(f"v_add_u32 v{vOffX+1}, {7168-1024}, v{vOffX+1}")
    a(f"s_movk_i32 s{sSM}, 2048")
    a(f"s_movk_i32 s{sSM+1}, 14336")
    a(f"s_movk_i32 s{sSG}, 14336")
    a(f"s_movk_i32 s{sSG+1}, {128-14336}")
    a(f"s_mul_i32 s{sOffX}, s{sTile}, {32*896}")
    a(f"s_lshl_b32 s{sRingX}, s{sTT}, 12")
    a.c("everything that needs no pointer, while the kernel arguments arrive")
    a(f"v_bfe_u32 v{t1}, v{vLane}, 4, 1")
    a(f"v_lshlrev_b32 v{t1}, 2, v{t1}")
    a(f"v_xor_b32 v{t1}, v{t1}, v{vT+5}")
    a(f"v_mul_u32_u24 v{vOffA}, 3584, v{vT+4}")
    a(f"v_lshl_add_u32 v{vOffA}, v{t1}, 4, v{vOffA}")
    a(f"v_add_u32 v{vOffA2}, {8*3584-1024}, v{vOffA}")
    a(f"s_lshl_b32 s{sOffA}, s{sCG}, 1")
    a(f"s_lshr_b32 s{sT0}, s{sTT}, 1")
    a(f"s_add_u32 s{sOffA}, s{sOffA}, s{sT0}")
    a(f"s_lshl_b32 s{sOffA}, s{sOffA}, 7")
    a(f"s_lshl_b32 s{sColQ}, s{sTT}, 11")
    a(f"s_add_u32 s{sRingA}, s{sColQ}, {FR}")
    if ROT:
        a.c("k order starts at chunk (rb+cg) mod 7: the chip asks for all of x and the weights at once")
        rm = OPT.get("rot", "5")
        if rm == "1":
            a(f"s_add_u32 s{sT2}, s{sRB}, s{sCG}")
        elif rm == "2":
            a(f"s_lshr_b32 s{sT2}, s{sRB}, 2")
            a(f"s_lshl_b32 s{sT2}, s{sT2}, 1")
            a(f"s_and_b32 s{sT3}, s{sCG}, 1")
            a(f"s_mul_i32 s{sT3}, s{sT3}, 3")
            a(f"s_add_u32 s{sT2}, s{sT2}, s{sT3}")
        elif rm == "3":
            a(f"s_lshr_b32 s{sT2}, s{sRB}, 1")
            a(f"s_and_b32 s{sT3}, s{sCG}, 1")
            a(f"s_mul_i32 s{sT3}, s{sT3}, 3")
            a(f"s_add_u32 s{sT2}, s{sT2}, s{sT3}")
        elif rm == "4":
            a(f"s_mov_b32 s{sT2}, s{sRB}")
        elif rm == "5":
            a(f"s_lshr_b32 s{sT2}, s{sRB}, 2")
            a(f"s_lshl_b32 s{sT2}, s{sT2}, 1")
            a(f"s_add_u32 s{sT2}, s{sT2}, s{sCG}")
        a(f"s_mul_i32 s{sT3}, s{sT2}, 37")
        a(f"s_lshr_b32 s{sT3}, s{sT3}, 8")
        a(f"s_mul_i32 s{sT3}, s{sT3}, 7")
        a(f"s_sub_u32 s{sT2}, s{sT2}, s{sT3}")
        a(f"s_mul_i32 s{sT3}, s{sT2}, {64*3584}")
        a(f"s_add_u32 s{sOffA}, s{sOffA}, s{sT3}")
    a(f"s_mov_b32 s{sColA}, s{sOffA}")
    a(f"v_mul_u32_u24 v{t1}, 43, v{vLane}")
    a(f"v_lshrrev_b32 v{t1}, 9, v{t1}")
    a(f"v_mul_u32_u24 v{vOffQ}, {2688-192}, v{t1}")
    a(f"v_add_u32 v{vOffQ}, v{vOffQ}, v{vL16}")
    a(f"v_add_u32 v{vOffQ2}, {4*2688-768}, v{vOffQ}")
    a(f"s_mul_i32 s{sOffQ}, s{sCG}, 192")
    a(f"s_mul_i32 s{sT0}, s{sTT}, {8*2688}")
    a(f"s_add_u32 s{sOffQ}, s{sOffQ}, s{sT0}")
    if ROT:
        a(f"s_mul_i32 s{sT0}, s{sT2}, {64*2688}")
        a(f"s_add_u32 s{sOffQ}, s{sOffQ}, s{sT0}")
        a(f"s_lshl_b32 s{sT2}, s{sT2}, 7")
    a(f"s_mul_i32 s{sRingQ}, s{sTT}, 1536")
    a(f"s_add_u32 s{sRingQ}, s{sRingQ}, {QR}")
    a(f"s_mov_b32 s{sE48}, -1")
    a(f"s_mov_b32 s{sE48+1}, 0xffff")
    a(f"v_mov_b32 v{vT+6}, {LDS_P1}")
    a(f"v_mov_b64 v[{vT+8}:{vT+9}], 0")
    a(f"v_mov_b64 v[{vT+10}:{vT+11}], 0")
    a(f"ds_write_b128 v{vT+6}, v[{vT+8}:{vT+11}]")
    a(f"ds_write_b128 v{vT+6}, v[{vT+8}:{vT+11}] offset:16")
    a(f"ds_write_b128 v{vT+6}, v[{vT+8}:{vT+11}] offset:32")
    a(f"s_lshr_b32 s{sT0}, s{sW}, 2")
    a(f"s_lshl_b32 s{sT1}, s{sT0}, 11")
    a(f"s_add_u32 m0, s{sRingX}, s{sT1}")
    a(f"s_mul_i32 s{sT1}, s{sT0}, 14336")
    a(f"s_add_u32 s{sT1}, s{sT1}, s{sOffX}")
    if ROT:
        a(f"s_add_u32 s{sT1}, s{sT1}, s{sT2}")
        a.c("column of the next chunk this wave loads: B chunk 1, A chunk 2")
        a(f"s_lshl_b32 s{sT0}, s{sT0}, 7")
        a(f"s_sub_u32 s{sT2}, s{sT2}, s{sT0}")
        a(f"s_add_u32 s{sT2}, s{sT2}, 256")
        a(f"s_cmp_ge_u32 s{sT2}, 896")
        a(f"s_cselect_b32 s{sT0}, 896, 0")
        a(f"s_sub_u32 s{sT2}, s{sT2}, s{sT0}")
        a(f"s_add_u32 s{sOffX}, s{sOffX}, s{sT2}")
    for d in (SX, SWQ, SWA, SWS, SDBG):
        a(f"s_mov_b32 s{d+3}, 0x20000")
    a(f"s_mov_b32 s{SX+2}, {2048*896}")
    a(f"s_mov_b32 s{SWQ+2}, {448*2688}")
    a(f"s_mov_b32 s{SWA+2}, {448*3584}")
    a(f"s_mov_b32 s{SWS+2}, {WS_END}")
    a(f"s_movk_i32 s{SDBG+2}, 256")
    a("s_waitcnt lgkmcnt(0)")
    a(f"s_mov_b32 s{SX}, s4")
    a(f"s_and_b32 s{SX+1}, s5, 0xffff")
    a(f"s_cmp_ge_u32 s{sCG}, 14")
    a("s_cbranch_scc1 P1_c2")
    a(f"buffer_load_dwordx4 v{vOffX}, s[{SX}:{SX+3}], s{sT1} offen lds")
    a(f"buffer_load_dwordx4 v{vOffX+1}, s[{SX}:{SX+3}], s{sT1} offen offset:1024 lds")
    a.label("P1_c2")
    a(f"s_mov_b32 s{SWQ}, s6")
    a(f"s_and_b32 s{SWQ+1}, s7, 0xffff")
    a(f"s_bitcmp1_b32 s{sW}, 0")
    a(f"s_cselect_b32 s{SWA}, s10, s8")
    a(f"s_cselect_b32 s{SWA+1}, s11, s9")
    a(f"s_and_b32 s{SWA+1}, s{SWA+1}, 0xffff")
    a(f"s_mov_b32 s{SDBG}, s12")
    a(f"s_and_b32 s{SDBG+1}, s13, 0xffff")
    a(f"s_mov_b32 s{SWS}, s14")
    a(f"s_and_b32 s{SWS+1}, s15, 0xffff")
    a(f"s_cmp_ge_u32 s{sCG}, 14")
    a("s_cbranch_scc1 P1_help")
    a(f"s_cmp_lt_u32 s{sW}, 4")
    a("s_cbranch_scc1 P1_A")
    for g in dmaF(0):
        for l in g: a(l)
    a("s_branch P1_B")
    a.label("P1_A")
    a(f"s_add_u32 s{sOffA}, s{sOffA}, {16*3584}")
    if ROT:
        a(f"s_mov_b32 s{sXc}, s{sT2}")
        for l in xwrap(): a(l)
    else:
        a(f"s_add_u32 s{sOffX}, s{sOffX}, 256")
    a(f"s_add_u32 s{sRingX}, s{sRingX}, 32768")
    def pgroup(sl):
        for g in dmaQ(sl) + (dmaF(sl) if sl else ()):
            for l in g: a(l)
        if sl >= 2:
            for g in dmaX(sl - 2):
                for l in g: a(l)
    PO = OPT.get("po", "1")
    pgroup(0)
    if PO == "0":
        for sl in range(1, 4): pgroup(sl)
    a(f"s_mov_b32 s{sRowX}, 16384")
    a(f"s_mov_b32 s{sDq}, {2*6144}")
    pstamp(a, 1)
    common_addr(a, "A")
    a(f"v_mul_u32_u24 v{vTr0}, 192, v{vT+2}")
    a(f"v_add_u32 v{vTr0}, v{vTr0}, v{vT+3}")
    a(f"v_add_u32 v{vTr0}, {QR}, v{vTr0}")
    for j in range(3):
        a(f"v_mfma_f32_32x32x16_bf16 v[{ACC+16*j}:{ACC+16*j+15}], v[{vT+8}:{vT+11}], v[{vT+8}:{vT+11}], 0")
    a(f"s_lshl_b32 s{sT3}, s{sTile}, 12")
    a.c("Q/K store address table: lane l -> 8-column chunk 12*cg + l")
    g8, m, e, x, tab, tab2 = vT + 4, vT + 5, vT + 6, vT + 7, vT + 8, vT + 9
    a(f"s_mul_i32 s{sT0}, s{sCG}, 12")
    a(f"v_add_u32 v{g8}, s{sT0}, v{vLane}")
    a(f"v_mul_u32_u24 v{m}, 9363, v{g8}")
    a(f"v_lshrrev_b32 v{m}, 16, v{m}")
    a(f"v_mul_u32_u24 v{e}, 7, v{m}")
    a(f"v_sub_u32 v{e}, v{g8}, v{e}")
    a(f"v_and_b32 v{x}, 7, v{m}")
    a(f"v_lshl_add_u32 v{tab}, v{x}, 19, s{sT3}")
    a(f"v_bfe_u32 v{x}, v{m}, 3, 1")
    a(f"v_xor_b32 v{x}, 1, v{x}")
    a(f"v_lshl_add_u32 v{tab}, v{x}, 11, v{tab}")
    a(f"v_add_u32 v{tab2}, {HS + 3*512}, v{tab}")
    a(f"v_lshrrev_b32 v{x}, 2, v{e}")
    a(f"v_lshl_add_u32 v{tab}, v{x}, 18, v{tab}")
    a(f"v_and_b32 v{x}, 3, v{e}")
    a(f"v_lshl_add_u32 v{tab}, v{x}, 9, v{tab}")
    a(f"v_cmp_eq_u32 vcc, 3, v{e}")
    a(f"v_lshlrev_b32 v{x}, 2, v{vH}")
    a(f"v_bfrev_b32 v{m}, 1")
    a(f"v_cndmask_b32 v{tab2}, v{m}, v{tab2}, vcc")
    for k in range(6):
        a(f"ds_bpermute_b32 v{vSt+k}, v{x}, v{tab} offset:{8*k}")
        a(f"ds_bpermute_b32 v{vSt+6+k}, v{x}, v{tab2} offset:{8*k}")
    a(f"v_and_b32 v{x}, 0x1f0, v{vL16}")
    a(f"v_mul_u32_u24 v{vT+12}, {VT//4}, v{vH}")
    a(f"v_add_u32 v{vT+12}, v{vT+12}, v{x}")
    a("s_waitcnt lgkmcnt(0)")
    for k in range(12):
        a(f"v_add_u32 v{vSt+k}, v{vSt+k}, v{x}")
    pstamp(a, 2)
    for k in OPT.get("zz", "").split("+"):
        if k: a(f"s_sleep {k}")
    if PO == "1":
        pgroup(1)
        a("s_waitcnt vmcnt(4)")
    elif PO == "2":
        for sl in range(1, 4): pgroup(sl)
        a("s_waitcnt vmcnt(16)")
    else:
        a("s_waitcnt vmcnt(16)")
    pstamp(a, 3)
    a("s_barrier")
    pstamp(a, 4)
    a(f"ds_read_b128 v[{XC}:{XC+3}], v{vXk}")
    a(f"ds_read_b128 v[{XC+4}:{XC+7}], v{vXk+1}")
    for l in wreadsA(0, 0): a(l)
    if PO == "1":
        pgroup(2)
        pgroup(3)
    pstamp(a, 5)
    a(f"s_cmp_gt_u32 s{sCG}, 9")
    a("s_cbranch_scc1 P1_loopA_VVV")
    a(f"s_cmp_eq_u32 s{sCG}, 9")
    a("s_cbranch_scc1 P1_loopA_QVV")
    loopA(a, "QQQ")
    a("s_branch P1_Aepi")
    loopA(a, "QVV")
    a("s_branch P1_Aepi")
    loopA(a, "VVV")
    a.label("P1_Aepi")
    pstamp(a, 6)
    epi_A(a)
    endA(a)
    aux_blocks(a)
    a.label("P1_B")
    tab = sum(v << (4 * i) for i, v in enumerate(BTAB))
    a(f"s_mov_b32 s{sTab}, {tab & 0xffffffff}")
    a(f"s_mov_b32 s{sTab+1}, {tab >> 32}")
    a(f"s_mov_b32 s{sDq}, {((1 << 16) - 1) | (1 << NBAR)}")
    a(f"s_mov_b32 s{sCnt}, 14")
    a(f"v_mov_b32 v28, -1")
    a(f"s_cmp_eq_u32 s{sW}, 4")
    a(f"s_cselect_b32 s{sColQ}, {int(OPT.get('sg', '12'))}, {int(OPT.get('sb', '4'))}")
    pstamp(a, 1)
    common_addr(a, "B")
    a(f"v_lshlrev_b32 v{vTr0}, 7, v{vT+2}")
    a(f"v_add_u32 v{vTr0}, v{vTr0}, v{vT+3}")
    a(f"v_bfe_u32 v{t1}, v{i_}, 3, 1")
    a(f"v_lshl_add_u32 v{vTr0}, v{t1}, 6, v{vTr0}")
    a(f"v_xor_b32 v{vTr1}, 64, v{vTr0}")
    a(f"s_lshr_b32 s{sT0}, s{sTT}, 1")
    a(f"s_lshl_b32 s{sT0}, s{sT0}, 12")
    a(f"v_add_u32 v{vOffA}, s{sT0}, v{vTr0}")
    a(f"v_add_u32 v{vOffA2}, s{sT0}, v{vTr1}")
    a(f"v_add_u32 v{vTr0}, {FR}, v{vOffA}")
    a(f"v_add_u32 v{vTr1}, {FR}, v{vOffA2}")
    for j in range(8):
        a(f"v_mfma_f32_32x32x16_bf16 v[{ACC+16*j}:{ACC+16*j+15}], v[{vT+8}:{vT+11}], v[{vT+8}:{vT+11}], 0")
    if not ROT: a(f"s_add_u32 s{sOffX}, s{sOffX}, 128")
    a(f"s_add_u32 s{sRingX}, s{sRingX}, 16384")
    for q in range(2):
        for g in dmaX(q):
            for l in g: a(l)
    pstamp(a, 2)
    a("s_waitcnt vmcnt(4)")
    pstamp(a, 3)
    a("s_barrier")
    pstamp(a, 4)
    a(f"ds_read_b128 v[{XB}:{XB+3}], v{vXk}")
    a(f"ds_read_b128 v[{XB+4}:{XB+7}], v{vXk} offset:4096")
    for l in wreadsB(0, 0): a(l)
    a("s_waitcnt vmcnt(0) lgkmcnt(0)")
    if OPT.get("pf", "0") != "0":
        a.c("touch one slice of x / wqkv / w_gate / w_up so that the whole chip asks memory for them at once")
        a(f"s_cmp_lt_u32 s{sTT}, 2")
        a(f"s_cselect_b32 s{SWA}, s4, s8")
        a(f"s_cselect_b32 s{SWA+1}, s5, s9")
        a(f"s_cselect_b32 s{sT0}, s6, s10")
        a(f"s_cselect_b32 s{sT1}, s7, s11")
        a(f"s_mov_b32 s{SWA+2}, {448*3584}")
        a(f"s_cselect_b32 s{sT2}, {448*2688}, s{SWA+2}")
        a(f"s_cselect_b32 s{SWA+2}, {2048*896}, s{SWA+2}")
        a(f"s_bitcmp1_b32 s{sTT}, 0")
        a(f"s_cselect_b32 s{SWA}, s{sT0}, s{SWA}")
        a(f"s_cselect_b32 s{SWA+1}, s{sT1}, s{SWA+1}")
        a(f"s_cselect_b32 s{SWA+2}, s{sT2}, s{SWA+2}")
        a(f"s_and_b32 s{SWA+1}, s{SWA+1}, 0xffff")
        a(f"s_mov_b32 s{SWA+3}, 0x20000")
        if OPT.get("pf") == "3":
            a(f"s_cmp_lt_u32 s{sTT}, 2")
            a(f"s_cselect_b32 s{SWA+2}, s{SWA+2}, 0")
        a(f"s_sub_u32 s{sT0}, s2, 32")
        a(f"s_lshl_b32 s{sT0}, s{sT0}, 13")
        a(f"v_lshlrev_b32 v{vT+6}, 7, v{vLane}")
        a(f"buffer_load_dword v55, v{vT+6}, s[{SWA}:{SWA+3}], s{sT0} offen")
    pstamp(a, 5)
    loopB(a)
    pstamp(a, 6)
    epi_B(a)
    endB(a)
    helper(a)
    endH(a)

def ffn_setup(a):
    t1 = vT + 1
    a.c("gate/up dma setup: wave tt loads block tt (G0,U0,G1,U1)")
    a(f"s_bitcmp1_b32 s{sW}, 0")
    a(f"s_cselect_b32 s{SWA}, s10, s8")
    a(f"s_cselect_b32 s{SWA+1}, s11, s9")
    a(f"s_and_b32 s{SWA+1}, s{SWA+1}, 0xffff")
    a(f"s_mov_b32 s{SWA+2}, {448*3584}")
    a(f"s_mov_b32 s{SWA+3}, 0x20000")
    a(f"v_bfe_u32 v{t1}, v{vLane}, 4, 1")
    a(f"v_lshlrev_b32 v{t1}, 2, v{t1}")
    a(f"v_xor_b32 v{t1}, v{t1}, v{vT+5}")
    a(f"v_mul_u32_u24 v{vOffA}, 3584, v{vT+4}")
    a(f"v_lshl_add_u32 v{vOffA}, v{t1}, 4, v{vOffA}")
    a(f"v_add_u32 v{vOffA2}, {8*3584-1024}, v{vOffA}")
    a(f"s_lshl_b32 s{sOffA}, s{sCG}, 1")
    a(f"s_lshr_b32 s{sT0}, s{sTT}, 1")
    a(f"s_add_u32 s{sOffA}, s{sOffA}, s{sT0}")
    a(f"s_lshl_b32 s{sOffA}, s{sOffA}, 7")
    a(f"s_lshl_b32 s{sRingA}, s{sTT}, 11")
    a(f"s_add_u32 s{sRingA}, s{sRingA}, {FR}")

def common_addr(a, role):
    t1, i_ = vT + 1, vT
    a.c("x fragment addresses")
    a(f"v_and_b32 v{t1}, 31, v{vLane}")
    a(f"v_bfe_u32 v{vT+2}, v{vLane}, 1, 3")
    a(f"v_xor_b32 v{vT+2}, v{vT+2}, v{vH}")
    a(f"v_lshlrev_b32 v{vT+2}, 4, v{vT+2}")
    a(f"v_lshl_add_u32 v{vXk}, v{t1}, 7, v{vT+2}")
    if role == "A":
        a(f"s_lshl_b32 s{sT0}, s{sTT}, 12")
    else:
        a(f"s_and_b32 s{sT0}, s{sTT}, 1")
        a(f"s_lshl_b32 s{sT0}, s{sT0}, 13")
    a(f"v_add_u32 v{vXk}, s{sT0}, v{vXk}")
    for k in range(1, 4):
        a(f"v_xor_b32 v{vXk+k}, {32*k}, v{vXk}")
    a(f"v_and_b32 v{i_}, 15, v{vLane}")
    a(f"v_lshrrev_b32 v{t1}, 2, v{i_}")
    a(f"v_lshl_add_u32 v{vT+2}, v{vH}, 3, v{t1}")
    a(f"v_bfe_u32 v{t1}, v{vLane}, 4, 1")
    a(f"v_lshlrev_b32 v{vT+3}, 5, v{t1}")
    a(f"v_and_b32 v{t1}, 3, v{i_}")
    a(f"v_lshl_add_u32 v{vT+3}, v{t1}, 3, v{vT+3}")
    a(f"s_mov_b32 s{sDelta}, {2*8192}")

def gen_k1(name):
    a = Asm()
    a(f"s_cmp_ge_u32 s2, 256")
    a(f"s_cbranch_scc1 K1_exit")
    def end(a):
        pstamp(a, 7)
        a.stamp_flush(8, 0, sW, 8)
        a("s_endpgm")
    def endH(a):
        pstamp(a, 8)
        a.stamp_flush(9, 0, sW, 8)
        a("s_endpgm")
    gen_p1(a, end, end, endH)
    a.label("K1_exit")
    a("s_endpgm")
    return kernel_header(name) + a.text(), kernel_desc(name, 256, 64), LDS_P1
```

```python
from asmlib import *
from consts import *
import p1
from p1 import OPT, sW, sRB, sCG, sTT, SWS, SDBG, sMask, vLane, vL16, vH, vZero

INB = 12288
WOB = 49152
XCH = 114688
SYNC = p1.LDS_P1
LDS_F = SYNC + 64 + 4096
FQ, FH, FO = WS_FLAG, WS_FLAG + 32768, WS_FLAG + 65536

SKH, SKV, SVH, SV, SWD = 4, 8, 16, 20, 24
sHead, sQB, sOff, sOffV, sCnt = 36, 37, 38, 39, 41
sT0, sT1, sT2, sT3 = 42, 43, 44, 45
sMT, sNT, sRing = 47, 48, 49
sVM, sUP = 50, 52
sA0, sA1, sWoff, sStep, sKQ = 54, 55, 40, 14, 15
SXO = 60
vT = 4
vZ = 15
vVo = 14
NB = 4
QF = 16
KV = 48
SS = KV + 16 * NB
PP = SS + 32
OO = PP + 16
vTr0, vTr1 = 16, 17
vOff = 20
XRES = 24
vXo = 28
ACT = 32
WFG = 96
GACC = 128
TW = 192

def fstamp(a, i):
    if OPT.get("st", "2") in ("1", "3") and i < 7:
        return
    if OPT.get("st") == "5" and i not in (7, 8):
        return
    if OPT.get("st") == "4" and i in (2, 3, 4, 5):
        return
    a.stamp(i)

def xstamp(a, i):
    if OPT.get("st", "2") == "3":
        a.stamp(i)

def mf(d, a, b, c):
    cs = "0" if c is None else f"v[{c}:{c+15}]"
    return f"v_mfma_f32_32x32x16_bf16 v[{d}:{d+15}], v[{a}:{a+3}], v[{b}:{b+3}], {cs}"

def signal(a, name, cnt_idx, flag_soff_reg, vaddr=None, young=0, wb=False):
    a(f"v_mov_b32 v{vT}, {SYNC + 4*cnt_idx}")
    a(f"v_mov_b32 v{vT+1}, 1")
    a("s_mov_b64 exec, 1")
    a(f"s_waitcnt vmcnt({young})")
    a(f"ds_add_rtn_u32 v{vT+2}, v{vT}, v{vT+1}")
    a("s_waitcnt lgkmcnt(0)")
    a(f"v_readfirstlane_b32 s{sT0}, v{vT+2}")
    if vaddr is not None: a("s_mov_b64 exec, 0x3ff")
    a(f"s_cmp_lg_u32 s{sT0}, 3")
    a(f"s_cbranch_scc1 {name}_ns")
    if wb:
        a("buffer_wbl2 sc1")
        a("s_waitcnt vmcnt(0)")
    a(f"buffer_store_dword v{vT+1}, v{vZ if vaddr is None else vaddr}, s[{SWS}:{SWS+3}], s{flag_soff_reg} offen sc1")
    a.label(f"{name}_ns")
    a("s_mov_b64 exec, -1")

def poll(a, name, soff, nlanes, wide, sleep, rel_idx, poller, wsleep=2):
    a(f"s_mov_b32 s{sT1}, 0x8000")
    a(f"v_mov_b32 v{vT+5}, {SYNC + 4*rel_idx}")
    a(f"s_cmp_lg_u32 s{sW}, {poller}")
    a(f"s_cbranch_scc1 {name}_w")
    if nlanes == 32: a("s_mov_b32 exec_hi, 0")
    else: a(f"s_mov_b64 exec, {hex((1 << nlanes) - 1)}")
    if not wide: a(f"v_lshlrev_b32 v{vT+4}, 7, v{vLane}")
    else:
        a(f"v_lshrrev_b32 v{vT+4}, 1, v{vLane}")
        a(f"v_mul_u32_u24 v{vT+4}, 96, v{vT+4}")
        a(f"v_add_u32 v{vT+4}, v{vT+4}, v{vL16}")
    a.label(f"{name}_l")
    if wide:
        a(f"buffer_load_dwordx3 v[{vT}:{vT+2}], v{vT+4}, s[{SWS}:{SWS+3}], {soff} offen sc1")
        a("s_waitcnt vmcnt(0)")
        a(f"v_and_b32 v{vT}, v{vT}, v{vT+1}")
        a(f"v_and_b32 v{vT}, v{vT}, v{vT+2}")
    else:
        a(f"buffer_load_dword v{vT}, v{vT+4}, s[{SWS}:{SWS+3}], {soff} offen sc1")
        a("s_waitcnt vmcnt(0)")
    a(f"v_cmp_ne_u32 vcc, 1, v{vT}")
    a(f"s_cbranch_vccz {name}_p")
    a(f"s_sub_u32 s{sT1}, s{sT1}, 1")
    a(f"s_cbranch_scc1 {name}_p")
    a(f"s_sleep {sleep}")
    a(f"s_branch {name}_l")
    a.label(f"{name}_p")
    a(f"v_mov_b32 v{vT}, 1")
    a(f"ds_write_b32 v{vT+5}, v{vT}")
    a("s_mov_b64 exec, -1")
    a(f"s_branch {name}_ok")
    a.label(f"{name}_w")
    a(f"s_lshl_b32 s{sT1}, s{sT1}, 4")
    a.label(f"{name}_w2")
    a(f"ds_read_b32 v{vT}, v{vT+5}")
    a("s_waitcnt lgkmcnt(0)")
    a(f"v_readfirstlane_b32 s{sT0}, v{vT}")
    a(f"s_cmp_eq_u32 s{sT0}, 1")
    a(f"s_cbranch_scc1 {name}_ok")
    a(f"s_sub_u32 s{sT1}, s{sT1}, 1")
    a(f"s_cbranch_scc1 {name}_ok")
    a(f"s_sleep {wsleep}")
    a(f"s_branch {name}_w2")
    a.label(f"{name}_ok")

def kvload(a, kb, srd, sv):
    b = KV + 16 * kb
    a(f"buffer_load_dwordx4 v[{b}:{b+3}], v{vL16}, s[{srd}:{srd+3}], s{sOff} offen sc1")
    a(f"buffer_load_dwordx4 v[{b+4}:{b+7}], v{vL16}, s[{srd}:{srd+3}], s{sOff} offen offset:1024 sc1")
    a(f"s_mov_b64 exec, s[{sVM}:{sVM+1}]")
    a(f"buffer_load_dwordx4 v[{b+8}:{b+11}], v{vVo}, s[{sv}:{sv+3}], s{sOffV} offen sc1")
    a(f"s_add_u32 s{sOffV}, s{sOffV}, {VT//2}")
    a(f"buffer_load_dwordx4 v[{b+12}:{b+15}], v{vVo}, s[{sv}:{sv+3}], s{sOffV} offen sc1")
    a(f"s_mov_b64 exec, -1")
    a(f"s_add_u32 s{sOffV}, s{sOffV}, {VT//2}")
    a(f"s_add_u32 s{sOff}, s{sOff}, {TS}")
    if srd == SKV and OPT.get("ra", "0") == "1":
        a(f"s_and_b32 s{sOff}, s{sOff}, 0xffff")
        a(f"s_cselect_b32 s{sOffV}, s{sOffV}, 0")

def maxtree(a, src, dst, first=True):
    if first:
        a(f"v_max3_f32 v{dst}, v{src}, v{src+1}, v{src+2}")
        for i in range(3, 15, 2):
            a(f"v_max3_f32 v{dst}, v{dst}, v{src+i}, v{src+i+1}")
        a(f"v_max_f32 v{dst}, v{dst}, v{src+15}")
    else:
        for i in range(0, 16, 2):
            a(f"v_max3_f32 v{dst}, v{dst}, v{src+i}, v{src+i+1}")

def setpads(a, ms, qs, t):
    n = len(ms)
    for i, m in enumerate(ms): a(f"v_mov_b32 v{t+i}, v{m}")
    a("s_nop 1")
    for i, m in enumerate(ms): a(f"v_permlane32_swap_b32 v{m}, v{t+i}")
    a("s_nop 0")
    for i, m in enumerate(ms): a(f"v_max_f32 v{m}, v{m}, v{t+i}")
    a(f"s_mov_b64 exec, s[{sUP}:{sUP+1}]")
    for i, (m, q) in enumerate(zip(ms, qs)):
        u, w = t + i, t + n + i
        a(f"v_sub_f32 v{m}, 0, v{m}")
        a(f"v_and_b32 v{u}, s{sMask}, v{m}")
        a(f"v_sub_f32 v{u}, v{m}, v{u}")
        a(f"v_lshrrev_b32 v{m}, 16, v{m}")
        a(f"v_and_b32 v{w}, s{sMask}, v{u}")
        a(f"v_or_b32 v{q+6}, v{m}, v{w}")
        a(f"v_sub_f32 v{u}, v{u}, v{w}")
        a(f"v_lshrrev_b32 v{q+7}, 16, v{u}")
    a("s_mov_b64 exec, -1")

def expcvt(S, P, g):
    o = [f"v_exp_f32 v{S+4*g+k}, v{S+4*g+k}" for k in range(4)]
    o += [f"v_cvt_pk_bf16_f32 v{P+2*g+k}, v{S+4*g+2*k}, v{S+4*g+2*k+1}" for k in range(2)]
    return o

def fillpat(S, P, g):
    pat = OPT.get("pat", "2")
    if pat == "0":
        return expcvt(S, P, g)
    E = [f"v_exp_f32 v{S+k}, v{S+k}" for k in range(16)]
    C = [f"v_cvt_pk_bf16_f32 v{P+k}, v{S+2*k}, v{S+2*k+1}" for k in range(8)]
    if pat == "1":
        return [E[0:3], E[3:8] + C[0:4], E[8:11], E[11:16] + C[4:8]][g]
    if pat == "2":
        return [E[0:3], E[3:6], E[6:9], E[9:16] + C][g]
    if pat == "3":
        return [E[0:2] + [], E[2:4] + C[0:2], E[4:6] + C[2:3], E[6:16] + C[3:8]][g]
    if pat == "4":
        return [E[0:3], E[3:5] + C[0:2], E[5:7] + C[2:3], E[7:16] + C[3:8]][g]

def ldswait(a, name, idx, n, sleep=2):
    a(f"v_mov_b32 v{vT+6}, {SYNC+4*idx}")
    a(f"s_mov_b32 s{sT1}, 0x80000")
    a(f"s_branch {name}")
    a.label(name + "_s")
    a(f"s_sleep {sleep}")
    a.label(name)
    a(f"ds_read_b32 v{vT+7}, v{vT+6}")
    a("s_waitcnt lgkmcnt(0)")
    a(f"v_readfirstlane_b32 s{sT0}, v{vT+7}")
    a(f"s_sub_u32 s{sT1}, s{sT1}, 1")
    a(f"s_cselect_b32 s{sT0}, {n}, s{sT0}")
    a(f"s_cmp_lt_u32 s{sT0}, {n}")
    a(f"s_cbranch_scc1 {name}_s")

def ldsadd(a, idx):
    a(f"v_mov_b32 v{vT+6}, {SYNC+4*idx}")
    a(f"v_mov_b32 v{vT+7}, 1")
    a("s_mov_b64 exec, 1")
    a(f"ds_add_u32 v{vT+6}, v{vT+7}")
    a("s_mov_b64 exec, -1")

def g2_ids(a):
    a(f"s_and_b32 s{sMT}, s2, 7")
    a(f"s_lshl_b32 s{sMT}, s{sMT}, 2")
    a(f"s_bfe_u32 s{sT0}, s2, 0x20003")
    a(f"s_add_u32 s{sMT}, s{sMT}, s{sT0}")
    a(f"s_lshr_b32 s{sNT}, s2, 5")
    a(f"s_lshr_b32 s{sKQ}, s{sW}, 1")

def g2_tr(a):
    t1, i_ = vT, vT + 2
    a(f"v_and_b32 v{i_}, 15, v{vLane}")
    a(f"v_lshrrev_b32 v{t1}, 2, v{i_}")
    a(f"v_lshl_add_u32 v{t1}, v{vH}, 2, v{t1}")
    a(f"v_lshlrev_b32 v{vTr0}, 7, v{t1}")
    a(f"v_bfe_u32 v{t1}, v{vLane}, 4, 1")
    a(f"v_lshl_add_u32 v{vTr0}, v{t1}, 5, v{vTr0}")
    a(f"v_and_b32 v{t1}, 3, v{i_}")
    a(f"v_lshl_add_u32 v{vTr0}, v{t1}, 3, v{vTr0}")
    a(f"v_bfe_u32 v{t1}, v{i_}, 3, 1")
    a(f"v_lshl_add_u32 v{vTr0}, v{t1}, 6, v{vTr0}")
    a(f"s_lshl_b32 s{sT0}, s{sKQ}, 5")
    a(f"v_xor_b32 v{vTr0}, s{sT0}, v{vTr0}")
    a(f"v_xor_b32 v{vTr1}, 64, v{vTr0}")

def wdma(a, slot):
    a(f"s_add_u32 m0, s{sRing}, {slot*4096}")
    a("s_nop 0")
    for i in range(4):
        a(f"buffer_load_dwordx4 v{vOff+i}, s[{SWD}:{SWD+3}], s{sWoff} offen offset:{1024*i} lds")
    a(f"s_add_u32 s{sWoff}, s{sWoff}, s{sStep}")
    if OPT.get("rg", "0") == "1":
        a(f"s_cmp_eq_u32 s{sWoff}, s{sHead}")
        a(f"s_cselect_b32 s{sWoff}, s{sQB}, s{sWoff}")

def actld(a, st):
    b = ACT + 16 * st
    a(f"buffer_load_dwordx4 v[{b}:{b+3}], v{vL16}, s[{SWS}:{SWS+3}], s{sA0} offen sc1")
    a(f"buffer_load_dwordx4 v[{b+4}:{b+7}], v{vL16}, s[{SWS}:{SWS+3}], s{sA0} offen offset:1024 sc1")
    a(f"buffer_load_dwordx4 v[{b+8}:{b+11}], v{vL16}, s[{SWS}:{SWS+3}], s{sA1} offen sc1")
    a(f"buffer_load_dwordx4 v[{b+12}:{b+15}], v{vL16}, s[{SWS}:{SWS+3}], s{sA1} offen offset:1024 sc1")
    if OPT.get("rg", "0") == "1":
        a(f"s_cmp_eq_u32 s{sA0}, s{sOff}")
        a(f"s_cselect_b32 s{sT0}, {(-13*2048) & 0xffffffff}, s{sOffV}")
        a(f"s_add_u32 s{sA0}, s{sA0}, s{sT0}")
        a(f"s_add_u32 s{sA1}, s{sA1}, s{sT0}")
    else:
        a(f"s_add_u32 s{sA0}, s{sA0}, 2048")
        a(f"s_add_u32 s{sA1}, s{sA1}, 2048")

def unit(a, slot):
    for s in range(2):
        for tau in range(2):
            for t in range(2):
                d = WFG + 8 * s + 4 * tau + 2 * t
                a(f"ds_read_b64_tr_b16 v[{d}:{d+1}], v{vTr0+2 if tau == 0 else vTr1+2} offset:{slot*4096+s*2048+t*1024}")
    for s in range(2):
        a(f"s_waitcnt lgkmcnt({4 if s == 0 else 0})")
        for tau in range(2):
            for tt in range(2):
                acc = GACC + 16 * (tt * 2 + tau)
                a(mf(acc, WFG + 8 * s + 4 * tau, ACT + 16 * slot + 8 * tt + 4 * s, acc))

def attention(a):
    a.label("F_att")
    fstamp(a, 8)
    a(f"s_and_b32 s{sHead}, s2, 7")
    a(f"s_lshl_b32 s{sHead}, s{sHead}, 1")
    a(f"s_bfe_u32 s{sT0}, s2, 0x10003")
    a(f"s_add_u32 s{sHead}, s{sHead}, s{sT0}")
    a(f"s_lshr_b32 s{sQB}, s2, 4")
    a(f"s_mov_b32 s{sVM}, 0x0fffffff")
    a(f"s_mov_b32 s{sVM+1}, 0x0fffffff")
    a(f"s_mov_b32 s{sUP}, 0")
    a(f"s_mov_b32 s{sUP+1}, -1")
    a.c("V rows 28 (ones: row sum) and 29..31 (zero) are never loaded")
    a(f"v_mov_b64 v[{KV+8}:{KV+9}], 0")
    a("s_mov_b32 exec_lo, 0x10000000")
    a("s_mov_b32 exec_hi, 0x10000000")
    a(f"v_mov_b32 v{KV+8}, 0x3f803f80")
    a(f"v_mov_b32 v{KV+9}, 0x3f803f80")
    a("s_mov_b64 exec, -1")
    for kb in range(NB):
        for i in range(0, 8, 2):
            if kb or i: a(f"v_mov_b64 v[{KV+16*kb+8+i}:{KV+16*kb+9+i}], v[{KV+8}:{KV+9}]")
    a(f"v_mul_u32_u24 v{vVo}, {VT//4 - 512}, v{vH}")
    a(f"v_add_u32 v{vVo}, v{vVo}, v{vL16}")
    a(f"s_mul_i32 s{sT0}, s{sHead}, 448")
    a(f"v_add_u32 v{vVo}, s{sT0}, v{vVo}")
    a(f"v_add_u32 v{vVo-1}, {VT//2}, v{vVo}")
    a(f"s_lshl_b32 s{sT1}, s{sHead}, 18")
    a(f"s_add_u32 s{SKH}, s{SWS}, s{sT1}")
    a(f"s_addc_u32 s{SKH+1}, s{SWS+1}, 0")
    a(f"s_mov_b32 s{SKH+2}, {HS}")
    a(f"s_mov_b32 s{SKH+3}, 0x20000")
    a(f"s_lshl_b32 s{sT1}, s{sW}, 16")
    a(f"s_add_u32 s{SKV}, s{SKH}, s{sT1}")
    a(f"s_addc_u32 s{SKV+1}, s{SKH+1}, 0")
    a(f"s_mov_b32 s{SKV+2}, {16*TS}")
    a(f"s_mov_b32 s{SKV+3}, 0x20000")
    a(f"s_add_u32 s{SVH}, s{SWS}, {WS_V}")
    a(f"s_addc_u32 s{SVH+1}, s{SWS+1}, 0")
    a(f"s_mov_b32 s{SVH+2}, {64*VT}")
    a(f"s_mov_b32 s{SVH+3}, 0x20000")
    a(f"s_mul_i32 s{sT1}, s{sW}, {16*VT}")
    a(f"s_add_u32 s{SV}, s{SVH}, s{sT1}")
    a(f"s_addc_u32 s{SV+1}, s{SVH+1}, 0")
    a(f"s_mov_b32 s{SV+2}, {16*VT}")
    a(f"s_mov_b32 s{SV+3}, 0x20000")
    if OPT.get("ra", "0") == "1":
        a(f"s_mul_i32 s{sOffV}, s{sQB}, {VT}")
        a(f"s_lshl_b32 s{sOff}, s{sQB}, 12")
    else:
        a(f"s_mov_b32 s{sOffV}, 0")
        a(f"s_mov_b32 s{sOff}, 0")
    for i in range(0, 8, 2):
        a(f"v_mov_b64 v[{PP+8+i}:{PP+9+i}], 0")
    g2_ids(a)
    for k in OPT.get("zq", "").split("+"):
        if k: a(f"s_sleep {k}")
    a(f"s_lshl_b32 s{sT3}, s{sHead}, 11")
    a(f"s_add_u32 s{sT3}, s{sT3}, {FQ}")
    poll(a, "F_pq", f"s{sT3}", 32, True, int(OPT.get("sq", "3")), 3, 0)
    fstamp(a, 9)
    a(f"s_setprio {OPT.get('pp', '1')}")
    a.c("K tile 0 of the head + Q (local tile j = global (w+j)&3)")
    a(f"buffer_load_dwordx4 v[{PP}:{PP+3}], v{vL16}, s[{SKH}:{SKH+3}], 0 offen sc1")
    a(f"buffer_load_dwordx4 v[{PP+4}:{PP+7}], v{vL16}, s[{SKH}:{SKH+3}], 0 offen offset:1024 sc1")
    a(f"s_lshl_b32 s{sT1}, s{sQB}, 14")
    for j in range(4):
        a(f"s_add_u32 s{sT0}, s{sW}, {j}")
        a(f"s_and_b32 s{sT0}, s{sT0}, 3")
        a(f"s_lshl_b32 s{sT0}, s{sT0}, 12")
        a(f"s_add_u32 s{sT0}, s{sT0}, s{sT1}")
        a(f"buffer_load_dwordx4 v[{QF+8*j}:{QF+8*j+3}], v{vL16}, s[{SKH}:{SKH+3}], s{sT0} offen offset:2048 sc1")
        a(f"buffer_load_dwordx4 v[{QF+8*j+4}:{QF+8*j+7}], v{vL16}, s[{SKH}:{SKH+3}], s{sT0} offen offset:3072 sc1")
    for kb in range(NB - 1):
        if kb == int(OPT.get("rel", "3")): ldsadd(a, 10)
        kvload(a, kb, SKV, SV)
    if int(OPT.get("rel", "3")) == 3: ldsadd(a, 10)
    a(f"s_waitcnt vmcnt({4*(NB-1)})")
    a(f"s_mov_b64 exec, s[{sUP}:{sUP+1}]")
    for qt in range(4):
        a(f"v_mov_b64 v[{QF+8*qt+6}:{QF+8*qt+7}], 0")
    a("s_mov_b64 exec, -1")
    a("s_nop 1")
    for qt in range(4):
        a(mf(OO + 16 * qt, PP, QF + 8 * qt, None))
        a(mf(OO + 16 * qt, PP + 4, QF + 8 * qt + 4, OO + 16 * qt))
    a.c("shift = largest score among keys 4..7 (upper lanes hold them), cut to bf16; checked after the loop")
    a("s_nop 5")
    a(f"s_mov_b64 exec, s[{sUP}:{sUP+1}]")
    for qt in range(4):
        o = OO + 16 * qt
        a(f"v_max3_f32 v{vT+qt}, v{o}, v{o+1}, v{o+2}")
        a(f"v_max_f32 v{vT+qt}, v{vT+qt}, v{o+3}")
        a(f"v_lshrrev_b32 v{vT+qt}, 16, v{vT+qt}")
        a(f"v_xor_b32 v{QF+8*qt+6}, 0x8000, v{vT+qt}")
    a("s_mov_b64 exec, -1")
    a(f"s_waitcnt vmcnt({4*(NB-2)})")
    a(mf(SS, KV, QF, None))
    a(mf(SS, KV + 4, QF + 4, SS))
    a.c("O = 0 (P[1] is zero)")
    for qt in range(4):
        a(mf(OO + 16 * qt, PP + 8, PP + 8, None))
    a.c("send local tiles 1..3 to waves (w+j)&3, inbox slot j-1")
    for j in range(1, 4):
        a(f"s_add_u32 s{sT0}, s{sW}, {j}")
        a(f"s_and_b32 s{sT0}, s{sT0}, 3")
        a(f"s_mul_i32 s{sT0}, s{sT0}, {INB}")
        a(f"v_add_u32 v{vT+j}, s{sT0}, v{vL16}")
    a(f"s_mov_b32 s{sCnt}, {16//NB}")
    a(f"s_setprio {OPT.get('prio', '1')}")
    fstamp(a, 10)
    if OPT.get("al"):
        a(".p2alignl 6, 0xbf800000")
        for k in range(int(OPT.get("al")) - 1): a("s_nop 0")
    a.label("F_aloop")
    if OPT.get("st") == "4":
        for c_ in (3, 2, 1):
            a(f"s_cmp_lg_u32 s{sCnt}, {c_}")
            a(f"s_cbranch_scc1 F_ls{c_}")
            a(f"s_memtime s[{64+2*(5-c_)}:{65+2*(5-c_)}]")
            a.label(f"F_ls{c_}")
    for kb in range(NB):
        for qt in range(4):
            n = kb * 4 + qt
            cur, nxt = SS + 16 * (n & 1), SS + 16 * ((n + 1) & 1)
            pc, pp = PP + 8 * (n & 1), PP + 8 * ((n + 1) & 1)
            nkb, nqt = (kb, qt + 1) if qt < 3 else ((kb + 1) % NB, 0)
            pkb, pqt = (kb, qt - 1) if qt > 0 else ((kb - 1) % NB, 3)
            if qt == 3:
                a(f"s_waitcnt vmcnt({4*(NB-2)})")
            K = KV + 16 * nkb
            V = KV + 16 * pkb + 8
            O = OO + 16 * pqt
            mm = [mf(nxt, K, QF + 8 * nqt, None), mf(nxt, K + 4, QF + 8 * nqt + 4, nxt),
                  mf(O, V, pp, O), mf(O, V + 4, pp + 4, O)]
            lb = KV + 16 * ((kb - 1) % NB)
            extra = []
            if qt == 0:
                extra = [[f"buffer_load_dwordx4 v[{lb}:{lb+3}], v{vL16}, s[{SKV}:{SKV+3}], s{sOff} offen sc1"],
                         [f"buffer_load_dwordx4 v[{lb+4}:{lb+7}], v{vL16}, s[{SKV}:{SKV+3}], s{sOff} offen offset:1024 sc1"],
                         [f"s_add_u32 s{sOff}, s{sOff}, {TS}"]]
            if qt == 1:
                extra = [[f"s_mov_b64 exec, s[{sVM}:{sVM+1}]",
                          f"buffer_load_dwordx4 v[{lb+8}:{lb+11}], v{vVo}, s[{SV}:{SV+3}], s{sOffV} offen sc1",
                          f"buffer_load_dwordx4 v[{lb+12}:{lb+15}], v{vVo-1}, s[{SV}:{SV+3}], s{sOffV} offen sc1",
                          "s_mov_b64 exec, -1"],
                         [f"s_add_u32 s{sOffV}, s{sOffV}, {VT}"]]
            if n == 4 * NB - 1:
                extra = [[f"s_sub_u32 s{sCnt}, s{sCnt}, 1"], [f"s_cmp_lg_u32 s{sCnt}, 0"]]
            for g in range(4):
                a(mm[g])
                fl = fillpat(cur, pc, g)
                if g == 3:
                    out = []
                    for k, l in enumerate(fl):
                        out.append(l)
                        if k % 2 == 0 and extra: out += extra.pop(0)
                    fl = out
                for l in fl:
                    a(l)
            if kb == 0 and qt == 2:
                a(f"s_cmp_lg_u32 s{sCnt}, 1")
                a("s_cbranch_scc1 F_bw0")
                a.c("last pass: the B waves are done with the phase-1 LDS image (inbox space)")
                ldswait(a, "F_bw1", 1, 4)
                a.label("F_bw0")
    a("s_cbranch_scc1 F_aloop")
    V = KV + 16 * (NB - 1) + 8
    O = OO + 48
    a("s_nop 0")
    a(mf(O, V, PP + 8, O))
    a(mf(O, V + 4, PP + 12, O))
    fstamp(a, 1)
    if OPT.get("trig", "2") == "4": ldsadd(a, 11)
    a("s_nop 3")
    for j in range(1, 4):
        for aa in range(4):
            a(f"ds_write_b128 v{vT+j}, v[{OO+16*j+4*aa}:{OO+16*j+4*aa+3}] offset:{4096*(j-1)+1024*aa}")
    ldsadd(a, 6)
    a(f"s_mul_i32 s{sT0}, s{sW}, {INB}")
    a(f"v_add_u32 v{vT}, s{sT0}, v{vL16}")
    a(f"s_lshl_b32 s{sT3}, s{sQB}, 2")
    a(f"s_add_u32 s{sT3}, s{sT3}, s{sW}")
    a(f"s_lshl_b32 s{sT3}, s{sT3}, 4")
    a(f"s_add_u32 s{sT3}, s{sT3}, s{sHead}")
    a(f"s_lshl_b32 s{sT3}, s{sT3}, 11")
    a(f"s_add_u32 s{sT3}, s{sT3}, {WS_O}")
    ldswait(a, "F_iw", 6, 4, 1)
    fstamp(a, 2)
    R = OO
    for j in range(1, 4):
        for aa in range(4):
            a(f"ds_read_b128 v[{OO+16*j+4*aa}:{OO+16*j+4*aa+3}], v{vT} offset:{4096*(j-1)+1024*aa}")
    for j in range(1, 4):
        a(f"s_waitcnt lgkmcnt({4*(3-j)})")
        for i in range(0, 16, 2): a(f"v_pk_add_f32 v[{R+i}:{R+i+1}], v[{R+i}:{R+i+1}], v[{OO+16*j+i}:{OO+16*j+i+1}]")
    a.c("check of the stand-in shift: every value finite and below 2^100, row sum above 2^-60; else redo with the true row max")
    a(f"v_add_f32 v{vT+2}, abs(v{R}), abs(v{R+1})")
    for i in range(2, 16):
        a(f"v_add_f32 v{vT+2}, v{vT+2}, abs(v{R+i})")
    a(f"v_cmp_lt_f32 vcc, {fhex(2.0**-60)}, v{R+12}")
    a(f"s_mov_b32 s{sT0}, vcc_hi")
    a(f"v_cmp_gt_f32 vcc, {fhex(2.0**100)}, v{vT+2}")
    a(f"s_and_b32 vcc_hi, vcc_hi, s{sT0}")
    a("s_cmp_eq_u64 vcc, -1")
    a("s_cbranch_scc0 F_slow")
    a.label("F_fin")
    a(f"v_mov_b32 v{vT+2}, v{R+12}")
    a(f"v_mov_b32 v{vT+3}, v{R+12}")
    a("s_nop 1")
    a(f"v_permlane32_swap_b32 v{vT+2}, v{vT+3}")
    a("s_nop 0")
    a(f"v_rcp_f32 v{vT+2}, v{vT+3}")
    a(f"v_rcp_f32 v{vT+3}, v{vT+3}")
    a(f"s_mov_b64 exec, s[{sUP}:{sUP+1}]")
    a(f"v_mov_b64 v[{R+12}:{R+13}], 0")
    a(f"v_mov_b64 v[{R+14}:{R+15}], 0")
    a("s_mov_b64 exec, -1")
    for i in range(0, 16, 2): a(f"v_pk_mul_f32 v[{R+i}:{R+i+1}], v[{R+i}:{R+i+1}], v[{vT+2}:{vT+3}]")
    for i in range(8): a(f"v_cvt_pk_bf16_f32 v{SS+i}, v{R+2*i}, v{R+2*i+1}")
    a(f"buffer_store_dwordx4 v[{SS}:{SS+3}], v{vL16}, s[{SWS}:{SWS+3}], s{sT3} offen sc1")
    a(f"buffer_store_dwordx4 v[{SS+4}:{SS+7}], v{vL16}, s[{SWS}:{SWS+3}], s{sT3} offen offset:1024 sc1")
    a(f"s_lshl_b32 s{sT3}, s{sQB}, 11")
    a(f"s_lshl_b32 s{sT0}, s{sHead}, 7")
    a(f"s_add_u32 s{sT3}, s{sT3}, s{sT0}")
    a(f"s_add_u32 s{sT3}, s{sT3}, {FO}")
    a.c("work for the tail while the stores fly")
    g2_tr(a)
    a(f"v_mov_b64 v[{WFG}:{WFG+1}], 0")
    a(f"v_mov_b64 v[{WFG+2}:{WFG+3}], 0")
    a("s_nop 1")
    for k in range(2):
        a(mf(GACC + 16 * k, WFG, WFG, None))
    if OPT.get("pw", "1") == "1":
        ldsadd(a, 2)
        a(f"v_mov_b32 v{vT+1}, 1")
        a(f"s_lshl_b32 s{sT0}, s{sW}, 2")
        a(f"s_add_u32 s{sT3}, s{sT3}, s{sT0}")
        a("s_mov_b64 exec, 1")
        a("s_waitcnt vmcnt(0)")
        a(f"buffer_store_dword v{vT+1}, v{vZ}, s[{SWS}:{SWS+3}], s{sT3} offen sc1")
        a("s_mov_b64 exec, -1")
    else:
        signal(a, "F_so", 2, sT3)
    fstamp(a, 3)
    a(f"s_cmp_ge_u32 s{sNT}, 7")
    a("s_cbranch_scc1 F_end")
    a("s_branch F_tail")
    a.label("F_slow")
    S2 = SS + 16
    a(f"v_mov_b32 v{vT+2}, 0xff800000")
    a(f"s_mov_b32 s{sOff}, 0")
    a(f"s_mov_b32 s{sOffV}, 0")
    a(f"s_mov_b64 exec, s[{sUP}:{sUP+1}]")
    a(f"v_mov_b64 v[{QF+6}:{QF+7}], 0")
    a("s_mov_b64 exec, -1")
    a.label("F_sl1")
    kvload(a, 0, SKH, SVH)
    a("s_waitcnt vmcnt(0)")
    a(mf(S2, KV, QF, None))
    a(mf(S2, KV + 4, QF + 4, S2))
    a("s_nop 15")
    maxtree(a, S2, vT + 2, first=False)
    a(f"s_cmp_lt_u32 s{sOff}, {HS}")
    a("s_cbranch_scc1 F_sl1")
    setpads(a, [vT + 2], [QF], vT + 4)
    for i in range(0, 16, 2): a(f"v_mov_b64 v[{R+i}:{R+i+1}], 0")
    a(f"s_mov_b32 s{sOff}, 0")
    a(f"s_mov_b32 s{sOffV}, 0")
    a.label("F_sl2")
    kvload(a, 0, SKH, SVH)
    a("s_waitcnt vmcnt(0)")
    a(mf(S2, KV, QF, None))
    a(mf(S2, KV + 4, QF + 4, S2))
    a("s_nop 15")
    for g in range(4):
        for l in expcvt(S2, PP, g): a(l)
    a("s_nop 1")
    a(mf(R, KV + 8, PP, R))
    a(mf(R, KV + 12, PP + 4, R))
    a(f"s_cmp_lt_u32 s{sOff}, {HS}")
    a("s_cbranch_scc1 F_sl2")
    a("s_nop 15")
    a("s_branch F_fin")

def g2h(a):
    a.label("F_g2")
    a(f"s_setprio {OPT.get('bp', '0')}")
    fstamp(a, 8)
    g2_ids(a)
    a(f"s_cmp_ge_u32 s{sNT}, 7")
    a("s_cbranch_scc1 F_end")
    a(f"s_load_dwordx2 s[{SWD}:{SWD+1}], s[0:1], 48")
    a(f"s_load_dwordx2 s[{SXO}:{SXO+1}], s[0:1], 16")
    a(f"s_lshl_b32 s{sRing}, s{sTT}, 14")
    a(f"s_add_u32 s{sRing}, s{sRing}, {WOB}")
    g2_tr(a)
    a(f"v_add_u32 v{vTr0+2}, s{sRing}, v{vTr0}")
    a(f"v_add_u32 v{vTr1+2}, s{sRing}, v{vTr1}")
    t1, t2, i_ = vT, vT + 1, vT + 2
    a(f"v_bfe_u32 v{t1}, v{vLane}, 4, 1")
    a(f"v_lshlrev_b32 v{t1}, 2, v{t1}")
    a(f"v_and_b32 v{t2}, 7, v{vLane}")
    a(f"v_xor_b32 v{t1}, v{t1}, v{t2}")
    a(f"v_lshrrev_b32 v{i_}, 3, v{vLane}")
    a(f"v_mul_u32_u24 v{vOff}, 896, v{i_}")
    a(f"v_lshl_add_u32 v{vOff}, v{t1}, 4, v{vOff}")
    for i in range(1, 4):
        a(f"v_add_u32 v{vOff+i}, {i*(7168-1024)}, v{vOff}")
    a(f"v_mov_b64 v[{WFG}:{WFG+1}], 0")
    a(f"v_mov_b64 v[{WFG+2}:{WFG+3}], 0")
    a(f"s_lshl_b32 s{sT2}, s{sNT}, 7")
    a(f"s_mul_i32 s{sWoff}, s{sTT}, {14*32*896}")
    a(f"s_add_u32 s{sWoff}, s{sWoff}, s{sT2}")
    for k in range(4):
        a(mf(GACC + 16 * k, WFG, WFG, None))
    a.c("local token tile 0 = tile w&1")
    a(f"s_mul_i32 s{sA0}, s{sMT}, {2*112*1024}")
    a(f"s_mul_i32 s{sT1}, s{sTT}, {28*1024}")
    a(f"s_add_u32 s{sA0}, s{sA0}, s{sT1}")
    a(f"s_add_u32 s{sA0}, s{sA0}, {WS_H}")
    a(f"s_add_u32 s{sT1}, s{sA0}, {112*1024}")
    a(f"s_bitcmp1_b32 s{sW}, 0")
    a(f"s_cselect_b32 s{sA1}, s{sA0}, s{sT1}")
    a(f"s_cselect_b32 s{sA0}, s{sT1}, s{sA0}")
    a(f"s_mov_b32 s{SWD+2}, {1792*896}")
    a(f"s_mov_b32 s{SWD+3}, 0x20000")
    a(f"s_movk_i32 s{sStep}, {32*896}")
    if OPT.get("rg", "0") == "1":
        a.c("start unit = (2nt + 3.5(mt&3)) mod 14: workgroups sharing h or w_down do not run in lockstep")
        a(f"s_mov_b32 s{sQB}, s{sWoff}")
        a(f"s_add_u32 s{sHead}, s{sWoff}, {14*32*896}")
        a(f"s_add_u32 s{sOff}, s{sA0}, {13*2048}")
        a(f"s_movk_i32 s{sOffV}, 2048")
        a(f"s_and_b32 s{sT0}, s{sMT}, 3")
        a(f"s_mul_i32 s{sT0}, s{sT0}, 7")
        a(f"s_lshr_b32 s{sT0}, s{sT0}, 1")
        a(f"s_lshl_b32 s{sT1}, s{sNT}, 1")
        a(f"s_add_u32 s{sT0}, s{sT0}, s{sT1}")
        a(f"s_cmp_ge_u32 s{sT0}, 14")
        a(f"s_cselect_b32 s{sT1}, 14, 0")
        a(f"s_sub_u32 s{sT0}, s{sT0}, s{sT1}")
        a(f"s_mul_i32 s{sT1}, s{sT0}, {32*896}")
        a(f"s_add_u32 s{sWoff}, s{sWoff}, s{sT1}")
        a(f"s_lshl_b32 s{sT1}, s{sT0}, 11")
        a(f"s_add_u32 s{sA0}, s{sA0}, s{sT1}")
        a(f"s_add_u32 s{sA1}, s{sA1}, s{sT1}")
    a(f"s_lshr_b32 s{sT3}, s{sMT}, 1")
    a(f"s_lshl_b32 s{sT3}, s{sT3}, 11")
    a(f"s_add_u32 s{sT3}, s{sT3}, {FH}")
    ldswait(a, "F_bw2", 1, 4)
    a(f"s_and_b32 s{SWD+1}, s{SWD+1}, 0xffff")
    for u in range(4): wdma(a, (u + 2) % 4)
    poll(a, "F_ph", f"s{sT3}", 14, False, int(OPT.get("sh", "4")), 4, 4, 4)
    a(f"s_setprio {OPT.get('bl', '0')}")
    fstamp(a, 9)
    for u in range(4): actld(a, (u + 2) % 4)
    a(f"s_mov_b32 s{sCnt}, 4")
    a("s_waitcnt vmcnt(4)")
    a("s_branch F_gmid")
    a.label("F_gloop")
    if OPT.get("gate", "0") != "0":
        a.c("the rest runs when the attention waves are (nearly) through: it then hides in their hand-off")
        a(f"s_cmp_lg_u32 s{sCnt}, {OPT.get('gate', '2')}")
        a("s_cbranch_scc1 F_gg")
        ldswait(a, "F_gw", 11, int(OPT.get("gn", "1")), 8)
        a.label("F_gg")
    a(f"s_cmp_lg_u32 s{sCnt}, 1")
    a("s_cbranch_scc1 F_gl2")
    a.c("last round: the weight stream continues with wo (heads 4tt..4tt+3), no more activations")
    a(f"s_mov_b32 s{SWD}, s{SXO}")
    a(f"s_and_b32 s{SWD+1}, s{SXO+1}, 0xffff")
    a(f"s_mov_b32 s{SWD+2}, {448*896}")
    a(f"s_movk_i32 s{sStep}, {28*896}")
    a(f"s_mul_i32 s{sWoff}, s{sTT}, {4*28*896}")
    a(f"s_add_u32 s{sWoff}, s{sWoff}, s{sT2}")
    a(f"s_mov_b32 s{sHead}, -1")
    a(f"s_mov_b32 s{sA0}, 0x40000000")
    a(f"s_mov_b32 s{sA1}, 0x40000000")
    a.label("F_gl2")
    for st in range(4):
        if st == 2: a.label("F_gmid")
        a("s_waitcnt vmcnt(24)")
        if OPT.get("x") != "1": unit(a, st)
        else: a("s_sleep 6")
        if OPT.get("x") != "2":
            actld(a, st)
            wdma(a, st)
        else: a("s_sleep 5")
    a(f"s_sub_u32 s{sCnt}, s{sCnt}, 1")
    a(f"s_cmp_lg_u32 s{sCnt}, 0")
    a("s_cbranch_scc1 F_gloop")
    a(f"s_setprio {OPT.get('be', '0')}")
    fstamp(a, 10)
    a.c("pair exchange: the other token tile goes to wave w^1")
    a(f"s_xor_b32 s{sT0}, s{sTT}, 1")
    a(f"s_lshl_b32 s{sT0}, s{sT0}, 13")
    a(f"s_add_u32 s{sT0}, s{sT0}, {XCH}")
    a(f"v_add_u32 v{vT}, s{sT0}, v{vL16}")
    a(f"v_xor_b32 v{vT+1}, 0x2000, v{vT}")
    for i in range(8):
        a(f"ds_write_b128 v{vT}, v[{GACC+32+4*i}:{GACC+32+4*i+3}] offset:{1024*i}")
    ldsadd(a, 7)
    ldswait(a, "F_xw", 7, 4, 4)
    for i in range(8):
        a(f"ds_read_b128 v[{GACC+32+4*i}:{GACC+32+4*i+3}], v{vT+1} offset:{1024*i}")
    a("s_waitcnt vmcnt(0) lgkmcnt(0)")
    ldsadd(a, 8)
    for i in range(0, 32, 2):
        a(f"v_pk_add_f32 v[{GACC+i}:{GACC+i+1}], v[{GACC+i}:{GACC+i+1}], v[{GACC+32+i}:{GACC+33+i}]")

def tail(a):
    a.label("F_tail")
    a(f"s_load_dwordx2 s[{SXO}:{SXO+1}], s[0:1], 0")
    a(f"s_load_dwordx2 s[{SWD}:{SWD+1}], s[0:1], 56")
    a(f"s_lshr_b32 s{sT3}, s{sMT}, 1")
    a(f"s_lshl_b32 s{sT3}, s{sT3}, 11")
    a(f"s_add_u32 s{sT3}, s{sT3}, {FO}")
    a.c("token tile 2mt + (w&1); heads 4kq..4kq+3")
    a(f"s_and_b32 s{sT2}, s{sW}, 1")
    a(f"s_lshl_b32 s{sT0}, s{sMT}, 1")
    a(f"s_add_u32 s{sT2}, s{sT2}, s{sT0}")
    a(f"s_lshl_b32 s{sA0}, s{sT2}, 15")
    a(f"s_lshl_b32 s{sT0}, s{sKQ}, 13")
    a(f"s_add_u32 s{sA0}, s{sA0}, s{sT0}")
    a(f"s_add_u32 s{sA0}, s{sA0}, {WS_O}")
    a(f"s_add_u32 s{sA1}, s{sA0}, 4096")
    a(f"s_mul_i32 s{sT2}, s{sT2}, {32*896}")
    a(f"s_lshl_b32 s{sT0}, s{sNT}, 7")
    a(f"s_add_u32 s{sT2}, s{sT2}, s{sT0}")
    a(f"s_lshl_b32 s{sT0}, s{sKQ}, 5")
    a(f"s_add_u32 s{sT2}, s{sT2}, s{sT0}")
    a(f"v_and_b32 v{vXo}, 31, v{vLane}")
    a(f"v_mul_u32_u24 v{vXo}, 896, v{vXo}")
    a(f"v_lshl_add_u32 v{vXo+1}, v{vH}, 3, v{vXo}")
    a(f"v_lshl_add_u32 v{vXo}, v{vH}, 4, v{vXo}")
    a(f"s_lshl_b32 s{sT0}, s{sKQ}, 14")
    a(f"s_add_u32 s{sT0}, s{sT0}, {WOB}")
    a(f"v_add_u32 v{vTr0}, s{sT0}, v{vTr0}")
    a(f"v_add_u32 v{vTr1}, s{sT0}, v{vTr1}")
    a(f"s_mov_b32 s{SXO+2}, {2048*896}")
    a(f"s_mov_b32 s{SXO+3}, 0x20000")
    a(f"s_mov_b32 s{SWD+2}, {2048*896}")
    a(f"s_mov_b32 s{SWD+3}, 0x20000")
    ldswait(a, "F_ww", 8, 4)
    a(f"s_and_b32 s{SXO+1}, s{SXO+1}, 0xffff")
    a(f"s_and_b32 s{SWD+1}, s{SWD+1}, 0xffff")
    a(f"buffer_load_dwordx2 v[{XRES}:{XRES+1}], v{vXo+1}, s[{SXO}:{SXO+3}], s{sT2} offen")
    a(f"buffer_load_dwordx2 v[{XRES+2}:{XRES+3}], v{vXo+1}, s[{SXO}:{SXO+3}], s{sT2} offen offset:16")
    for hd in range(4):
        for s_ in range(2):
            for tau in range(2):
                for t in range(2):
                    d = TW + 16 * hd + 8 * s_ + 4 * tau + 2 * t
                    a(f"ds_read_b64_tr_b16 v[{d}:{d+1}], v{vTr0 if tau == 0 else vTr1} offset:{hd*4096+s_*2048+t*1024}")
    a.c("final inbox addresses: local quarter i -> wave w ^ (2i), slot i-1")
    for i in range(1, 4):
        a(f"s_xor_b32 s{sT0}, s{sW}, {2*i}")
        a(f"s_mul_i32 s{sT0}, s{sT0}, 6144")
        a(f"v_add_u32 v{vOff+i}, s{sT0}, v{vL16}")
    a(f"s_mul_i32 s{sT0}, s{sW}, 6144")
    a(f"v_add_u32 v{vOff}, s{sT0}, v{vL16}")
    ldswait(a, "F_ow", 2, 4, 4)
    if OPT.get("pw", "1") == "1":
        a.c("flags of heads 4kq..4kq+3 for q tile 2(mt&1) + (w&1)")
        a(f"s_lshl_b32 s{sT0}, s{sKQ}, 9")
        a(f"s_add_u32 s{sT3}, s{sT3}, s{sT0}")
        a(f"s_and_b32 s{sT0}, s{sMT}, 1")
        a(f"s_lshl_b32 s{sT0}, s{sT0}, 3")
        a(f"s_add_u32 s{sT3}, s{sT3}, s{sT0}")
        a(f"s_and_b32 s{sT0}, s{sW}, 1")
        a(f"s_lshl_b32 s{sT0}, s{sT0}, 2")
        a(f"s_add_u32 s{sT3}, s{sT3}, s{sT0}")
        a(f"v_lshlrev_b32 v{vT+4}, 7, v{vLane}")
        a(f"s_mov_b32 s{sT1}, 0x8000")
        a("s_mov_b64 exec, 0xf")
        a.label("F_po_l")
        a(f"buffer_load_dword v{vT}, v{vT+4}, s[{SWS}:{SWS+3}], s{sT3} offen sc1")
        a("s_waitcnt vmcnt(0)")
        a(f"v_cmp_ne_u32 vcc, 1, v{vT}")
        a("s_cbranch_vccz F_po_ok")
        a(f"s_sub_u32 s{sT1}, s{sT1}, 1")
        a("s_cbranch_scc1 F_po_ok")
        a(f"s_sleep {OPT.get('so', '2')}")
        a("s_branch F_po_l")
        a.label("F_po_ok")
        a("s_mov_b64 exec, -1")
    else:
        poll(a, "F_po", f"s{sT3}", 16, False, int(OPT.get("so", "2")), 5, 4)
    fstamp(a, 4)
    for k in range(8):
        a(f"buffer_load_dwordx4 v[{ACT+4*k}:{ACT+4*k+3}], v{vL16}, s[{SWS}:{SWS+3}], s{sA0 if k < 4 else sA1} offen offset:{1024*(k&3)} sc1")
    R = 64
    a("s_waitcnt vmcnt(8)")
    for i in range(4):
        a(f"v_lshlrev_b32 v{R+2*i}, 16, v{XRES+i}")
        a(f"v_and_b32 v{R+2*i+1}, s{sMask}, v{XRES+i}")
    for k in range(8):
        a(f"s_waitcnt vmcnt({7-k})")
        for tau in range(2):
            acc = GACC + 16 * tau
            a(mf(acc, TW + 8 * k + 4 * tau, ACT + 4 * k, acc))
    fstamp(a, 5)
    a("s_nop 10")
    for i in range(1, 4):
        for c in range(2):
            r = GACC + 8 * i + 4 * c
            a(f"ds_write_b128 v{vOff+i}, v[{r}:{r+3}] offset:{2048*(i-1)+1024*c}")
    for i in range(8): a(f"v_add_f32 v{R+i}, v{R+i}, v{GACC+i}")
    a("s_waitcnt lgkmcnt(0)")
    a("s_barrier")
    D = GACC + 32
    for k in range(6):
        a(f"ds_read_b128 v[{D+4*k}:{D+4*k+3}], v{vOff} offset:{1024*k}")
    for i in range(3):
        a(f"s_waitcnt lgkmcnt({4-2*i})")
        for k in range(8): a(f"v_add_f32 v{R+k}, v{R+k}, v{D+8*i+k}")
    for i in range(4):
        a(f"v_cvt_pk_bf16_f32 v{XRES+i}, v{R+2*i}, v{R+2*i+1}")
    a("s_nop 1")
    a(f"v_permlane32_swap_b32 v{XRES}, v{XRES+2}")
    a(f"v_permlane32_swap_b32 v{XRES+1}, v{XRES+3}")
    a(f"buffer_store_dwordx4 v[{XRES}:{XRES+3}], v{vXo}, s[{SWD}:{SWD+3}], s{sT2} offen" + {"0": "", "1": " nt", "2": " sc1", "3": " sc0 sc1"}[OPT.get("os", "0")])
    a.label("F_end")
    fstamp(a, 7)
    a.stamp_flush(11, 0, sW, 8)
    a("s_endpgm")

def gen_fused(name):
    a = Asm()
    a("s_cmp_ge_u32 s2, 256")
    a("s_cbranch_scc1 F_exit")
    if OPT.get("scr") == "1":
        a("s_lshl_b32 s3, s2, 3")
        a("s_lshr_b32 s2, s2, 5")
        a("s_or_b32 s2, s2, s3")
        a("s_and_b32 s2, s2, 255")
    if OPT.get("scr") == "2":
        for sh, mul in ((3, 0x35), (4, 0x4d), (3, 1)):
            a(f"s_lshr_b32 s3, s2, {sh}")
            a("s_xor_b32 s2, s2, s3")
            a(f"s_mul_i32 s2, s2, {mul}")
            a("s_and_b32 s2, s2, 255")
    def endA(a):
        a(f"v_mov_b32 v{vZ}, 0")
        a.c("flag lanes: lane l<10 -> virtual head vh0 + (l>>1), part l&1 (0: holds its first column, 1: its last)")
        vh, col, ad = vT + 4, vT + 5, vT + 6
        a(f"s_mul_i32 s{sT2}, s{sCG}, 96")
        a(f"s_mul_i32 s{sT0}, s{sT2}, 2341")
        a(f"s_lshr_b32 s{sT0}, s{sT0}, 16")
        a(f"v_lshrrev_b32 v{vh}, 1, v{vLane}")
        a(f"v_add_u32 v{vh}, s{sT0}, v{vh}")
        a(f"v_and_b32 v{ad}, 1, v{vLane}")
        a(f"v_mul_u32_u24 v{col}, 27, v{ad}")
        a(f"v_mad_u32_u24 v{col}, v{vh}, 28, v{col}")
        a(f"v_subrev_u32 v{col}, s{sT2}, v{col}")
        a(f"v_cmp_gt_u32 vcc, 96, v{col}")
        a(f"v_lshlrev_b32 v{ad}, 4, v{ad}")
        a(f"v_lshrrev_b32 v{col}, 4, v{vh}")
        a(f"v_lshl_add_u32 v{ad}, v{col}, 2, v{ad}")
        a(f"v_and_b32 v{col}, 15, v{vh}")
        a(f"v_lshl_add_u32 v{ad}, v{col}, 11, v{ad}")
        a(f"v_cndmask_b32 v{ad}, -1, v{ad}, vcc")
        a(f"s_lshl_b32 s{sT3}, s{sRB}, 7")
        a(f"s_add_u32 s{sT3}, s{sT3}, {FQ}")
        xstamp(a, 3)
        signal(a, "F_sq", 0, sT3, ad, wb=OPT.get("sc1") == "0")
        fstamp(a, 6)
        attention(a)
    def endB(a):
        xstamp(a, 3)
        a(f"v_mov_b32 v{vZ}, 0")
        a(f"s_lshl_b32 s{sT3}, s{sRB}, 11")
        a(f"s_lshl_b32 s{sT0}, s{sCG}, 7")
        a(f"s_add_u32 s{sT3}, s{sT3}, s{sT0}")
        a(f"s_add_u32 s{sT3}, s{sT3}, {FH}")
        signal(a, "F_sh", 1, sT3, wb=OPT.get("hwb") == "1")
        g2h(a)
        tail(a)
    def endH(a):
        a.c("helper workgroups: wait for all helpers (flags are cleared by then), then take their roles")
        a(f"v_mov_b32 v{vZ}, 0")
        a.c("touch a slice of w_down / wo")
        a("s_load_dwordx2 s[4:5], s[0:1], 16")
        a("s_load_dwordx2 s[6:7], s[0:1], 48")
        a(f"s_lshl_b32 s{sT0}, s2, 3")
        a(f"s_add_u32 s{sT0}, s{sT0}, s{sW}")
        a(f"v_lshlrev_b32 v{vT+1}, 7, v{vLane}")
        a(f"s_mov_b32 s{SWD+2}, {448*896}")
        a("s_waitcnt lgkmcnt(0)")
        a(f"s_cmp_lt_u32 s{sT0}, 196")
        a(f"s_cselect_b32 s{SWD}, s6, s4")
        a(f"s_cselect_b32 s{SWD+1}, s7, s5")
        a(f"s_cselect_b32 s{SWD+2}, {1792*896}, s{SWD+2}")
        a(f"s_cselect_b32 s{sT1}, 0, 196")
        a(f"s_and_b32 s{SWD+1}, s{SWD+1}, 0xffff")
        a(f"s_mov_b32 s{SWD+3}, 0x20000")
        a(f"s_sub_u32 s{sT0}, s{sT0}, s{sT1}")
        a(f"s_lshl_b32 s{sT0}, s{sT0}, 13")
        a(f"buffer_load_dword v{vT+2}, v{vT+1}, s[{SWD}:{SWD+3}], s{sT0} offen")
        a(f"s_mov_b32 s{sT1}, 0x4000")
        a(f"s_cmp_lg_u32 s{sW}, 0")
        a("s_cbranch_scc1 F_hw_ok")
        a.label("F_hw")
        a("s_sleep 32")
        a(f"buffer_load_dword v{vT}, v{vZ}, s[{SDBG}:{SDBG+3}], 0 offen offset:128 sc1")
        a("s_waitcnt vmcnt(0)")
        a(f"v_readfirstlane_b32 s{sT0}, v{vT}")
        a(f"s_cmp_eq_u32 s{sT0}, 1")
        a("s_cbranch_scc1 F_hw_ok")
        a(f"s_sub_u32 s{sT1}, s{sT1}, 1")
        a("s_cbranch_scc0 F_hw")
        a.label("F_hw_ok")
        a("s_barrier")
        a(f"s_cmp_lt_u32 s{sW}, 4")
        a("s_cbranch_scc1 F_att")
        a("s_branch F_g2")
    p1.FUSED = True
    p1.KNAME = name
    p1.gen_p1(a, endA, endB, endH)
    a.label("F_exit")
    a("s_endpgm")
    return kernel_header(name) + a.text(), kernel_desc(name, 256, 64), LDS_F
```

```python
from asmlib import *
from consts import *
import math, os
OPT = dict(kv.split("=") for kv in os.environ.get("OPT", "").split(",") if kv)

XR = 0
FR = 98304
QR = 131072
LDS_P1 = QR + 4 * 6144
AUX = LDS_P1 + 64
SC1 = " sc1"
FUSED = False
KNAME = "k1_kernel"

SX, SWQ, SWA, SWS, SDBG = 16, 20, 24, 28, 56
sW, sRB, sCG, sTT = 32, 33, 34, 35
sOffX, sOffA, sOffQ, sRingA, sRingQ, sCnt = 36, 37, 38, 39, 40, 41
sT0, sT1, sT2, sT3 = 42, 43, 44, 45
sMask, sDelta = 46, 47
sTile, sRingX = 48, 49
sE48 = 50
sColA, sColQ, sRowX, sDq = 52, 53, 54, 55
vLane, vL16, vH, vR, vR2, vFlag = 1, 2, 3, 4, 5, 62
vTr0, vTr1 = 7, 8
vOffA, vOffA2, vOffQ = 9, 10, 11
vT = 12
vSt = 28
vOffQ2 = 40
vXk = 48
vOffX = 52
vZero = 54
WF = 64
XB = 96
XC = 112
RR = 192
ACC = 128

def pstamp(a, i):
    if FUSED and OPT.get("st", "2") in ("2", "4") and i != 0:
        return
    if OPT.get("st", "2") in ("3", "5") and i not in (0, 6):
        return
    a.stamp(i)

def mf(d, a, b):
    return f"v_mfma_f32_32x32x16_bf16 v[{d}:{d+15}], v[{a}:{a+3}], v[{b}:{b+3}], v[{d}:{d+15}]"

def wreadsA(slot, p):
    return [f"ds_read_b64_tr_b16 v[{WF+24*p+12*k+4*j+2*t}:{WF+24*p+12*k+4*j+2*t+1}], v{vTr0} offset:{slot*6144 + 3072*k + 64*j + 768*t}"
            for k in range(2) for j in range(3) for t in range(2)]

def wreadsB(slot, p):
    return [f"ds_read_b64_tr_b16 v[{WF+16*p+4*j+2*t}:{WF+16*p+4*j+2*t+1}], v{vTr0 if (j&1)==0 else vTr1} offset:{slot*8192 + (j>>1)*2048 + 512*t}"
            for j in range(4) for t in range(2)]

def dmaF(slot):
    g1 = [f"s_add_u32 m0, s{sRingA}, {slot*8192}",
          f"s_nop 0",
          f"buffer_load_dwordx4 v{vOffA}, s[{SWA}:{SWA+3}], s{sOffA} offen lds"]
    g2 = [f"buffer_load_dwordx4 v{vOffA2}, s[{SWA}:{SWA+3}], s{sOffA} offen offset:1024 lds",
          f"s_add_u32 s{sOffA}, s{sOffA}, {16*3584}"] + wrap(sOffA, 448 * 3584)
    return g1, g2

def dmaQ(slot):
    g1 = [f"s_add_u32 m0, s{sRingQ}, {slot*6144}",
          f"s_mov_b64 exec, s[{sE48}:{sE48+1}]",
          f"buffer_load_dwordx4 v{vOffQ}, s[{SWQ}:{SWQ+3}], s{sOffQ} offen lds",
          f"s_mov_b64 exec, -1"]
    g2 = [f"s_mov_b64 exec, s[{sE48}:{sE48+1}]",
          f"buffer_load_dwordx4 v{vOffQ2}, s[{SWQ}:{SWQ+3}], s{sOffQ} offen offset:768 lds",
          f"s_mov_b64 exec, -1",
          f"s_add_u32 s{sOffQ}, s{sOffQ}, {32*2688}"] + wrap(sOffQ, 448 * 2688)
    return g1, g2

sSM, sSG = 60, 62
sTab = 14
sXc, sRotA = 12, 13
ROT = OPT.get("rot", "5") != "0"

def wrap(reg, lim):
    return [f"s_cmp_ge_u32 s{reg}, {lim}", f"s_cselect_b32 s{sRotA}, {lim}, 0", f"s_sub_u32 s{reg}, s{reg}, s{sRotA}"] if ROT else []

def dmaX(q):
    x1 = [f"s_mov_b32 m0, s{sRingX}",
          f"s_add_u32 s{sRingX}, s{sRingX}, s{sSM+q}",
          f"buffer_load_dwordx4 v{vOffX}, s[{SX}:{SX+3}], s{sOffX} offen lds"]
    x2 = [f"buffer_load_dwordx4 v{vOffX+1}, s[{SX}:{SX+3}], s{sOffX} offen offset:1024 lds",
          f"s_add_u32 s{sOffX}, s{sOffX}, s{sSG+q}"]
    return x1, x2

def xwrap():
    if not ROT: return []
    return [f"s_add_u32 s{sXc}, s{sXc}, 128", f"s_cmp_eq_u32 s{sXc}, 896", f"s_cselect_b32 s{sXc}, 0, s{sXc}",
            f"s_cselect_b32 s{sT1}, 896, 0", f"s_sub_u32 s{sSG+1}, {(128-14336) & 0xffffffff}, s{sT1}"]

def foff(dst, ks):
    o = [f"s_add_u32 s{dst}, s{sColA}, {ks*16*3584}"]
    return o + wrap(dst, 448 * 3584)

def mmA(typ, p):
    out = []
    for k in range(2):
        for j in range(3):
            w, x = WF + 24 * p + 12 * k + 4 * j, XC + 8 * p + 4 * k
            out.append(mf(ACC + 16 * j, w, x) if typ[j] == "Q" else mf(ACC + 16 * j, x, w))
    return out

def mmB(p):
    return [mf(ACC + 64 * th + 16 * j, WF + 16 * p + 4 * j, XB + 8 * p + 4 * th) for j in range(4) for th in range(2)]

AXA = 188
AWA = 176
AXB = 28
AWB = 112

def call(a, cnt, lab, target):
    a(f"s_cmp_lg_u32 s{sCnt}, {cnt}")
    a(f"s_cbranch_scc1 {lab}")
    a(f"s_getpc_b64 s[{sT2}:{sT3}]")
    a(f"s_branch {target}")
    a.label(lab)

def ret(a):
    a(f"s_add_u32 s{sT2}, s{sT2}, 4")
    a(f"s_addc_u32 s{sT3}, s{sT3}, 0")
    a(f"s_setpc_b64 s[{sT2}:{sT3}]")

def loopA(a, typ):
    lab = f"P1_loopA_{typ}"
    a.label(lab)
    for q in range(2):
        p = q
        a("s_waitcnt vmcnt(12) lgkmcnt(0)")
        a("s_barrier")
        if OPT.get("st") == "5" and q == 0:
            for c_ in (7, 6, 5, 4, 3, 2, 1):
                a(f"s_cmp_lg_u32 s{sCnt}, {c_}")
                a(f"s_cbranch_scc1 {lab}_ls{c_}")
                k_ = {7: 1, 6: 2, 5: 3, 4: 4, 3: 5, 2: 9, 1: 10}[c_]
                a(f"s_memtime s[{64+2*k_}:{65+2*k_}]")
                a.label(f"{lab}_ls{c_}")
        mm = mmA(typ, p)
        if q == 0:
            a(f"s_cmp_gt_u32 s{sCnt}, 4")
            a(f"s_cbranch_scc1 {lab}_n0")
            a(f"s_getpc_b64 s[{sT2}:{sT3}]")
            a(f"s_branch P1_side")
            a.label(f"{lab}_n0")
        if q == 0:
            tail = [f"s_cmp_eq_u32 s{sCnt}, 2", f"s_cselect_b32 s{sT1}, {(-5*16384) & 0xffffffff}, s{sRowX}",
                    f"v_add_u32 v{vXk}, s{sT1}, v{vXk}", f"v_add_u32 v{vXk+1}, s{sT1}, v{vXk+1}",
                    f"v_add_u32 v{vXk+2}, s{sT1}, v{vXk+2}", f"v_add_u32 v{vXk+3}, s{sT1}, v{vXk+3}",
                    f"v_add_u32 v{vTr0}, s{sDq}, v{vTr0}"] + xwrap()
        else:
            tail = [f"s_add_u32 s{sRingA}, s{sRingA}, s{sDelta}", f"s_add_u32 s{sRingQ}, s{sRingQ}, s{sDq}",
                    f"s_sub_u32 s{sDelta}, 0, s{sDelta}", f"s_sub_u32 s{sDq}, 0, s{sDq}",
                    f"s_sub_u32 s{sCnt}, s{sCnt}, 1", f"s_cmp_lg_u32 s{sCnt}, 0"]
        ks0 = 2 if q == 0 else 0
        rx = [f"ds_read_b128 v[{XC+8*(p^1)+4*k}:{XC+8*(p^1)+4*k+3}], v{vXk+ks0+k}" for k in range(2)]
        wr_ = wreadsA(1 - q, p ^ 1)
        rd = [rx[0]] + wr_[:6] + [rx[1]] + wr_[6:]
        f1, f2 = dmaF(q)
        q1, q2 = dmaQ(q)
        x1, x2 = dmaX(q)
        seq = f1 + rd[:3] + [mm[0]] + f2 + rd[3:6] + [mm[1]] + q1 + rd[6:9] + [mm[2]] + q2 + rd[9:12] + [mm[3]] + x1 + rd[12:] + [mm[4]] + x2 + tail + [mm[5]]
        y = OPT.get("y", "0")
        if y == "1": seq = [l for l in seq if not l.startswith("buffer_load")]
        if y == "2": seq = [l for l in seq if not l.startswith("ds_read")]
        if y == "3": seq = [l for l in seq if "mfma" not in l]
        if y == "4":
            seq = rd[:4] + f1 + rd[4:8] + f2 + [mm[0]] + rd[8:11] + q1 + [mm[1]] + rd[11:] + q2 + [mm[2]] + x1 + [mm[3]] + x2 + [mm[4]] + tail + [mm[5]]
        if y == "5":
            seq = [mm[0]] + f1 + rd[:3] + [mm[1]] + f2 + rd[3:6] + [mm[2]] + q1 + rd[6:9] + [mm[3]] + q2 + rd[9:12] + [mm[4]] + x1 + rd[12:] + [mm[5]] + x2 + tail
        for l in seq: a(l)
    a(f"s_cbranch_scc1 {lab}")
    a(f"s_getpc_b64 s[{sT2}:{sT3}]")
    a("s_branch P1_auxA")
    for j in range(3):
        w, x = AWA + 4 * j, AXA
        a(mf(ACC + 16 * j, w, x) if typ[j] == "Q" else mf(ACC + 16 * j, x, w))

def pair_dma(a, base, ks):
    a(f"s_add_u32 s{sRingX}, s{sColQ}, {base}")
    for l in foff(sOffX, ks): a(l)
    for q in range(2):
        for g in dmaX(q):
            for l in g: a(l)

BTAB = [6, 7, 6, 7, 6, 7, 6, 7, 6, 1, 2, 3, 8, 7, 7]
NBAR = int(OPT.get("nbar", "19"))
assert 18 <= NBAR <= 21

def loopB(a):
    lab = "P1_loopB"
    if OPT.get("bl_"):
        a(".p2alignl 6, 0xbf800000")
        for k in range(int(OPT.get("bl_")) - 1): a("s_nop 0")
    a.label(lab)
    for q in range(2):
        p = q
        a(f"s_bitcmp0_b32 s{sDq}, {q}")
        a(f"s_cbranch_scc1 {lab}_b{q}")
        a("s_barrier")
        a.label(f"{lab}_b{q}")
        mm = mmB(p)
        if q == 0:
            tail = [f"s_bitcmp1_b32 s{sCnt}, 0", f"s_cselect_b32 s{sT1}, 16384, 0",
                    f"s_cmp_eq_u32 s{sCnt}, 3", f"s_cselect_b32 s{sT1}, {(-5*16384) & 0xffffffff}, s{sT1}",
                    f"v_xor_b32 v{vXk}, 64, v{vXk}", f"v_add_u32 v{vXk}, s{sT1}, v{vXk}", f"v_xor_b32 v{vXk+1}, 32, v{vXk}",
                    f"s_lshr_b64 s[{sTab}:{sTab+1}], s[{sTab}:{sTab+1}], 4", f"s_and_b32 s{sT1}, s{sTab}, 15", f"s_lshl_b32 s{sT1}, s{sT1}, 14",
                    f"v_add_u32 v{vTr0}, s{sT1}, v{vOffA}", f"v_add_u32 v{vTr1}, s{sT1}, v{vOffA2}"]
        else:
            tail = [f"s_lshr_b32 s{sDq}, s{sDq}, 2", f"s_sub_u32 s{sCnt}, s{sCnt}, 1", f"s_cmp_lg_u32 s{sCnt}, 0"]
        xa = vXk + 1 if q == 0 else vXk
        rx = [f"ds_read_b128 v[{XB+8*(p^1)+4*th}:{XB+8*(p^1)+4*th+3}], v{xa} offset:{4096*th}" for th in range(2)]
        wr_ = wreadsB(1 - q, p ^ 1)
        rd = [rx[0]] + wr_[:2] + [rx[1]] + wr_[2:]
        nr = [2, 2, 2, 2, 2, 0, 0]
        for g in range(8):
            a(mm[g])
            if g == 0 and (q == 1 or OPT.get("s2", "0") == "1"):
                a(f"s_cmp_gt_u32 s{sCnt}, s{sColQ}")
                a(f"s_cbranch_scc1 {lab}_n{q}")
                a(f"s_getpc_b64 s[{sT2}:{sT3}]")
                a(f"s_branch P1_sideB" + ("" if q == 1 else "q"))
                a.label(f"{lab}_n{q}")
            if g < 7:
                for l in rd[:nr[g]]: a(l)
                rd = rd[nr[g]:]
            if g == 5:
                for l in tail[:len(tail)//2]: a(l)
            if g == 6:
                for l in tail[len(tail)//2:]: a(l)
        assert not rd
        a("s_waitcnt lgkmcnt(0)")
    a(f"s_cbranch_scc1 {lab}")
    if OPT.get("st") == "3": a.stamp(2)
    a.c("column-sum words still all-ones were not written yet: load again")
    a(f"s_mov_b32 s{sDq}, 0x2000")
    a.label("P1_bchk")
    a("s_waitcnt vmcnt(0) lgkmcnt(0)")
    a(f"v_max3_u32 v{vT+4}, v{AWB}, v{AWB+1}, v{AWB+2}")
    for i in range(3, 15, 2):
        a(f"v_max3_u32 v{vT+4}, v{vT+4}, v{AWB+i}, v{AWB+i+1}")
    a(f"v_max_u32 v{vT+4}, v{vT+4}, v{AWB+15}")
    a(f"v_cmp_eq_u32 vcc, -1, v{vT+4}")
    a("s_cbranch_vccz P1_bok")
    a(f"s_sub_u32 s{sDq}, s{sDq}, 1")
    a("s_cbranch_scc1 P1_bok")
    a("s_sleep 8")
    a(f"s_getpc_b64 s[{sT2}:{sT3}]")
    a("s_branch P1_auxB")
    a("s_branch P1_bchk")
    a.label("P1_bok")
    for j in range(4):
        for th in range(2):
            a(mf(ACC + 64 * th + 16 * j, AWB + 4 * j, AXB + 4 * th))

def waitgo(a, name, which, sleep):
    a(f"s_mov_b32 s{sT1}, 0x4000")
    a.label(f"{name}_l")
    a(f"v_readfirstlane_b32 s{sT0}, v{vFlag+which}")
    a(f"s_cmp_eq_u32 s{sT0}, 1")
    a(f"s_cbranch_scc1 {name}_ok")
    a(f"s_sub_u32 s{sT1}, s{sT1}, 1")
    a(f"s_cbranch_scc1 {name}_ok")
    a(f"buffer_load_dwordx2 v[{vFlag}:{vFlag+1}], v{vZero}, s[{SDBG}:{SDBG+3}], 0 offen offset:128 sc1")
    a(f"s_sleep {sleep}")
    a("s_waitcnt vmcnt(0)")
    a(f"s_branch {name}_l")
    a.label(f"{name}_ok")

def aux_blocks(a):
    a.c("A side jobs at the top of bodies 3..6 (cnt 4..1)")
    a.label("P1_side")
    a(f"s_cmp_lg_u32 s{sCnt}, 4")
    a("s_cbranch_scc1 P1_s3")
    a(f"s_lshl_b32 s{sRingX}, s{sTT}, 12")
    ret(a)
    a.label("P1_s3")
    a(f"s_cmp_lg_u32 s{sCnt}, 3")
    a("s_cbranch_scc1 P1_s2")
    a.c("the x stream now carries gate/up rows: k-steps 18,19 -> x slot 1")
    a(f"s_mov_b64 s[{SX}:{SX+1}], s[{SWA}:{SWA+1}]")
    a(f"s_mov_b32 s{SX+2}, s{SWA+2}")
    a(f"v_mov_b32 v{vOffX}, v{vOffA}")
    a(f"v_mov_b32 v{vOffX+1}, v{vOffA2}")
    a(f"s_mov_b32 s{sSM}, 8192")
    a(f"s_mov_b32 s{sSM+1}, 8192")
    a(f"s_mov_b32 s{sSG}, {16*3584}")
    a(f"s_mov_b32 s{sSG+1}, {16*3584}")
    a(f"s_add_u32 s{sRingX}, s{sColQ}, 16384")
    for l in foff(sOffX, 18): a(l)
    ret(a)
    a.label("P1_s2")
    a(f"s_cmp_lg_u32 s{sCnt}, 2")
    a("s_cbranch_scc1 P1_s1")
    a(f"s_mov_b32 s{sRingX}, 0x30000")
    a(f"s_mov_b32 s{sOffX}, 0x40000000")
    a(f"s_mov_b32 s{sRingQ}, 0x34000")
    a(f"s_mov_b32 s{SWQ+2}, 0")
    ret(a)
    a.label("P1_s1")
    a(f"s_add_u32 s{sRingX}, s{sColQ}, 32768")
    for l in foff(sOffX, 20): a(l)
    ret(a)
    a.label("P1_auxA")
    a(f"v_and_b32 v{vT}, 0x1f0, v{vL16}")
    a(f"s_lshl_b32 s{sT0}, s{sTT}, 9")
    a(f"s_add_u32 s{sT0}, s{sT0}, {AUX}")
    a(f"v_add_u32 v{vT+1}, s{sT0}, v{vT}")
    a(f"s_lshl_b32 s{sT0}, s{sTT}, 7")
    a(f"s_add_u32 s{sT0}, s{sT0}, {AUX+3584}")
    a(f"v_lshrrev_b32 v{vT+2}, 2, v{vT}")
    a(f"v_add_u32 v{vT+2}, s{sT0}, v{vT+2}")
    a(f"v_lshl_add_u32 v{vT+3}, v{vH}, 4, s{sT0}")
    a(f"v_add_u32 v{vT}, {AUX+2048}, v{vT}")
    a(f"v_mov_b64 v[{AXA}:{AXA+1}], 0")
    a(f"v_mov_b64 v[{AXA+2}:{AXA+3}], 0")
    a("s_waitcnt vmcnt(12) lgkmcnt(0)")
    a("s_barrier")
    pair_dma(a, QR, 24)
    a(f"v_mov_b32 v{vT+4}, {LDS_P1+36}")
    a(f"s_mov_b32 s{sT1}, 0x100000")
    a.label("P1_aw")
    a(f"ds_read_b32 v{vT+5}, v{vT+4}")
    a("s_waitcnt lgkmcnt(0)")
    a(f"v_readfirstlane_b32 s{sT0}, v{vT+5}")
    a(f"s_sub_u32 s{sT1}, s{sT1}, 1")
    a(f"s_cselect_b32 s{sT0}, 1, s{sT0}")
    a(f"s_cmp_eq_u32 s{sT0}, 1")
    a("s_cbranch_scc1 P1_aw_ok")
    a("s_sleep 2")
    a("s_branch P1_aw")
    a.label("P1_aw_ok")
    a("s_mov_b32 exec_hi, 0")
    a(f"ds_read_b128 v[{AXA}:{AXA+3}], v{vT+1}")
    a("s_mov_b32 exec_hi, -1")
    for j in range(3):
        a(f"ds_read_b128 v[{AWA+4*j}:{AWA+4*j+3}], v{vT} offset:{512*j}")
    a(f"ds_read_b32 v{vR}, v{vT+2}")
    for aa in range(4):
        a(f"ds_read_b128 v[{RR+4*aa}:{RR+4*aa+3}], v{vT+3} offset:{32*aa}")
    a("s_waitcnt lgkmcnt(0)")
    ret(a)
    a.c("B side jobs. wave 4: wait for the helpers' start flag, then fetch their operands until all words are written; put them into LDS")
    AL = 28
    SB = int(OPT.get('sb', '4'))
    a.label("P1_sideBq")
    a(f"s_cmp_le_u32 s{sCnt}, 8")
    a("s_cbranch_scc1 P1_sbr")
    a.label("P1_sideB")
    a(f"s_cmp_le_u32 s{sCnt}, {SB}")
    a("s_cbranch_scc1 P1_auxB")
    a(f"s_movk_i32 s{sT1}, 0x2000")
    a.label("P1_sb0")
    a(f"s_cmp_lg_u32 s{sCnt}, 8")
    a("s_cbranch_scc1 P1_sbn")
    a("s_waitcnt vmcnt(0)")
    a.label("P1_sbn")
    a(f"s_getreg_b32 s{sT0}, hwreg(HW_REG_IB_STS)")
    a(f"s_and_b32 s{sT0}, s{sT0}, 0x00c0000f")
    a("s_cbranch_scc1 P1_sbr")
    a(f"v_readfirstlane_b32 s{sT0}, v{vFlag}")
    a(f"s_cmp_eq_u32 s{sT0}, 1")
    a("s_cbranch_scc1 P1_sbd")
    a(f"buffer_load_dwordx2 v[{vFlag}:{vFlag+1}], v{vZero}, s[{SDBG}:{SDBG+3}], 0 offen offset:128 sc1")
    if OPT.get("sl", "9") != "0": a(f"s_min_u32 s{sColQ}, s{sColQ}, {OPT.get('sl', '9')}")
    a.label("P1_sba")
    a(f"s_cmp_lg_u32 s{sCnt}, 8")
    a("s_cbranch_scc1 P1_sbr")
    a(f"s_sub_u32 s{sT1}, s{sT1}, 1")
    a("s_cbranch_scc0 P1_sb0")
    a("s_branch P1_sbw")
    a.label("P1_sbr")
    ret(a)
    a.label("P1_sbd")
    a(f"v_max3_u32 v{vT+4}, v{AL}, v{AL+1}, v{AL+2}")
    for i in range(3, 15, 2):
        a(f"v_max3_u32 v{vT+4}, v{vT+4}, v{AL+i}, v{AL+i+1}")
    a(f"v_max_u32 v{vT+4}, v{vT+4}, v{AL+15}")
    a(f"v_cmp_eq_u32 vcc, -1, v{vT+4}")
    a("s_cbranch_vccz P1_sbw")
    a(f"s_lshl_b32 s{sT0}, s{sRB}, 11")
    a(f"s_add_u32 s{sT0}, s{sT0}, {WS_AX}")
    a(f"buffer_load_dwordx4 v[{AL}:{AL+3}], v{vL16}, s[{SWS}:{SWS+3}], s{sT0} offen sc1")
    a(f"buffer_load_dwordx4 v[{AL+4}:{AL+7}], v{vL16}, s[{SWS}:{SWS+3}], s{sT0} offen offset:1024 sc1")
    a(f"s_mul_i32 s{sT0}, s{sCG}, {96*16}")
    a(f"s_add_u32 s{sT0}, s{sT0}, {WS_AW}")
    a(f"buffer_load_dwordx4 v[{AL+8}:{AL+11}], v{vL16}, s[{SWS}:{SWS+3}], s{sT0} offen sc1")
    a("s_mov_b32 exec_hi, 0")
    a(f"buffer_load_dwordx4 v[{AL+12}:{AL+15}], v{vL16}, s[{SWS}:{SWS+3}], s{sT0} offen offset:1024 sc1")
    a(f"s_lshl_b32 s{sT0}, s{sRB}, 9")
    a(f"s_add_u32 s{sT0}, s{sT0}, {WS_AR-512}")
    a("s_not_b64 exec, exec")
    a(f"buffer_load_dwordx4 v[{AL+12}:{AL+15}], v{vL16}, s[{SWS}:{SWS+3}], s{sT0} offen sc1")
    a("s_mov_b64 exec, -1")
    a("s_branch P1_sba")
    a.label("P1_sbw")
    if OPT.get("st") == "3": a("s_memtime s[66:67]")
    a(f"v_add_u32 v{vT+4}, {AUX}, v{vL16}")
    for k in range(4):
        a(f"ds_write_b128 v{vT+4}, v[{AL+4*k}:{AL+4*k+3}] offset:{1024*k}")
    a(f"v_mov_b32 v{vT+4}, {LDS_P1+36}")
    a(f"v_mov_b32 v{vT+5}, 1")
    a(f"ds_write_b32 v{vT+4}, v{vT+5}")
    a(f"s_movk_i32 s{sColQ}, {SB}")
    ret(a)
    a.label("P1_auxB")
    a(f"s_mov_b32 s{sColQ}, 0")
    a(f"v_and_b32 v{vT}, 0x1f0, v{vL16}")
    a(f"s_lshl_b32 s{sT0}, s{sCG}, 1")
    a(f"s_lshr_b32 s{sT1}, s{sTT}, 1")
    a(f"s_add_u32 s{sT0}, s{sT0}, s{sT1}")
    a(f"s_lshl_b32 s{sT0}, s{sT0}, 10")
    a(f"s_add_u32 s{sT0}, s{sT0}, {WS_AW+AW_G}")
    a(f"s_add_u32 s{sT1}, s{sT0}, {AW_U-AW_G}")
    for j in range(4):
        a(f"buffer_load_dwordx4 v[{AWB+4*j}:{AWB+4*j+3}], v{vT}, s[{SWS}:{SWS+3}], s{sT0 if j < 2 else sT1} offen offset:{512*(j&1)} sc1")
    a(f"s_and_b32 s{sT1}, s{sTT}, 1")
    a(f"s_lshl_b32 s{sT0}, s{sT1}, 10")
    a(f"s_add_u32 s{sT0}, s{sT0}, {AUX}")
    a(f"v_add_u32 v{vT+1}, s{sT0}, v{vT}")
    a(f"s_lshl_b32 s{sT0}, s{sT1}, 8")
    a(f"s_add_u32 s{sT0}, s{sT0}, {AUX+3584}")
    a(f"v_lshrrev_b32 v{vT+2}, 2, v{vT}")
    a(f"v_add_u32 v{vT+2}, s{sT0}, v{vT+2}")
    for k in range(0, 8, 2):
        a(f"v_mov_b64 v[{AXB+k}:{AXB+k+1}], 0")
    a(f"ds_read_b32 v{vR}, v{vT+2}")
    a(f"ds_read_b32 v{vR2}, v{vT+2} offset:128")
    a("s_mov_b32 exec_hi, 0")
    for th in range(2):
        a(f"ds_read_b128 v[{AXB+4*th}:{AXB+4*th+3}], v{vT+1} offset:{512*th}")
    a("s_mov_b32 exec_hi, -1")
    ret(a)

def epi_B(a):
    c0 = -2.0 * math.sqrt(2.0 / math.pi) * math.log2(math.e)
    c1 = c0 * 0.044715
    a.c("epilogue B: gelu(g)*u")
    if OPT.get("gp", "2") != "0": a(f"s_setprio {OPT.get('gp', '2')}")
    a(f"s_and_b32 s{sT1}, s{sTT}, 1")
    a(f"s_lshl_b32 s{sT1}, s{sT1}, 1")
    a(f"s_lshl_b32 s{sT2}, s{sRB}, 2")
    a(f"s_add_u32 s{sT1}, s{sT1}, s{sT2}")
    a(f"s_mul_i32 s{sT1}, s{sT1}, 112")
    a(f"s_lshl_b32 s{sT2}, s{sCG}, 3")
    a(f"s_add_u32 s{sT1}, s{sT1}, s{sT2}")
    a(f"s_lshr_b32 s{sT2}, s{sTT}, 1")
    a(f"s_lshl_b32 s{sT2}, s{sT2}, 2")
    a(f"s_add_u32 s{sT1}, s{sT1}, s{sT2}")
    a(f"s_lshl_b32 s{sT1}, s{sT1}, 10")
    a(f"s_add_u32 s{sT1}, s{sT1}, {WS_H}")
    a(f"s_add_u32 s{sT2}, s{sT1}, {112*1024}")
    KC = 28
    for th in range(2):
        k0, k1, ir2 = KC + 6 * th, KC + 6 * th + 2, KC + 6 * th + 4
        r = vR if th == 0 else vR2
        a(f"v_mul_f32 v{ir2}, v{r}, v{r}")
        a(f"v_mul_f32 v{k0}, {fhex(c0)}, v{r}")
        a(f"v_mul_f32 v{k1}, v{ir2}, v{r}")
        a(f"v_mul_f32 v{k1}, {fhex(c1)}, v{k1}")
        a(f"v_rcp_f32 v{ir2}, v{ir2}")
        a(f"v_mov_b32 v{k0+1}, v{k0}")
        a(f"v_mov_b32 v{k1+1}, v{k1}")
        a(f"v_mov_b32 v{ir2+1}, v{ir2}")
    T = vT
    held = []
    pr = lambda r: f"v[{r}:{r+1}]"
    for th in range(2):
        k0, k1, ir2 = KC + 6 * th, KC + 6 * th + 2, KC + 6 * th + 4
        for p in range(2):
            G = ACC + 64 * th + 16 * p
            U = G + 32
            out = WF + 8 * (2 * th + p)
            for i0 in range(0, 16, 8):
                for k in range(0, 8, 2): a(f"v_pk_mul_f32 {pr(T+k)}, {pr(G+i0+k)}, {pr(G+i0+k)}")
                for k in range(0, 8, 2): a(f"v_pk_fma_f32 {pr(T+k)}, {pr(T+k)}, {pr(k1)}, {pr(k0)}")
                for k in range(0, 8, 2): a(f"v_pk_mul_f32 {pr(T+k)}, {pr(T+k)}, {pr(G+i0+k)}")
                for k in range(8): a(f"v_exp_f32 v{T+k}, v{T+k}")
                for k in range(0, 8, 2): a(f"v_pk_mul_f32 {pr(U+i0+k)}, {pr(U+i0+k)}, {pr(G+i0+k)}")
                for k in range(0, 8, 2): a(f"v_pk_fma_f32 {pr(T+k)}, {pr(T+k)}, {pr(ir2)}, {pr(ir2)}")
                for k in range(8): a(f"v_rcp_f32 v{T+k}, v{T+k}")
                a("s_nop 0")
                for k in range(0, 8, 2): a(f"v_pk_mul_f32 {pr(U+i0+k)}, {pr(U+i0+k)}, {pr(T+k)}")
                for k in range(4): a(f"v_cvt_pk_bf16_f32 v{out+i0//2+k}, v{U+i0+2*k}, v{U+i0+2*k+1}")
                s = i0 // 8
                so = sT1 if th == 0 else sT2
                st_ = f"buffer_store_dwordx4 v[{out+4*s}:{out+4*s+3}], v{vL16}, s[{SWS}:{SWS+3}], s{so} offen offset:{(2*p+s)*1024}" + ("" if OPT.get("hwb") == "1" else " sc1")
                if OPT.get("hold", "1") == "1": held.append(st_)
                else: a(st_)
    if held:
        a.c("the h stores wait until the attention waves have their first loads out")
        a(f"s_setprio {OPT.get('bp', '0')}")
        if OPT.get("st") == "3": a.stamp(4)
        a(f"v_mov_b32 v{vT+8}, {LDS_P1+40}")
        a(f"s_mov_b32 s{sT3}, 0x100000")
        a.label("P1_hw")
        a(f"ds_read_b32 v{vT+9}, v{vT+8}")
        a("s_waitcnt lgkmcnt(0)")
        a(f"v_readfirstlane_b32 s{sT0}, v{vT+9}")
        a(f"s_sub_u32 s{sT3}, s{sT3}, 1")
        a(f"s_cselect_b32 s{sT0}, 4, s{sT0}")
        a(f"s_cmp_ge_u32 s{sT0}, 4")
        a("s_cbranch_scc1 P1_hw_ok")
        a("s_sleep 2")
        a("s_branch P1_hw")
        a.label("P1_hw_ok")
        if OPT.get("st") == "3": a.stamp(5)
        for k, l in enumerate(held):
            a(l)
            if OPT.get("pace", "0") != "0" and k < 7: a(f"s_sleep {OPT.get('pace')}")

def STF():
    return SC1 if OPT.get("sc1", "1") == "1" else ""

def epi_A(a):
    a.c("epilogue A")
    a(f"s_mul_i32 s{sT0}, s{sCG}, 3")
    for j in range(3):
        a(f"s_cmp_lt_u32 s{sT0}, {14-j}")
        a(f"s_cselect_b32 s{sT1}, {fhex(QSCALE)}, 1.0")
        a(f"v_mul_f32 v{vT+6+2*j}, s{sT1}, v{vR}")
        a(f"v_mul_f32 v{vT+7+2*j}, s{sT1}, v{vR}")
    P0, P1 = vT + 4, vT + 5
    a(f"v_mov_b32 v{P0}, 0x3f803f80")
    a(f"v_mov_b32 v{P1}, 0x00003f80")
    a(f"s_mul_i32 s{sT2}, s{sTile}, {VT}")
    a(f"s_lshl_b32 s{sT3}, s{sT0}, 9")
    a(f"s_add_u32 s{sT2}, s{sT2}, s{sT3}")
    a(f"s_add_u32 s{sT2}, s{sT2}, {WS_V - 28*512}")
    a(f"s_add_u32 s{sT3}, s{sT2}, {VT//2}")
    for j in range(3):
        A = ACC + 16 * j
        out = WF + 12 * j
        a(f"s_cmp_ge_u32 s{sT0}, {28-j}")
        a(f"s_cbranch_scc1 P1_eV{j}")
        for i in range(0, 16, 2):
            a(f"v_pk_mul_f32 v[{A+i}:{A+i+1}], v[{A+i}:{A+i+1}], v[{vT+6+2*j}:{vT+7+2*j}]")
        for i in range(8):
            a(f"v_cvt_pk_bf16_f32 v{out+6*(i>>2)+(i&3)}, v{A+2*i}, v{A+2*i+1}")
        for pp in range(2):
            a(f"v_mov_b64 v[{out+6*pp+4}:{out+6*pp+5}], v[{P0}:{P1}]")
            a(f"v_cmp_gt_i32 s[{4+2*pp}:{5+2*pp}], 0, v{vSt+6+2*j+pp}")
        for pp in range(2):
            o = out + 6 * pp
            a(f"v_permlane32_swap_b32 v{o}, v{o+2}")
            a(f"v_permlane32_swap_b32 v{o+1}, v{o+3}")
        if j == 0: bar15(a)
        for pp in range(2):
            o = out + 6 * pp
            a(f"s_cmp_eq_u64 s[{4+2*pp}:{5+2*pp}], -1")
            a(f"s_cbranch_scc1 P1_eS{j}{pp}")
            a(f"buffer_store_dwordx4 v[{o+2}:{o+5}], v{vSt+6+2*j+pp}, s[{SWS}:{SWS+3}], 0 offen{STF()}")
            a(f"s_not_b64 exec, s[{4+2*pp}:{5+2*pp}]")
            a("s_nop 0")
            a(f"v_mov_b64 v[{o+2}:{o+3}], v[{P0}:{P1}]")
            a("s_mov_b64 exec, -1")
            a.label(f"P1_eS{j}{pp}")
            a(f"buffer_store_dwordx4 v[{o}:{o+3}], v{vSt+2*j+pp}, s[{SWS}:{SWS+3}], 0 offen{STF()}")
        if j == 1: a("s_waitcnt vmcnt(4)")
        a(f"s_branch P1_eN{j}")
        a.label(f"P1_eV{j}")
        for i in range(0, 16, 2):
            a(f"v_pk_mul_f32 v[{A+i}:{A+i+1}], v[{A+i}:{A+i+1}], v[{RR+i}:{RR+i+1}]")
        for i in range(8):
            a(f"v_cvt_pk_bf16_f32 v{out+i}, v{A+2*i}, v{A+2*i+1}")
        if j == 0: bar15(a)
        for s in range(2):
            a(f"buffer_store_dwordx4 v[{out+4*s}:{out+4*s+3}], v{vT+12}, s[{SWS}:{SWS+3}], s{sT2+s} offen offset:{512*j}{STF()}")
        if j == 1: a("s_waitcnt vmcnt(4)")
        a.label(f"P1_eN{j}")
        if j == 1:
            if OPT.get("st") == "3": a.stamp(4)
            a("s_barrier")
            if OPT.get("st") == "3": a.stamp(5)

def bar15(a):
    a("s_waitcnt vmcnt(4)")
    if OPT.get("st") == "3": a.stamp(1)
    a("s_barrier")
    pair_dma(a, 3 * 16384, 22)
    pair_dma(a, FR + 16384, 26)
    if OPT.get("st") == "3": a.stamp(2)

def split3(a, src, t, o1, o2, o3):
    a(f"v_and_b32 v{o1}, s{sMask}, v{src}")
    a(f"v_sub_f32 v{t}, v{src}, v{o1}")
    a(f"v_and_b32 v{o2}, s{sMask}, v{t}")
    a(f"v_sub_f32 v{t}, v{t}, v{o2}")
    a(f"v_and_b32 v{o3}, s{sMask}, v{t}")

def helper(a):
    sHid, sU, sPass = sCnt, sRingA, sRingQ
    a.label("P1_help")
    a(f"s_lshl_b32 s{sHid}, s{sRB}, 1")
    a(f"s_add_u32 s{sHid}, s{sHid}, s{sCG}")
    a(f"s_sub_u32 s{sHid}, s{sHid}, 14")
    a.c("wave 0: clear this launch's flags, mark everything this helper will publish as not written")
    a(f"v_mov_b64 v[92:93], -1")
    a(f"v_mov_b64 v[94:95], -1")
    a(f"s_lshl_b32 s{sT0}, s{sW}, 5")
    a(f"s_add_u32 s{sT0}, s{sT0}, s{sHid}")
    a(f"s_cmp_lt_u32 s{sT0}, 77")
    a(f"s_cselect_b32 s{sT1}, {WS_AW}, -1")
    a(f"s_cselect_b32 s{sT0}, s{sT0}, 0")
    a(f"s_lshl_b32 s{sT0}, s{sT0}, 10")
    a(f"s_add_u32 s{sOffQ}, s{sT0}, s{sT1}")
    a(f"s_cmp_lg_u32 s{sW}, 0")
    a("s_cbranch_scc1 P1_hc")
    a(f"buffer_store_dwordx4 v[92:95], v{vL16}, s[{SWS}:{SWS+3}], s{sOffQ} offen sc1")
    a(f"s_add_u32 s{sT0}, s{sOffQ}, 32768")
    a(f"buffer_store_dwordx4 v[92:95], v{vL16}, s[{SWS}:{SWS+3}], s{sT0} offen sc1")
    a(f"s_add_u32 s{sT0}, s{sOffQ}, 65536")
    a(f"buffer_store_dwordx4 v[92:95], v{vL16}, s[{SWS}:{SWS+3}], s{sT0} offen sc1")
    a(f"s_lshl_b32 s{sT0}, s{sHid}, 10")
    a(f"s_add_u32 s{sT0}, s{sT0}, {WS_AX}")
    a(f"buffer_store_dwordx4 v[92:95], v{vL16}, s[{SWS}:{SWS+3}], s{sT0} offen sc1")
    a(f"s_lshl_b32 s{sT0}, s{sHid}, 8")
    a(f"s_add_u32 s{sT0}, s{sT0}, {WS_AR}")
    a("s_mov_b64 exec, 0xffff")
    a(f"buffer_store_dwordx4 v[92:95], v{vL16}, s[{SWS}:{SWS+3}], s{sT0} offen sc1")
    a(f"s_mul_i32 s{sT0}, s{sHid}, 3072")
    a(f"s_add_u32 s{sT0}, s{sT0}, {WS_FLAG}")
    a(f"s_mov_b64 exec, s[{sE48}:{sE48+1}]")
    a(f"v_lshrrev_b32 v60, 1, v{vLane}")
    a(f"v_mul_u32_u24 v60, 96, v60")
    a(f"v_add_u32 v60, v60, v{vL16}")
    a(f"buffer_store_dwordx4 v[{vT+8}:{vT+11}], v60, s[{SWS}:{SWS+3}], s{sT0} offen sc1")
    a(f"v_mov_b32 v61, 1")
    a("s_mov_b64 exec, 1")
    a("s_waitcnt vmcnt(0)")
    a(f"buffer_atomic_add v61, v{vZero}, s[{SDBG}:{SDBG+3}], 0 offen sc0 sc1")
    a("s_waitcnt vmcnt(0)")
    a(f"v_readfirstlane_b32 s{sT0}, v61")
    a(f"v_mov_b32 v61, 1")
    a(f"s_cmp_lg_u32 s{sT0}, 31")
    a("s_cbranch_scc1 P1_hg")
    a(f"buffer_store_dword v61, v{vZero}, s[{SDBG}:{SDBG+3}], 0 offen offset:128 sc1")
    a.label("P1_hg")
    a("s_mov_b64 exec, -1")
    a.label("P1_hc")
    XD = 64
    WD = 128
    a(f"v_mul_u32_u24 v{vT+1}, 896, v{vT+4}")
    a(f"v_lshl_add_u32 v{vT+3}, v{vT+5}, 4, v{vT+1}")
    a(f"s_lshl_b32 s{sTile}, s{sHid}, 3")
    a(f"s_add_u32 s{sTile}, s{sTile}, s{sW}")
    a(f"s_mul_i32 s{sRowX}, s{sTile}, {8*896}")
    for i in range(7):
        a(f"buffer_load_dwordx4 v[{XD+4*i}:{XD+4*i+3}], v{vT+3}, s[{SX}:{SX+3}], s{sRowX} offen offset:{128*i}")
    a.c("unit loads: wave -> 56 rows, lane -> (row lane>>3, chunk lane&7)")
    a(f"s_mov_b32 s{SWA+3}, 0x20000")
    def uload(u):
        a(f"s_add_u32 s{sU}, s{sHid}, {32*u}")
        if u == 0:
            a(f"s_cmp_lt_u32 s{sU}, 21")
            a(f"s_cselect_b32 s{SWA}, s6, s8")
            a(f"s_cselect_b32 s{SWA+1}, s7, s9")
            a(f"s_cselect_b32 s{sT0}, 0, 21")
            a(f"s_movk_i32 s{sT1}, 3584")
            a(f"s_cselect_b32 s{sT1}, 2688, s{sT1}")
        elif u == 1:
            a(f"s_cmp_lt_u32 s{sU}, 49")
            a(f"s_cselect_b32 s{SWA}, s8, s10")
            a(f"s_cselect_b32 s{SWA+1}, s9, s11")
            a(f"s_cselect_b32 s{sT0}, 21, 49")
            a(f"s_movk_i32 s{sT1}, 3584")
        else:
            a(f"s_mov_b64 s[{SWA}:{SWA+1}], s[10:11]")
            a(f"s_movk_i32 s{sT0}, 49")
        a(f"s_and_b32 s{SWA+1}, s{SWA+1}, 0xffff")
        if u < 2:
            a(f"s_mul_i32 s{SWA+2}, s{sT1}, 448")
            a(f"v_mul_u32_u24 v51, s{sT1}, v{vT+4}")
            a(f"v_lshl_add_u32 v51, v{vT+5}, 4, v51")
            if u == 0:
                a(f"s_mul_i32 s{sT3}, s{sW}, 56")
            else:
                a(f"s_sub_u32 s{sT3}, s{sW}, 1")
                a(f"s_lshl_b32 s{sT3}, s{sT3}, 6")
            a(f"s_mul_i32 s{sT3}, s{sT3}, s{sT1}")
            a(f"s_lshl_b32 s{sT2}, s{sT1}, 3")
        else:
            a(f"s_cmp_lt_u32 s{sU}, 77")
            a(f"s_cselect_b32 s{SWA+2}, s{SWA+2}, 0")
        a(f"s_sub_u32 s{sT0}, s{sU}, s{sT0}")
        a(f"s_lshl_b32 s{sT0}, s{sT0}, 7")
        a(f"s_add_u32 s{sOffA}, s{sT3}, s{sT0}")
        n = 7 if u == 0 else 8
        for i in range(n):
            r = WD + 32 * u + 4 * i
            a(f"buffer_load_dwordx4 v[{r}:{r+3}], v51, s[{SWA}:{SWA+3}], s{sOffA} offen")
            if i < n - 1: a(f"s_add_u32 s{sOffA}, s{sOffA}, s{sT2}")
    uload(0)
    HP = OPT.get("hp", "0") != "0"
    if HP:
        a.c("touch a slice of w_gate / w_up early")
        a(f"s_mul_i32 s{sT0}, s{sTile}, 6272")
        a(f"v_lshlrev_b32 v59, 7, v{vLane}")
        a(f"s_mov_b32 s{SWQ+2}, {448*3584}")
        a("s_mov_b32 exec_hi, 0x1ffff")
        for p_ in (8, 10):
            a(f"s_mov_b32 s{SWQ}, s{p_}")
            a(f"s_and_b32 s{SWQ+1}, s{p_+1}, 0xffff")
            a(f"buffer_load_dword v55, v59, s[{SWQ}:{SWQ+3}], s{sT0} offen")
        a("s_mov_b32 exec_hi, -1")
    a(f"v_mov_b32 v{vT+2}, 0x3f803f80")
    a(f"v_mov_b32 v43, 1.0")
    pstamp(a, 1)
    a.c("statistics (two pass)")
    S0, S1, ONE0, ONE1, D0, D1 = 40, 41, 42, 43, 44, 45
    a(f"v_mov_b64 v[{S0}:{S1}], 0")
    a(f"v_mov_b32 v{ONE0}, 0x00003f80")
    a(f"s_waitcnt vmcnt({9 if HP else 7})")
    for i in range(28):
        a(f"v_dot2c_f32_bf16 v{S0+(i&1)}, v{XD+i}, v{vT+2}")
    def red8(r):
        a("s_nop 2")
        a(f"v_add_f32 v{r}, v{S0}, v{S1}")
        a("s_nop 1")
        a(f"v_add_f32_dpp v{r}, v{r}, v{r} quad_perm:[1,0,3,2] row_mask:0xf bank_mask:0xf")
        a("s_nop 1")
        a(f"v_add_f32_dpp v{r}, v{r}, v{r} quad_perm:[2,3,0,1] row_mask:0xf bank_mask:0xf")
        a("s_nop 1")
        a(f"v_add_f32_dpp v{r}, v{r}, v{r} row_half_mirror row_mask:0xf bank_mask:0xf")
    NM = 46
    red8(NM)
    a(f"v_mul_f32 v{NM}, {fhex(-1.0/448)}, v{NM}")
    a(f"v_mov_b64 v[{S0}:{S1}], 0")
    DD = 96
    for i0 in range(0, 28, 4):
        for k in range(4):
            a(f"v_dot2_f32_bf16 v{DD+2*k}, v{XD+i0+k}, v{ONE0}, v{NM}")
            a(f"v_dot2_f32_bf16 v{DD+2*k+1}, v{XD+i0+k}, v{ONE1}, v{NM}")
        a("s_nop 1")
        for k in range(8):
            a(f"v_fmac_f32 v{S0+(k&1)}, v{DD+k}, v{DD+k}")
    RS = 47
    red8(RS)
    a(f"v_mov_b32 v{D0}, {fhex(1e-5)}")
    a(f"v_fmac_f32 v{D0}, {fhex(1.0/448)}, v{RS}")
    a(f"v_rsq_f32 v{RS}, v{D0}")
    m1, m2, m3, O = 48, 49, 50, 56
    split3(a, NM, D0, m1, m2, m3)
    a(f"v_lshrrev_b32 v{D0}, 16, v{m1}")
    a(f"v_lshrrev_b32 v{D1}, 16, v{m2}")
    a(f"v_or_b32 v{O}, v{D0}, v{m1}")
    a(f"v_or_b32 v{O+1}, v{D1}, v{m1}")
    a(f"v_or_b32 v{O+2}, v{D1}, v{m3}")
    a(f"v_or_b32 v{O+3}, v{D1}, v{m3}")
    a(f"v_lshlrev_b32 v{D0}, 4, v{vT+4}")
    a(f"v_lshlrev_b32 v{D1}, 2, v{vT+4}")
    a(f"s_lshl_b32 s{sRowX}, s{sTile}, 7")
    a(f"s_add_u32 s{sRowX}, s{sRowX}, {WS_AX}")
    a(f"s_lshl_b32 s{sColQ}, s{sTile}, 5")
    a(f"s_add_u32 s{sColQ}, s{sColQ}, {WS_AR}")
    a("s_barrier")
    a("s_mov_b32 exec_lo, 0x01010101")
    a("s_mov_b32 exec_hi, 0x01010101")
    a(f"buffer_store_dwordx4 v[{O}:{O+3}], v{D0}, s[{SWS}:{SWS+3}], s{sRowX} offen sc1")
    a(f"buffer_store_dword v{RS}, v{D1}, s[{SWS}:{SWS+3}], s{sColQ} offen sc1")
    a("s_mov_b64 exec, -1")
    pstamp(a, 2)
    a.c("column sums: per wave partials [unit][wave*8 + row lane][64] in LDS (row pitch 272B)")
    C = 64
    a(f"s_mul_i32 s{sT0}, s{sW}, {8*272}")
    a(f"v_mul_u32_u24 v{vT+6}, 272, v{vT+4}")
    a(f"v_lshl_add_u32 v{vT+6}, v{vT+5}, 5, v{vT+6}")
    a(f"v_add_u32 v{vT+6}, s{sT0}, v{vT+6}")
    a(f"v_lshl_add_u32 v{vT+7}, v{vLane}, 2, s{sT0}")
    def usum(u, wait):
        for k in range(0, 8, 2): a(f"v_mov_b64 v[{C+k}:{C+k+1}], 0")
        a(f"s_waitcnt vmcnt({wait})")
        for i in range(7 if u == 0 else 8):
            for k in range(4):
                a(f"v_dot2c_f32_bf16 v{C+2*k}, v{WD+32*u+4*i+k}, v{ONE0}")
                a(f"v_dot2c_f32_bf16 v{C+2*k+1}, v{WD+32*u+4*i+k}, v{ONE1}")
        a("s_nop 2")
        a(f"ds_write_b128 v{vT+6}, v[{C}:{C+3}]")
        a(f"ds_write_b128 v{vT+6}, v[{C+4}:{C+7}] offset:16")
        a("s_waitcnt lgkmcnt(0)")
        for k in range(4):
            a(f"ds_read2_b32 v[{C+8+2*k}:{C+9+2*k}], v{vT+7} offset0:{136*(k&1)} offset1:{136*(k&1)+68}" if k < 2 else
              f"ds_read2_b32 v[{C+8+2*k}:{C+9+2*k}], v{vT+1} offset0:{136*(k&1)} offset1:{136*(k&1)+68}")
        a("s_waitcnt lgkmcnt(0)")
        for k in range(4): a(f"v_add_f32 v{C+8+k}, v{C+8+k}, v{C+12+k}")
        a(f"v_add_f32 v{C+8}, v{C+8}, v{C+10}")
        a(f"v_add_f32 v{C+9}, v{C+9}, v{C+11}")
        a(f"v_add_f32 v{C+8}, v{C+8}, v{C+9}")
        a(f"ds_write_b32 v{vT+3}, v{C+8} offset:{32768 + 2048*u}")
    a(f"v_add_u32 v{vT+1}, {4*272}, v{vT+7}")
    a(f"v_lshlrev_b32 v{vT+3}, 2, v0")
    def final(name, lo, hi, ubase):
        a("s_waitcnt lgkmcnt(0)")
        a("s_barrier")
        a(f"s_sub_u32 s{sT0}, s{sW}, {lo}")
        a(f"s_cmp_ge_u32 s{sT0}, {hi-lo}")
        a(f"s_cbranch_scc1 {name}_s")
        a(f"s_lshl_b32 s{sT0}, s{sW}, 11")
        a(f"v_lshl_add_u32 v{D1}, v{vLane}, 2, s{sT0}")
        for k in range(4):
            a(f"ds_read2st64_b32 v[{C+8+2*k}:{C+9+2*k}], v{D1} offset0:{128+8*ubase+2*k} offset1:{128+8*ubase+2*k+1}")
        a("s_waitcnt lgkmcnt(0)")
        for k in range(4): a(f"v_add_f32 v{C+8+k}, v{C+8+k}, v{C+12+k}")
        a(f"v_add_f32 v{C+8}, v{C+8}, v{C+10}")
        a(f"v_add_f32 v{C+9}, v{C+9}, v{C+11}")
        a(f"v_add_f32 v{C+8}, v{C+8}, v{C+9}")
        split3(a, C + 8, D0, 84, 85, 86)
        for k in range(3):
            a(f"v_lshrrev_b32 v{87+k}, 16, v{84+k}")
        a(f"v_or_b32 v92, v87, v85")
        a(f"v_or_b32 v93, v87, v86")
        a(f"v_or_b32 v94, v88, v84")
        a(f"v_or_b32 v95, v89, v85")
        a(f"buffer_store_dwordx4 v[92:95], v{vL16}, s[{SWS}:{SWS+3}], s{sOffQ} offen sc1")
        a.label(f"{name}_s")
    def sig(name, cnt_off, go_off, bar=True):
        if bar:
            a("s_barrier")
            a(f"s_cmp_lg_u32 s{sW}, 7")
            a(f"s_cbranch_scc1 {name}_e")
        a(f"v_mov_b32 v{D0}, 1")
        a("s_mov_b64 exec, 1")
        a(f"buffer_atomic_add v{D0}, v{vZero}, s[{SDBG}:{SDBG+3}], 0 offen offset:{cnt_off} sc0 sc1")
        a("s_waitcnt vmcnt(0)")
        a(f"v_readfirstlane_b32 s{sT0}, v{D0}")
        a(f"v_mov_b32 v{D0}, 1")
        a(f"s_cmp_lg_u32 s{sT0}, 31")
        a(f"s_cbranch_scc1 {name}_n")
        a(f"buffer_store_dword v{D0}, v{vZero}, s[{SDBG}:{SDBG+3}], 0 offen offset:{go_off} sc1")
        a.label(f"{name}_n")
        a("s_mov_b64 exec, -1")
        a.label(f"{name}_e")
    usum(0, 4 if HP else 2)
    pstamp(a, 3)
    final("P1_h1", 0, 1, 0)
    a(f"s_cmp_lg_u32 s{sW}, 0")
    a("s_cbranch_scc1 P1_h1x")
    a(f"ds_write_b32 v{vT+3}, v{vZero} offset:{32768 + 2048}")
    a(f"ds_write_b32 v{vT+3}, v{vZero} offset:{32768 + 4096}")
    a("s_branch P1_h1y")
    a.label("P1_h1x")
    pstamp(a, 5)
    uload(1)
    uload(2)
    usum(1, 8)
    usum(2, 0)
    a.label("P1_h1y")
    pstamp(a, 4)
    final("P1_h2", 1, 3, 0)
    a(f"v_mov_b32 v{D0}, {LDS_P1+4}")
    a(f"v_mov_b32 v{D1}, 4")
    a(f"ds_write_b32 v{D0}, v{D1}")
    pstamp(a, 6)

def gen_p1(a, endA, endB, endH):
    pstamp(a, 0)
    a("s_load_dwordx4 s[4:7], s[0:1], 0")
    a("s_load_dwordx4 s[8:11], s[0:1], 32")
    a("s_load_dwordx4 s[12:15], s[0:1], 64")
    a(f"v_lshrrev_b32 v{vT}, 6, v0")
    a(f"v_and_b32 v{vLane}, 63, v0")
    a(f"v_readfirstlane_b32 s{sW}, v{vT}")
    a(f"v_lshlrev_b32 v{vL16}, 4, v{vLane}")
    a(f"v_lshrrev_b32 v{vH}, 5, v{vLane}")
    a(f"v_mov_b32 v{vZero}, 0")
    a(f"v_mov_b64 v[{vFlag}:{vFlag+1}], 0")
    a.c("pull the code of all phases into L2: waves 5..7 touch 8KB each")
    a(f"s_getpc_b64 s[{SWQ}:{SWQ+1}]")
    a(f"s_and_b32 s{SWQ}, s{SWQ}, 0xffffff00")
    a(f"s_and_b32 s{SWQ+1}, s{SWQ+1}, 0xffff")
    a(f"s_cmp_lt_u32 s2, {OPT.get('ct', '32')}")
    a(f"s_cselect_b32 s{SWQ+2}, CODE_END - {KNAME}, 0")
    a(f"s_mov_b32 s{SWQ+3}, 0x20000")
    a(f"v_lshlrev_b32 v{vT+1}, 7, v0")
    a(f"v_subrev_u32 v{vT+1}, {5*8192}, v{vT+1}")
    a(f"buffer_load_dword v55, v{vT+1}, s[{SWQ}:{SWQ+3}], 0 offen")
    a(f"s_and_b32 s{sT0}, s2, 7")
    a(f"s_lshr_b32 s{sT1}, s2, 3")
    a(f"s_add_u32 s{sT1}, s{sT1}, 28")
    a(f"s_and_b32 s{sT1}, s{sT1}, 31")
    a(f"s_lshr_b32 s{sRB}, s{sT0}, 1")
    a(f"s_lshl_b32 s{sRB}, s{sRB}, 2")
    a(f"s_and_b32 s{sT2}, s{sT1}, 3")
    a(f"s_add_u32 s{sRB}, s{sRB}, s{sT2}")
    a(f"s_and_b32 s{sCG}, s{sT0}, 1")
    a(f"s_lshr_b32 s{sT2}, s{sT1}, 2")
    a(f"s_lshl_b32 s{sT2}, s{sT2}, 1")
    a(f"s_add_u32 s{sCG}, s{sCG}, s{sT2}")
    a(f"s_and_b32 s{sTT}, s{sW}, 3")
    a(f"s_lshl_b32 s{sTile}, s{sRB}, 2")
    a(f"s_add_u32 s{sTile}, s{sTile}, s{sTT}")
    a(f"s_mov_b32 s{sMask}, 0xffff0000")
    a(f"s_mov_b32 s{sCnt}, 7")
    a.c("x dma pattern")
    t1, i_ = vT + 1, vT
    a(f"v_lshrrev_b32 v{vT+4}, 3, v{vLane}")
    a(f"v_mul_u32_u24 v{vOffX}, 896, v{vT+4}")
    a(f"v_lshrrev_b32 v{t1}, 4, v{vLane}")
    a(f"v_and_b32 v{vT+5}, 7, v{vLane}")
    a(f"v_xor_b32 v{t1}, v{t1}, v{vT+5}")
    a(f"v_lshl_add_u32 v{vOffX}, v{t1}, 4, v{vOffX}")
    a(f"v_xor_b32 v{vOffX+1}, 64, v{vOffX}")
    a(f"v_add_u32 v{vOffX+1}, {7168-1024}, v{vOffX+1}")
    a(f"s_movk_i32 s{sSM}, 2048")
    a(f"s_movk_i32 s{sSM+1}, 14336")
    a(f"s_movk_i32 s{sSG}, 14336")
    a(f"s_movk_i32 s{sSG+1}, {128-14336}")
    a(f"s_mul_i32 s{sOffX}, s{sTile}, {32*896}")
    a(f"s_lshl_b32 s{sRingX}, s{sTT}, 12")
    a.c("everything that needs no pointer, while the kernel arguments arrive")
    a(f"v_bfe_u32 v{t1}, v{vLane}, 4, 1")
    a(f"v_lshlrev_b32 v{t1}, 2, v{t1}")
    a(f"v_xor_b32 v{t1}, v{t1}, v{vT+5}")
    a(f"v_mul_u32_u24 v{vOffA}, 3584, v{vT+4}")
    a(f"v_lshl_add_u32 v{vOffA}, v{t1}, 4, v{vOffA}")
    a(f"v_add_u32 v{vOffA2}, {8*3584-1024}, v{vOffA}")
    a(f"s_lshl_b32 s{sOffA}, s{sCG}, 1")
    a(f"s_lshr_b32 s{sT0}, s{sTT}, 1")
    a(f"s_add_u32 s{sOffA}, s{sOffA}, s{sT0}")
    a(f"s_lshl_b32 s{sOffA}, s{sOffA}, 7")
    a(f"s_lshl_b32 s{sColQ}, s{sTT}, 11")
    a(f"s_add_u32 s{sRingA}, s{sColQ}, {FR}")
    if ROT:
        a.c("k order starts at chunk (rb+cg) mod 7: the chip asks for all of x and the weights at once")
        rm = OPT.get("rot", "5")
        if rm == "1":
            a(f"s_add_u32 s{sT2}, s{sRB}, s{sCG}")
        elif rm == "2":
            a(f"s_lshr_b32 s{sT2}, s{sRB}, 2")
            a(f"s_lshl_b32 s{sT2}, s{sT2}, 1")
            a(f"s_and_b32 s{sT3}, s{sCG}, 1")
            a(f"s_mul_i32 s{sT3}, s{sT3}, 3")
            a(f"s_add_u32 s{sT2}, s{sT2}, s{sT3}")
        elif rm == "3":
            a(f"s_lshr_b32 s{sT2}, s{sRB}, 1")
            a(f"s_and_b32 s{sT3}, s{sCG}, 1")
            a(f"s_mul_i32 s{sT3}, s{sT3}, 3")
            a(f"s_add_u32 s{sT2}, s{sT2}, s{sT3}")
        elif rm == "4":
            a(f"s_mov_b32 s{sT2}, s{sRB}")
        elif rm == "5":
            a(f"s_lshr_b32 s{sT2}, s{sRB}, 2")
            a(f"s_lshl_b32 s{sT2}, s{sT2}, 1")
            a(f"s_add_u32 s{sT2}, s{sT2}, s{sCG}")
        a(f"s_mul_i32 s{sT3}, s{sT2}, 37")
        a(f"s_lshr_b32 s{sT3}, s{sT3}, 8")
        a(f"s_mul_i32 s{sT3}, s{sT3}, 7")
        a(f"s_sub_u32 s{sT2}, s{sT2}, s{sT3}")
        a(f"s_mul_i32 s{sT3}, s{sT2}, {64*3584}")
        a(f"s_add_u32 s{sOffA}, s{sOffA}, s{sT3}")
    a(f"s_mov_b32 s{sColA}, s{sOffA}")
    a(f"v_mul_u32_u24 v{t1}, 43, v{vLane}")
    a(f"v_lshrrev_b32 v{t1}, 9, v{t1}")
    a(f"v_mul_u32_u24 v{vOffQ}, {2688-192}, v{t1}")
    a(f"v_add_u32 v{vOffQ}, v{vOffQ}, v{vL16}")
    a(f"v_add_u32 v{vOffQ2}, {4*2688-768}, v{vOffQ}")
    a(f"s_mul_i32 s{sOffQ}, s{sCG}, 192")
    a(f"s_mul_i32 s{sT0}, s{sTT}, {8*2688}")
    a(f"s_add_u32 s{sOffQ}, s{sOffQ}, s{sT0}")
    if ROT:
        a(f"s_mul_i32 s{sT0}, s{sT2}, {64*2688}")
        a(f"s_add_u32 s{sOffQ}, s{sOffQ}, s{sT0}")
        a(f"s_lshl_b32 s{sT2}, s{sT2}, 7")
    a(f"s_mul_i32 s{sRingQ}, s{sTT}, 1536")
    a(f"s_add_u32 s{sRingQ}, s{sRingQ}, {QR}")
    a(f"s_mov_b32 s{sE48}, -1")
    a(f"s_mov_b32 s{sE48+1}, 0xffff")
    a(f"v_mov_b32 v{vT+6}, {LDS_P1}")
    a(f"v_mov_b64 v[{vT+8}:{vT+9}], 0")
    a(f"v_mov_b64 v[{vT+10}:{vT+11}], 0")
    a(f"ds_write_b128 v{vT+6}, v[{vT+8}:{vT+11}]")
    a(f"ds_write_b128 v{vT+6}, v[{vT+8}:{vT+11}] offset:16")
    a(f"ds_write_b128 v{vT+6}, v[{vT+8}:{vT+11}] offset:32")
    a(f"s_lshr_b32 s{sT0}, s{sW}, 2")
    a(f"s_lshl_b32 s{sT1}, s{sT0}, 11")
    a(f"s_add_u32 m0, s{sRingX}, s{sT1}")
    a(f"s_mul_i32 s{sT1}, s{sT0}, 14336")
    a(f"s_add_u32 s{sT1}, s{sT1}, s{sOffX}")
    if ROT:
        a(f"s_add_u32 s{sT1}, s{sT1}, s{sT2}")
        a.c("column of the next chunk this wave loads: B chunk 1, A chunk 2")
        a(f"s_lshl_b32 s{sT0}, s{sT0}, 7")
        a(f"s_sub_u32 s{sT2}, s{sT2}, s{sT0}")
        a(f"s_add_u32 s{sT2}, s{sT2}, 256")
        a(f"s_cmp_ge_u32 s{sT2}, 896")
        a(f"s_cselect_b32 s{sT0}, 896, 0")
        a(f"s_sub_u32 s{sT2}, s{sT2}, s{sT0}")
        a(f"s_add_u32 s{sOffX}, s{sOffX}, s{sT2}")
    for d in (SX, SWQ, SWA, SWS, SDBG):
        a(f"s_mov_b32 s{d+3}, 0x20000")
    a(f"s_mov_b32 s{SX+2}, {2048*896}")
    a(f"s_mov_b32 s{SWQ+2}, {448*2688}")
    a(f"s_mov_b32 s{SWA+2}, {448*3584}")
    a(f"s_mov_b32 s{SWS+2}, {WS_END}")
    a(f"s_movk_i32 s{SDBG+2}, 256")
    a("s_waitcnt lgkmcnt(0)")
    a(f"s_mov_b32 s{SX}, s4")
    a(f"s_and_b32 s{SX+1}, s5, 0xffff")
    a(f"s_cmp_ge_u32 s{sCG}, 14")
    a("s_cbranch_scc1 P1_c2")
    a(f"buffer_load_dwordx4 v{vOffX}, s[{SX}:{SX+3}], s{sT1} offen lds")
    a(f"buffer_load_dwordx4 v{vOffX+1}, s[{SX}:{SX+3}], s{sT1} offen offset:1024 lds")
    a.label("P1_c2")
    a(f"s_mov_b32 s{SWQ}, s6")
    a(f"s_and_b32 s{SWQ+1}, s7, 0xffff")
    a(f"s_bitcmp1_b32 s{sW}, 0")
    a(f"s_cselect_b32 s{SWA}, s10, s8")
    a(f"s_cselect_b32 s{SWA+1}, s11, s9")
    a(f"s_and_b32 s{SWA+1}, s{SWA+1}, 0xffff")
    a(f"s_mov_b32 s{SDBG}, s12")
    a(f"s_and_b32 s{SDBG+1}, s13, 0xffff")
    a(f"s_mov_b32 s{SWS}, s14")
    a(f"s_and_b32 s{SWS+1}, s15, 0xffff")
    a(f"s_cmp_ge_u32 s{sCG}, 14")
    a("s_cbranch_scc1 P1_help")
    a(f"s_cmp_lt_u32 s{sW}, 4")
    a("s_cbranch_scc1 P1_A")
    for g in dmaF(0):
        for l in g: a(l)
    a("s_branch P1_B")
    a.label("P1_A")
    if OPT.get("ap"): a(f"s_setprio {OPT.get('ap')}")
    a(f"s_add_u32 s{sOffA}, s{sOffA}, {16*3584}")
    if ROT:
        a(f"s_mov_b32 s{sXc}, s{sT2}")
        for l in xwrap(): a(l)
    else:
        a(f"s_add_u32 s{sOffX}, s{sOffX}, 256")
    a(f"s_add_u32 s{sRingX}, s{sRingX}, 32768")
    def pgroup(sl):
        for g in dmaQ(sl) + (dmaF(sl) if sl else ()):
            for l in g: a(l)
        if sl >= 2:
            for g in dmaX(sl - 2):
                for l in g: a(l)
    PO = OPT.get("po", "1")
    pgroup(0)
    if PO == "0":
        for sl in range(1, 4): pgroup(sl)
    a(f"s_mov_b32 s{sRowX}, 16384")
    a(f"s_mov_b32 s{sDq}, {2*6144}")
    pstamp(a, 1)
    common_addr(a, "A")
    a(f"v_mul_u32_u24 v{vTr0}, 192, v{vT+2}")
    a(f"v_add_u32 v{vTr0}, v{vTr0}, v{vT+3}")
    a(f"v_add_u32 v{vTr0}, {QR}, v{vTr0}")
    for j in range(3):
        a(f"v_mfma_f32_32x32x16_bf16 v[{ACC+16*j}:{ACC+16*j+15}], v[{vT+8}:{vT+11}], v[{vT+8}:{vT+11}], 0")
    a(f"s_lshl_b32 s{sT3}, s{sTile}, 12")
    a.c("Q/K store address table: lane l -> 8-column chunk 12*cg + l")
    g8, m, e, x, tab, tab2 = vT + 4, vT + 5, vT + 6, vT + 7, vT + 8, vT + 9
    a(f"s_mul_i32 s{sT0}, s{sCG}, 12")
    a(f"v_add_u32 v{g8}, s{sT0}, v{vLane}")
    a(f"v_mul_u32_u24 v{m}, 9363, v{g8}")
    a(f"v_lshrrev_b32 v{m}, 16, v{m}")
    a(f"v_mul_u32_u24 v{e}, 7, v{m}")
    a(f"v_sub_u32 v{e}, v{g8}, v{e}")
    a(f"v_and_b32 v{x}, 7, v{m}")
    a(f"v_lshl_add_u32 v{tab}, v{x}, 19, s{sT3}")
    a(f"v_bfe_u32 v{x}, v{m}, 3, 1")
    a(f"v_xor_b32 v{x}, 1, v{x}")
    a(f"v_lshl_add_u32 v{tab}, v{x}, 11, v{tab}")
    a(f"v_add_u32 v{tab2}, {HS + 3*512}, v{tab}")
    a(f"v_lshrrev_b32 v{x}, 2, v{e}")
    a(f"v_lshl_add_u32 v{tab}, v{x}, 18, v{tab}")
    a(f"v_and_b32 v{x}, 3, v{e}")
    a(f"v_lshl_add_u32 v{tab}, v{x}, 9, v{tab}")
    a(f"v_cmp_eq_u32 vcc, 3, v{e}")
    a(f"v_lshlrev_b32 v{x}, 2, v{vH}")
    a(f"v_bfrev_b32 v{m}, 1")
    a(f"v_cndmask_b32 v{tab2}, v{m}, v{tab2}, vcc")
    for k in range(6):
        a(f"ds_bpermute_b32 v{vSt+k}, v{x}, v{tab} offset:{8*k}")
        a(f"ds_bpermute_b32 v{vSt+6+k}, v{x}, v{tab2} offset:{8*k}")
    a(f"v_and_b32 v{x}, 0x1f0, v{vL16}")
    a(f"v_mul_u32_u24 v{vT+12}, {VT//4}, v{vH}")
    a(f"v_add_u32 v{vT+12}, v{vT+12}, v{x}")
    a("s_waitcnt lgkmcnt(0)")
    for k in range(12):
        a(f"v_add_u32 v{vSt+k}, v{vSt+k}, v{x}")
    pstamp(a, 2)
    for k in OPT.get("zz", "").split("+"):
        if k: a(f"s_sleep {k}")
    if PO == "1":
        pgroup(1)
        a("s_waitcnt vmcnt(4)")
    elif PO == "2":
        for sl in range(1, 4): pgroup(sl)
        a("s_waitcnt vmcnt(16)")
    else:
        a("s_waitcnt vmcnt(16)")
    pstamp(a, 3)
    a("s_barrier")
    pstamp(a, 4)
    a(f"ds_read_b128 v[{XC}:{XC+3}], v{vXk}")
    a(f"ds_read_b128 v[{XC+4}:{XC+7}], v{vXk+1}")
    for l in wreadsA(0, 0): a(l)
    if PO == "1":
        pgroup(2)
        pgroup(3)
    pstamp(a, 5)
    a(f"s_cmp_gt_u32 s{sCG}, 9")
    a("s_cbranch_scc1 P1_loopA_VVV")
    a(f"s_cmp_eq_u32 s{sCG}, 9")
    a("s_cbranch_scc1 P1_loopA_QVV")
    loopA(a, "QQQ")
    a("s_branch P1_Aepi")
    loopA(a, "QVV")
    a("s_branch P1_Aepi")
    loopA(a, "VVV")
    a.label("P1_Aepi")
    pstamp(a, 6)
    epi_A(a)
    endA(a)
    aux_blocks(a)
    a.label("P1_B")
    if OPT.get("bp1"): a(f"s_setprio {OPT.get('bp1')}")
    tab = sum(v << (4 * i) for i, v in enumerate(BTAB))
    a(f"s_mov_b32 s{sTab}, {tab & 0xffffffff}")
    a(f"s_mov_b32 s{sTab+1}, {tab >> 32}")
    a(f"s_mov_b32 s{sDq}, {((1 << 16) - 1) | (1 << NBAR)}")
    a(f"s_mov_b32 s{sCnt}, 14")
    a(f"v_mov_b32 v28, -1")
    a(f"s_cmp_eq_u32 s{sW}, 4")
    a(f"s_cselect_b32 s{sColQ}, {int(OPT.get('sg', '12'))}, {int(OPT.get('sb', '4'))}")
    pstamp(a, 1)
    common_addr(a, "B")
    a(f"v_lshlrev_b32 v{vTr0}, 7, v{vT+2}")
    a(f"v_add_u32 v{vTr0}, v{vTr0}, v{vT+3}")
    a(f"v_bfe_u32 v{t1}, v{i_}, 3, 1")
    a(f"v_lshl_add_u32 v{vTr0}, v{t1}, 6, v{vTr0}")
    a(f"v_xor_b32 v{vTr1}, 64, v{vTr0}")
    a(f"s_lshr_b32 s{sT0}, s{sTT}, 1")
    a(f"s_lshl_b32 s{sT0}, s{sT0}, 12")
    a(f"v_add_u32 v{vOffA}, s{sT0}, v{vTr0}")
    a(f"v_add_u32 v{vOffA2}, s{sT0}, v{vTr1}")
    a(f"v_add_u32 v{vTr0}, {FR}, v{vOffA}")
    a(f"v_add_u32 v{vTr1}, {FR}, v{vOffA2}")
    for j in range(8):
        a(f"v_mfma_f32_32x32x16_bf16 v[{ACC+16*j}:{ACC+16*j+15}], v[{vT+8}:{vT+11}], v[{vT+8}:{vT+11}], 0")
    if not ROT: a(f"s_add_u32 s{sOffX}, s{sOffX}, 128")
    a(f"s_add_u32 s{sRingX}, s{sRingX}, 16384")
    for q in range(2):
        for g in dmaX(q):
            for l in g: a(l)
    pstamp(a, 2)
    a("s_waitcnt vmcnt(4)")
    pstamp(a, 3)
    a("s_barrier")
    pstamp(a, 4)
    a(f"ds_read_b128 v[{XB}:{XB+3}], v{vXk}")
    a(f"ds_read_b128 v[{XB+4}:{XB+7}], v{vXk} offset:4096")
    for l in wreadsB(0, 0): a(l)
    a("s_waitcnt vmcnt(0) lgkmcnt(0)")
    if OPT.get("pf", "0") != "0":
        a.c("touch one slice of x / wqkv / w_gate / w_up so that the whole chip asks memory for them at once")
        a(f"s_cmp_lt_u32 s{sTT}, 2")
        a(f"s_cselect_b32 s{SWA}, s4, s8")
        a(f"s_cselect_b32 s{SWA+1}, s5, s9")
        a(f"s_cselect_b32 s{sT0}, s6, s10")
        a(f"s_cselect_b32 s{sT1}, s7, s11")
        a(f"s_mov_b32 s{SWA+2}, {448*3584}")
        a(f"s_cselect_b32 s{sT2}, {448*2688}, s{SWA+2}")
        a(f"s_cselect_b32 s{SWA+2}, {2048*896}, s{SWA+2}")
        a(f"s_bitcmp1_b32 s{sTT}, 0")
        a(f"s_cselect_b32 s{SWA}, s{sT0}, s{SWA}")
        a(f"s_cselect_b32 s{SWA+1}, s{sT1}, s{SWA+1}")
        a(f"s_cselect_b32 s{SWA+2}, s{sT2}, s{SWA+2}")
        a(f"s_and_b32 s{SWA+1}, s{SWA+1}, 0xffff")
        a(f"s_mov_b32 s{SWA+3}, 0x20000")
        if OPT.get("pf") == "3":
            a(f"s_cmp_lt_u32 s{sTT}, 2")
            a(f"s_cselect_b32 s{SWA+2}, s{SWA+2}, 0")
        a(f"s_sub_u32 s{sT0}, s2, 32")
        a(f"s_lshl_b32 s{sT0}, s{sT0}, 13")
        a(f"v_lshlrev_b32 v{vT+6}, 7, v{vLane}")
        a(f"buffer_load_dword v55, v{vT+6}, s[{SWA}:{SWA+3}], s{sT0} offen")
    pstamp(a, 5)
    loopB(a)
    pstamp(a, 6)
    epi_B(a)
    endB(a)
    helper(a)
    endH(a)

def ffn_setup(a):
    t1 = vT + 1
    a.c("gate/up dma setup: wave tt loads block tt (G0,U0,G1,U1)")
    a(f"s_bitcmp1_b32 s{sW}, 0")
    a(f"s_cselect_b32 s{SWA}, s10, s8")
    a(f"s_cselect_b32 s{SWA+1}, s11, s9")
    a(f"s_and_b32 s{SWA+1}, s{SWA+1}, 0xffff")
    a(f"s_mov_b32 s{SWA+2}, {448*3584}")
    a(f"s_mov_b32 s{SWA+3}, 0x20000")
    a(f"v_bfe_u32 v{t1}, v{vLane}, 4, 1")
    a(f"v_lshlrev_b32 v{t1}, 2, v{t1}")
    a(f"v_xor_b32 v{t1}, v{t1}, v{vT+5}")
    a(f"v_mul_u32_u24 v{vOffA}, 3584, v{vT+4}")
    a(f"v_lshl_add_u32 v{vOffA}, v{t1}, 4, v{vOffA}")
    a(f"v_add_u32 v{vOffA2}, {8*3584-1024}, v{vOffA}")
    a(f"s_lshl_b32 s{sOffA}, s{sCG}, 1")
    a(f"s_lshr_b32 s{sT0}, s{sTT}, 1")
    a(f"s_add_u32 s{sOffA}, s{sOffA}, s{sT0}")
    a(f"s_lshl_b32 s{sOffA}, s{sOffA}, 7")
    a(f"s_lshl_b32 s{sRingA}, s{sTT}, 11")
    a(f"s_add_u32 s{sRingA}, s{sRingA}, {FR}")

def common_addr(a, role):
    t1, i_ = vT + 1, vT
    a.c("x fragment addresses")
    a(f"v_and_b32 v{t1}, 31, v{vLane}")
    a(f"v_bfe_u32 v{vT+2}, v{vLane}, 1, 3")
    a(f"v_xor_b32 v{vT+2}, v{vT+2}, v{vH}")
    a(f"v_lshlrev_b32 v{vT+2}, 4, v{vT+2}")
    a(f"v_lshl_add_u32 v{vXk}, v{t1}, 7, v{vT+2}")
    if role == "A":
        a(f"s_lshl_b32 s{sT0}, s{sTT}, 12")
    else:
        a(f"s_and_b32 s{sT0}, s{sTT}, 1")
        a(f"s_lshl_b32 s{sT0}, s{sT0}, 13")
    a(f"v_add_u32 v{vXk}, s{sT0}, v{vXk}")
    for k in range(1, 4):
        a(f"v_xor_b32 v{vXk+k}, {32*k}, v{vXk}")
    a(f"v_and_b32 v{i_}, 15, v{vLane}")
    a(f"v_lshrrev_b32 v{t1}, 2, v{i_}")
    a(f"v_lshl_add_u32 v{vT+2}, v{vH}, 3, v{t1}")
    a(f"v_bfe_u32 v{t1}, v{vLane}, 4, 1")
    a(f"v_lshlrev_b32 v{vT+3}, 5, v{t1}")
    a(f"v_and_b32 v{t1}, 3, v{i_}")
    a(f"v_lshl_add_u32 v{vT+3}, v{t1}, 3, v{vT+3}")
    a(f"s_mov_b32 s{sDelta}, {2*8192}")

def gen_k1(name):
    a = Asm()
    a(f"s_cmp_ge_u32 s2, 256")
    a(f"s_cbranch_scc1 K1_exit")
    def end(a):
        pstamp(a, 7)
        a.stamp_flush(8, 0, sW, 8)
        a("s_endpgm")
    def endH(a):
        pstamp(a, 8)
        a.stamp_flush(9, 0, sW, 8)
        a("s_endpgm")
    gen_p1(a, end, end, endH)
    a.label("K1_exit")
    a("s_endpgm")
    return kernel_header(name) + a.text(), kernel_desc(name, 256, 64), LDS_P1
```

```python
import sys
sys.path.insert(0, "gen")
from p1 import gen_k1
from k2 import gen_k2
from k3 import gen_k3

HDR = """; out = x + MHA(LN(x)) + GEGLU-FFN(LN(x)) on gfx950, one persistent launch (generated by gen/gen.py)
; Hand-offs between workgroups: write-through (sc1) stores, drained, then a flag; flags are cleared by the helpers first.
"""
def build(path):
    import os
    if os.environ.get("MODE", "fused") == "fused":
        from fused import gen_fused
        name = "parallel_sum__mha_block__glu_gated_geglu__prompt_kernel"
        c, d, lds = gen_fused(name)
        s = HDR + f"; @launch grid=(256,1,1) block=(512,1,1) lds={lds}\n" + '.amdgcn_target "amdgcn-amd-amdhsa--gfx950"\n.text\n' + c + 'CODE_END:\n.section .rodata,"a"\n' + d
        from p1 import OPT
        nt = OPT.get("nt", "")
        out = []
        for l in s.split("\n"):
            if l.endswith(" lds") and " sc1" not in l:
                if ("x" in nt and "s[16:19]" in l) or ("q" in nt and "s[20:23]" in l) or ("f" in nt and "s[24:27]" in l and ("v9," in l or "v10," in l)):
                    l = l[:-4] + " nt lds"
            if "h" in nt and l.startswith("    buffer_load_dwordx4 v[") and ("v51, s[24:27]" in l or "v15, s[16:19]" in l):
                l += " nt"
            if OPT.get("ld") == "1" and l.startswith("    buffer_load_dwordx4 v[") and l.endswith(" sc1") and ("s[8:11]" in l or "s[20:23]" in l):
                l = l[:-4]
            if OPT.get("ld") == "2" and l.startswith("    buffer_load_dwordx4 v[") and l.endswith(" sc1") and ("s[8:11]" in l or "s[20:23]" in l or "s54" in l or "s55" in l):
                l = l[:-4]
            out.append(l)
        s = "\n".join(out)
        open(path, "w").write(s)
        return
    ks = [("k1_kernel", gen_k1, 256, 512), ("k2_kernel", gen_k2, 256, 256), ("k3_kernel", gen_k3, 224, 512)]
    code, desc, launch = "", "", ""
    for name, g, grid, blk in ks:
        c, d, lds = g(name)
        code += c
        desc += d
        launch += f"; @launch kernel={name} grid=({grid},1,1) block=({blk},1,1) lds={lds}\n"
    s = HDR + launch + '.amdgcn_target "amdgcn-amd-amdhsa--gfx950"\n.text\n' + code + 'CODE_END:\n.section .rodata,"a"\n' + desc
    open(path, "w").write(s)
if __name__ == "__main__":
    import asmlib
    if "--diag" in sys.argv:
        asmlib.DIAG["on"] = True
        sys.argv.remove("--diag")
    build(sys.argv[1] if len(sys.argv) > 1 else "parallel_sum__mha_block__glu_gated_geglu__prompt.s")
```
